```python
import torch

def _softmax(x, axis=-1):
    return torch.softmax(x, dim=axis)
def _gelu(x):
    return torch.nn.functional.gelu(x, approximate="tanh")
def _silu(x):
    return torch.nn.functional.silu(x)
def _sigmoid(x):
    return torch.sigmoid(x)
def _layernorm(x, axis=-1, eps=1e-5):
    m = x.mean(dim=axis, keepdim=True)
    v = x.var(dim=axis, keepdim=True, unbiased=False)
    return (x - m) / torch.sqrt(v + eps)
def _scatter_add(tgt, idx, src, axis=0):
    return tgt.clone().index_add_(axis, idx, src)
def _segment_sum(src, seg, n):
    out = torch.zeros((n,) + src.shape[1:], dtype=src.dtype)
    return out.index_add_(0, seg, src)
def _pad(x, pw):
    flat = tuple(v for pair in reversed(pw) for v in pair)
    return torch.nn.functional.pad(x, flat)

kernel_name = 'standalone__gqa_block_cached__near_ridge'

def setup_inputs():

    _w = (lambda a: (lambda t: t.to(torch.bfloat16) if t.is_floating_point() else t)(torch.as_tensor(a)))
    B, Sq, D = 8, 96, 640
    Hq, Hkv, Sk, Dh = 32, 32, 96, 192
    assert Hq % Hkv == 0, (Hq, Hkv)
    return {
        "x": _w((lambda *s: torch.randn(*s, dtype=torch.bfloat16) * 0.8)(B, Sq, D)),
        "k_cache": _w((lambda *s: torch.randn(*s, dtype=torch.bfloat16) * 0.8)(B, Hkv, Sk, Dh)),
        "v_cache": _w((lambda *s: torch.randn(*s, dtype=torch.bfloat16) * 0.05)(B, Hkv, Sk, Dh)),
        "wq": _w((lambda *s: torch.randn(*s, dtype=torch.bfloat16) * 0.8)(D, Hq * Dh) * (D ** -0.5)),
        "wo": _w((lambda *s: torch.randn(*s, dtype=torch.bfloat16) * 0.05)(Hq * Dh, D) * ((Hq * Dh) ** -0.5)),
    }

def reference(x, k_cache, v_cache, wq, wo):
    B, Sq, D = x.shape
    Hq, Dh = 32, 192
    Hkv = k_cache.shape[1]
    rep = Hq // Hkv
    q = (lambda x, *d: x.permute(*d))((x @ wq).reshape(B, Sq, Hq, Dh), 0, 2, 1, 3)
    k = (lambda x, n, axis: torch.repeat_interleave(x, n, dim=axis))(k_cache, rep, axis=1)
    v = (lambda x, n, axis: torch.repeat_interleave(x, n, dim=axis))(v_cache, rep, axis=1)
    scores = torch.einsum("bhqd,bhkd->bhqk", q, k) * (Dh ** -0.5)
    p = _softmax(scores, axis=-1)
    o = torch.einsum("bhqk,bhkd->bhqd", p, v)
    return (lambda x, *d: x.permute(*d))(o, 0, 2, 1, 3).reshape(B, Sq, Hq * Dh) @ wo
```

```python
import hazard

class Asm:
    def __init__(self):
        self.lines = []
        self.lg = []
        self.vm = []
    def __call__(self, s):
        for l in s.strip("\n").split("\n"):
            l = l.strip()
            if not l: continue
            self.lines.append(l if l.endswith(":") else "    " + l)
    def label(self, n):
        self.lines.append(n + ":")
    def raw(self, s):
        self.lines.append(s)
    def c(self, s):
        self.lines.append("    ; " + s)
    def ds(self, instr, tag=None):
        self(instr)
        self.lg.append(tag)
        assert len(self.lg) <= 15 or True
    def vmem(self, instr, tag=None):
        self(instr)
        self.vm.append(tag)
        assert len(self.vm) <= 63, "vmcnt overflow"
    def _n(self, q, tags):
        last = -1
        for i, t in enumerate(q):
            if t in tags: last = i
        return last
    def wait_lg(self, *tags):
        i = self._n(self.lg, tags)
        if i < 0: return
        n = len(self.lg) - 1 - i
        n = min(n, 15)
        self(f"s_waitcnt lgkmcnt({n})")
        self.lg = self.lg[len(self.lg) - n:] if n else []
    def wait_vm(self, *tags):
        i = self._n(self.vm, tags)
        if i < 0: return
        n = len(self.vm) - 1 - i
        self(f"s_waitcnt vmcnt({n})")
        self.vm = self.vm[len(self.vm) - n:] if n else []
    def wait_lg_all(self):
        self("s_waitcnt lgkmcnt(0)"); self.lg = []
    def wait_vm_all(self):
        self("s_waitcnt vmcnt(0)"); self.vm = []
    def reset(self):
        self.lg = []; self.vm = []
    def text(self, fix=True):
        lines = self.lines
        if fix:
            flat = []
            for l in lines: flat.extend(l.split("\n"))
            lines, n = hazard.fix(flat)
        return "\n".join(lines) + "\n"

def vr(b, n=4):
    return f"v[{b}:{b+n-1}]" if n > 1 else f"v{b}"
def sr(b, n=4):
    return f"s[{b}:{b+n-1}]" if n > 1 else f"s{b}"

def kernel_header(name):
    return f""".globl {name}
.p2align 8
.type {name},@function
{name}:"""

def kernel_desc(name, vgpr=256, sgpr=102, accum=None, extra=""):
    if accum is None:
        accum = min(256, (vgpr + 3) // 4 * 4)
    return f""".section .rodata,"a"
.p2align 6
.amdhsa_kernel {name}
  .amdhsa_next_free_vgpr {vgpr}
  .amdhsa_next_free_sgpr {sgpr}
  .amdhsa_accum_offset {accum}
  .amdhsa_group_segment_fixed_size 0
  .amdhsa_kernarg_size 64
  .amdhsa_user_sgpr_count 2
  .amdhsa_user_sgpr_kernarg_segment_ptr 1
  .amdhsa_system_sgpr_workgroup_id_x 1
{extra}.end_amdhsa_kernel
.text"""

def srd(a, d, base, nbytes):
    a(f"s_mov_b32 s{d}, s{base}")
    a(f"s_and_b32 s{d+1}, s{base+1}, 0xffff")
    a(f"s_mov_b32 s{d+2}, {nbytes}")
    a(f"s_mov_b32 s{d+3}, 0x20000")
```

```python
import re
TRANS = ("v_exp_f32", "v_log_f32", "v_rcp_f32", "v_rsq_f32", "v_sqrt_f32", "v_sin_f32", "v_cos_f32", "v_rcp_iflag_f32")

def regs_of(tok):
    tok = tok.strip()
    neg = tok.lstrip("-")
    if neg.startswith("abs(") or neg.startswith("|"):
        neg = neg.replace("abs(", "").replace(")", "").replace("|", "")
    m = re.fullmatch(r"([vas])(\d+)", neg)
    if m:
        return [(m.group(1), int(m.group(2)))]
    m = re.fullmatch(r"([vas])\[(\d+):(\d+)\]", neg)
    if m:
        return [(m.group(1), i) for i in range(int(m.group(2)), int(m.group(3)) + 1)]
    if neg in ("vcc", "vcc_lo", "vcc_hi"):
        return [("s", "vcc")]
    if neg == "m0":
        return [("s", "m0")]
    if neg in ("exec", "exec_lo", "exec_hi"):
        return [("s", "exec")]
    return []

class I:
    def __init__(self, line):
        self.line = line
        s = line.split(";")[0].strip()
        self.op = s.split()[0] if s else ""
        rest = s[len(self.op):].strip()
        toks = [t.strip() for t in re.split(r",(?![^\[]*\])", rest)] if rest else []
        ops = []
        for t in toks:
            ops.append(t.split()[0] if t.split() else t)
        self.toks = ops
        self.mods = rest
        op = self.op
        self.is_mfma = op.startswith("v_mfma")
        self.is_valu = op.startswith("v_") and not self.is_mfma
        self.is_trans = any(op.startswith(t) for t in TRANS)
        self.is_ds = op.startswith("ds_")
        self.is_vmem = op.startswith("buffer_") or op.startswith("global_") or op.startswith("flat_")
        self.is_salu = op.startswith("s_")
        self.is_lds_dma = self.is_vmem and (" lds" in " " + rest or "_lds_" in op)
        self.is_perm = op.startswith("v_permlane")
        self.is_dpp = "dpp" in op or "row_" in rest or "quad_perm" in rest
        self.w, self.r = [], []
        self.srcC = []
        R = [regs_of(t) for t in ops]
        if self.is_mfma:
            self.w = R[0]; self.r = R[1] + R[2] + R[3]; self.srcC = R[3]; self.srcAB = R[1] + R[2]
        elif self.is_valu:
            if op.startswith("v_cmp"):
                self.w = R[0]; self.r = sum(R[1:], [])
                if op.startswith("v_cmpx"): self.w = self.w + [("s", "exec")]
            elif self.is_perm and "swap" in op:
                self.w = R[0] + R[1]; self.r = R[0] + R[1]
            elif op.startswith(("v_add_co", "v_sub_co", "v_addc_co", "v_subb_co", "v_subrev_co", "v_mad_u64")):
                self.w = R[0] + R[1]; self.r = sum(R[2:], [])
            elif op.startswith(("v_fmac", "v_pk_fmac", "v_dot2c")):
                self.w = R[0]; self.r = sum(R, [])
            elif op.startswith("v_nop"):
                pass
            else:
                self.w = R[0]; self.r = sum(R[1:], [])
                if op.startswith("v_cndmask") and len(R) == 3: self.r += [("s", "vcc")]
                if self.is_dpp or op.startswith("v_writelane"): self.r += R[0]
        elif self.is_ds:
            if op.startswith("ds_read") or op.startswith("ds_bpermute") or op.startswith("ds_swizzle") or op.startswith("ds_permute"):
                self.w = R[0]; self.r = sum(R[1:], [])
            else:
                self.r = sum(R, [])
        elif self.is_vmem:
            if self.is_lds_dma or "store" in op or op in ("buffer_wbl2", "buffer_inv"):
                self.r = sum(R, [])
                if self.is_lds_dma: self.r += [("s", "m0")]
            elif "atomic" in op:
                self.r = sum(R, [])
                if "sc0" in rest:
                    self.w = R[0]
            else:
                self.w = R[0]; self.r = sum(R[1:], [])
        elif self.is_salu:
            if op.startswith(("s_cmp", "s_cbranch", "s_branch", "s_waitcnt", "s_barrier", "s_nop", "s_endpgm", "s_sleep", "s_setprio", "s_bitcmp", "s_setreg")):
                self.r = sum(R, [])
            else:
                self.w = R[0] if R else []; self.r = sum(R[1:], [])
                if "saveexec" in op: self.w = self.w + [("s", "exec")]
        self.wide_store = self.is_vmem and "store" in op and ("x3" in op or "x4" in op)
        self.store_data = []
        if self.wide_store:
            self.store_data = R[0] if op.startswith("buffer_") else R[1]
        self.states = 1
        if op == "s_nop":
            self.states = int(ops[0], 0) + 1
        self.passes = 0
        if self.is_mfma:
            self.passes = 8 if "32x32x16" in op or "32x32x8" in op else 4

def inter(a, b):
    return bool(set(a) & set(b))

def need(p, c):
    n = 0
    pv = [x for x in p.w if x[0] in "va"]
    ps = [x for x in p.w if x[0] == "s"]
    if p.is_valu:
        if c.is_mfma and inter(pv, c.r): n = max(n, 2)
        if c.is_perm and inter(pv, c.r): n = max(n, 2)
        if c.is_dpp and inter(pv, c.r): n = max(n, 2)
        if c.op.startswith(("v_readlane", "v_readfirstlane")) and inter(pv, c.r): n = max(n, 1)
        if p.is_trans and c.is_valu and not c.is_trans and inter(pv, c.r + c.w): n = max(n, 1)
        if p.is_trans and c.is_valu and c.is_trans and inter(pv, c.r): n = max(n, 1)
        if ps:
            if c.is_vmem and inter(ps, c.r): n = max(n, 5)
            if c.is_valu and inter(ps, c.r): n = max(n, 2)
            if c.op.startswith(("v_readlane", "v_writelane")) and inter(ps, c.r): n = max(n, 4)
            if c.is_salu and inter(ps, c.r): n = max(n, 2)
            if ("s", "exec") in ps:
                if c.is_mfma or c.is_perm or c.op.startswith(("v_readlane", "v_readfirstlane", "v_writelane")): n = max(n, 4)
                if c.is_dpp: n = max(n, 5)
    if p.is_salu and ("s", "m0") in ps and (c.is_lds_dma or c.op.startswith(("s_sendmsg", "s_movrel")) or "addtid" in c.op):
        n = max(n, 1)
    if p.is_mfma:
        P = p.passes
        t_use = {4: 8, 8: 12}[P]; t_c = {4: 6, 8: 10}[P]; t_war = {4: 3, 8: 7}[P]
        if c.is_mfma:
            if inter(pv, c.srcAB): n = max(n, t_use)
            if inter(pv, c.srcC):
                if not (p.w == c.srcC and p.passes == c.passes): n = max(n, t_c)
            elif inter(pv, c.w): n = max(n, t_use)
        elif c.is_valu or c.is_ds or c.is_vmem:
            if inter(pv, c.r + c.w): n = max(n, t_use)
            if c.is_valu and inter(p.srcC, c.w): n = max(n, t_war)
    if p.wide_store and inter(p.store_data, c.w):
        n = max(n, 2)
    return n

def fix(lines, verbose=False):
    out = []
    hist = []
    inserted = 0
    for ln in lines:
        s = ln.split(";")[0].strip()
        if not s or s.endswith(":") or s.startswith("."):
            out.append(ln)
            continue
        c = I(ln)
        dist = 0
        pad = 0
        for p in reversed(hist):
            n = need(p, c)
            if n > dist: pad = max(pad, n - dist)
            dist += p.states
            if dist > 24: break
        if pad:
            nop = I(f"s_nop {pad-1}")
            out.append(f"    s_nop {pad-1}  ; hz")
            hist.append(nop)
            inserted += 1
            if verbose: print("hazard pad", pad, "before", s)
        out.append(ln)
        hist.append(c)
        if c.op in ("s_branch", "s_endpgm"):
            hist = []
        if len(hist) > 40: hist = hist[-40:]
    return out, inserted
```

```python
import sys, math
from asmgen import *

NAME = "standalone__gqa_block_cached__near_ridge"
HEADER = open("cdna_kernels/" + NAME + ".s.ref").read().split("; Override launch")[0] if __name__ == "__main__" else ""

X_BYTES = 768 * 640 * 2
KV_BYTES = 8 * 32 * 96 * 192 * 2
W_BYTES = 640 * 6144 * 2
OUT_BYTES = 768 * 640 * 2
WS_BYTES = 268435456
WS_O = 0
WS_P = 0x1000000
WS_STAMP = 0x4000000
SCALE = 192 ** -0.5 * math.log2(math.e)

def f32hex(x):
    import struct
    return "0x%08x" % struct.unpack("<I", struct.pack("<f", x))[0]

sX, sK, sV, sWQ, sWO, sOUT, sDBG, sWS = 4, 6, 8, 10, 12, 14, 16, 18
sWAVE, sG, sB, sJ, sH, sBH = 20, 21, 22, 23, 24, 25
rX, rWQ, rK, rV, rWS, rWO, rOUT = 28, 32, 36, 40, 44, 48, 52
sT0, sT1, sT2, sT3 = 56, 57, 58, 59
sLW = 60
sM0B = 61
sC = 62
sSTAMP = 64


class Cfg:
    stamps = False
    prefetch_code = True
    o_store_mods = ""
    p_store_mods = ""
    k_sched = [4, 5, 6, 7, 8, 9, 10, 11, 12]
    v_sched = [13, 14, 15, 15, 16, 16, 16, 16, 16]
    ring_c = 8


def stamp(a, cfg, idx, wave_only=None):
    if not cfg.stamps: return
    a(f"""
    s_memtime s[{sSTAMP}:{sSTAMP+1}]
    s_waitcnt lgkmcnt(0)
    v_writelane_b32 v255, s{sSTAMP}, {idx}
    """)
    a.lg = []

def stamp_flush(a, cfg, kidx):
    if not cfg.stamps: return
    a(f"""
    s_lshl_b32 s{sT0}, s2, 3
    s_add_u32 s{sT0}, s{sT0}, s{sWAVE}
    s_lshl_b32 s{sT0}, s{sT0}, 8
    s_add_u32 s{sT0}, s{sT0}, {WS_STAMP + kidx * 0x100000}
    v_mbcnt_lo_u32_b32 v254, -1, 0
    v_mbcnt_hi_u32_b32 v254, -1, v254
    v_lshlrev_b32 v254, 2, v254
    buffer_store_dword v255, v254, s[{rWS}:{rWS+3}], s{sT0} offen
    """)


def prologue(a, cfg, kname, endlabel, nthreads_waves, code_kb):
    a.raw(kernel_header(kname))
    if cfg.stamps:
        a(f"s_memtime s[{sSTAMP}:{sSTAMP+1}]")
    a(f"""
    s_cmp_ge_u32 s2, 256
    s_cbranch_scc1 {endlabel}
    s_load_dwordx16 s[4:19], s[0:1], 0
    v_lshrrev_b32 v1, 6, v0
    v_and_b32 v0, 63, v0
    v_readfirstlane_b32 s{sWAVE}, v1
    s_and_b32 s{sG}, s2, 7
    s_lshr_b32 s{sT0}, s2, 3
    s_lshr_b32 s{sB}, s{sT0}, 2
    s_and_b32 s{sJ}, s{sT0}, 3
    s_lshl_b32 s{sH}, s{sG}, 2
    s_add_u32 s{sH}, s{sH}, s{sJ}
    s_lshl_b32 s{sBH}, s{sB}, 5
    s_add_u32 s{sBH}, s{sBH}, s{sH}
    """)
    if cfg.prefetch_code and code_kb:
        a(f"""
        s_cmp_lg_u32 s{sWAVE}, 0
        s_cbranch_scc1 {kname}_nopf
        s_getpc_b64 s[{sT2}:{sT2+1}]
        """)
        a.label(f"{kname}_pc")
        a(f"""
        s_sub_u32 s{sT2}, s{sT2}, {kname}_pc-{kname}
        s_subb_u32 s{sT2+1}, s{sT2+1}, 0
        v_lshlrev_b32 v2, 7, v0
        """)
        for i in range((code_kb + 7) // 8):
            if i: a(f"v_add_u32 v2, 8192, v2")
            a(f"v_min_u32 v3, {endlabel}-{kname}, v2")
            a(f"global_load_dword v253, v3, s[{sT2}:{sT2+1}]")
        a.label(f"{kname}_nopf")


def wait_kernarg(a, cfg):
    a("s_waitcnt lgkmcnt(0)")
    if cfg.stamps:
        a(f"v_writelane_b32 v255, s{sSTAMP}, 0")


def mfma(d, A, B, first=False):
    c = "0" if first else vr(d)
    return f"v_mfma_f32_16x16x32_bf16 {vr(d)}, {vr(A)}, {vr(B)}, {c}"


L_W = 0
L_X = 49152
L_K = 86016
L_V = 122880
L_Q = 0

def k1(a, cfg):
    kn = "k1_kernel"
    prologue(a, cfg, kn, "k1_end", 8, cfg.k1_kb)
    a(f"""
    s_cmp_ge_u32 s{sWAVE}, 4
    s_cbranch_scc1 k1_loader
    """)
    vA = [10, 11, 12]; vXe, vXo, vQW = 13, 14, 15
    ACC = 16
    def acc(T, t): return ACC + (T * 6 + t) * 4
    SETA = [88, 124]; SETB = [100, 136]
    a.c("phase A addresses: v2=kq v3=r v4=c v5=n")
    a(f"""
    v_lshrrev_b32 v2, 4, v0
    v_bfe_u32 v3, v0, 2, 2
    v_and_b32 v4, 3, v0
    v_and_b32 v5, 15, v0
    v_lshlrev_b32 v6, 3, v2
    v_add_u32 v6, v6, v3                     ; k = 8kq + r
    v_mul_u32_u24 v6, 384, v6
    v_lshl_add_u32 v6, v4, 3, v6             ; k*384 + 8c
    v_lshrrev_b32 v7, 1, v3
    v_and_b32 v8, 1, v2
    v_lshl_or_b32 v7, v8, 1, v7              ; h(k)
    s_mul_i32 s{sT0}, s{sWAVE}, 3
    """)
    for T in range(3):
        a(f"""
        s_add_u32 s{sT1}, s{sT0}, {T}
        v_xor_b32 v8, s{sT1}, v7
        v_lshl_add_u32 v{vA[T]}, v8, 5, v6
        """)
    a(f"""
    v_lshrrev_b32 v6, 1, v5                  ; (n>>1)&7
    v_xor_b32 v6, v6, v2
    v_lshlrev_b32 v6, 4, v6
    v_lshl_add_u32 v6, v5, 7, v6
    v_add_u32 v{vXe}, {L_X}, v6
    v_xor_b32 v{vXo}, 64, v{vXe}
    v_lshrrev_b32 v6, 1, v2
    v_lshlrev_b32 v6, 8, v6
    v_lshl_add_u32 v6, v5, 4, v6
    v_and_b32 v7, 1, v2
    v_lshl_add_u32 v6, v7, 3, v6
    s_mul_i32 s{sT0}, s{sWAVE}, 1536
    v_add_u32 v{vQW}, s{sT0}, v6
    """)
    phaseB_addr(a, cfg)
    wait_kernarg(a, cfg)
    srd(a, rWS, sWS, WS_BYTES)
    stamp(a, cfg, 1)

    def reads(s):
        st = s & 1
        wo = L_W + (s % 4) * 12288
        xo = ((s >> 1) % 3) * 12288
        vx = vXo if s & 1 else vXe
        R = []
        def ra(T):
            R.append((f"ds_read_b64_tr_b16 {vr(SETA[st]+4*T, 2)}, v{vA[T]} offset:{wo}", ("A", s, T)))
            R.append((f"ds_read_b64_tr_b16 {vr(SETA[st]+4*T+2, 2)}, v{vA[T]} offset:{wo+1536}", ("A", s, T)))
        ra(0)
        for t in range(6):
            R.append((f"ds_read_b128 {vr(SETB[st]+4*t)}, v{vx} offset:{xo + t*2048}", ("B", s, t)))
        ra(1); ra(2)
        return R

    a("s_barrier   ; P")
    stamp(a, cfg, 2)
    for ins, tag in reads(0): a.ds(ins, tag)
    for s in range(20):
        a.wait_lg_all()
        if s < 19:
            a(f"s_barrier   ; B{s}")
        R = reads(s + 1) if s < 19 else []
        st = s & 1
        m = 0
        for T in range(3):
            for t in range(6):
                a(mfma(acc(T, t), SETA[st] + 4 * T, SETB[st] + 4 * t, first=(s == 0)))
                if m < len(R): a.ds(*R[m])
                m += 1
        if s in (4, 9, 14): stamp(a, cfg, 3 + (s - 4) // 5)
    stamp(a, cfg, 6)
    a.c("Q -> bf16 -> LDS (fragment-major)")
    for T in range(3):
        for t in range(6):
            d = acc(T, t)
            tmp = 88 + ((T * 6 + t) % 8) * 2
            a(f"v_cvt_pk_bf16_f32 v{tmp}, v{d}, v{d+1}")
            a(f"v_cvt_pk_bf16_f32 v{tmp+1}, v{d+2}, v{d+3}")
            a.ds(f"ds_write_b64 v{vQW}, {vr(tmp, 2)} offset:{L_Q + 512*T + 6144*t}", "qw")
    a.wait_lg_all()
    a("s_barrier   ; Q")
    a("s_branch k1_phaseB")

    a.label("k1_loader")
    a.reset()
    vW = [220, 221, 222]; vXL = [223, 224, 225]; vKA = [226, 227, 228]; vKB = [229, 230, 231]; vV = [232, 233, 234]
    vK0 = [235, 236, 237]; vCP = [238, 239, 240]
    a(f"s_sub_u32 s{sLW}, s{sWAVE}, 4")
    a(f"s_mul_i32 s{sT0}, s{sLW}, {8*12288}")
    a(f"s_mul_i32 s{sT1}, s{sH}, 384")
    a(f"s_add_u32 s{sT0}, s{sT0}, s{sT1}")
    a(f"s_and_b32 s{sT1}, s{sLW}, 1")
    a(f"s_lshl_b32 s{sT1}, s{sT1}, 2")
    for i in range(3):
        a(f"""
        v_add_u32 v2, {64*i}, v0
        v_mul_u32_u24 v3, 2731, v2
        v_lshrrev_b32 v{vK0[i]}, 16, v3
        v_mul_u32_u24 v4, 24, v{vK0[i]}
        v_sub_u32 v{vCP[i]}, v2, v4
        v_and_b32 v5, 2, v{vK0[i]}
        v_or_b32 v5, s{sT1}, v5
        v_xor_b32 v5, v5, v{vCP[i]}
        v_mul_u32_u24 v6, 12288, v{vK0[i]}
        v_lshl_add_u32 v6, v5, 4, v6
        v_add_u32 v{vW[i]}, s{sT0}, v6
        """)
    a(f"""
    s_mul_i32 s{sT2}, s{sB}, 96
    s_mul_i32 s{sT3}, s{sLW}, 24
    s_add_u32 s{sT2}, s{sT2}, s{sT3}
    s_mul_i32 s{sT2}, s{sT2}, 1280
    v_lshrrev_b32 v2, 3, v0
    v_mul_u32_u24 v2, 1280, v2
    v_and_b32 v3, 7, v0
    v_lshrrev_b32 v4, 4, v0
    v_xor_b32 v3, v3, v4
    v_xor_b32 v3, s{sT1}, v3
    v_lshl_add_u32 v{vXL[0]}, v3, 4, v2
    v_add_u32 v{vXL[0]}, s{sT2}, v{vXL[0]}
    v_xor_b32 v3, 4, v3
    v_lshl_add_u32 v{vXL[1]}, v3, 4, v2
    s_add_u32 s{sT3}, s{sT2}, {8*1280}
    v_add_u32 v{vXL[1]}, s{sT3}, v{vXL[1]}
    v_add_u32 v{vXL[2]}, {16*1280}, v{vXL[0]}
    s_mul_i32 s{sM0B}, s{sLW}, 3072
    """)
    wait_kernarg(a, cfg)
    srd(a, rWQ, sWQ, W_BYTES)
    srd(a, rX, sX, X_BYTES)

    def dma(vaddr, rs, soff, ldsoff, tag, base=sM0B):
        a(f"s_add_u32 m0, s{base}, {ldsoff}")
        a(f"s_mov_b32 s{sT0}, {soff}")
        a.vmem(f"buffer_load_dwordx4 v{vaddr}, s[{rs}:{rs+3}], s{sT0} offen lds", tag)
    def ldW(s):
        for i in range(3): dma(vW[i], rWQ, s * 32 * 12288, L_W + (s % 4) * 12288 + i * 1024, ("W", s))
    def ldX(m):
        for i in range(3): dma(vXL[i], rX, m * 128, L_X + (m % 3) * 12288 + i * 1024, ("X", m))
    sKVB = 63
    def ldK(i):
        i1, i0 = divmod(i, 3)
        dma((vKB if i1 & 1 else vKA)[i0], rK, i1 * 3072, L_K + i * 1024, "K", base=sKVB)
    def ldV(i):
        i1, i0 = divmod(i, 3)
        dma(vV[i0], rV, i1 * 3072, L_V + i * 1024, "V", base=sKVB)

    ldW(0); ldX(0); ldW(1)
    srd(a, rK, sK, KV_BYTES)
    srd(a, rV, sV, KV_BYTES)
    srd(a, rWS, sWS, WS_BYTES)
    a(f"""
    s_mul_i32 s{sKVB}, s{sLW}, 9216
    s_mul_i32 s{sT2}, s{sBH}, 36864
    s_add_u32 s{sT2}, s{sT2}, s{sKVB}
    """)
    for i in range(3):
        a(f"""
        v_mul_u32_u24 v6, 384, v{vK0[i]}
        v_add_u32 v6, s{sT2}, v6
        v_lshrrev_b32 v3, 1, v{vK0[i]}
        v_xor_b32 v4, v3, v{vCP[i]}
        v_xor_b32 v4, s{sT1}, v4
        v_lshl_add_u32 v{vKA[i]}, v4, 4, v6
        v_xor_b32 v4, 4, v4
        v_lshl_add_u32 v{vKB[i]}, v4, 4, v6
        v_lshlrev_b32 v3, 1, v3
        v_xor_b32 v4, v3, v{vCP[i]}
        v_lshl_add_u32 v{vV[i]}, v4, 4, v6
        """)
    ldW(2); ldX(1); ldW(3); ldX(2)
    phaseB_addr(a, cfg)
    stamp(a, cfg, 1)
    a.wait_vm(("W", 0), ("X", 0))
    a("s_barrier   ; P")
    stamp(a, cfg, 2)
    for s in range(19):
        a.wait_vm(("W", s + 1), ("X", (s + 1) >> 1))
        a(f"s_barrier   ; B{s}")
        if s + 4 < 20: ldW(s + 4)
        if s & 1 and (s >> 1) + 3 < 10: ldX((s >> 1) + 3)
        for i, ss in enumerate(cfg.k_sched):
            if ss == s: ldK(i)
        for i, ss in enumerate(cfg.v_sched):
            if ss == s: ldV(i)
        if s in (4, 9, 14): stamp(a, cfg, 3 + (s - 4) // 5)
    a.wait_vm("K")
    stamp(a, cfg, 6)
    a("s_barrier   ; Q")
    a(f"""
    s_cmp_lt_u32 s{sWAVE}, 6
    s_cbranch_scc1 k1_phaseB
    s_waitcnt vmcnt(0)
    s_barrier   ; V
    """)
    a("s_branch k1_fin")
    a.label("k1_phaseB")
    a.reset()
    phaseB(a, cfg)
    a.label("k1_fin")
    stamp(a, cfg, 15)
    stamp_flush(a, cfg, 0)
    a.label("k1_end")
    a("s_endpgm")
    a.raw(kernel_desc(kn))


vQR, vKE, vKO, vVA, vOS = 160, 161, 162, [163, 164, 165, 166], 167

def phaseB_addr(a, cfg):
    a.c("phase B addresses")
    a(f"""
    v_lshrrev_b32 v2, 4, v0                  ; kq
    v_and_b32 v5, 15, v0                     ; m / n
    s_mul_i32 s{sT2}, s{sWAVE}, 6144
    v_lshlrev_b32 v6, 4, v0
    v_add_u32 v{vQR}, s{sT2}, v6
    v_lshrrev_b32 v7, 1, v5
    v_xor_b32 v7, v7, v2
    v_mul_u32_u24 v8, 384, v5
    v_lshl_add_u32 v8, v7, 4, v8
    v_add_u32 v{vKE}, {L_K}, v8
    v_xor_b32 v{vKO}, 64, v{vKE}
    v_lshrrev_b32 v7, 2, v5                  ; r
    v_lshl_add_u32 v7, v2, 2, v7             ; 4kq + r
    v_mul_u32_u24 v8, 384, v7
    v_and_b32 v3, 3, v0                      ; c
    v_lshl_add_u32 v8, v3, 3, v8
    v_add_u32 v8, {L_V}, v8
    v_bfe_u32 v7, v7, 1, 2                   ; h
    """)
    for i in range(4):
        a(f"v_xor_b32 v3, {i}, v7")
        a(f"v_lshl_add_u32 v{vVA[i]}, v3, 5, v8")
    a(f"""
    s_lshl_b32 s{sT2}, s{sB}, 3
    s_add_u32 s{sT2}, s{sT2}, s{sG}
    s_mul_i32 s{sT2}, s{sT2}, 24
    s_mul_i32 s{sT3}, s{sJ}, 6
    s_add_u32 s{sT2}, s{sT2}, s{sT3}
    s_mul_i32 s{sT2}, s{sT2}, 6144
    s_lshl_b32 s{sT3}, s{sWAVE}, 10
    s_add_u32 s{sT2}, s{sT2}, s{sT3}
    v_add_u32 v{vOS}, s{sT2}, v6
    """)


def phaseB(a, cfg):
    QF = 88; KF = [112, 136]; S = 16; P = 40; O = 168; VF = 88
    stamp(a, cfg, 7)
    a(f"s_mov_b32 s{sC}, {f32hex(SCALE)}")
    def kread(ks, kt):
        v = vKO if ks & 1 else vKE
        a.ds(f"ds_read_b128 {vr(KF[ks&1]+4*kt)}, v{v} offset:{kt*6144 + (ks>>1)*128}", ("K", ks, kt))
    a.ds(f"ds_read_b128 {vr(QF)}, v{vQR} offset:{L_Q}", ("Q", 0))
    for kt in range(6): kread(0, kt)
    for ks in range(1, 6):
        a.ds(f"ds_read_b128 {vr(QF+4*ks)}, v{vQR} offset:{L_Q + ks*1024}", ("Q", ks))
    for ks in range(6):
        for kt in range(6):
            a.wait_lg(("Q", ks), ("K", ks, kt))
            a(mfma(S + 4 * kt, KF[ks & 1] + 4 * kt, QF + 4 * ks, first=(ks == 0)))
            if ks < 5: kread(ks + 1, kt)
    stamp(a, cfg, 8)
    a.c("V landed?")
    a("s_waitcnt vmcnt(0)")
    a("s_barrier   ; V")
    stamp(a, cfg, 9)
    def vread(s, Td, slot):
        for e in range(2):
            a.ds(f"ds_read_b64_tr_b16 {vr(VF + 4*slot + 2*e, 2)}, v{vVA[Td & 3]} offset:{(Td>>2)*128 + s*12288 + e*6144}", ("V", s, Td))
    order = [(s, Td) for s in range(3) for Td in range(12)]
    NV = 6
    for i in range(NV): vread(*order[i], i % 18)
    a.c("softmax")
    M, T1, L = 2, 3, 4
    a(f"v_max3_f32 v{M}, v{S}, v{S+1}, v{S+2}")
    for i in range(3, 23, 2):
        a(f"v_max3_f32 v{M}, v{M}, v{S+i}, v{S+i+1}")
    a(f"v_max_f32 v{M}, v{M}, v{S+23}")
    for sw in ("v_permlane16_swap_b32", "v_permlane32_swap_b32"):
        a(f"v_mov_b32 v{T1}, v{M}")
        a(f"{sw} v{M}, v{T1}")
        a(f"v_max_f32 v{M}, v{M}, v{T1}")
    a(f"v_mul_f32 v{M}, s{sC}, v{M}")
    for i in range(24):
        a(f"v_fma_f32 v{S+i}, v{S+i}, s{sC}, -v{M}")
    for i in range(24):
        a(f"v_exp_f32 v{S+i}, v{S+i}")
    for i in range(12):
        a(f"v_cvt_pk_bf16_f32 v{P+i}, v{S+2*i}, v{S+2*i+1}")
    stamp(a, cfg, 10)
    sums = []
    sums.append(f"v_add_f32 v{L}, v{S}, v{S+1}")
    sums.append(f"v_add_f32 v{L+1}, v{S+2}, v{S+3}")
    for i in range(4, 24, 2):
        sums.append(f"v_add_f32 v{L}, v{L}, v{S+i}")
        sums.append(f"v_add_f32 v{L+1}, v{L+1}, v{S+i+1}")
    sums.append(f"v_add_f32 v{L}, v{L}, v{L+1}")
    for i, (s, Td) in enumerate(order):
        a.wait_lg(("V", s, Td))
        a(mfma(O + 4 * Td, VF + 4 * (i % 18), P + 4 * s, first=(s == 0)))
        if i + NV < len(order): vread(*order[i + NV], (i + NV) % 18)
        if i >= 6 and sums: a(sums.pop(0))
    while sums: a(sums.pop(0))
    for sw in ("v_permlane16_swap_b32", "v_permlane32_swap_b32"):
        a(f"v_mov_b32 v{T1}, v{L}")
        a(f"{sw} v{L}, v{T1}")
        a(f"v_add_f32 v{L}, v{L}, v{T1}")
    a(f"v_rcp_f32 v{L}, v{L}")
    stamp(a, cfg, 11)
    for Pp in range(6):
        d = O + 8 * Pp
        for i in range(8): a(f"v_mul_f32 v{d+i}, v{d+i}, v{L}")
        o = 88 + 4 * Pp
        for i in range(4): a(f"v_cvt_pk_bf16_f32 v{o+i}, v{d+2*i}, v{d+2*i+1}")
        a(f"s_mov_b32 s{sT0}, {WS_O + Pp*6144}")
        a.vmem(f"buffer_store_dwordx4 {vr(o)}, v{vOS}, s[{rWS}:{rWS+3}], s{sT0} offen {cfg.o_store_mods}", "os")
    stamp(a, cfg, 12)


def k2(a, cfg):
    kn = "k2_kernel"
    R = cfg.ring_c
    prologue(a, cfg, kn, "k2_end", 8, cfg.k2_kb)
    a(f"""
    s_cmp_ge_u32 s{sWAVE}, 4
    s_cbranch_scc1 k2_loader
    """)
    vA = [[10, 11, 12, 13, 14], [15, 16, 17, 18, 19], [90, 91, 92, 93, 94]]; vB = [20, 21, 95]; vPS = 22; vPH = 23
    ACC = 24
    def acc(T, t): return ACC + (T * 3 + t) * 4
    SETA = [96, 128]; SETB = [116, 148]
    sI, sJQ = 66, 67
    a(f"""
    s_and_b32 s{sI}, s{sWAVE}, 1
    s_lshr_b32 s{sJQ}, s{sWAVE}, 1
    v_lshrrev_b32 v2, 4, v0                  ; kq
    v_bfe_u32 v3, v0, 2, 2                   ; r
    v_and_b32 v4, 3, v0                      ; c
    v_lshl_add_u32 v6, v2, 2, v3             ; 4kq + r
    v_mul_u32_u24 v6, 320, v6
    v_lshl_add_u32 v6, v4, 3, v6
    v_and_b32 v7, 1, v2
    s_mul_i32 s{sT0}, s{sI}, 5
    """)
    for T in range(5):
        a(f"""
        s_add_u32 s{sT1}, s{sT0}, {T}
        v_xor_b32 v8, s{sT1}, v7
        v_lshl_add_u32 v{vA[0][T]}, v8, 5, v6
        v_add_u32 v{vA[1][T]}, 0x10000, v{vA[0][T]}
        v_add_u32 v{vA[2][T]}, 0x20000, v{vA[0][T]}
        """)
    a(f"""
    s_mul_i32 s{sT0}, s{sJQ}, 3072
    s_add_u32 s{sT0}, s{sT0}, 10240
    v_lshlrev_b32 v6, 4, v0
    v_add_u32 v{vB[0]}, s{sT0}, v6
    v_add_u32 v{vB[1]}, 0x10000, v{vB[0]}
    v_add_u32 v{vB[2]}, 0x20000, v{vB[0]}
    s_lshl_b32 s{sT0}, s{sB}, 2
    s_add_u32 s{sT0}, s{sT0}, s{sJ}
    s_lshl_b32 s{sT0}, s{sT0}, 3
    s_add_u32 s{sT0}, s{sT0}, s{sG}
    s_mul_i32 s{sT0}, s{sT0}, 30720
    s_mul_i32 s{sT1}, s{sJQ}, 15360
    s_add_u32 s{sT0}, s{sT0}, s{sT1}
    s_add_u32 s{sT0}, s{sT0}, {WS_P}
    s_mul_i32 s{sT1}, s{sI}, 3072
    s_add_u32 s{sT1}, s{sT1}, s{sT0}
    v_add_u32 v{vPS}, s{sT1}, v6
    s_lshl_b32 s{sT1}, s{sI}, 3
    s_add_u32 s{sT1}, s{sT1}, s{sT0}
    s_add_u32 s{sT1}, s{sT1}, 2048
    v_add_u32 v{vPH}, s{sT1}, v6
    """)
    wait_kernarg(a, cfg)
    srd(a, rWS, sWS, WS_BYTES)
    stamp(a, cfg, 1)
    def reads(u):
        st = u & 1
        so = (u % R) * 16384
        hi, so = divmod(so, 65536)
        Rr = []
        def ra(T):
            Rr.append((f"ds_read_b64_tr_b16 {vr(SETA[st]+4*T, 2)}, v{vA[hi][T]} offset:{so}", ("A", u, T)))
            Rr.append((f"ds_read_b64_tr_b16 {vr(SETA[st]+4*T+2, 2)}, v{vA[hi][T]} offset:{so+5120}", ("A", u, T)))
        ra(0)
        for t in range(3):
            Rr.append((f"ds_read_b128 {vr(SETB[st]+4*t)}, v{vB[hi]} offset:{so + t*1024}", ("B", u, t)))
        for T in range(1, 5): ra(T)
        return Rr
    a("s_barrier   ; P")
    stamp(a, cfg, 2)
    for ins, tag in reads(0): a.ds(ins, tag)
    for u in range(24):
        a.wait_lg_all()
        if u < 23: a(f"s_barrier   ; B{u}")
        Rr = reads(u + 1) if u < 23 else []
        st = u & 1
        m = 0
        for T in range(5):
            for t in range(3):
                a(mfma(acc(T, t), SETA[st] + 4 * T, SETB[st] + 4 * t, first=(u == 0)))
                if m < len(Rr): a.ds(*Rr[m])
                m += 1
        if u in (5, 11, 17): stamp(a, cfg, 3 + (u - 5) // 6)
    stamp(a, cfg, 6)
    a.c("partials: wave i=0 -> pairs (0,1),(2,3), half (4) ; i=1 -> half (0), pairs (1,2),(3,4)")
    a(f"""
    s_cmp_lg_u32 s{sI}, 0
    s_cbranch_scc1 k2_st1
    """)
    def cv(dst, d):
        a(f"v_cvt_pk_bf16_f32 v{dst}, v{d}, v{d+1}")
        a(f"v_cvt_pk_bf16_f32 v{dst+1}, v{d+2}, v{d+3}")
    for i in range(2):
        if i == 1:
            a("s_branch k2_fin")
            a.label("k2_st1")
        pairs = [(0, 1), (2, 3)] if i == 0 else [(1, 2), (3, 4)]
        half = 4 if i == 0 else 0
        n = 0
        for t in range(3):
            for pi, (Ta, Tb) in enumerate(pairs):
                o = 96 + (n % 8) * 4; n += 1
                cv(o, acc(Ta, t)); cv(o + 2, acc(Tb, t))
                a(f"s_mov_b32 s{sT0}, {t*5120 + pi*1024}")
                a(f"buffer_store_dwordx4 {vr(o)}, v{vPS}, s[{rWS}:{rWS+3}], s{sT0} offen {cfg.p_store_mods}")
            o = 96 + (n % 8) * 4; n += 1
            cv(o, acc(half, t))
            a(f"s_mov_b32 s{sT0}, {t*5120}")
            a(f"buffer_store_dwordx2 {vr(o, 2)}, v{vPH}, s[{rWS}:{rWS+3}], s{sT0} offen {cfg.p_store_mods}")
    a("s_branch k2_fin")

    a.label("k2_loader")
    a.reset()
    vL = [10, 11, 12, 13]
    rA, rB = 68, 72
    sOA, sOB, sSA, sSB = 76, 77, 78, 79
    a(f"""
    s_sub_u32 s{sLW}, s{sWAVE}, 4
    s_mul_i32 s{sT0}, s{sG}, {768*1280}
    s_mul_i32 s{sT1}, s{sJ}, 320
    s_add_u32 s{sT0}, s{sT0}, s{sT1}
    s_lshl_b32 s{sT1}, s{sB}, 3
    s_add_u32 s{sT1}, s{sT1}, s{sG}
    s_mul_i32 s{sT1}, s{sT1}, 147456
    s_add_u32 s{sT1}, s{sT1}, {WS_O}        ; O base
    s_lshl_b32 s{sT2}, s{sLW}, 8            ; 256*lw
    v_lshlrev_b32 v7, 4, v0
    """)
    for i in range(4):
        a(f"""
        v_add_u32 v2, s{sT2}, v0
        v_add_u32 v2, {64*i}, v2
        v_mul_u32_u24 v3, 3277, v2
        v_lshrrev_b32 v3, 16, v3            ; row = t/20
        v_mul_u32_u24 v4, 20, v3
        v_sub_u32 v4, v2, v4                ; cp
        v_lshrrev_b32 v5, 1, v3
        v_and_b32 v5, 2, v5
        v_xor_b32 v4, v4, v5
        v_mul_u32_u24 v3, 1280, v3
        v_lshl_add_u32 v3, v4, 4, v3
        v_add_u32 v3, s{sT0}, v3
        s_lshl_b32 s{sT3}, s{sLW}, 2
        s_add_u32 s{sT3}, s{sT3}, {i}
        s_sub_u32 s{sT3}, s{sT3}, 10
        s_lshl_b32 s{sT3}, s{sT3}, 10
        s_add_u32 s{sT3}, s{sT3}, s{sT1}
        v_add_u32 v4, s{sT3}, v7
        s_cmp_lt_u32 s{sLW}, {3 if i < 2 else 2}
        s_cselect_b64 vcc, -1, 0
        v_cndmask_b32 v{vL[i]}, v4, v3, vcc
        """)
    a(f"s_lshl_b32 s{sM0B}, s{sLW}, 12")
    wait_kernarg(a, cfg)
    srd(a, rWS, sWS, WS_BYTES)
    a(f"s_mov_b32 s{sT2}, {WS_BYTES}")
    a(f"s_mov_b32 s{sT3}, 6144")
    for (rr, lim, sS) in ((rA, 3, sSA), (rB, 2, sSB)):
        a(f"""
        s_cmp_lt_u32 s{sLW}, {lim}
        s_cselect_b32 s{rr}, s{sWO}, s{sWS}
        s_cselect_b32 s{rr+1}, s{sWO+1}, s{sWS+1}
        s_cselect_b32 s{rr+2}, {W_BYTES}, s{sT2}
        s_cselect_b32 s{sS}, 40960, s{sT3}
        s_and_b32 s{rr+1}, s{rr+1}, 0xffff
        s_mov_b32 s{rr+3}, 0x20000
        """)
    a(f"s_mov_b32 s{sOA}, 0")
    a(f"s_mov_b32 s{sOB}, 0")
    def ldT(u):
        for i in range(4):
            rr, so = (rA, sOA) if i < 2 else (rB, sOB)
            a(f"s_add_u32 m0, s{sM0B}, {(u % R) * 16384 + i * 1024}")
            if i == 0 and u > 0:
                a(f"s_add_u32 s{sOA}, s{sOA}, s{sSA}")
            elif i == 2 and u > 0:
                a(f"s_add_u32 s{sOB}, s{sOB}, s{sSB}")
            a.vmem(f"buffer_load_dwordx4 v{vL[i]}, s[{rr}:{rr+3}], s{so} offen lds", ("T", u))
    for u in range(R): ldT(u)
    stamp(a, cfg, 1)
    a.wait_vm(("T", 0))
    a("s_barrier   ; P")
    stamp(a, cfg, 2)
    for u in range(23):
        a.wait_vm(("T", u + 1))
        a(f"s_barrier   ; B{u}")
        if u + R < 24: ldT(u + R)
        if u in (5, 11, 17): stamp(a, cfg, 3 + (u - 5) // 6)
    a.label("k2_fin")
    stamp(a, cfg, 15)
    stamp_flush(a, cfg, 1)
    a.label("k2_end")
    a("s_endpgm")
    a.raw(kernel_desc(kn))


def k3(a, cfg):
    kn = "k3_kernel"
    prologue(a, cfg, kn, "k3_end", 4, 0)
    a(f"""
    s_mul_i32 s{sT0}, s{sG}, 240
    s_mul_i32 s{sT1}, s{sWAVE}, 60
    s_add_u32 s{sT0}, s{sT0}, s{sT1}
    v_add_u32 v2, s{sT0}, v0                ; Lambda
    s_lshl_b32 s{sT2}, s{sB}, 2
    s_add_u32 s{sT2}, s{sT2}, s{sJ}
    s_mul_i32 s{sT2}, s{sT2}, {8*30720}
    s_add_u32 s{sT2}, s{sT2}, {WS_P}
    v_lshlrev_b32 v3, 4, v2
    v_add_u32 v3, s{sT2}, v3
    v_lshrrev_b32 v4, 6, v2                 ; unit
    v_mul_u32_u24 v5, 205, v4
    v_lshrrev_b32 v5, 10, v5
    v_mul_u32_u24 v6, 5, v5
    v_sub_u32 v6, v4, v6                    ; p
    v_and_b32 v7, 15, v2
    v_lshl_add_u32 v7, v5, 4, v7            ; q
    s_mul_i32 s{sT1}, s{sB}, 96
    v_add_u32 v7, s{sT1}, v7
    v_mul_u32_u24 v7, 1280, v7
    v_lshl_add_u32 v7, v6, 6, v7            ; + 64 p
    v_bfe_u32 v8, v2, 4, 2                  ; kq
    v_lshl_add_u32 v7, v8, 3, v7            ; + 8 kq
    s_mul_i32 s{sT1}, s{sJ}, 320
    v_add_u32 v7, s{sT1}, v7
    """)
    wait_kernarg(a, cfg)
    srd(a, rWS, sWS, WS_BYTES)
    srd(a, rOUT, sOUT, OUT_BYTES)
    stamp(a, cfg, 1)
    a(f"""
    v_cmp_gt_u32 vcc, 60, v0
    s_and_saveexec_b64 s[70:71], vcc
    """)
    for g in range(8):
        a(f"s_mov_b32 s{sT0}, {g*30720}")
        a.vmem(f"buffer_load_dwordx4 {vr(16+4*g)}, v3, s[{rWS}:{rWS+3}], s{sT0} offen", ("p", g))
    A = 48
    a(f"s_mov_b32 s{sT1}, 0xffff0000")
    for g in range(8):
        a.wait_vm(("p", g))
        for i in range(4):
            s = 16 + 4 * g + i
            if g == 0:
                a(f"v_lshlrev_b32 v{A+2*i}, 16, v{s}")
                a(f"v_and_b32 v{A+2*i+1}, s{sT1}, v{s}")
            else:
                a(f"v_lshlrev_b32 v{60+2*i}, 16, v{s}")
                a(f"v_and_b32 v{61+2*i}, s{sT1}, v{s}")
                a(f"v_add_f32 v{A+2*i}, v{A+2*i}, v{60+2*i}")
                a(f"v_add_f32 v{A+2*i+1}, v{A+2*i+1}, v{61+2*i}")
    for i in range(4):
        a(f"v_cvt_pk_bf16_f32 v{16+i}, v{A+2*i}, v{A+2*i+1}")
    a(f"buffer_store_dwordx2 v[16:17], v7, s[{rOUT}:{rOUT+3}], 0 offen")
    a(f"buffer_store_dwordx2 v[18:19], v7, s[{rOUT}:{rOUT+3}], 0 offen offset:32")
    a("s_mov_b64 exec, s[70:71]")
    stamp(a, cfg, 15)
    stamp_flush(a, cfg, 2)
    a.label("k3_end")
    a("s_endpgm")
    a.raw(kernel_desc(kn, vgpr=256 if cfg.stamps else 72))


def build(cfg, header=""):
    cfg.k1_kb = getattr(cfg, "k1_kb", 16)
    cfg.k2_kb = getattr(cfg, "k2_kb", 12)
    a = Asm()
    a.raw(header.rstrip("\n")) if header else None
    a.raw("; @launch kernel=k1_kernel grid=(256,1,1) block=(512,1,1) lds=163840")
    a.raw(f"; @launch kernel=k2_kernel grid=(256,1,1) block=(512,1,1) lds={cfg.ring_c*16384}")
    a.raw("; @launch kernel=k3_kernel grid=(256,1,1) block=(256,1,1) lds=0")
    a.raw('.amdgcn_target "amdgcn-amd-amdhsa--gfx950"\n.text')
    k1(a, cfg); a.reset()
    k2(a, cfg); a.reset()
    k3(a, cfg)
    return a.text()


if __name__ == "__main__":
    cfg = Cfg()
    for kv in sys.argv[2:]:
        k, v = kv.split("=", 1)
        setattr(cfg, k, eval(v))
    open(sys.argv[1], "w").write(build(cfg, HEADER))
```

```python
import sys, math, struct
from asmgen import *

NAME = "standalone__gqa_block_cached__near_ridge"
KN = NAME + "_kernel"

X_BYTES = 768 * 640 * 2
KV_BYTES = 8 * 32 * 96 * 192 * 2
W_BYTES = 640 * 6144 * 2
OUT_BYTES = 768 * 640 * 2
WS_BYTES = 268435456
SCALE = 192 ** -0.5 * math.log2(math.e)

def f32hex(x):
    return "0x%08x" % struct.unpack("<I", struct.pack("<f", x))[0]

sX, sK, sV, sWQ, sWO, sOUT, sDBG, sWS = 4, 6, 8, 10, 12, 14, 16, 18
sWAVE, sG, sB, sJ, sH, sBH = 20, 21, 22, 23, 24, 25
sFAST, sSPIN = 26, 27
rX, rWQ, rK, rV, rWS, rWO, rOUT, rDBG = 28, 32, 36, 40, 44, 48, 52, 68
sT0, sT1, sT2, sT3 = 56, 57, 58, 59
sLW, sM0B, sC, sKVB = 60, 61, 62, 63
sI, sJQ, sROLE = 64, 65, 66
sWM0, sWK, sOM0, sOK = 72, 73, 74, 75
sINB = 76
sSTAMP = 80
sEX = 84

L_W, L_X, L_K, L_V, L_Q = 0, 49152, 86016, 122880, 0
L_FLAG = 159744
L_OWN, L_WO, L_OR = 0, 36864, 122880
LDS_BYTES = 163840


class Cfg:
    stamps = False
    prefetch_code = True
    code_kb = 32
    ws_o = 0x0000000
    ws_p = 0x1000000
    ws_in = 0x2000000
    ws_stamp = 0x4000000
    polW = "nt"
    polX = ""
    polKV = "nt"
    polWO = "nt"
    polPF = "nt"
    wo_prefetch = True
    pretouch = True
    force_slow = False
    k_sched = [4, 5, 6, 7, 8, 9, 10, 11, 12]
    v_sched = [13, 14, 15, 15, 16, 16, 16, 16, 16]
    h1_flag_step = 1
    spin_max = 400000
    polO = 'sc1'
    skip_o = False
    skip_wo = False


def stamp(a, cfg, idx):
    if not cfg.stamps: return
    a(f"""
    s_memtime s[{sSTAMP}:{sSTAMP+1}]
    s_waitcnt lgkmcnt(0)
    v_writelane_b32 v255, s{sSTAMP}, {idx}
    """)
    a.lg = []

def stamp_flush(a, cfg):
    if not cfg.stamps: return
    a(f"""
    s_memrealtime s[{sSTAMP}:{sSTAMP+1}]
    s_waitcnt lgkmcnt(0)
    v_writelane_b32 v255, s{sSTAMP}, 33
    s_lshl_b32 s{sT0}, s2, 3
    s_add_u32 s{sT0}, s{sT0}, s{sWAVE}
    s_lshl_b32 s{sT0}, s{sT0}, 8
    s_add_u32 s{sT0}, s{sT0}, {cfg.ws_stamp}
    v_mbcnt_lo_u32_b32 v254, -1, 0
    v_mbcnt_hi_u32_b32 v254, -1, v254
    v_lshlrev_b32 v254, 2, v254
    buffer_store_dword v255, v254, s[{rWS}:{rWS+3}], s{sT0} offen
    """)

def wait_kernarg(a, cfg):
    a("s_waitcnt lgkmcnt(0)")
    if cfg.stamps:
        a(f"v_writelane_b32 v255, s{sSTAMP}, 0")
        a(f"v_writelane_b32 v255, s{sSTAMP+2}, 32")

def mfma(d, A, B, first=False):
    c = "0" if first else vr(d)
    return f"v_mfma_f32_16x16x32_bf16 {vr(d)}, {vr(A)}, {vr(B)}, {c}"

_lbl = [0]
def poll(a, cfg, vaddr, rs, soff, vtmp, check):
    _lbl[0] += 1
    n = _lbl[0]
    a(f"s_mov_b32 s{sSPIN}, 0")
    a.label(f"poll{n}")
    a(f"buffer_load_dword v{vtmp}, v{vaddr}, s[{rs}:{rs+3}], {soff} offen sc1")
    a.wait_vm_all()
    check()
    a(f"""
    s_cbranch_scc1 poll{n}_ok
    s_add_u32 s{sSPIN}, s{sSPIN}, 1
    s_cmp_ge_u32 s{sSPIN}, {cfg.spin_max}
    s_cbranch_scc1 poll{n}_ok
    s_sleep 1
    s_branch poll{n}
    """)
    a.label(f"poll{n}_ok")


vA = [10, 11, 12]; vXe, vXo, vQW = 13, 14, 15
vQR, vKE, vKO, vVA, vOS, vOL, vF1 = 160, 161, 162, [163, 164, 165, 166], 167, 168, 169
vCA = [[220, 221, 222, 223, 224], [225, 226, 227, 228, 229]]; vCB = [230, 231]; vPS, vPH, vF2 = 232, 233, 234
vW = [220, 221, 222]; vXL = [223, 224, 225]; vKA = [226, 227, 228]; vKB = [229, 230, 231]; vV = [232, 233, 234]
vK0 = [235, 236, 237]; vCP = [238, 239, 240]
vWO = [241, 242, 243, 244, 245]; vOR, vDL, vDO, vP1, vP2, vPF = 246, 247, 248, 249, 250, 251
vONE = 252


def prologue(a, cfg):
    a.raw(kernel_header(KN))
    if cfg.stamps:
        a(f"s_memtime s[{sSTAMP}:{sSTAMP+1}]")
        a(f"s_memrealtime s[{sSTAMP+2}:{sSTAMP+3}]")
    a(f"""
    s_cmp_ge_u32 s2, 256
    s_cbranch_scc1 L_end
    s_load_dwordx16 s[4:19], s[0:1], 0
    v_lshrrev_b32 v1, 6, v0
    v_and_b32 v0, 63, v0
    v_readfirstlane_b32 s{sWAVE}, v1
    s_and_b32 s{sG}, s2, 7
    s_lshr_b32 s{sT0}, s2, 3
    s_lshr_b32 s{sB}, s{sT0}, 2
    s_and_b32 s{sJ}, s{sT0}, 3
    s_lshl_b32 s{sH}, s{sG}, 2
    s_add_u32 s{sH}, s{sH}, s{sJ}
    s_lshl_b32 s{sBH}, s{sB}, 5
    s_add_u32 s{sBH}, s{sBH}, s{sH}
    s_lshl_b32 s{sINB}, s{sBH}, 8
    s_add_u32 s{sINB}, s{sINB}, {cfg.ws_in}
    s_cmp_ge_u32 s{sWAVE}, 4
    s_cbranch_scc1 L_loaderA
    """)
    if cfg.prefetch_code:
        a(f"s_getpc_b64 s[{sT2}:{sT2+1}]")
        a.label("L_pc")
        a(f"""
        s_sub_u32 s{sT2}, s{sT2}, L_pc-{KN}
        s_subb_u32 s{sT2+1}, s{sT2+1}, 0
        s_lshl_b32 s{sT0}, s{sWAVE}, 13
        v_lshlrev_b32 v2, 7, v0
        v_add_u32 v2, s{sT0}, v2
        v_min_u32 v2, L_end-{KN}, v2
        global_load_dword v253, v2, s[{sT2}:{sT2+1}]
        """)


def addrB(a, cfg):
    a.c("phase B addresses")
    a(f"""
    v_lshrrev_b32 v2, 4, v0                  ; kq
    v_and_b32 v5, 15, v0                     ; m / n
    s_mul_i32 s{sT2}, s{sWAVE}, 6144
    v_lshlrev_b32 v6, 4, v0
    v_add_u32 v{vQR}, s{sT2}, v6
    v_lshrrev_b32 v7, 1, v5
    v_xor_b32 v7, v7, v2
    v_mul_u32_u24 v8, 384, v5
    v_lshl_add_u32 v8, v7, 4, v8
    v_add_u32 v{vKE}, {L_K}, v8
    v_xor_b32 v{vKO}, 64, v{vKE}
    v_lshrrev_b32 v7, 2, v5                  ; r
    v_lshl_add_u32 v7, v2, 2, v7             ; 4kq + r
    v_mul_u32_u24 v8, 384, v7
    v_and_b32 v3, 3, v0                      ; c
    v_lshl_add_u32 v8, v3, 3, v8
    v_add_u32 v8, {L_V}, v8
    v_bfe_u32 v7, v7, 1, 2                   ; h
    """)
    for i in range(4):
        a(f"v_xor_b32 v3, {i}, v7")
        a(f"v_lshl_add_u32 v{vVA[i]}, v3, 5, v8")
    a(f"""
    s_lshl_b32 s{sT2}, s{sB}, 3
    s_add_u32 s{sT2}, s{sT2}, s{sG}
    s_mul_i32 s{sT2}, s{sT2}, 24
    s_mul_i32 s{sT3}, s{sJ}, 6
    s_add_u32 s{sT2}, s{sT2}, s{sT3}
    s_mul_i32 s{sT2}, s{sT2}, 6144
    s_lshl_b32 s{sT3}, s{sWAVE}, 10
    s_add_u32 s{sT2}, s{sT2}, s{sT3}
    v_add_u32 v{vOS}, s{sT2}, v6
    v_add_u32 v{vOL}, s{sT3}, v6
    s_lshl_b32 s{sT2}, s{sJ}, 8
    s_sub_u32 s{sT2}, s{sINB}, s{sT2}
    s_mul_i32 s{sT3}, s{sJ}, 24
    s_add_u32 s{sT2}, s{sT2}, s{sT3}
    s_lshl_b32 s{sT3}, s{sWAVE}, 2
    s_add_u32 s{sT2}, s{sT2}, s{sT3}
    v_and_b32 v3, 3, v0
    v_lshlrev_b32 v3, 8, v3
    v_add_u32 v{vF1}, s{sT2}, v3
    v_mov_b32 v{vONE}, 1
    """)


def h1_flag(a, cfg, n):
    a(f"""
    s_mov_b64 exec, 15
    s_cmp_lg_u32 s{sFAST}, 0
    s_cbranch_scc1 L_f1fast{n}
    """)
    a(f"buffer_store_dword v{vONE}, v{vF1}, s[{rWS}:{rWS+3}], 0 offen sc0 sc1")
    a(f"s_branch L_f1done{n}")
    a.label(f"L_f1fast{n}")
    a.vmem(f"buffer_store_dword v{vONE}, v{vF1}, s[{rWS}:{rWS+3}], 0 offen", "flag")
    a.label(f"L_f1done{n}")
    a("s_mov_b64 exec, -1")


def computeA(a, cfg):
    ACC = 16
    def acc(T, t): return ACC + (T * 6 + t) * 4
    SETA = [88, 124]; SETB = [100, 136]
    a(f"s_mov_b32 s{sROLE}, 0")
    a.c("phase A addresses: v2=kq v3=r v4=c v5=n")
    a(f"""
    v_lshrrev_b32 v2, 4, v0
    v_bfe_u32 v3, v0, 2, 2
    v_and_b32 v4, 3, v0
    v_and_b32 v5, 15, v0
    v_lshlrev_b32 v6, 3, v2
    v_add_u32 v6, v6, v3                     ; k = 8kq + r
    v_mul_u32_u24 v6, 384, v6
    v_lshl_add_u32 v6, v4, 3, v6             ; k*384 + 8c
    v_lshrrev_b32 v7, 1, v3
    v_and_b32 v8, 1, v2
    v_lshl_or_b32 v7, v8, 1, v7              ; h(k)
    s_mul_i32 s{sT0}, s{sWAVE}, 3
    """)
    for T in range(3):
        a(f"""
        s_add_u32 s{sT1}, s{sT0}, {T}
        v_xor_b32 v8, s{sT1}, v7
        v_lshl_add_u32 v{vA[T]}, v8, 5, v6
        """)
    a(f"""
    v_lshrrev_b32 v6, 1, v5                  ; (n>>1)&7
    v_xor_b32 v6, v6, v2
    v_lshlrev_b32 v6, 4, v6
    v_lshl_add_u32 v6, v5, 7, v6
    v_add_u32 v{vXe}, {L_X}, v6
    v_xor_b32 v{vXo}, 64, v{vXe}
    v_lshrrev_b32 v6, 1, v2
    v_lshlrev_b32 v6, 8, v6
    v_lshl_add_u32 v6, v5, 4, v6
    v_and_b32 v7, 1, v2
    v_lshl_add_u32 v6, v7, 3, v6
    s_mul_i32 s{sT0}, s{sWAVE}, 1536
    v_add_u32 v{vQW}, s{sT0}, v6
    """)
    addrB(a, cfg)
    a.c("phase C addresses")
    a(f"""
    s_and_b32 s{sI}, s{sWAVE}, 1
    s_lshr_b32 s{sJQ}, s{sWAVE}, 1
    v_lshrrev_b32 v2, 4, v0                  ; kq
    v_bfe_u32 v3, v0, 2, 2                   ; r
    v_and_b32 v4, 3, v0                      ; c
    v_lshl_add_u32 v6, v2, 2, v3             ; 4kq + r
    v_mul_u32_u24 v6, 320, v6
    v_lshl_add_u32 v6, v4, 3, v6
    v_add_u32 v6, {L_WO}, v6
    v_and_b32 v7, 1, v2
    s_mul_i32 s{sT0}, s{sI}, 5
    """)
    for T in range(5):
        a(f"""
        s_add_u32 s{sT1}, s{sT0}, {T}
        v_xor_b32 v8, s{sT1}, v7
        v_lshl_add_u32 v{vCA[0][T]}, v8, 5, v6
        v_add_u32 v{vCA[1][T]}, 40960, v{vCA[0][T]}
        """)
    a(f"""
    s_mul_i32 s{sT0}, s{sJQ}, 3072
    v_lshlrev_b32 v6, 4, v0
    v_add_u32 v{vCB[0]}, s{sT0}, v6
    v_add_u32 v{vCB[1]}, {L_OR}, v{vCB[0]}
    s_lshl_b32 s{sT0}, s{sB}, 2
    s_add_u32 s{sT0}, s{sT0}, s{sJ}
    s_lshl_b32 s{sT0}, s{sT0}, 3
    s_add_u32 s{sT0}, s{sT0}, s{sG}
    s_mul_i32 s{sT0}, s{sT0}, 30720
    s_mul_i32 s{sT1}, s{sJQ}, 15360
    s_add_u32 s{sT0}, s{sT0}, s{sT1}
    s_add_u32 s{sT0}, s{sT0}, {cfg.ws_p}
    s_mul_i32 s{sT1}, s{sI}, 3072
    s_add_u32 s{sT1}, s{sT1}, s{sT0}
    v_add_u32 v{vPS}, s{sT1}, v6
    s_lshl_b32 s{sT1}, s{sI}, 3
    s_add_u32 s{sT1}, s{sT1}, s{sT0}
    s_add_u32 s{sT1}, s{sT1}, 2048
    v_add_u32 v{vPH}, s{sT1}, v6
    s_lshl_b32 s{sT0}, s{sB}, 5
    s_lshl_b32 s{sT1}, s{sJQ}, 4
    s_add_u32 s{sT0}, s{sT0}, s{sT1}
    s_add_u32 s{sT0}, s{sT0}, s{sJ}
    s_lshl_b32 s{sT0}, s{sT0}, 8
    s_lshl_b32 s{sT1}, s{sG}, 3
    s_add_u32 s{sT0}, s{sT0}, s{sT1}
    s_lshl_b32 s{sT1}, s{sI}, 2
    s_add_u32 s{sT0}, s{sT0}, s{sT1}
    s_add_u32 s{sT0}, s{sT0}, {cfg.ws_in + 128}
    v_and_b32 v3, 3, v0
    v_lshlrev_b32 v3, 10, v3
    v_add_u32 v{vF2}, s{sT0}, v3
    """)
    wait_kernarg(a, cfg)
    srd(a, rWS, sWS, WS_BYTES)
    if cfg.pretouch:
        a(f"""
        s_cmp_lg_u32 s{sWAVE}, 1
        s_cbranch_scc1 L_notouch
        """)
        srd(a, rK, sK, KV_BYTES); srd(a, rV, sV, KV_BYTES); srd(a, rWO, sWO, W_BYTES); srd(a, rOUT, sOUT, OUT_BYTES)
        a(f"""
        s_mov_b64 exec, 3
        v_mul_u32_u24 v2, 36860, v0
        s_mul_i32 s{sT0}, s{sBH}, 36864
        buffer_load_dword v253, v2, s[{rK}:{rK+3}], s{sT0} offen nt
        buffer_load_dword v253, v2, s[{rV}:{rV+3}], s{sT0} offen nt
        v_mul_u32_u24 v2, 983036, v0
        s_mul_i32 s{sT0}, s{sG}, 983040
        buffer_load_dword v253, v2, s[{rWO}:{rWO+3}], s{sT0} offen nt
        buffer_load_dword v253, v2, s[{rOUT}:{rOUT+3}], 0 offen nt
        buffer_load_dword v253, v{vOS}, s[{rWS}:{rWS+3}], 0 offen nt
        buffer_load_dword v253, v{vPS}, s[{rWS}:{rWS+3}], 0 offen nt
        s_mov_b64 exec, -1
        """)
        a.label("L_notouch")
    stamp(a, cfg, 1)

    def reads(s):
        st = s & 1
        wo = L_W + (s % 4) * 12288
        xo = ((s >> 1) % 3) * 12288
        vx = vXo if s & 1 else vXe
        R = []
        def ra(T):
            R.append((f"ds_read_b64_tr_b16 {vr(SETA[st]+4*T, 2)}, v{vA[T]} offset:{wo}", ("A", s, T)))
            R.append((f"ds_read_b64_tr_b16 {vr(SETA[st]+4*T+2, 2)}, v{vA[T]} offset:{wo+1536}", ("A", s, T)))
        ra(0)
        for t in range(6):
            R.append((f"ds_read_b128 {vr(SETB[st]+4*t)}, v{vx} offset:{xo + t*2048}", ("B", s, t)))
        ra(1); ra(2)
        return R

    a("s_barrier   ; P")
    stamp(a, cfg, 2)
    for ins, tag in reads(0): a.ds(ins, tag)
    for s in range(20):
        a.wait_lg_all()
        if s < 19:
            a(f"s_barrier   ; B{s}")
        R = reads(s + 1) if s < 19 else []
        st = s & 1
        m = 0
        for T in range(3):
            for t in range(6):
                a(mfma(acc(T, t), SETA[st] + 4 * T, SETB[st] + 4 * t, first=(s == 0)))
                if m < len(R): a.ds(*R[m])
                m += 1
        if s in (4, 9, 14): stamp(a, cfg, 3 + (s - 4) // 5)
    stamp(a, cfg, 6)
    a.c("Q -> bf16 -> LDS (fragment-major)")
    for T in range(3):
        for t in range(6):
            d = acc(T, t)
            tmp = 88 + ((T * 6 + t) % 8) * 2
            a(f"v_cvt_pk_bf16_f32 v{tmp}, v{d}, v{d+1}")
            a(f"v_cvt_pk_bf16_f32 v{tmp+1}, v{d+2}, v{d+3}")
            a.ds(f"ds_write_b64 v{vQW}, {vr(tmp, 2)} offset:{L_Q + 512*T + 6144*t}", "qw")
    a.wait_lg_all()
    a("s_barrier   ; Q")
    a("s_branch L_phaseB")


def dma(a, vaddr, rs, soff, ldsoff, tag, base, pol=""):
    a(f"s_add_u32 m0, s{base}, {ldsoff}")
    if isinstance(soff, str):
        so = soff
        a("s_nop 0")
    else:
        a(f"s_mov_b32 s{sT0}, {soff}")
        so = f"s{sT0}"
    a.vmem(f"buffer_load_dwordx4 v{vaddr}, s[{rs}:{rs+3}], {so} offen {pol} lds", tag)


def ld_wo_pair(a, cfg, p, both):
    slot = L_WO + (p % 4) * 20480
    if both:
        for e in range(2):
            a(f"s_add_u32 s{sT3}, s{sWK}, {e*40960}")
            for i in range(5):
                dma(a, vWO[i], rWO, f"s{sT3}", slot + e * 10240 + i * 1024, ("WO", p), sWM0, cfg.polWO)
    else:
        a(f"s_add_u32 s{sT3}, s{sWK}, s{sOK+2}")
        for i in range(0 if cfg.skip_wo else 5):
            dma(a, vWO[i], rWO, f"s{sT3}", slot + i * 1024, ("WO", p), sOK + 3, cfg.polWO)
    a(f"""
    s_add_u32 s{sWK}, s{sWK}, 81920
    s_cmp_eq_u32 s{sWK}, {12*81920}
    s_cselect_b32 s{sWK}, 0, s{sWK}
    """)

def ld_o_pair(a, cfg, p):
    slot = L_OR + ((p - 3) % 3) * 12288
    a(f"s_add_u32 m0, s{sOM0}, {slot}")
    a("s_nop 0")
    for i in range(0 if cfg.skip_o else 3):
        a.vmem(f"buffer_load_dwordx4 v{vOR}, s[{rWS}:{rWS+3}], s{sOK} offen offset:{i*1024} {cfg.polO} lds", ("O", p))
    a(f"""
    s_add_u32 s{sOK}, s{sOK}, 12288
    s_cmp_eq_u32 s{sOK}, {12*12288}
    s_cselect_b32 s{sOK}, 0, s{sOK}
    """)


def loaderA(a, cfg):
    a.label("L_loaderA")
    a.reset()
    a(f"s_mov_b32 s{sROLE}, 1")
    a(f"s_sub_u32 s{sLW}, s{sWAVE}, 4")
    a(f"s_mul_i32 s{sT0}, s{sLW}, {8*12288}")
    a(f"s_mul_i32 s{sT1}, s{sH}, 384")
    a(f"s_add_u32 s{sT0}, s{sT0}, s{sT1}")
    a(f"s_and_b32 s{sT1}, s{sLW}, 1")
    a(f"s_lshl_b32 s{sT1}, s{sT1}, 2")
    for i in range(3):
        a(f"""
        v_add_u32 v2, {64*i}, v0
        v_mul_u32_u24 v3, 2731, v2
        v_lshrrev_b32 v{vK0[i]}, 16, v3
        v_mul_u32_u24 v4, 24, v{vK0[i]}
        v_sub_u32 v{vCP[i]}, v2, v4
        v_and_b32 v5, 2, v{vK0[i]}
        v_or_b32 v5, s{sT1}, v5
        v_xor_b32 v5, v5, v{vCP[i]}
        v_mul_u32_u24 v6, 12288, v{vK0[i]}
        v_lshl_add_u32 v6, v5, 4, v6
        v_add_u32 v{vW[i]}, s{sT0}, v6
        """)
    a(f"""
    s_mul_i32 s{sT2}, s{sB}, 96
    s_mul_i32 s{sT3}, s{sLW}, 24
    s_add_u32 s{sT2}, s{sT2}, s{sT3}
    s_mul_i32 s{sT2}, s{sT2}, 1280
    v_lshrrev_b32 v2, 3, v0
    v_mul_u32_u24 v2, 1280, v2
    v_and_b32 v3, 7, v0
    v_lshrrev_b32 v4, 4, v0
    v_xor_b32 v3, v3, v4
    v_xor_b32 v3, s{sT1}, v3
    v_lshl_add_u32 v{vXL[0]}, v3, 4, v2
    v_add_u32 v{vXL[0]}, s{sT2}, v{vXL[0]}
    v_xor_b32 v3, 4, v3
    v_lshl_add_u32 v{vXL[1]}, v3, 4, v2
    s_add_u32 s{sT3}, s{sT2}, {8*1280}
    v_add_u32 v{vXL[1]}, s{sT3}, v{vXL[1]}
    v_add_u32 v{vXL[2]}, {16*1280}, v{vXL[0]}
    s_mul_i32 s{sM0B}, s{sLW}, 3072
    """)
    wait_kernarg(a, cfg)
    srd(a, rWQ, sWQ, W_BYTES)
    srd(a, rX, sX, X_BYTES)

    def ldW(s):
        for i in range(3): dma(a, vW[i], rWQ, s * 32 * 12288, L_W + (s % 4) * 12288 + i * 1024, ("W", s), sM0B, cfg.polW)
    def ldX(m):
        for i in range(3): dma(a, vXL[i], rX, m * 128, L_X + (m % 3) * 12288 + i * 1024, ("X", m), sM0B, cfg.polX)
    def ldK(i):
        i1, i0 = divmod(i, 3)
        dma(a, (vKB if i1 & 1 else vKA)[i0], rK, i1 * 3072, L_K + i * 1024, "K", sKVB, cfg.polKV)
    def ldV(i):
        i1, i0 = divmod(i, 3)
        dma(a, vV[i0], rV, i1 * 3072, L_V + i * 1024, "V", sKVB, cfg.polKV)

    ldW(0); ldX(0)
    srd(a, rWS, sWS, WS_BYTES)
    srd(a, rDBG, sDBG, 256)
    a.c("wave 7: clear this workgroup's inbox")
    a(f"""
    s_cmp_lg_u32 s{sWAVE}, 7
    s_cbranch_scc1 L_noclr
    v_lshlrev_b32 v2, 2, v0
    v_mov_b32 v3, 0
    buffer_store_dword v3, v2, s[{rWS}:{rWS+3}], s{sINB} offen sc0 sc1
    """)
    a.label("L_noclr")
    ldW(1)
    srd(a, rK, sK, KV_BYTES)
    srd(a, rV, sV, KV_BYTES)
    srd(a, rWO, sWO, W_BYTES)
    srd(a, rOUT, sOUT, OUT_BYTES)
    a(f"""
    s_mul_i32 s{sKVB}, s{sLW}, 9216
    s_mul_i32 s{sT2}, s{sBH}, 36864
    s_add_u32 s{sT2}, s{sT2}, s{sKVB}
    """)
    for i in range(3):
        a(f"""
        v_mul_u32_u24 v6, 384, v{vK0[i]}
        v_add_u32 v6, s{sT2}, v6
        v_lshrrev_b32 v3, 1, v{vK0[i]}
        v_xor_b32 v4, v3, v{vCP[i]}
        v_xor_b32 v4, s{sT1}, v4
        v_lshl_add_u32 v{vKA[i]}, v4, 4, v6
        v_xor_b32 v4, 4, v4
        v_lshl_add_u32 v{vKB[i]}, v4, 4, v6
        v_lshlrev_b32 v3, 1, v3
        v_xor_b32 v4, v3, v{vCP[i]}
        v_lshl_add_u32 v{vV[i]}, v4, 4, v6
        """)
    ldW(2); ldX(1); ldW(3); ldX(2)
    addrB(a, cfg)
    a.c("phase C / D loader addresses")
    a(f"""
    s_and_b32 s{sT1}, s{sLW}, 1
    s_mul_i32 s{sWM0}, s{sT1}, 5120
    s_mul_i32 s{sT1}, s{sT1}, 320
    s_mul_i32 s{sT2}, s{sG}, {768*1280}
    s_mul_i32 s{sT3}, s{sJ}, 320
    s_add_u32 s{sT2}, s{sT2}, s{sT3}
    """)
    for i in range(5):
        a(f"""
        v_add_u32 v2, s{sT1}, v0
        v_add_u32 v2, {64*i}, v2
        v_mul_u32_u24 v3, 3277, v2
        v_lshrrev_b32 v3, 16, v3            ; row = t/20
        v_mul_u32_u24 v4, 20, v3
        v_sub_u32 v4, v2, v4                ; cp
        v_lshrrev_b32 v5, 1, v3
        v_and_b32 v5, 2, v5
        v_xor_b32 v4, v4, v5
        v_mul_u32_u24 v3, 1280, v3
        v_lshl_add_u32 v3, v4, 4, v3
        v_add_u32 v{vWO[i]}, s{sT2}, v3
        """)
    a(f"""
    s_mul_i32 s{sWK}, s{sJ}, {3*81920}
    s_lshr_b32 s{sT1}, s{sLW}, 1
    s_mul_i32 s{sOK+2}, s{sT1}, 40960
    s_mul_i32 s{sOK+3}, s{sT1}, 10240
    s_add_u32 s{sOK+3}, s{sOK+3}, s{sWM0}
    s_add_u32 s{sT1}, s{sJ}, 1
    s_and_b32 s{sT1}, s{sT1}, 3
    s_mul_i32 s{sOK}, s{sT1}, {3*12288}
    s_mul_i32 s{sOM0}, s{sLW}, 3072
    s_lshl_b32 s{sT1}, s{sB}, 3
    s_add_u32 s{sT1}, s{sT1}, s{sG}
    s_mul_i32 s{sT1}, s{sT1}, 147456
    s_add_u32 s{sT1}, s{sT1}, s{sOM0}
    s_add_u32 s{sT1}, s{sT1}, {cfg.ws_o}
    v_lshlrev_b32 v7, 4, v0
    v_add_u32 v{vOR}, s{sT1}, v7
    v_min_u32 v2, 23, v0
    v_lshlrev_b32 v2, 2, v2
    v_add_u32 v{vP1}, s{sINB}, v2
    v_min_u32 v2, 15, v0
    v_lshlrev_b32 v2, 2, v2
    s_add_u32 s{sT1}, s{sINB}, 128
    v_add_u32 v{vP2}, s{sT1}, v2
    s_lshl_b32 s{sT1}, s{sB}, 2
    s_add_u32 s{sT1}, s{sT1}, s{sJ}
    s_mul_i32 s{sT1}, s{sT1}, 30720
    s_mul_i32 s{sT2}, s{sG}, 983040
    s_add_u32 s{sT1}, s{sT1}, s{sT2}
    s_and_b32 s{sT2}, s{sLW}, 1
    s_mul_i32 s{sT2}, s{sT2}, 15360
    s_add_u32 s{sT1}, s{sT1}, s{sT2}
    v_min_u32 v2, 59, v0
    v_lshlrev_b32 v2, 7, v2
    v_add_u32 v{vPF}, s{sT1}, v2
    s_mul_i32 s{sT0}, s{sG}, 240
    s_mul_i32 s{sT1}, s{sLW}, 60
    s_add_u32 s{sT0}, s{sT0}, s{sT1}
    v_add_u32 v2, s{sT0}, v0                ; Lambda
    s_lshl_b32 s{sT2}, s{sB}, 2
    s_add_u32 s{sT2}, s{sT2}, s{sJ}
    s_mul_i32 s{sT2}, s{sT2}, {8*30720}
    s_add_u32 s{sT2}, s{sT2}, {cfg.ws_p}
    v_lshlrev_b32 v3, 4, v2
    v_add_u32 v{vDL}, s{sT2}, v3
    v_lshrrev_b32 v4, 6, v2                 ; unit
    v_mul_u32_u24 v5, 205, v4
    v_lshrrev_b32 v5, 10, v5
    v_mul_u32_u24 v6, 5, v5
    v_sub_u32 v6, v4, v6                    ; p
    v_and_b32 v7, 15, v2
    v_lshl_add_u32 v7, v5, 4, v7            ; q
    s_mul_i32 s{sT1}, s{sB}, 96
    v_add_u32 v7, s{sT1}, v7
    v_mul_u32_u24 v7, 1280, v7
    v_lshl_add_u32 v7, v6, 6, v7
    v_bfe_u32 v8, v2, 4, 2
    v_lshl_add_u32 v7, v8, 3, v7
    s_mul_i32 s{sT1}, s{sJ}, 320
    v_add_u32 v{vDO}, s{sT1}, v7
    """)
    stamp(a, cfg, 1)
    a.wait_vm(("W", 0), ("X", 0))
    a("s_barrier   ; P")
    stamp(a, cfg, 2)
    for s in range(19):
        a.wait_vm(("W", s + 1), ("X", (s + 1) >> 1))
        if s == 0:
            a.c("wave 7: inbox cleared (its store is older than W1) -> arrive on the group word in d_debug")
            a(f"""
            s_cmp_lg_u32 s{sWAVE}, 7
            s_cbranch_scc1 L_noarr
            s_getreg_b32 s{sT1}, hwreg(HW_REG_XCC_ID, 0, 4)
            s_lshl_b32 s{sT2}, s{sJ}, 2
            s_add_u32 s{sT2}, s{sT2}, 4
            s_lshl_b32 s{sT1}, s{sT1}, s{sT2}
            s_add_u32 s{sT1}, s{sT1}, 1
            s_lshl_b32 s{sT2}, s{sB}, 3
            s_add_u32 s{sT2}, s{sT2}, s{sG}
            s_lshl_b32 s{sT2}, s{sT2}, 2
            v_mov_b32 v2, s{sT1}
            v_mov_b32 v3, s{sT2}
            s_mov_b64 exec, 1
            buffer_atomic_add v2, v3, s[{rDBG}:{rDBG+3}], 0 offen sc1
            s_mov_b64 exec, -1
            """)
            a.label("L_noarr")
        a(f"s_barrier   ; B{s}")
        if s + 4 < 20: ldW(s + 4)
        if s & 1 and (s >> 1) + 3 < 10: ldX((s >> 1) + 3)
        for i, ss in enumerate(cfg.k_sched):
            if ss == s: ldK(i)
        for i, ss in enumerate(cfg.v_sched):
            if ss == s: ldV(i)
        if s in (4, 9, 14): stamp(a, cfg, 3 + (s - 4) // 5)
    a.wait_vm("K")
    stamp(a, cfg, 6)
    a.c("wave 7: check that the 32 workgroups of this batch have cleared their inboxes; same-XCD test")
    a(f"""
    s_cmp_lg_u32 s{sWAVE}, 7
    s_cbranch_scc1 L_nohs
    v_and_b32 v2, 7, v0
    v_lshlrev_b32 v2, 2, v2
    s_lshl_b32 s{sT3}, s{sB}, 5
    """)
    save = list(a.vm)
    def chk():
        a(f"""
        v_and_b32 v4, 7, v3
        v_cmp_eq_u32 vcc, 4, v4
        s_cmp_eq_u64 vcc, -1
        """)
    poll(a, cfg, 2, rDBG, f"s{sT3}", 3, chk)
    a(f"""
    v_readlane_b32 s{sT1}, v3, s{sG}
    s_lshr_b32 s{sT1}, s{sT1}, 4
    s_and_b32 s{sT2}, s{sT1}, 15
    s_mul_i32 s{sT2}, s{sT2}, 0x1111
    s_cmp_eq_u32 s{sT1}, s{sT2}
    s_cselect_b32 s{sT1}, {0 if cfg.force_slow else 1}, 0
    v_mov_b32 v2, {L_FLAG}
    v_mov_b32 v3, s{sT1}
    ds_write_b32 v2, v3
    s_waitcnt lgkmcnt(0)
    """)
    a.label("L_nohs")
    a.vm = save
    a("s_barrier   ; Q")
    a(f"""
    s_cmp_lt_u32 s{sWAVE}, 6
    s_cbranch_scc1 L_phaseB
    """)
    a.c("waves 6,7 during attention: wo prefetch into L2 and the first four wo pairs")
    a.vm = ["V"]
    if cfg.wo_prefetch:
        a.vmem(f"buffer_load_dword v253, v{vPF}, s[{rWO}:{rWO+3}], 0 offen {cfg.polPF}", "pf")
        a(f"s_mov_b32 s{sT0}, 7680")
        a.vmem(f"buffer_load_dword v253, v{vPF}, s[{rWO}:{rWO+3}], s{sT0} offen {cfg.polPF}", "pf")
    ld_wo_pair(a, cfg, 0, True); ld_wo_pair(a, cfg, 1, True)
    a.wait_vm("V")
    a("s_barrier   ; V")
    ld_wo_pair(a, cfg, 2, True); ld_wo_pair(a, cfg, 3, True)
    a.wait_vm(("WO", 0))
    stamp(a, cfg, 12)
    a("s_barrier   ; O1")
    a("s_branch L_loaderC")
    return list(a.vm)


def phaseB(a, cfg):
    a.label("L_phaseB")
    a.reset()
    QF = 88; KF = [112, 136]; S = 16; P = 40; O = 172; VF = 88
    stamp(a, cfg, 7)
    a(f"s_mov_b32 s{sC}, {f32hex(SCALE)}")
    def kread(ks, kt):
        v = vKO if ks & 1 else vKE
        a.ds(f"ds_read_b128 {vr(KF[ks&1]+4*kt)}, v{v} offset:{kt*6144 + (ks>>1)*128}", ("K", ks, kt))
    a.ds(f"ds_read_b128 {vr(QF)}, v{vQR} offset:{L_Q}", ("Q", 0))
    for kt in range(6): kread(0, kt)
    for ks in range(1, 6):
        a.ds(f"ds_read_b128 {vr(QF+4*ks)}, v{vQR} offset:{L_Q + ks*1024}", ("Q", ks))
    a(f"v_mov_b32 v6, {L_FLAG}")
    a.ds("ds_read_b32 v7, v6", "fast")
    for ks in range(6):
        for kt in range(6):
            a.wait_lg(("Q", ks), ("K", ks, kt), *(["fast"] if (ks, kt) == (1, 0) else []))
            a(mfma(S + 4 * kt, KF[ks & 1] + 4 * kt, QF + 4 * ks, first=(ks == 0)))
            if ks < 5: kread(ks + 1, kt)
    a(f"v_readfirstlane_b32 s{sFAST}, v7")
    stamp(a, cfg, 8)
    a("s_waitcnt vmcnt(0)")
    a("s_barrier   ; V")
    stamp(a, cfg, 9)
    def vread(s, Td, slot):
        for e in range(2):
            a.ds(f"ds_read_b64_tr_b16 {vr(VF + 4*slot + 2*e, 2)}, v{vVA[Td & 3]} offset:{(Td>>2)*128 + s*12288 + e*6144}", ("V", s, Td))
    order = [(s, Td) for s in range(3) for Td in range(12)]
    NV = 6
    for i in range(NV): vread(*order[i], i % 18)
    a.c("softmax")
    M, T1, L = 2, 3, 4
    a(f"v_max3_f32 v{M}, v{S}, v{S+1}, v{S+2}")
    for i in range(3, 23, 2):
        a(f"v_max3_f32 v{M}, v{M}, v{S+i}, v{S+i+1}")
    a(f"v_max_f32 v{M}, v{M}, v{S+23}")
    for sw in ("v_permlane16_swap_b32", "v_permlane32_swap_b32"):
        a(f"v_mov_b32 v{T1}, v{M}")
        a(f"{sw} v{M}, v{T1}")
        a(f"v_max_f32 v{M}, v{M}, v{T1}")
    a(f"v_mul_f32 v{M}, s{sC}, v{M}")
    for i in range(24):
        a(f"v_fma_f32 v{S+i}, v{S+i}, s{sC}, -v{M}")
    for i in range(24):
        a(f"v_exp_f32 v{S+i}, v{S+i}")
    for i in range(12):
        a(f"v_cvt_pk_bf16_f32 v{P+i}, v{S+2*i}, v{S+2*i+1}")
    stamp(a, cfg, 10)
    sums = [f"v_add_f32 v{L}, v{S}, v{S+1}", f"v_add_f32 v{L+1}, v{S+2}, v{S+3}"]
    for i in range(4, 24, 2):
        sums.append(f"v_add_f32 v{L}, v{L}, v{S+i}")
        sums.append(f"v_add_f32 v{L+1}, v{L+1}, v{S+i+1}")
    sums.append(f"v_add_f32 v{L}, v{L}, v{L+1}")
    for i, (s, Td) in enumerate(order):
        a.wait_lg(("V", s, Td))
        a(mfma(O + 4 * Td, VF + 4 * (i % 18), P + 4 * s, first=(s == 0)))
        if i + NV < len(order): vread(*order[i + NV], (i + NV) % 18)
        if i >= 6 and sums: a(sums.pop(0))
    while sums: a(sums.pop(0))
    for sw in ("v_permlane16_swap_b32", "v_permlane32_swap_b32"):
        a(f"v_mov_b32 v{T1}, v{L}")
        a(f"{sw} v{L}, v{T1}")
        a(f"v_add_f32 v{L}, v{L}, v{T1}")
    a(f"v_rcp_f32 v{L}, v{L}")
    stamp(a, cfg, 11)
    OB = 88
    for Pp in range(6):
        d = O + 8 * Pp
        for i in range(8): a(f"v_mul_f32 v{d+i}, v{d+i}, v{L}")
        o = OB + 4 * Pp
        for i in range(4): a(f"v_cvt_pk_bf16_f32 v{o+i}, v{d+2*i}, v{d+2*i+1}")
        a.ds(f"ds_write_b128 v{vOL}, {vr(o)} offset:{L_OWN + Pp*6144}", "ow")
    a(f"""
    s_cmp_lg_u32 s{sFAST}, 0
    s_cbranch_scc1 L_ofast
    """)
    for fast in range(2):
        if fast:
            a("s_branch L_odone")
            a.label("L_ofast")
        for Pp in range(6):
            a(f"s_mov_b32 s{sT0}, {cfg.ws_o + Pp*6144}")
            a(f"buffer_store_dwordx4 {vr(OB + 4*Pp)}, v{vOS}, s[{rWS}:{rWS+3}], s{sT0} offen {'' if fast else 'sc0 sc1'}")
    a.label("L_odone")
    a.wait_lg_all()
    stamp(a, cfg, 12)
    a("s_barrier   ; O1")
    a(f"""
    s_cmp_eq_u32 s{sROLE}, 0
    s_cbranch_scc1 L_computeC
    s_waitcnt vmcnt(0)
    """)
    h1_flag(a, cfg, 0)
    a(f"""
    s_mul_i32 s{sT0}, s{sJ}, 3
    s_add_u32 s{sT0}, s{sT0}, 4
    s_cmp_ge_u32 s{sT0}, 12
    s_cselect_b32 s{sT1}, 12, 0
    s_sub_u32 s{sT0}, s{sT0}, s{sT1}
    s_mul_i32 s{sWK}, s{sT0}, 81920
    """)
    a.c("falls through into the phase C loader")


def loaderC(a, cfg, hist):
    a.label("L_loaderC")
    a.reset()
    a.vm = hist
    stamp(a, cfg, 13)
    for p in range(11):
        if p in (1, 2): stamp(a, cfg, 21 + p)
        if p == 2:
            a.c("wait for the siblings' O tiles")
            def chk():
                a(f"v_cmp_eq_u32 vcc, 1, v3")
                a("s_cmp_eq_u64 vcc, -1")
            poll(a, cfg, vP1, rWS, "0", 3, chk)
            if cfg.stamps: a(f"v_writelane_b32 v255, s{sSPIN}, 30")
            stamp(a, cfg, 14)
            for pp in (3, 4, 5): ld_o_pair(a, cfg, pp)
        a.wait_vm(("WO", p + 1), ("O", p + 1))
        if p in (2, 3, 4): stamp(a, cfg, 22 + p)
        a(f"s_barrier   ; C{p}")
        if p + 4 < 12: ld_wo_pair(a, cfg, p + 4, False)
        if p >= 3 and p + 3 < 12: ld_o_pair(a, cfg, p + 3)
        if p in (2, 5, 8): stamp(a, cfg, 15 + (p - 2) // 3)
    stamp(a, cfg, 18)
    a.c("phase D")
    def chk2():
        a(f"v_cmp_eq_u32 vcc, 1, v3")
        a("s_cmp_eq_u64 vcc, -1")
    poll(a, cfg, vP2, rWS, "0", 3, chk2)
    if cfg.stamps: a(f"v_writelane_b32 v255, s{sSPIN}, 31")
    stamp(a, cfg, 19)
    a(f"""
    v_cmp_gt_u32 vcc, 60, v0
    s_and_saveexec_b64 s[{sEX}:{sEX+1}], vcc
    """)
    for g in range(8):
        a(f"s_mov_b32 s{sT0}, {g*30720}")
        a.vmem(f"buffer_load_dwordx4 {vr(16+4*g)}, v{vDL}, s[{rWS}:{rWS+3}], s{sT0} offen sc1", ("p", g))
    A = 48
    a(f"s_mov_b32 s{sT1}, 0xffff0000")
    for g in range(8):
        a.wait_vm(("p", g))
        for i in range(4):
            s = 16 + 4 * g + i
            if g == 0:
                a(f"v_lshlrev_b32 v{A+2*i}, 16, v{s}")
                a(f"v_and_b32 v{A+2*i+1}, s{sT1}, v{s}")
            else:
                a(f"v_lshlrev_b32 v{60+2*i}, 16, v{s}")
                a(f"v_and_b32 v{61+2*i}, s{sT1}, v{s}")
                a(f"v_add_f32 v{A+2*i}, v{A+2*i}, v{60+2*i}")
                a(f"v_add_f32 v{A+2*i+1}, v{A+2*i+1}, v{61+2*i}")
    stamp(a, cfg, 20)
    for i in range(4):
        a(f"v_cvt_pk_bf16_f32 v{16+i}, v{A+2*i}, v{A+2*i+1}")
    a(f"buffer_store_dwordx2 v[16:17], v{vDO}, s[{rOUT}:{rOUT+3}], 0 offen")
    a(f"buffer_store_dwordx2 v[18:19], v{vDO}, s[{rOUT}:{rOUT+3}], 0 offen offset:32")
    a(f"s_mov_b64 exec, s[{sEX}:{sEX+1}]")
    a("s_branch L_fin")


def computeC(a, cfg):
    a.label("L_computeC")
    a.reset()
    ACC = 16
    def acc(T, t): return ACC + (T * 3 + t) * 4
    SETA = [76, 96]; SETB = [116, 128]
    def reads(u):
        st = u & 1
        p = u >> 1
        hi, sl = divmod(p % 4, 2)
        so = sl * 20480 + (u & 1) * 10240
        if u < 6:
            vb, bo = vCB[0], L_OWN + u * 6144
        else:
            vb, bo = vCB[1], ((p - 3) % 3) * 12288 + (u & 1) * 6144
        R = []
        def ra(T):
            R.append((f"ds_read_b64_tr_b16 {vr(SETA[st]+4*T, 2)}, v{vCA[hi][T]} offset:{so}", ("A", u, T)))
            R.append((f"ds_read_b64_tr_b16 {vr(SETA[st]+4*T+2, 2)}, v{vCA[hi][T]} offset:{so+5120}", ("A", u, T)))
        ra(0)
        for t in range(3):
            R.append((f"ds_read_b128 {vr(SETB[st]+4*t)}, v{vb} offset:{bo + t*1024}", ("B", u, t)))
        for T in range(1, 5): ra(T)
        return R
    stamp(a, cfg, 13)
    for ins, tag in reads(0): a.ds(ins, tag)
    for u in range(24):
        if u & 1 and u < 23:
            a.wait_lg_all()
            a(f"s_barrier   ; C{u >> 1}")
        R = reads(u + 1) if u < 23 else []
        st = u & 1
        m = 0
        for T in range(5):
            for t in range(3):
                a.wait_lg(("A", u, T), ("B", u, t))
                a(mfma(acc(T, t), SETA[st] + 4 * T, SETB[st] + 4 * t, first=(u == 0)))
                if m < len(R): a.ds(*R[m])
                m += 1
        if u == cfg.h1_flag_step:
            stamp(a, cfg, 22)
            a("s_waitcnt vmcnt(0)")
            stamp(a, cfg, 23)
            h1_flag(a, cfg, 1)
        if u in (2, 3, 4): stamp(a, cfg, 22 + u)
        if u in (5, 11, 17): stamp(a, cfg, 15 + (u - 5) // 6)
    stamp(a, cfg, 18)
    a.c("partials: wave i=0 -> pairs (0,1),(2,3), half (4) ; i=1 -> half (0), pairs (1,2),(3,4)")
    a(f"""
    s_cmp_lg_u32 s{sI}, 0
    s_cbranch_scc1 L_st1
    """)
    def cv(dst, d):
        a(f"v_cvt_pk_bf16_f32 v{dst}, v{d}, v{d+1}")
        a(f"v_cvt_pk_bf16_f32 v{dst+1}, v{d+2}, v{d+3}")
    for i in range(2):
        if i == 1:
            a("s_branch L_pdone")
            a.label("L_st1")
        pairs = [(0, 1), (2, 3)] if i == 0 else [(1, 2), (3, 4)]
        half = 4 if i == 0 else 0
        n = 0
        for t in range(3):
            for pi, (Ta, Tb) in enumerate(pairs):
                o = 76 + n * 4; n += 1
                cv(o, acc(Ta, t)); cv(o + 2, acc(Tb, t))
                a(f"s_mov_b32 s{sT0}, {t*5120 + pi*1024}")
                a(f"buffer_store_dwordx4 {vr(o)}, v{vPS}, s[{rWS}:{rWS+3}], s{sT0} offen sc0 sc1")
            o = 76 + n * 4; n += 1
            cv(o, acc(half, t))
            a(f"s_mov_b32 s{sT0}, {t*5120}")
            a(f"buffer_store_dwordx2 {vr(o, 2)}, v{vPH}, s[{rWS}:{rWS+3}], s{sT0} offen sc0 sc1")
    a.label("L_pdone")
    stamp(a, cfg, 19)
    a("s_waitcnt vmcnt(0)")
    stamp(a, cfg, 20)
    a(f"""
    s_mov_b64 exec, 15
    buffer_store_dword v{vONE}, v{vF2}, s[{rWS}:{rWS+3}], 0 offen sc0 sc1
    s_mov_b64 exec, -1
    """)


def build(cfg, header=""):
    _lbl[0] = 0
    a = Asm()
    if header: a.raw(header.rstrip("\n"))
    a.raw(f"; @launch grid=(256,1,1) block=(512,1,1) lds={LDS_BYTES}")
    a.raw('.amdgcn_target "amdgcn-amd-amdhsa--gfx950"\n.text')
    prologue(a, cfg)
    computeA(a, cfg)
    hist = loaderA(a, cfg)
    phaseB(a, cfg)
    loaderC(a, cfg, hist)
    computeC(a, cfg)
    a.label("L_fin")
    stamp(a, cfg, 21)
    stamp_flush(a, cfg)
    a.label("L_end")
    a("s_endpgm")
    a.raw(kernel_desc(KN))
    return a.text()


def make(**kw):
    cfg = Cfg()
    for k, v in kw.items(): setattr(cfg, k, v)
    header = open("cdna_kernels/" + NAME + ".s.ref").read().split("; Override launch")[0]
    return build(cfg, header)


if __name__ == "__main__":
    kw = {}
    for kv in sys.argv[2:]:
        k, v = kv.split("=", 1)
        kw[k] = eval(v)
    open(sys.argv[1], "w").write(make(**kw))
```

```python
import sys, math, struct
from asmgen import *

NAME = "standalone__gqa_block_cached__near_ridge"
KN = NAME + "_kernel"

X_BYTES = 768 * 640 * 2
KV_BYTES = 8 * 32 * 96 * 192 * 2
W_BYTES = 640 * 6144 * 2
OUT_BYTES = 768 * 640 * 2
WS_BYTES = 268435456
SCALE = 192 ** -0.5 * math.log2(math.e)

def f32hex(x):
    return "0x%08x" % struct.unpack("<I", struct.pack("<f", x))[0]

sX, sK, sV, sWQ, sWO, sOUT, sDBG, sWS = 4, 6, 8, 10, 12, 14, 16, 18
sWAVE, sG, sB, sJ, sH, sBH = 20, 21, 22, 23, 24, 25
sFAST, sSPIN = 26, 27
rX, rWQ, rK, rV, rWS, rWO, rOUT, rDBG = 28, 32, 36, 40, 44, 48, 52, 68
sT0, sT1, sT2, sT3 = 56, 57, 58, 59
sLW, sM0B, sC, sKVB = 60, 61, 62, 63
sI, sJQ, sROLE = 64, 65, 66
sWM0, sWK, sOM0, sOK = 72, 73, 74, 75
sINB = 76
sSTAMP = 80
sEX = 84

L_W, L_X, L_K, L_V, L_Q = 0, 49152, 86016, 122880, 0
L_FLAG = 159744
L_OWN, L_WO, L_OR = 0, 36864, 122880
LDS_BYTES = 163840


class Cfg:
    stamps = False
    prefetch_code = True
    code_kb = 32
    ws_o = 0x0000000
    ws_p = 0x1000000
    ws_in = 0x2000000
    ws_stamp = 0x4000000
    polW = "nt"
    polX = ""
    polKV = "nt"
    polWO = "nt"
    polPF = "nt"
    wo_prefetch = True
    pretouch = True
    force_slow = False
    k_sched = [4, 5, 6, 7, 8, 9, 10, 11, 12]
    v_sched = [13, 14, 15, 15, 16, 16, 16, 16, 16]
    h1_flag_step = 1
    spin_max = 400000
    polO = 'sc1'
    skip_o = False
    skip_wo = False
    dbg_stamps = None


def stamp(a, cfg, idx):
    if not cfg.stamps: return
    a(f"""
    s_memtime s[{sSTAMP}:{sSTAMP+1}]
    s_waitcnt lgkmcnt(0)
    v_writelane_b32 v255, s{sSTAMP}, {idx}
    """)
    a.lg = []

def stamp_flush(a, cfg):
    if not cfg.stamps: return
    a(f"""
    s_memrealtime s[{sSTAMP}:{sSTAMP+1}]
    s_waitcnt lgkmcnt(0)
    v_writelane_b32 v255, s{sSTAMP}, 33
    s_lshl_b32 s{sT0}, s2, 3
    s_add_u32 s{sT0}, s{sT0}, s{sWAVE}
    s_lshl_b32 s{sT0}, s{sT0}, 8
    s_add_u32 s{sT0}, s{sT0}, {cfg.ws_stamp}
    v_mbcnt_lo_u32_b32 v254, -1, 0
    v_mbcnt_hi_u32_b32 v254, -1, v254
    v_lshlrev_b32 v254, 2, v254
    buffer_store_dword v255, v254, s[{rWS}:{rWS+3}], s{sT0} offen
    """)

def wait_kernarg(a, cfg):
    a("s_waitcnt lgkmcnt(0)")
    if cfg.stamps:
        a(f"v_writelane_b32 v255, s{sSTAMP}, 0")
        a(f"v_writelane_b32 v255, s{sSTAMP+2}, 32")

def mfma(d, A, B, first=False):
    c = "0" if first else vr(d)
    return f"v_mfma_f32_16x16x32_bf16 {vr(d)}, {vr(A)}, {vr(B)}, {c}"

_lbl = [0]
def poll(a, cfg, vaddr, rs, soff, vtmp, check):
    _lbl[0] += 1
    n = _lbl[0]
    a(f"s_mov_b32 s{sSPIN}, 0")
    a.label(f"poll{n}")
    a(f"buffer_load_dword v{vtmp}, v{vaddr}, s[{rs}:{rs+3}], {soff} offen sc1")
    a.wait_vm_all()
    check()
    a(f"""
    s_cbranch_scc1 poll{n}_ok
    s_add_u32 s{sSPIN}, s{sSPIN}, 1
    s_cmp_ge_u32 s{sSPIN}, {cfg.spin_max}
    s_cbranch_scc1 poll{n}_ok
    s_sleep 1
    s_branch poll{n}
    """)
    a.label(f"poll{n}_ok")


vA = [10, 11, 12]; vXe, vXo, vQW = 13, 14, 15
vQR, vKE, vKO, vVA, vOS, vOL, vF1 = 160, 161, 162, [163, 164, 165, 166], 167, 168, 169
vCA = [[220, 221, 222, 223, 224], [225, 226, 227, 228, 229]]; vCB = [230, 231]; vPS, vPH, vF2 = 232, 233, 234
vW = [220, 221, 222]; vXL = [223, 224, 225]; vKA = [226, 227, 228]; vKB = [229, 230, 231]; vV = [232, 233, 234]
vK0 = [235, 236, 237]; vCP = [238, 239, 240]
vWO = [241, 242, 243, 244, 245]; vOR, vDL, vDO, vP1, vP2, vPF = 246, 247, 248, 249, 250, 251
vONE = 252


def prologue(a, cfg):
    a.raw(kernel_header(KN))
    if cfg.stamps:
        a(f"s_memtime s[{sSTAMP}:{sSTAMP+1}]")
        a(f"s_memrealtime s[{sSTAMP+2}:{sSTAMP+3}]")
    a(f"""
    s_cmp_ge_u32 s2, 256
    s_cbranch_scc1 L_end
    s_load_dwordx16 s[4:19], s[0:1], 0
    v_lshrrev_b32 v1, 6, v0
    v_and_b32 v0, 63, v0
    v_readfirstlane_b32 s{sWAVE}, v1
    s_and_b32 s{sG}, s2, 7
    s_lshr_b32 s{sT0}, s2, 3
    s_lshr_b32 s{sB}, s{sT0}, 2
    s_and_b32 s{sJ}, s{sT0}, 3
    s_lshl_b32 s{sH}, s{sG}, 2
    s_add_u32 s{sH}, s{sH}, s{sJ}
    s_lshl_b32 s{sBH}, s{sB}, 5
    s_add_u32 s{sBH}, s{sBH}, s{sH}
    s_lshl_b32 s{sINB}, s{sBH}, 8
    s_add_u32 s{sINB}, s{sINB}, {cfg.ws_in}
    s_cmp_ge_u32 s{sWAVE}, 4
    s_cbranch_scc1 L_loaderA
    """)
    if cfg.prefetch_code:
        a(f"s_getpc_b64 s[{sT2}:{sT2+1}]")
        a.label("L_pc")
        a(f"""
        s_sub_u32 s{sT2}, s{sT2}, L_pc-{KN}
        s_subb_u32 s{sT2+1}, s{sT2+1}, 0
        s_lshl_b32 s{sT0}, s{sWAVE}, 13
        v_lshlrev_b32 v2, 7, v0
        v_add_u32 v2, s{sT0}, v2
        v_min_u32 v2, L_end-{KN}, v2
        global_load_dword v253, v2, s[{sT2}:{sT2+1}]
        """)


def addrB(a, cfg):
    a.c("phase B addresses")
    a(f"""
    v_lshrrev_b32 v2, 4, v0                  ; kq
    v_and_b32 v5, 15, v0                     ; m / n
    s_mul_i32 s{sT2}, s{sWAVE}, 6144
    v_lshlrev_b32 v6, 4, v0
    v_add_u32 v{vQR}, s{sT2}, v6
    v_lshrrev_b32 v7, 1, v5
    v_xor_b32 v7, v7, v2
    v_mul_u32_u24 v8, 384, v5
    v_lshl_add_u32 v8, v7, 4, v8
    v_add_u32 v{vKE}, {L_K}, v8
    v_xor_b32 v{vKO}, 64, v{vKE}
    v_lshrrev_b32 v7, 2, v5                  ; r
    v_lshl_add_u32 v7, v2, 2, v7             ; 4kq + r
    v_mul_u32_u24 v8, 384, v7
    v_and_b32 v3, 3, v0                      ; c
    v_lshl_add_u32 v8, v3, 3, v8
    v_add_u32 v8, {L_V}, v8
    v_bfe_u32 v7, v7, 1, 2                   ; h
    """)
    for i in range(4):
        a(f"v_xor_b32 v3, {i}, v7")
        a(f"v_lshl_add_u32 v{vVA[i]}, v3, 5, v8")
    a(f"""
    s_lshl_b32 s{sT2}, s{sB}, 3
    s_add_u32 s{sT2}, s{sT2}, s{sG}
    s_mul_i32 s{sT2}, s{sT2}, 24
    s_mul_i32 s{sT3}, s{sJ}, 6
    s_add_u32 s{sT2}, s{sT2}, s{sT3}
    s_mul_i32 s{sT2}, s{sT2}, 6144
    s_lshl_b32 s{sT3}, s{sWAVE}, 10
    s_add_u32 s{sT2}, s{sT2}, s{sT3}
    v_add_u32 v{vOS}, s{sT2}, v6
    v_add_u32 v{vOL}, s{sT3}, v6
    s_lshl_b32 s{sT2}, s{sJ}, 8
    s_sub_u32 s{sT2}, s{sINB}, s{sT2}
    s_mul_i32 s{sT3}, s{sJ}, 24
    s_add_u32 s{sT2}, s{sT2}, s{sT3}
    s_lshl_b32 s{sT3}, s{sWAVE}, 2
    s_add_u32 s{sT2}, s{sT2}, s{sT3}
    v_and_b32 v3, 3, v0
    v_lshlrev_b32 v3, 8, v3
    v_add_u32 v{vF1}, s{sT2}, v3
    v_mov_b32 v{vONE}, 1
    """)


def h1_flag(a, cfg, n):
    a(f"""
    s_mov_b64 exec, 15
    s_cmp_lg_u32 s{sFAST}, 0
    s_cbranch_scc1 L_f1fast{n}
    """)
    a(f"buffer_store_dword v{vONE}, v{vF1}, s[{rWS}:{rWS+3}], 0 offen sc0 sc1")
    a(f"s_branch L_f1done{n}")
    a.label(f"L_f1fast{n}")
    a.vmem(f"buffer_store_dword v{vONE}, v{vF1}, s[{rWS}:{rWS+3}], 0 offen", "flag")
    a.label(f"L_f1done{n}")
    a("s_mov_b64 exec, -1")


def computeA(a, cfg):
    ACC = 16
    def acc(T, t): return ACC + (T * 6 + t) * 4
    SETA = [88, 124]; SETB = [100, 136]
    a(f"s_mov_b32 s{sROLE}, 0")
    a.c("phase A addresses: v2=kq v3=r v4=c v5=n")
    a(f"""
    v_lshrrev_b32 v2, 4, v0
    v_bfe_u32 v3, v0, 2, 2
    v_and_b32 v4, 3, v0
    v_and_b32 v5, 15, v0
    v_lshlrev_b32 v6, 3, v2
    v_add_u32 v6, v6, v3                     ; k = 8kq + r
    v_mul_u32_u24 v6, 384, v6
    v_lshl_add_u32 v6, v4, 3, v6             ; k*384 + 8c
    v_lshrrev_b32 v7, 1, v3
    v_and_b32 v8, 1, v2
    v_lshl_or_b32 v7, v8, 1, v7              ; h(k)
    s_mul_i32 s{sT0}, s{sWAVE}, 3
    """)
    for T in range(3):
        a(f"""
        s_add_u32 s{sT1}, s{sT0}, {T}
        v_xor_b32 v8, s{sT1}, v7
        v_lshl_add_u32 v{vA[T]}, v8, 5, v6
        """)
    a(f"""
    v_lshrrev_b32 v6, 1, v5                  ; (n>>1)&7
    v_xor_b32 v6, v6, v2
    v_lshlrev_b32 v6, 4, v6
    v_lshl_add_u32 v6, v5, 7, v6
    v_add_u32 v{vXe}, {L_X}, v6
    v_xor_b32 v{vXo}, 64, v{vXe}
    v_lshrrev_b32 v6, 1, v2
    v_lshlrev_b32 v6, 8, v6
    v_lshl_add_u32 v6, v5, 4, v6
    v_and_b32 v7, 1, v2
    v_lshl_add_u32 v6, v7, 3, v6
    s_mul_i32 s{sT0}, s{sWAVE}, 1536
    v_add_u32 v{vQW}, s{sT0}, v6
    """)
    addrB(a, cfg)
    a.c("phase C addresses")
    a(f"""
    s_and_b32 s{sI}, s{sWAVE}, 1
    s_lshr_b32 s{sJQ}, s{sWAVE}, 1
    v_lshrrev_b32 v2, 4, v0                  ; kq
    v_bfe_u32 v3, v0, 2, 2                   ; r
    v_and_b32 v4, 3, v0                      ; c
    v_lshl_add_u32 v6, v2, 2, v3             ; 4kq + r
    v_mul_u32_u24 v6, 320, v6
    v_lshl_add_u32 v6, v4, 3, v6
    v_add_u32 v6, {L_WO}, v6
    v_and_b32 v7, 1, v2
    s_mul_i32 s{sT0}, s{sI}, 5
    """)
    for T in range(5):
        a(f"""
        s_add_u32 s{sT1}, s{sT0}, {T}
        v_xor_b32 v8, s{sT1}, v7
        v_lshl_add_u32 v{vCA[0][T]}, v8, 5, v6
        v_add_u32 v{vCA[1][T]}, 40960, v{vCA[0][T]}
        """)
    a(f"""
    s_mul_i32 s{sT0}, s{sJQ}, 3072
    v_lshlrev_b32 v6, 4, v0
    v_add_u32 v{vCB[0]}, s{sT0}, v6
    v_add_u32 v{vCB[1]}, {L_OR}, v{vCB[0]}
    s_lshl_b32 s{sT0}, s{sB}, 2
    s_add_u32 s{sT0}, s{sT0}, s{sJ}
    s_lshl_b32 s{sT0}, s{sT0}, 3
    s_add_u32 s{sT0}, s{sT0}, s{sG}
    s_mul_i32 s{sT0}, s{sT0}, 30720
    s_mul_i32 s{sT1}, s{sJQ}, 15360
    s_add_u32 s{sT0}, s{sT0}, s{sT1}
    s_add_u32 s{sT0}, s{sT0}, {cfg.ws_p}
    s_mul_i32 s{sT1}, s{sI}, 3072
    s_add_u32 s{sT1}, s{sT1}, s{sT0}
    v_add_u32 v{vPS}, s{sT1}, v6
    s_lshl_b32 s{sT1}, s{sI}, 3
    s_add_u32 s{sT1}, s{sT1}, s{sT0}
    s_add_u32 s{sT1}, s{sT1}, 2048
    v_add_u32 v{vPH}, s{sT1}, v6
    s_lshl_b32 s{sT0}, s{sB}, 5
    s_lshl_b32 s{sT1}, s{sJQ}, 4
    s_add_u32 s{sT0}, s{sT0}, s{sT1}
    s_add_u32 s{sT0}, s{sT0}, s{sJ}
    s_lshl_b32 s{sT0}, s{sT0}, 8
    s_lshl_b32 s{sT1}, s{sG}, 3
    s_add_u32 s{sT0}, s{sT0}, s{sT1}
    s_lshl_b32 s{sT1}, s{sI}, 2
    s_add_u32 s{sT0}, s{sT0}, s{sT1}
    s_add_u32 s{sT0}, s{sT0}, {cfg.ws_in + 128}
    v_and_b32 v3, 3, v0
    v_lshlrev_b32 v3, 10, v3
    v_add_u32 v{vF2}, s{sT0}, v3
    """)
    wait_kernarg(a, cfg)
    srd(a, rWS, sWS, WS_BYTES)
    if cfg.pretouch:
        a(f"""
        s_cmp_lg_u32 s{sWAVE}, 1
        s_cbranch_scc1 L_notouch
        """)
        srd(a, rK, sK, KV_BYTES); srd(a, rV, sV, KV_BYTES); srd(a, rWO, sWO, W_BYTES); srd(a, rOUT, sOUT, OUT_BYTES)
        a(f"""
        s_mov_b64 exec, 3
        v_mul_u32_u24 v2, 36860, v0
        s_mul_i32 s{sT0}, s{sBH}, 36864
        buffer_load_dword v253, v2, s[{rK}:{rK+3}], s{sT0} offen nt
        buffer_load_dword v253, v2, s[{rV}:{rV+3}], s{sT0} offen nt
        v_mul_u32_u24 v2, 983036, v0
        s_mul_i32 s{sT0}, s{sG}, 983040
        buffer_load_dword v253, v2, s[{rWO}:{rWO+3}], s{sT0} offen nt
        buffer_load_dword v253, v2, s[{rOUT}:{rOUT+3}], 0 offen nt
        buffer_load_dword v253, v{vOS}, s[{rWS}:{rWS+3}], 0 offen nt
        buffer_load_dword v253, v{vPS}, s[{rWS}:{rWS+3}], 0 offen nt
        s_mov_b64 exec, -1
        """)
        a.label("L_notouch")
    stamp(a, cfg, 1)

    def reads(s):
        st = s & 1
        wo = L_W + (s % 4) * 12288
        xo = ((s >> 1) % 3) * 12288
        vx = vXo if s & 1 else vXe
        R = []
        def ra(T):
            R.append((f"ds_read_b64_tr_b16 {vr(SETA[st]+4*T, 2)}, v{vA[T]} offset:{wo}", ("A", s, T)))
            R.append((f"ds_read_b64_tr_b16 {vr(SETA[st]+4*T+2, 2)}, v{vA[T]} offset:{wo+1536}", ("A", s, T)))
        ra(0)
        for t in range(6):
            R.append((f"ds_read_b128 {vr(SETB[st]+4*t)}, v{vx} offset:{xo + t*2048}", ("B", s, t)))
        ra(1); ra(2)
        return R

    a("s_barrier   ; P")
    stamp(a, cfg, 2)
    for ins, tag in reads(0): a.ds(ins, tag)
    for s in range(20):
        a.wait_lg_all()
        if s < 19:
            a(f"s_barrier   ; B{s}")
        R = reads(s + 1) if s < 19 else []
        st = s & 1
        m = 0
        for T in range(3):
            for t in range(6):
                a(mfma(acc(T, t), SETA[st] + 4 * T, SETB[st] + 4 * t, first=(s == 0)))
                if m < len(R): a.ds(*R[m])
                m += 1
        if s in (4, 9, 14): stamp(a, cfg, 3 + (s - 4) // 5)
    stamp(a, cfg, 6)
    a.c("Q -> bf16 -> LDS (fragment-major)")
    for T in range(3):
        for t in range(6):
            d = acc(T, t)
            tmp = 88 + ((T * 6 + t) % 8) * 2
            a(f"v_cvt_pk_bf16_f32 v{tmp}, v{d}, v{d+1}")
            a(f"v_cvt_pk_bf16_f32 v{tmp+1}, v{d+2}, v{d+3}")
            a.ds(f"ds_write_b64 v{vQW}, {vr(tmp, 2)} offset:{L_Q + 512*T + 6144*t}", "qw")
    a.wait_lg_all()
    a("s_barrier   ; Q")
    a("s_branch L_phaseB")


def dma(a, vaddr, rs, soff, ldsoff, tag, base, pol=""):
    a(f"s_add_u32 m0, s{base}, {ldsoff}")
    if isinstance(soff, str):
        so = soff
        a("s_nop 0")
    else:
        a(f"s_mov_b32 s{sT0}, {soff}")
        so = f"s{sT0}"
    a.vmem(f"buffer_load_dwordx4 v{vaddr}, s[{rs}:{rs+3}], {so} offen {pol} lds", tag)


def ld_wo_pair(a, cfg, p, both):
    slot = L_WO + (p % 4) * 20480
    if both:
        for e in range(2):
            a(f"s_add_u32 s{sT3}, s{sWK}, {e*40960}")
            for i in range(5):
                dma(a, vWO[i], rWO, f"s{sT3}", slot + e * 10240 + i * 1024, ("WO", p), sWM0, cfg.polWO)
    else:
        a(f"s_add_u32 s{sT3}, s{sWK}, s{sOK+2}")
        for i in range(0 if cfg.skip_wo else 5):
            dma(a, vWO[i], rWO, f"s{sT3}", slot + i * 1024, ("WO", p), sOK + 3, cfg.polWO)
    a(f"""
    s_add_u32 s{sWK}, s{sWK}, 81920
    s_cmp_eq_u32 s{sWK}, {12*81920}
    s_cselect_b32 s{sWK}, 0, s{sWK}
    """)

def ld_o_pair(a, cfg, p):
    slot = L_OR + ((p - 3) % 3) * 12288
    a(f"s_add_u32 m0, s{sOM0}, {slot}")
    a("s_nop 0")
    for i in range(0 if cfg.skip_o else 3):
        a.vmem(f"buffer_load_dwordx4 v{vOR}, s[{rWS}:{rWS+3}], s{sOK} offen offset:{i*1024} {cfg.polO} lds", ("O", p))
    a(f"""
    s_add_u32 s{sOK}, s{sOK}, 12288
    s_cmp_eq_u32 s{sOK}, {12*12288}
    s_cselect_b32 s{sOK}, 0, s{sOK}
    """)


def loaderA(a, cfg):
    a.label("L_loaderA")
    a.reset()
    a(f"s_mov_b32 s{sROLE}, 1")
    a(f"s_sub_u32 s{sLW}, s{sWAVE}, 4")
    a(f"s_mul_i32 s{sT0}, s{sLW}, {8*12288}")
    a(f"s_mul_i32 s{sT1}, s{sH}, 384")
    a(f"s_add_u32 s{sT0}, s{sT0}, s{sT1}")
    a(f"s_and_b32 s{sT1}, s{sLW}, 1")
    a(f"s_lshl_b32 s{sT1}, s{sT1}, 2")
    for i in range(3):
        a(f"""
        v_add_u32 v2, {64*i}, v0
        v_mul_u32_u24 v3, 2731, v2
        v_lshrrev_b32 v{vK0[i]}, 16, v3
        v_mul_u32_u24 v4, 24, v{vK0[i]}
        v_sub_u32 v{vCP[i]}, v2, v4
        v_and_b32 v5, 2, v{vK0[i]}
        v_or_b32 v5, s{sT1}, v5
        v_xor_b32 v5, v5, v{vCP[i]}
        v_mul_u32_u24 v6, 12288, v{vK0[i]}
        v_lshl_add_u32 v6, v5, 4, v6
        v_add_u32 v{vW[i]}, s{sT0}, v6
        """)
    a(f"""
    s_mul_i32 s{sT2}, s{sB}, 96
    s_mul_i32 s{sT3}, s{sLW}, 24
    s_add_u32 s{sT2}, s{sT2}, s{sT3}
    s_mul_i32 s{sT2}, s{sT2}, 1280
    v_lshrrev_b32 v2, 3, v0
    v_mul_u32_u24 v2, 1280, v2
    v_and_b32 v3, 7, v0
    v_lshrrev_b32 v4, 4, v0
    v_xor_b32 v3, v3, v4
    v_xor_b32 v3, s{sT1}, v3
    v_lshl_add_u32 v{vXL[0]}, v3, 4, v2
    v_add_u32 v{vXL[0]}, s{sT2}, v{vXL[0]}
    v_xor_b32 v3, 4, v3
    v_lshl_add_u32 v{vXL[1]}, v3, 4, v2
    s_add_u32 s{sT3}, s{sT2}, {8*1280}
    v_add_u32 v{vXL[1]}, s{sT3}, v{vXL[1]}
    v_add_u32 v{vXL[2]}, {16*1280}, v{vXL[0]}
    s_mul_i32 s{sM0B}, s{sLW}, 3072
    """)
    wait_kernarg(a, cfg)
    srd(a, rWQ, sWQ, W_BYTES)
    srd(a, rX, sX, X_BYTES)

    def ldW(s):
        for i in range(3): dma(a, vW[i], rWQ, s * 32 * 12288, L_W + (s % 4) * 12288 + i * 1024, ("W", s), sM0B, cfg.polW)
    def ldX(m):
        for i in range(3): dma(a, vXL[i], rX, m * 128, L_X + (m % 3) * 12288 + i * 1024, ("X", m), sM0B, cfg.polX)
    def ldK(i):
        i1, i0 = divmod(i, 3)
        dma(a, (vKB if i1 & 1 else vKA)[i0], rK, i1 * 3072, L_K + i * 1024, "K", sKVB, cfg.polKV)
    def ldV(i):
        i1, i0 = divmod(i, 3)
        dma(a, vV[i0], rV, i1 * 3072, L_V + i * 1024, "V", sKVB, cfg.polKV)

    ldW(0); ldX(0)
    srd(a, rWS, sWS, WS_BYTES)
    srd(a, rDBG, sDBG, 256)
    a.c("wave 7: clear this workgroup's inbox")
    a(f"""
    s_cmp_lg_u32 s{sWAVE}, 7
    s_cbranch_scc1 L_noclr
    v_lshlrev_b32 v2, 2, v0
    v_mov_b32 v3, 0
    buffer_store_dword v3, v2, s[{rWS}:{rWS+3}], s{sINB} offen sc0 sc1
    """)
    a.label("L_noclr")
    ldW(1)
    srd(a, rK, sK, KV_BYTES)
    srd(a, rV, sV, KV_BYTES)
    srd(a, rWO, sWO, W_BYTES)
    srd(a, rOUT, sOUT, OUT_BYTES)
    a(f"""
    s_mul_i32 s{sKVB}, s{sLW}, 9216
    s_mul_i32 s{sT2}, s{sBH}, 36864
    s_add_u32 s{sT2}, s{sT2}, s{sKVB}
    """)
    for i in range(3):
        a(f"""
        v_mul_u32_u24 v6, 384, v{vK0[i]}
        v_add_u32 v6, s{sT2}, v6
        v_lshrrev_b32 v3, 1, v{vK0[i]}
        v_xor_b32 v4, v3, v{vCP[i]}
        v_xor_b32 v4, s{sT1}, v4
        v_lshl_add_u32 v{vKA[i]}, v4, 4, v6
        v_xor_b32 v4, 4, v4
        v_lshl_add_u32 v{vKB[i]}, v4, 4, v6
        v_lshlrev_b32 v3, 1, v3
        v_xor_b32 v4, v3, v{vCP[i]}
        v_lshl_add_u32 v{vV[i]}, v4, 4, v6
        """)
    ldW(2); ldX(1); ldW(3); ldX(2)
    addrB(a, cfg)
    a.c("phase C / D loader addresses")
    a(f"""
    s_and_b32 s{sT1}, s{sLW}, 1
    s_mul_i32 s{sWM0}, s{sT1}, 5120
    s_mul_i32 s{sT1}, s{sT1}, 320
    s_mul_i32 s{sT2}, s{sG}, {768*1280}
    s_mul_i32 s{sT3}, s{sJ}, 320
    s_add_u32 s{sT2}, s{sT2}, s{sT3}
    """)
    for i in range(5):
        a(f"""
        v_add_u32 v2, s{sT1}, v0
        v_add_u32 v2, {64*i}, v2
        v_mul_u32_u24 v3, 3277, v2
        v_lshrrev_b32 v3, 16, v3            ; row = t/20
        v_mul_u32_u24 v4, 20, v3
        v_sub_u32 v4, v2, v4                ; cp
        v_lshrrev_b32 v5, 1, v3
        v_and_b32 v5, 2, v5
        v_xor_b32 v4, v4, v5
        v_mul_u32_u24 v3, 1280, v3
        v_lshl_add_u32 v3, v4, 4, v3
        v_add_u32 v{vWO[i]}, s{sT2}, v3
        """)
    a(f"""
    s_mul_i32 s{sWK}, s{sJ}, {3*81920}
    s_lshr_b32 s{sT1}, s{sLW}, 1
    s_mul_i32 s{sOK+2}, s{sT1}, 40960
    s_mul_i32 s{sOK+3}, s{sT1}, 10240
    s_add_u32 s{sOK+3}, s{sOK+3}, s{sWM0}
    s_add_u32 s{sT1}, s{sJ}, 1
    s_and_b32 s{sT1}, s{sT1}, 3
    s_mul_i32 s{sOK}, s{sT1}, {3*12288}
    s_mul_i32 s{sOM0}, s{sLW}, 3072
    s_lshl_b32 s{sT1}, s{sB}, 3
    s_add_u32 s{sT1}, s{sT1}, s{sG}
    s_mul_i32 s{sT1}, s{sT1}, 147456
    s_add_u32 s{sT1}, s{sT1}, s{sOM0}
    s_add_u32 s{sT1}, s{sT1}, {cfg.ws_o}
    v_lshlrev_b32 v7, 4, v0
    v_add_u32 v{vOR}, s{sT1}, v7
    v_min_u32 v2, 23, v0
    v_lshlrev_b32 v2, 2, v2
    v_add_u32 v{vP1}, s{sINB}, v2
    v_min_u32 v2, 15, v0
    v_lshlrev_b32 v2, 2, v2
    s_add_u32 s{sT1}, s{sINB}, 128
    v_add_u32 v{vP2}, s{sT1}, v2
    s_lshl_b32 s{sT1}, s{sB}, 2
    s_add_u32 s{sT1}, s{sT1}, s{sJ}
    s_mul_i32 s{sT1}, s{sT1}, 30720
    s_mul_i32 s{sT2}, s{sG}, 983040
    s_add_u32 s{sT1}, s{sT1}, s{sT2}
    s_and_b32 s{sT2}, s{sLW}, 1
    s_mul_i32 s{sT2}, s{sT2}, 15360
    s_add_u32 s{sT1}, s{sT1}, s{sT2}
    v_min_u32 v2, 59, v0
    v_lshlrev_b32 v2, 7, v2
    v_add_u32 v{vPF}, s{sT1}, v2
    s_mul_i32 s{sT0}, s{sG}, 240
    s_mul_i32 s{sT1}, s{sLW}, 60
    s_add_u32 s{sT0}, s{sT0}, s{sT1}
    v_add_u32 v2, s{sT0}, v0                ; Lambda
    s_lshl_b32 s{sT2}, s{sB}, 2
    s_add_u32 s{sT2}, s{sT2}, s{sJ}
    s_mul_i32 s{sT2}, s{sT2}, {8*30720}
    s_add_u32 s{sT2}, s{sT2}, {cfg.ws_p}
    v_lshlrev_b32 v3, 4, v2
    v_add_u32 v{vDL}, s{sT2}, v3
    v_lshrrev_b32 v4, 6, v2                 ; unit
    v_mul_u32_u24 v5, 205, v4
    v_lshrrev_b32 v5, 10, v5
    v_mul_u32_u24 v6, 5, v5
    v_sub_u32 v6, v4, v6                    ; p
    v_and_b32 v7, 15, v2
    v_lshl_add_u32 v7, v5, 4, v7            ; q
    s_mul_i32 s{sT1}, s{sB}, 96
    v_add_u32 v7, s{sT1}, v7
    v_mul_u32_u24 v7, 1280, v7
    v_lshl_add_u32 v7, v6, 6, v7
    v_bfe_u32 v8, v2, 4, 2
    v_lshl_add_u32 v7, v8, 3, v7
    s_mul_i32 s{sT1}, s{sJ}, 320
    v_add_u32 v{vDO}, s{sT1}, v7
    """)
    stamp(a, cfg, 1)
    a.wait_vm(("W", 0), ("X", 0))
    a("s_barrier   ; P")
    stamp(a, cfg, 2)
    for s in range(19):
        a.wait_vm(("W", s + 1), ("X", (s + 1) >> 1))
        if s == 0:
            a.c("wave 7: inbox cleared (its store is older than W1) -> arrive on the group word in d_debug")
            a(f"""
            s_cmp_lg_u32 s{sWAVE}, 7
            s_cbranch_scc1 L_noarr
            s_getreg_b32 s{sT1}, hwreg(HW_REG_XCC_ID, 0, 4)
            s_lshl_b32 s{sT2}, s{sJ}, 2
            s_add_u32 s{sT2}, s{sT2}, 4
            s_lshl_b32 s{sT1}, s{sT1}, s{sT2}
            s_add_u32 s{sT1}, s{sT1}, 1
            s_lshl_b32 s{sT2}, s{sB}, 3
            s_add_u32 s{sT2}, s{sT2}, s{sG}
            s_lshl_b32 s{sT2}, s{sT2}, 2
            v_mov_b32 v2, s{sT1}
            v_mov_b32 v3, s{sT2}
            s_mov_b64 exec, 1
            buffer_atomic_add v2, v3, s[{rDBG}:{rDBG+3}], 0 offen sc1
            s_mov_b64 exec, -1
            """)
            a.label("L_noarr")
        a(f"s_barrier   ; B{s}")
        if s + 4 < 20: ldW(s + 4)
        if s & 1 and (s >> 1) + 3 < 10: ldX((s >> 1) + 3)
        for i, ss in enumerate(cfg.k_sched):
            if ss == s: ldK(i)
        for i, ss in enumerate(cfg.v_sched):
            if ss == s: ldV(i)
        if s in (4, 9, 14): stamp(a, cfg, 3 + (s - 4) // 5)
    a.wait_vm("K")
    stamp(a, cfg, 6)
    a.c("wave 7: check that the 32 workgroups of this batch have cleared their inboxes; same-XCD test")
    a(f"""
    s_cmp_lg_u32 s{sWAVE}, 7
    s_cbranch_scc1 L_nohs
    v_and_b32 v2, 7, v0
    v_lshlrev_b32 v2, 2, v2
    s_lshl_b32 s{sT3}, s{sB}, 5
    """)
    save = list(a.vm)
    def chk():
        a(f"""
        v_and_b32 v4, 7, v3
        v_cmp_eq_u32 vcc, 4, v4
        s_cmp_eq_u64 vcc, -1
        """)
    poll(a, cfg, 2, rDBG, f"s{sT3}", 3, chk)
    a(f"""
    v_readlane_b32 s{sT1}, v3, s{sG}
    s_lshr_b32 s{sT1}, s{sT1}, 4
    s_and_b32 s{sT2}, s{sT1}, 15
    s_mul_i32 s{sT2}, s{sT2}, 0x1111
    s_cmp_eq_u32 s{sT1}, s{sT2}
    s_cselect_b32 s{sT1}, {0 if cfg.force_slow else 1}, 0
    v_mov_b32 v2, {L_FLAG}
    v_mov_b32 v3, s{sT1}
    ds_write_b32 v2, v3
    s_waitcnt lgkmcnt(0)
    """)
    a.label("L_nohs")
    a.vm = save
    a("s_barrier   ; Q")
    a(f"""
    s_cmp_lt_u32 s{sWAVE}, 6
    s_cbranch_scc1 L_phaseB
    """)
    a.c("waves 6,7 during attention: wo prefetch into L2 and the first four wo pairs")
    a.vm = ["V"]
    if cfg.wo_prefetch:
        a.vmem(f"buffer_load_dword v253, v{vPF}, s[{rWO}:{rWO+3}], 0 offen {cfg.polPF}", "pf")
        a(f"s_mov_b32 s{sT0}, 7680")
        a.vmem(f"buffer_load_dword v253, v{vPF}, s[{rWO}:{rWO+3}], s{sT0} offen {cfg.polPF}", "pf")
    ld_wo_pair(a, cfg, 0, True); ld_wo_pair(a, cfg, 1, True)
    a.wait_vm("V")
    a("s_barrier   ; V")
    ld_wo_pair(a, cfg, 2, True); ld_wo_pair(a, cfg, 3, True)
    a.wait_vm(("WO", 0))
    stamp(a, cfg, 12)
    a("s_barrier   ; O1")
    a("s_branch L_loaderC")
    return list(a.vm)


def phaseB(a, cfg):
    a.label("L_phaseB")
    a.reset()
    QF = 88; KF = [112, 136]; S = 16; P = 40; O = 172; VF = 88
    stamp(a, cfg, 7)
    a(f"s_mov_b32 s{sC}, {f32hex(SCALE)}")
    def kread(ks, kt):
        v = vKO if ks & 1 else vKE
        a.ds(f"ds_read_b128 {vr(KF[ks&1]+4*kt)}, v{v} offset:{kt*6144 + (ks>>1)*128}", ("K", ks, kt))
    a.ds(f"ds_read_b128 {vr(QF)}, v{vQR} offset:{L_Q}", ("Q", 0))
    for kt in range(6): kread(0, kt)
    for ks in range(1, 6):
        a.ds(f"ds_read_b128 {vr(QF+4*ks)}, v{vQR} offset:{L_Q + ks*1024}", ("Q", ks))
    a(f"v_mov_b32 v6, {L_FLAG}")
    a.ds("ds_read_b32 v7, v6", "fast")
    for ks in range(6):
        for kt in range(6):
            a.wait_lg(("Q", ks), ("K", ks, kt), *(["fast"] if (ks, kt) == (1, 0) else []))
            a(mfma(S + 4 * kt, KF[ks & 1] + 4 * kt, QF + 4 * ks, first=(ks == 0)))
            if ks < 5: kread(ks + 1, kt)
    a(f"v_readfirstlane_b32 s{sFAST}, v7")
    stamp(a, cfg, 8)
    a("s_waitcnt vmcnt(0)")
    a("s_barrier   ; V")
    stamp(a, cfg, 9)
    def vread(s, Td, slot):
        for e in range(2):
            a.ds(f"ds_read_b64_tr_b16 {vr(VF + 4*slot + 2*e, 2)}, v{vVA[Td & 3]} offset:{(Td>>2)*128 + s*12288 + e*6144}", ("V", s, Td))
    order = [(s, Td) for s in range(3) for Td in range(12)]
    NV = 6
    for i in range(NV): vread(*order[i], i % 18)
    a.c("softmax")
    M, T1, L = 2, 3, 4
    a(f"v_max3_f32 v{M}, v{S}, v{S+1}, v{S+2}")
    for i in range(3, 23, 2):
        a(f"v_max3_f32 v{M}, v{M}, v{S+i}, v{S+i+1}")
    a(f"v_max_f32 v{M}, v{M}, v{S+23}")
    for sw in ("v_permlane16_swap_b32", "v_permlane32_swap_b32"):
        a(f"v_mov_b32 v{T1}, v{M}")
        a(f"{sw} v{M}, v{T1}")
        a(f"v_max_f32 v{M}, v{M}, v{T1}")
    a(f"v_mul_f32 v{M}, s{sC}, v{M}")
    for i in range(24):
        a(f"v_fma_f32 v{S+i}, v{S+i}, s{sC}, -v{M}")
    for i in range(24):
        a(f"v_exp_f32 v{S+i}, v{S+i}")
    for i in range(12):
        a(f"v_cvt_pk_bf16_f32 v{P+i}, v{S+2*i}, v{S+2*i+1}")
    stamp(a, cfg, 10)
    sums = [f"v_add_f32 v{L}, v{S}, v{S+1}", f"v_add_f32 v{L+1}, v{S+2}, v{S+3}"]
    for i in range(4, 24, 2):
        sums.append(f"v_add_f32 v{L}, v{L}, v{S+i}")
        sums.append(f"v_add_f32 v{L+1}, v{L+1}, v{S+i+1}")
    sums.append(f"v_add_f32 v{L}, v{L}, v{L+1}")
    for i, (s, Td) in enumerate(order):
        a.wait_lg(("V", s, Td))
        a(mfma(O + 4 * Td, VF + 4 * (i % 18), P + 4 * s, first=(s == 0)))
        if i + NV < len(order): vread(*order[i + NV], (i + NV) % 18)
        if i >= 6 and sums: a(sums.pop(0))
    while sums: a(sums.pop(0))
    for sw in ("v_permlane16_swap_b32", "v_permlane32_swap_b32"):
        a(f"v_mov_b32 v{T1}, v{L}")
        a(f"{sw} v{L}, v{T1}")
        a(f"v_add_f32 v{L}, v{L}, v{T1}")
    a(f"v_rcp_f32 v{L}, v{L}")
    stamp(a, cfg, 11)
    OB = 88
    for Pp in range(6):
        d = O + 8 * Pp
        for i in range(8): a(f"v_mul_f32 v{d+i}, v{d+i}, v{L}")
        o = OB + 4 * Pp
        for i in range(4): a(f"v_cvt_pk_bf16_f32 v{o+i}, v{d+2*i}, v{d+2*i+1}")
        a.ds(f"ds_write_b128 v{vOL}, {vr(o)} offset:{L_OWN + Pp*6144}", "ow")
    a(f"""
    s_cmp_lg_u32 s{sFAST}, 0
    s_cbranch_scc1 L_ofast
    """)
    for fast in range(2):
        if fast:
            a("s_branch L_odone")
            a.label("L_ofast")
        for Pp in range(6):
            a(f"s_mov_b32 s{sT0}, {cfg.ws_o + Pp*6144}")
            a(f"buffer_store_dwordx4 {vr(OB + 4*Pp)}, v{vOS}, s[{rWS}:{rWS+3}], s{sT0} offen {'' if fast else 'sc0 sc1'}")
    a.label("L_odone")
    a.wait_lg_all()
    stamp(a, cfg, 12)
    a("s_barrier   ; O1")
    a(f"""
    s_cmp_eq_u32 s{sROLE}, 0
    s_cbranch_scc1 L_computeC
    s_waitcnt vmcnt(0)
    """)
    h1_flag(a, cfg, 0)
    a(f"""
    s_mul_i32 s{sT0}, s{sJ}, 3
    s_add_u32 s{sT0}, s{sT0}, 4
    s_cmp_ge_u32 s{sT0}, 12
    s_cselect_b32 s{sT1}, 12, 0
    s_sub_u32 s{sT0}, s{sT0}, s{sT1}
    s_mul_i32 s{sWK}, s{sT0}, 81920
    """)
    a.c("falls through into the phase C loader")


def loaderC(a, cfg, hist):
    a.label("L_loaderC")
    a.reset()
    a.vm = hist
    stamp(a, cfg, 13)
    for p in range(11):
        if p in (1, 2): stamp(a, cfg, 21 + p)
        if p == 2:
            a.c("wait for the siblings' O tiles")
            def chk():
                a(f"v_cmp_eq_u32 vcc, 1, v3")
                a("s_cmp_eq_u64 vcc, -1")
            poll(a, cfg, vP1, rWS, "0", 3, chk)
            if cfg.stamps: a(f"v_writelane_b32 v255, s{sSPIN}, 30")
            stamp(a, cfg, 14)
            for pp in (3, 4, 5): ld_o_pair(a, cfg, pp)
        a.wait_vm(("WO", p + 1), ("O", p + 1))
        if p in (2, 3, 4): stamp(a, cfg, 22 + p)
        a(f"s_barrier   ; C{p}")
        if p + 4 < 12: ld_wo_pair(a, cfg, p + 4, False)
        if p >= 3 and p + 3 < 12: ld_o_pair(a, cfg, p + 3)
        if p in (2, 5, 8): stamp(a, cfg, 15 + (p - 2) // 3)
    stamp(a, cfg, 18)
    a.c("phase D")
    def chk2():
        a(f"v_cmp_eq_u32 vcc, 1, v3")
        a("s_cmp_eq_u64 vcc, -1")
    poll(a, cfg, vP2, rWS, "0", 3, chk2)
    if cfg.stamps: a(f"v_writelane_b32 v255, s{sSPIN}, 31")
    stamp(a, cfg, 19)
    a(f"""
    v_cmp_gt_u32 vcc, 60, v0
    s_and_saveexec_b64 s[{sEX}:{sEX+1}], vcc
    """)
    for g in range(8):
        a(f"s_mov_b32 s{sT0}, {g*30720}")
        a.vmem(f"buffer_load_dwordx4 {vr(16+4*g)}, v{vDL}, s[{rWS}:{rWS+3}], s{sT0} offen sc1", ("p", g))
    A = 48
    a(f"s_mov_b32 s{sT1}, 0xffff0000")
    for g in range(8):
        a.wait_vm(("p", g))
        for i in range(4):
            s = 16 + 4 * g + i
            if g == 0:
                a(f"v_lshlrev_b32 v{A+2*i}, 16, v{s}")
                a(f"v_and_b32 v{A+2*i+1}, s{sT1}, v{s}")
            else:
                a(f"v_lshlrev_b32 v{60+2*i}, 16, v{s}")
                a(f"v_and_b32 v{61+2*i}, s{sT1}, v{s}")
                a(f"v_add_f32 v{A+2*i}, v{A+2*i}, v{60+2*i}")
                a(f"v_add_f32 v{A+2*i+1}, v{A+2*i+1}, v{61+2*i}")
    stamp(a, cfg, 20)
    for i in range(4):
        a(f"v_cvt_pk_bf16_f32 v{16+i}, v{A+2*i}, v{A+2*i+1}")
    a(f"buffer_store_dwordx2 v[16:17], v{vDO}, s[{rOUT}:{rOUT+3}], 0 offen")
    a(f"buffer_store_dwordx2 v[18:19], v{vDO}, s[{rOUT}:{rOUT+3}], 0 offen offset:32")
    a(f"s_mov_b64 exec, s[{sEX}:{sEX+1}]")
    a("s_branch L_fin")


def computeC(a, cfg):
    a.label("L_computeC")
    a.reset()
    ACC = 16
    def acc(T, t): return ACC + (T * 3 + t) * 4
    SETA = [76, 96]; SETB = [116, 128]
    def reads(u):
        st = u & 1
        p = u >> 1
        hi, sl = divmod(p % 4, 2)
        so = sl * 20480 + (u & 1) * 10240
        if u < 6:
            vb, bo = vCB[0], L_OWN + u * 6144
        else:
            vb, bo = vCB[1], ((p - 3) % 3) * 12288 + (u & 1) * 6144
        R = []
        def ra(T):
            R.append((f"ds_read_b64_tr_b16 {vr(SETA[st]+4*T, 2)}, v{vCA[hi][T]} offset:{so}", ("A", u, T)))
            R.append((f"ds_read_b64_tr_b16 {vr(SETA[st]+4*T+2, 2)}, v{vCA[hi][T]} offset:{so+5120}", ("A", u, T)))
        ra(0)
        for t in range(3):
            R.append((f"ds_read_b128 {vr(SETB[st]+4*t)}, v{vb} offset:{bo + t*1024}", ("B", u, t)))
        for T in range(1, 5): ra(T)
        return R
    stamp(a, cfg, 13)
    for ins, tag in reads(0): a.ds(ins, tag)
    for u in range(24):
        if u & 1 and u < 23:
            a.wait_lg_all()
            a(f"s_barrier   ; C{u >> 1}")
        R = reads(u + 1) if u < 23 else []
        st = u & 1
        m = 0
        for T in range(5):
            for t in range(3):
                a.wait_lg(("A", u, T), ("B", u, t))
                a(mfma(acc(T, t), SETA[st] + 4 * T, SETB[st] + 4 * t, first=(u == 0)))
                if m < len(R): a.ds(*R[m])
                m += 1
        if u == cfg.h1_flag_step:
            stamp(a, cfg, 22)
            a("s_waitcnt vmcnt(0)")
            stamp(a, cfg, 23)
            h1_flag(a, cfg, 1)
        if u in (2, 3, 4): stamp(a, cfg, 22 + u)
        if u in (5, 11, 17): stamp(a, cfg, 15 + (u - 5) // 6)
    stamp(a, cfg, 18)
    a.c("partials: wave i=0 -> pairs (0,1),(2,3), half (4) ; i=1 -> half (0), pairs (1,2),(3,4)")
    a(f"""
    s_cmp_lg_u32 s{sI}, 0
    s_cbranch_scc1 L_st1
    """)
    def cv(dst, d):
        a(f"v_cvt_pk_bf16_f32 v{dst}, v{d}, v{d+1}")
        a(f"v_cvt_pk_bf16_f32 v{dst+1}, v{d+2}, v{d+3}")
    for i in range(2):
        if i == 1:
            a("s_branch L_pdone")
            a.label("L_st1")
        pairs = [(0, 1), (2, 3)] if i == 0 else [(1, 2), (3, 4)]
        half = 4 if i == 0 else 0
        n = 0
        for t in range(3):
            for pi, (Ta, Tb) in enumerate(pairs):
                o = 76 + n * 4; n += 1
                cv(o, acc(Ta, t)); cv(o + 2, acc(Tb, t))
                a(f"s_mov_b32 s{sT0}, {t*5120 + pi*1024}")
                a(f"buffer_store_dwordx4 {vr(o)}, v{vPS}, s[{rWS}:{rWS+3}], s{sT0} offen sc0 sc1")
            o = 76 + n * 4; n += 1
            cv(o, acc(half, t))
            a(f"s_mov_b32 s{sT0}, {t*5120}")
            a(f"buffer_store_dwordx2 {vr(o, 2)}, v{vPH}, s[{rWS}:{rWS+3}], s{sT0} offen sc0 sc1")
    a.label("L_pdone")
    stamp(a, cfg, 19)
    a("s_waitcnt vmcnt(0)")
    stamp(a, cfg, 20)
    a(f"""
    s_mov_b64 exec, 15
    buffer_store_dword v{vONE}, v{vF2}, s[{rWS}:{rWS+3}], 0 offen sc0 sc1
    s_mov_b64 exec, -1
    """)


def build(cfg, header=""):
    _lbl[0] = 0
    a = Asm()
    if header: a.raw(header.rstrip("\n"))
    a.raw(f"; @launch grid=(256,1,1) block=(512,1,1) lds={LDS_BYTES}")
    a.raw('.amdgcn_target "amdgcn-amd-amdhsa--gfx950"\n.text')
    prologue(a, cfg)
    computeA(a, cfg)
    hist = loaderA(a, cfg)
    phaseB(a, cfg)
    loaderC(a, cfg, hist)
    computeC(a, cfg)
    a.label("L_fin")
    stamp(a, cfg, 21)
    if cfg.dbg_stamps:
        wg, lst = cfg.dbg_stamps
        srd(a, rDBG, sDBG, 256)
        a(f"s_cmp_lg_u32 s2, {wg}")
        a("s_cbranch_scc1 L_nodbg")
        a(f"v_readlane_b32 s{sT2}, v255, 0")
        for w in sorted(set(x[0] for x in lst)):
            a(f"s_cmp_lg_u32 s{sWAVE}, {w}")
            a(f"s_cbranch_scc1 L_nodbg{w}")
            a("s_mov_b64 exec, 1")
            for i, (ww, idx) in enumerate(lst):
                if ww != w: continue
                a(f"""
                v_readlane_b32 s{sT1}, v255, {idx}
                s_sub_u32 s{sT1}, s{sT1}, s{sT2}
                s_lshr_b32 s{sT1}, s{sT1}, 4
                s_min_u32 s{sT1}, s{sT1}, 4095
                s_lshl_b32 s{sT1}, s{sT1}, 20
                v_mov_b32 v2, s{sT1}
                v_mov_b32 v3, {i*4}
                buffer_atomic_add v2, v3, s[{rDBG}:{rDBG+3}], 0 offen sc1
                """)
            a("s_mov_b64 exec, -1")
            a.label(f"L_nodbg{w}")
        a.label("L_nodbg")
    stamp_flush(a, cfg)
    a.label("L_end")
    a("s_endpgm")
    a.raw(kernel_desc(KN))
    return a.text()


def make(**kw):
    cfg = Cfg()
    for k, v in kw.items(): setattr(cfg, k, v)
    header = open("cdna_kernels/" + NAME + ".s.ref").read().split("; Override launch")[0]
    return build(cfg, header)


if __name__ == "__main__":
    kw = {}
    for kv in sys.argv[2:]:
        k, v = kv.split("=", 1)
        kw[k] = eval(v)
    open(sys.argv[1], "w").write(make(**kw))
```

```python
import sys, math, struct
from asmgen import *

NAME = "standalone__gqa_block_cached__near_ridge"
KN = NAME + "_kernel"

X_BYTES = 768 * 640 * 2
KV_BYTES = 8 * 32 * 96 * 192 * 2
W_BYTES = 640 * 6144 * 2
OUT_BYTES = 768 * 640 * 2
WS_BYTES = 268435456
SCALE = 192 ** -0.5 * math.log2(math.e)

def f32hex(x):
    return "0x%08x" % struct.unpack("<I", struct.pack("<f", x))[0]

sX, sK, sV, sWQ, sWO, sOUT, sDBG, sWS = 4, 6, 8, 10, 12, 14, 16, 18
sWAVE, sG, sB, sJ, sH, sBH = 20, 21, 22, 23, 24, 25
sFAST, sSPIN = 26, 27
rX, rWQ, rK, rV, rWS, rWO, rOUT, rDBG = 28, 32, 36, 40, 44, 48, 52, 68
sT0, sT1, sT2, sT3 = 56, 57, 58, 59
sLW, sM0B, sC, sKVB = 60, 61, 62, 63
sI, sJQ, sROLE = 64, 65, 66
sWM0, sWK, sOM0, sOK = 72, 73, 74, 75
sINB = 76
sSTAMP = 80
sEX = 90

L_W, L_X, L_K, L_V, L_Q = 0, 49152, 86016, 122880, 0
L_FLAG = 159744
L_OWN, L_WO, L_OR = 0, 36864, 122880
LDS_BYTES = 163840


class Cfg:
    stamps = False
    prefetch_code = True
    code_kb = 32
    ws_o = 0x0000000
    ws_p = 0x1000000
    ws_in = 0x2000000
    ws_stamp = 0x4000000
    polW = "nt"
    polX = ""
    polKV = "nt"
    polWO = "nt"
    polPF = "nt"
    wo_prefetch = True
    pretouch = True
    force_slow = False
    k_sched = [4, 5, 6, 7, 8, 9, 10, 11, 12]
    v_sched = [13, 14, 15, 15, 16, 16, 16, 16, 16]
    h1_flag_step = 1
    spin_max = 400000
    polO = 'sc1'
    skip_o = False
    skip_wo = False
    pre_wx = True
    polPW = 'nt'
    polPX = ''
    kv_variants = None
    kv_sel_shift = 3
    dbg_stamps = None


def stamp(a, cfg, idx):
    if not cfg.stamps: return
    a(f"""
    s_memtime s[{sSTAMP}:{sSTAMP+1}]
    s_waitcnt lgkmcnt(0)
    v_writelane_b32 v255, s{sSTAMP}, {idx}
    """)
    a.lg = []

def stamp_flush(a, cfg):
    if not cfg.stamps: return
    a(f"""
    s_memrealtime s[{sSTAMP}:{sSTAMP+1}]
    s_waitcnt lgkmcnt(0)
    v_writelane_b32 v255, s{sSTAMP}, 33
    s_lshl_b32 s{sT0}, s2, 3
    s_add_u32 s{sT0}, s{sT0}, s{sWAVE}
    s_lshl_b32 s{sT0}, s{sT0}, 8
    s_add_u32 s{sT0}, s{sT0}, {cfg.ws_stamp}
    v_mbcnt_lo_u32_b32 v254, -1, 0
    v_mbcnt_hi_u32_b32 v254, -1, v254
    v_lshlrev_b32 v254, 2, v254
    buffer_store_dword v255, v254, s[{rWS}:{rWS+3}], s{sT0} offen
    """)

def wait_kernarg(a, cfg):
    a("s_waitcnt lgkmcnt(0)")
    if cfg.stamps:
        a(f"v_writelane_b32 v255, s{sSTAMP}, 0")
        a(f"v_writelane_b32 v255, s{sSTAMP+2}, 32")

def mfma(d, A, B, first=False):
    c = "0" if first else vr(d)
    return f"v_mfma_f32_16x16x32_bf16 {vr(d)}, {vr(A)}, {vr(B)}, {c}"

_lbl = [0]
def poll(a, cfg, vaddr, rs, soff, vtmp, check):
    _lbl[0] += 1
    n = _lbl[0]
    a(f"s_mov_b32 s{sSPIN}, 0")
    a.label(f"poll{n}")
    a(f"buffer_load_dword v{vtmp}, v{vaddr}, s[{rs}:{rs+3}], {soff} offen sc1")
    a.wait_vm_all()
    check()
    a(f"""
    s_cbranch_scc1 poll{n}_ok
    s_add_u32 s{sSPIN}, s{sSPIN}, 1
    s_cmp_ge_u32 s{sSPIN}, {cfg.spin_max}
    s_cbranch_scc1 poll{n}_ok
    s_sleep 1
    s_branch poll{n}
    """)
    a.label(f"poll{n}_ok")


vA = [10, 11, 12]; vXe, vXo, vQW = 13, 14, 15
vQR, vKE, vKO, vVA, vOS, vOL, vF1 = 160, 161, 162, [163, 164, 165, 166], 167, 168, 169
vCA = [[220, 221, 222, 223, 224], [225, 226, 227, 228, 229]]; vCB = [230, 231]; vPS, vPH, vF2 = 232, 233, 234
vW = [220, 221, 222]; vXL = [223, 224, 225]; vKA = [226, 227, 228]; vKB = [229, 230, 231]; vV = [232, 233, 234]
vK0 = [235, 236, 237]; vCP = [238, 239, 240]
vWO = [241, 242, 243, 244, 245]; vOR, vDL, vDO, vP1, vP2, vPF = 246, 247, 248, 249, 250, 251
vONE = 252


def prologue(a, cfg):
    a.raw(kernel_header(KN))
    if cfg.stamps:
        a(f"s_memtime s[{sSTAMP}:{sSTAMP+1}]")
        a(f"s_memrealtime s[{sSTAMP+2}:{sSTAMP+3}]")
    a(f"""
    s_cmp_ge_u32 s2, 256
    s_cbranch_scc1 L_end
    s_load_dwordx16 s[4:19], s[0:1], 0
    v_lshrrev_b32 v1, 6, v0
    v_and_b32 v0, 63, v0
    v_readfirstlane_b32 s{sWAVE}, v1
    s_and_b32 s{sG}, s2, 7
    s_lshr_b32 s{sT0}, s2, 3
    s_lshr_b32 s{sB}, s{sT0}, 2
    s_and_b32 s{sJ}, s{sT0}, 3
    s_lshl_b32 s{sH}, s{sG}, 2
    s_add_u32 s{sH}, s{sH}, s{sJ}
    s_lshl_b32 s{sBH}, s{sB}, 5
    s_add_u32 s{sBH}, s{sBH}, s{sH}
    s_lshl_b32 s{sINB}, s{sBH}, 8
    s_add_u32 s{sINB}, s{sINB}, {cfg.ws_in}
    s_cmp_ge_u32 s{sWAVE}, 4
    s_cbranch_scc1 L_loaderA
    """)
    if cfg.prefetch_code:
        a(f"s_getpc_b64 s[{sT2}:{sT2+1}]")
        a.label("L_pc")
        a(f"""
        s_sub_u32 s{sT2}, s{sT2}, L_pc-{KN}
        s_subb_u32 s{sT2+1}, s{sT2+1}, 0
        s_lshl_b32 s{sT0}, s{sWAVE}, 13
        v_lshlrev_b32 v2, 7, v0
        v_add_u32 v2, s{sT0}, v2
        v_min_u32 v2, L_end-{KN}, v2
        global_load_dword v253, v2, s[{sT2}:{sT2+1}]
        """)


def addrB(a, cfg):
    a.c("phase B addresses")
    a(f"""
    v_lshrrev_b32 v2, 4, v0                  ; kq
    v_and_b32 v5, 15, v0                     ; m / n
    s_mul_i32 s{sT2}, s{sWAVE}, 6144
    v_lshlrev_b32 v6, 4, v0
    v_add_u32 v{vQR}, s{sT2}, v6
    v_lshrrev_b32 v7, 1, v5
    v_xor_b32 v7, v7, v2
    v_mul_u32_u24 v8, 384, v5
    v_lshl_add_u32 v8, v7, 4, v8
    v_add_u32 v{vKE}, {L_K}, v8
    v_xor_b32 v{vKO}, 64, v{vKE}
    v_lshrrev_b32 v7, 2, v5                  ; r
    v_lshl_add_u32 v7, v2, 2, v7             ; 4kq + r
    v_mul_u32_u24 v8, 384, v7
    v_and_b32 v3, 3, v0                      ; c
    v_lshl_add_u32 v8, v3, 3, v8
    v_add_u32 v8, {L_V}, v8
    v_bfe_u32 v7, v7, 1, 2                   ; h
    """)
    for i in range(4):
        a(f"v_xor_b32 v3, {i}, v7")
        a(f"v_lshl_add_u32 v{vVA[i]}, v3, 5, v8")
    a(f"""
    s_lshl_b32 s{sT2}, s{sB}, 3
    s_add_u32 s{sT2}, s{sT2}, s{sG}
    s_mul_i32 s{sT2}, s{sT2}, 24
    s_mul_i32 s{sT3}, s{sJ}, 6
    s_add_u32 s{sT2}, s{sT2}, s{sT3}
    s_mul_i32 s{sT2}, s{sT2}, 6144
    s_lshl_b32 s{sT3}, s{sWAVE}, 10
    s_add_u32 s{sT2}, s{sT2}, s{sT3}
    v_add_u32 v{vOS}, s{sT2}, v6
    v_add_u32 v{vOL}, s{sT3}, v6
    s_lshl_b32 s{sT2}, s{sJ}, 8
    s_sub_u32 s{sT2}, s{sINB}, s{sT2}
    s_mul_i32 s{sT3}, s{sJ}, 24
    s_add_u32 s{sT2}, s{sT2}, s{sT3}
    s_lshl_b32 s{sT3}, s{sWAVE}, 2
    s_add_u32 s{sT2}, s{sT2}, s{sT3}
    v_and_b32 v3, 3, v0
    v_lshlrev_b32 v3, 8, v3
    v_add_u32 v{vF1}, s{sT2}, v3
    v_mov_b32 v{vONE}, 1
    """)


def h1_flag(a, cfg, n):
    a(f"""
    s_mov_b64 exec, 15
    s_cmp_lg_u32 s{sFAST}, 0
    s_cbranch_scc1 L_f1fast{n}
    """)
    a(f"buffer_store_dword v{vONE}, v{vF1}, s[{rWS}:{rWS+3}], 0 offen sc0 sc1")
    a(f"s_branch L_f1done{n}")
    a.label(f"L_f1fast{n}")
    a.vmem(f"buffer_store_dword v{vONE}, v{vF1}, s[{rWS}:{rWS+3}], 0 offen", "flag")
    a.label(f"L_f1done{n}")
    a("s_mov_b64 exec, -1")


def computeA(a, cfg):
    ACC = 16
    def acc(T, t): return ACC + (T * 6 + t) * 4
    SETA = [88, 124]; SETB = [100, 136]
    a(f"s_mov_b32 s{sROLE}, 0")
    a.c("phase A addresses: v2=kq v3=r v4=c v5=n")
    a(f"""
    v_lshrrev_b32 v2, 4, v0
    v_bfe_u32 v3, v0, 2, 2
    v_and_b32 v4, 3, v0
    v_and_b32 v5, 15, v0
    v_lshlrev_b32 v6, 3, v2
    v_add_u32 v6, v6, v3                     ; k = 8kq + r
    v_mul_u32_u24 v6, 384, v6
    v_lshl_add_u32 v6, v4, 3, v6             ; k*384 + 8c
    v_lshrrev_b32 v7, 1, v3
    v_and_b32 v8, 1, v2
    v_lshl_or_b32 v7, v8, 1, v7              ; h(k)
    s_mul_i32 s{sT0}, s{sWAVE}, 3
    """)
    for T in range(3):
        a(f"""
        s_add_u32 s{sT1}, s{sT0}, {T}
        v_xor_b32 v8, s{sT1}, v7
        v_lshl_add_u32 v{vA[T]}, v8, 5, v6
        """)
    a(f"""
    v_lshrrev_b32 v6, 1, v5                  ; (n>>1)&7
    v_xor_b32 v6, v6, v2
    v_lshlrev_b32 v6, 4, v6
    v_lshl_add_u32 v6, v5, 7, v6
    v_add_u32 v{vXe}, {L_X}, v6
    v_xor_b32 v{vXo}, 64, v{vXe}
    v_lshrrev_b32 v6, 1, v2
    v_lshlrev_b32 v6, 8, v6
    v_lshl_add_u32 v6, v5, 4, v6
    v_and_b32 v7, 1, v2
    v_lshl_add_u32 v6, v7, 3, v6
    s_mul_i32 s{sT0}, s{sWAVE}, 1536
    v_add_u32 v{vQW}, s{sT0}, v6
    """)
    addrB(a, cfg)
    a.c("phase C addresses")
    a(f"""
    s_and_b32 s{sI}, s{sWAVE}, 1
    s_lshr_b32 s{sJQ}, s{sWAVE}, 1
    v_lshrrev_b32 v2, 4, v0                  ; kq
    v_bfe_u32 v3, v0, 2, 2                   ; r
    v_and_b32 v4, 3, v0                      ; c
    v_lshl_add_u32 v6, v2, 2, v3             ; 4kq + r
    v_mul_u32_u24 v6, 320, v6
    v_lshl_add_u32 v6, v4, 3, v6
    v_add_u32 v6, {L_WO}, v6
    v_and_b32 v7, 1, v2
    s_mul_i32 s{sT0}, s{sI}, 5
    """)
    for T in range(5):
        a(f"""
        s_add_u32 s{sT1}, s{sT0}, {T}
        v_xor_b32 v8, s{sT1}, v7
        v_lshl_add_u32 v{vCA[0][T]}, v8, 5, v6
        v_add_u32 v{vCA[1][T]}, 40960, v{vCA[0][T]}
        """)
    a(f"""
    s_mul_i32 s{sT0}, s{sJQ}, 3072
    v_lshlrev_b32 v6, 4, v0
    v_add_u32 v{vCB[0]}, s{sT0}, v6
    v_add_u32 v{vCB[1]}, {L_OR}, v{vCB[0]}
    s_lshl_b32 s{sT0}, s{sB}, 2
    s_add_u32 s{sT0}, s{sT0}, s{sJ}
    s_lshl_b32 s{sT0}, s{sT0}, 3
    s_add_u32 s{sT0}, s{sT0}, s{sG}
    s_mul_i32 s{sT0}, s{sT0}, 30720
    s_mul_i32 s{sT1}, s{sJQ}, 15360
    s_add_u32 s{sT0}, s{sT0}, s{sT1}
    s_add_u32 s{sT0}, s{sT0}, {cfg.ws_p}
    s_mul_i32 s{sT1}, s{sI}, 3072
    s_add_u32 s{sT1}, s{sT1}, s{sT0}
    v_add_u32 v{vPS}, s{sT1}, v6
    s_lshl_b32 s{sT1}, s{sI}, 3
    s_add_u32 s{sT1}, s{sT1}, s{sT0}
    s_add_u32 s{sT1}, s{sT1}, 2048
    v_add_u32 v{vPH}, s{sT1}, v6
    s_lshl_b32 s{sT0}, s{sB}, 5
    s_lshl_b32 s{sT1}, s{sJQ}, 4
    s_add_u32 s{sT0}, s{sT0}, s{sT1}
    s_add_u32 s{sT0}, s{sT0}, s{sJ}
    s_lshl_b32 s{sT0}, s{sT0}, 8
    s_lshl_b32 s{sT1}, s{sG}, 3
    s_add_u32 s{sT0}, s{sT0}, s{sT1}
    s_lshl_b32 s{sT1}, s{sI}, 2
    s_add_u32 s{sT0}, s{sT0}, s{sT1}
    s_add_u32 s{sT0}, s{sT0}, {cfg.ws_in + 128}
    v_and_b32 v3, 3, v0
    v_lshlrev_b32 v3, 10, v3
    v_add_u32 v{vF2}, s{sT0}, v3
    """)
    wait_kernarg(a, cfg)
    srd(a, rWS, sWS, WS_BYTES)
    if cfg.pretouch:
        a(f"""
        s_cmp_lg_u32 s{sWAVE}, 1
        s_cbranch_scc1 L_notouch
        """)
        srd(a, rK, sK, KV_BYTES); srd(a, rV, sV, KV_BYTES); srd(a, rWO, sWO, W_BYTES); srd(a, rOUT, sOUT, OUT_BYTES)
        a(f"""
        s_mov_b64 exec, 3
        v_mul_u32_u24 v2, 36860, v0
        s_mul_i32 s{sT0}, s{sBH}, 36864
        buffer_load_dword v253, v2, s[{rK}:{rK+3}], s{sT0} offen nt
        buffer_load_dword v253, v2, s[{rV}:{rV+3}], s{sT0} offen nt
        v_mul_u32_u24 v2, 983036, v0
        s_mul_i32 s{sT0}, s{sG}, 983040
        buffer_load_dword v253, v2, s[{rWO}:{rWO+3}], s{sT0} offen nt
        buffer_load_dword v253, v2, s[{rOUT}:{rOUT+3}], 0 offen nt
        buffer_load_dword v253, v{vOS}, s[{rWS}:{rWS+3}], 0 offen nt
        buffer_load_dword v253, v{vPS}, s[{rWS}:{rWS+3}], 0 offen nt
        s_mov_b64 exec, -1
        """)
        a.label("L_notouch")
    stamp(a, cfg, 1)

    def reads(s):
        st = s & 1
        wo = L_W + (s % 4) * 12288
        xo = ((s >> 1) % 3) * 12288
        vx = vXo if s & 1 else vXe
        R = []
        def ra(T):
            R.append((f"ds_read_b64_tr_b16 {vr(SETA[st]+4*T, 2)}, v{vA[T]} offset:{wo}", ("A", s, T)))
            R.append((f"ds_read_b64_tr_b16 {vr(SETA[st]+4*T+2, 2)}, v{vA[T]} offset:{wo+1536}", ("A", s, T)))
        ra(0)
        for t in range(6):
            R.append((f"ds_read_b128 {vr(SETB[st]+4*t)}, v{vx} offset:{xo + t*2048}", ("B", s, t)))
        ra(1); ra(2)
        return R

    a("s_barrier   ; P")
    stamp(a, cfg, 2)
    for ins, tag in reads(0): a.ds(ins, tag)
    for s in range(20):
        a.wait_lg_all()
        if s < 19:
            a(f"s_barrier   ; B{s}")
        R = reads(s + 1) if s < 19 else []
        st = s & 1
        m = 0
        for T in range(3):
            for t in range(6):
                a(mfma(acc(T, t), SETA[st] + 4 * T, SETB[st] + 4 * t, first=(s == 0)))
                if m < len(R): a.ds(*R[m])
                m += 1
        if s in (4, 9, 14): stamp(a, cfg, 3 + (s - 4) // 5)
    stamp(a, cfg, 6)
    a.c("Q -> bf16 -> LDS (fragment-major)")
    for T in range(3):
        for t in range(6):
            d = acc(T, t)
            tmp = 88 + ((T * 6 + t) % 8) * 2
            a(f"v_cvt_pk_bf16_f32 v{tmp}, v{d}, v{d+1}")
            a(f"v_cvt_pk_bf16_f32 v{tmp+1}, v{d+2}, v{d+3}")
            a.ds(f"ds_write_b64 v{vQW}, {vr(tmp, 2)} offset:{L_Q + 512*T + 6144*t}", "qw")
    a.wait_lg_all()
    a("s_barrier   ; Q")
    a("s_branch L_phaseB")


def dma(a, vaddr, rs, soff, ldsoff, tag, base, pol=""):
    a(f"s_add_u32 m0, s{base}, {ldsoff}")
    if isinstance(soff, str):
        so = soff
        a("s_nop 0")
    else:
        a(f"s_mov_b32 s{sT0}, {soff}")
        so = f"s{sT0}"
    a.vmem(f"buffer_load_dwordx4 v{vaddr}, s[{rs}:{rs+3}], {so} offen {pol} lds", tag)


def ld_wo_pair(a, cfg, p, both):
    slot = L_WO + (p % 4) * 20480
    if both:
        for e in range(2):
            a(f"s_add_u32 s{sT3}, s{sWK}, {e*40960}")
            for i in range(5):
                dma(a, vWO[i], rWO, f"s{sT3}", slot + e * 10240 + i * 1024, ("WO", p), sWM0, cfg.polWO)
    else:
        a(f"s_add_u32 s{sT3}, s{sWK}, s{sOK+2}")
        for i in range(0 if cfg.skip_wo else 5):
            dma(a, vWO[i], rWO, f"s{sT3}", slot + i * 1024, ("WO", p), sOK + 3, cfg.polWO)
    a(f"""
    s_add_u32 s{sWK}, s{sWK}, 81920
    s_cmp_eq_u32 s{sWK}, {12*81920}
    s_cselect_b32 s{sWK}, 0, s{sWK}
    """)

def ld_o_pair(a, cfg, p):
    slot = L_OR + ((p - 3) % 3) * 12288
    a(f"s_add_u32 m0, s{sOM0}, {slot}")
    a("s_nop 0")
    for i in range(0 if cfg.skip_o else 3):
        a.vmem(f"buffer_load_dwordx4 v{vOR}, s[{rWS}:{rWS+3}], s{sOK} offen offset:{i*1024} {cfg.polO} lds", ("O", p))
    a(f"""
    s_add_u32 s{sOK}, s{sOK}, 12288
    s_cmp_eq_u32 s{sOK}, {12*12288}
    s_cselect_b32 s{sOK}, 0, s{sOK}
    """)


def loaderA(a, cfg):
    a.label("L_loaderA")
    a.reset()
    if cfg.stamps:
        a(f"s_memtime s[{sSTAMP+4}:{sSTAMP+5}]")
    a(f"s_mov_b32 s{sROLE}, 1")
    a(f"s_sub_u32 s{sLW}, s{sWAVE}, 4")
    if cfg.pre_wx:
        a.c("L2 prefetch of this XCD's share of wq and x: one dword per 128-byte line, k-major")
        a(f"""
        s_mul_i32 s{sT0}, s{sLW}, 60
        v_min_u32 v2, 59, v0
        v_add_u32 v2, s{sT0}, v2
        v_lshlrev_b32 v2, 5, v2
        s_lshr_b32 s{sT0}, s2, 3
        v_add_u32 v2, s{sT0}, v2               ; L in [0,7680)
        v_mov_b32 v6, 5462
        v_mul_lo_u32 v3, v2, v6
        v_lshrrev_b32 v3, 16, v3               ; L/12
        v_mul_u32_u24 v4, 12, v3
        v_sub_u32 v4, v2, v4
        v_mul_u32_u24 v3, 12288, v3
        v_lshl_add_u32 v3, v4, 7, v3
        s_mul_i32 s{sT0}, s{sG}, 1536
        v_add_u32 v8, s{sT0}, v3
        v_lshrrev_b32 v7, 6, v2
        v_mul_u32_u24 v7, 5462, v7
        v_lshrrev_b32 v7, 16, v7               ; L/768
        v_mul_u32_u24 v4, 768, v7
        v_sub_u32 v4, v2, v4
        v_mul_u32_u24 v4, 1280, v4
        v_lshl_add_u32 v9, v7, 7, v4           ; x line
        """)
        wait_kernarg(a, cfg)
        srd(a, rWQ, sWQ, W_BYTES)
        srd(a, rX, sX, X_BYTES)
        a(f"buffer_load_dword v253, v8, s[{rWQ}:{rWQ+3}], 0 offen {cfg.polPW}")
        a(f"buffer_load_dword v253, v9, s[{rX}:{rX+3}], 0 offen {cfg.polPX}")
    a(f"s_mul_i32 s{sT0}, s{sLW}, {8*12288}")
    a(f"s_mul_i32 s{sT1}, s{sH}, 384")
    a(f"s_add_u32 s{sT0}, s{sT0}, s{sT1}")
    a(f"s_and_b32 s{sT1}, s{sLW}, 1")
    a(f"s_lshl_b32 s{sT1}, s{sT1}, 2")
    for i in range(3):
        a(f"""
        v_add_u32 v2, {64*i}, v0
        v_mul_u32_u24 v3, 2731, v2
        v_lshrrev_b32 v{vK0[i]}, 16, v3
        v_mul_u32_u24 v4, 24, v{vK0[i]}
        v_sub_u32 v{vCP[i]}, v2, v4
        v_and_b32 v5, 2, v{vK0[i]}
        v_or_b32 v5, s{sT1}, v5
        v_xor_b32 v5, v5, v{vCP[i]}
        v_mul_u32_u24 v6, 12288, v{vK0[i]}
        v_lshl_add_u32 v6, v5, 4, v6
        v_add_u32 v{vW[i]}, s{sT0}, v6
        """)
    a(f"""
    s_mul_i32 s{sT2}, s{sB}, 96
    s_mul_i32 s{sT3}, s{sLW}, 24
    s_add_u32 s{sT2}, s{sT2}, s{sT3}
    s_mul_i32 s{sT2}, s{sT2}, 1280
    v_lshrrev_b32 v2, 3, v0
    v_mul_u32_u24 v2, 1280, v2
    v_and_b32 v3, 7, v0
    v_lshrrev_b32 v4, 4, v0
    v_xor_b32 v3, v3, v4
    v_xor_b32 v3, s{sT1}, v3
    v_lshl_add_u32 v{vXL[0]}, v3, 4, v2
    v_add_u32 v{vXL[0]}, s{sT2}, v{vXL[0]}
    v_xor_b32 v3, 4, v3
    v_lshl_add_u32 v{vXL[1]}, v3, 4, v2
    s_add_u32 s{sT3}, s{sT2}, {8*1280}
    v_add_u32 v{vXL[1]}, s{sT3}, v{vXL[1]}
    v_add_u32 v{vXL[2]}, {16*1280}, v{vXL[0]}
    s_mul_i32 s{sM0B}, s{sLW}, 3072
    """)
    if not cfg.pre_wx:
        wait_kernarg(a, cfg)
        srd(a, rWQ, sWQ, W_BYTES)
        srd(a, rX, sX, X_BYTES)
    if cfg.stamps:
        a("s_waitcnt lgkmcnt(0)")
        a(f"v_writelane_b32 v255, s{sSTAMP+4}, 27")
        stamp(a, cfg, 29)

    def ldW(s):
        for i in range(3): dma(a, vW[i], rWQ, s * 32 * 12288, L_W + (s % 4) * 12288 + i * 1024, ("W", s), sM0B, cfg.polW)
    def ldX(m):
        for i in range(3): dma(a, vXL[i], rX, m * 128, L_X + (m % 3) * 12288 + i * 1024, ("X", m), sM0B, cfg.polX)
    def ldK(i):
        i1, i0 = divmod(i, 3)
        dma(a, (vKB if i1 & 1 else vKA)[i0], rK, i1 * 3072, L_K + i * 1024, "K", sKVB, cfg.polKV)
    def ldV(i):
        i1, i0 = divmod(i, 3)
        dma(a, vV[i0], rV, i1 * 3072, L_V + i * 1024, "V", sKVB, cfg.polKV)

    ldW(0); ldX(0)
    stamp(a, cfg, 26)
    srd(a, rWS, sWS, WS_BYTES)
    srd(a, rDBG, sDBG, 256)
    a.c("wave 7: clear this workgroup's inbox")
    a(f"""
    s_cmp_lg_u32 s{sWAVE}, 7
    s_cbranch_scc1 L_noclr
    v_lshlrev_b32 v2, 2, v0
    v_mov_b32 v3, 0
    buffer_store_dword v3, v2, s[{rWS}:{rWS+3}], s{sINB} offen sc0 sc1
    """)
    a.label("L_noclr")
    ldW(1)
    srd(a, rK, sK, KV_BYTES)
    srd(a, rV, sV, KV_BYTES)
    srd(a, rWO, sWO, W_BYTES)
    srd(a, rOUT, sOUT, OUT_BYTES)
    a(f"""
    s_mul_i32 s{sKVB}, s{sLW}, 9216
    s_mul_i32 s{sT2}, s{sBH}, 36864
    s_add_u32 s{sT2}, s{sT2}, s{sKVB}
    """)
    for i in range(3):
        a(f"""
        v_mul_u32_u24 v6, 384, v{vK0[i]}
        v_add_u32 v6, s{sT2}, v6
        v_lshrrev_b32 v3, 1, v{vK0[i]}
        v_xor_b32 v4, v3, v{vCP[i]}
        v_xor_b32 v4, s{sT1}, v4
        v_lshl_add_u32 v{vKA[i]}, v4, 4, v6
        v_xor_b32 v4, 4, v4
        v_lshl_add_u32 v{vKB[i]}, v4, 4, v6
        v_lshlrev_b32 v3, 1, v3
        v_xor_b32 v4, v3, v{vCP[i]}
        v_lshl_add_u32 v{vV[i]}, v4, 4, v6
        """)
    ldW(2); ldX(1); ldW(3); ldX(2)
    addrB(a, cfg)
    a.c("phase C / D loader addresses")
    a(f"""
    s_and_b32 s{sT1}, s{sLW}, 1
    s_mul_i32 s{sWM0}, s{sT1}, 5120
    s_mul_i32 s{sT1}, s{sT1}, 320
    s_mul_i32 s{sT2}, s{sG}, {768*1280}
    s_mul_i32 s{sT3}, s{sJ}, 320
    s_add_u32 s{sT2}, s{sT2}, s{sT3}
    """)
    for i in range(5):
        a(f"""
        v_add_u32 v2, s{sT1}, v0
        v_add_u32 v2, {64*i}, v2
        v_mul_u32_u24 v3, 3277, v2
        v_lshrrev_b32 v3, 16, v3            ; row = t/20
        v_mul_u32_u24 v4, 20, v3
        v_sub_u32 v4, v2, v4                ; cp
        v_lshrrev_b32 v5, 1, v3
        v_and_b32 v5, 2, v5
        v_xor_b32 v4, v4, v5
        v_mul_u32_u24 v3, 1280, v3
        v_lshl_add_u32 v3, v4, 4, v3
        v_add_u32 v{vWO[i]}, s{sT2}, v3
        """)
    a(f"""
    s_mul_i32 s{sWK}, s{sJ}, {3*81920}
    s_lshr_b32 s{sT1}, s{sLW}, 1
    s_mul_i32 s{sOK+2}, s{sT1}, 40960
    s_mul_i32 s{sOK+3}, s{sT1}, 10240
    s_add_u32 s{sOK+3}, s{sOK+3}, s{sWM0}
    s_add_u32 s{sT1}, s{sJ}, 1
    s_and_b32 s{sT1}, s{sT1}, 3
    s_mul_i32 s{sOK}, s{sT1}, {3*12288}
    s_mul_i32 s{sOM0}, s{sLW}, 3072
    s_lshl_b32 s{sT1}, s{sB}, 3
    s_add_u32 s{sT1}, s{sT1}, s{sG}
    s_mul_i32 s{sT1}, s{sT1}, 147456
    s_add_u32 s{sT1}, s{sT1}, s{sOM0}
    s_add_u32 s{sT1}, s{sT1}, {cfg.ws_o}
    v_lshlrev_b32 v7, 4, v0
    v_add_u32 v{vOR}, s{sT1}, v7
    v_min_u32 v2, 23, v0
    v_lshlrev_b32 v2, 2, v2
    v_add_u32 v{vP1}, s{sINB}, v2
    v_min_u32 v2, 15, v0
    v_lshlrev_b32 v2, 2, v2
    s_add_u32 s{sT1}, s{sINB}, 128
    v_add_u32 v{vP2}, s{sT1}, v2
    s_lshl_b32 s{sT1}, s{sB}, 2
    s_add_u32 s{sT1}, s{sT1}, s{sJ}
    s_mul_i32 s{sT1}, s{sT1}, 30720
    s_mul_i32 s{sT2}, s{sG}, 983040
    s_add_u32 s{sT1}, s{sT1}, s{sT2}
    s_and_b32 s{sT2}, s{sLW}, 1
    s_mul_i32 s{sT2}, s{sT2}, 15360
    s_add_u32 s{sT1}, s{sT1}, s{sT2}
    v_min_u32 v2, 59, v0
    v_lshlrev_b32 v2, 7, v2
    v_add_u32 v{vPF}, s{sT1}, v2
    s_mul_i32 s{sT0}, s{sG}, 240
    s_mul_i32 s{sT1}, s{sLW}, 60
    s_add_u32 s{sT0}, s{sT0}, s{sT1}
    v_add_u32 v2, s{sT0}, v0                ; Lambda
    s_lshl_b32 s{sT2}, s{sB}, 2
    s_add_u32 s{sT2}, s{sT2}, s{sJ}
    s_mul_i32 s{sT2}, s{sT2}, {8*30720}
    s_add_u32 s{sT2}, s{sT2}, {cfg.ws_p}
    v_lshlrev_b32 v3, 4, v2
    v_add_u32 v{vDL}, s{sT2}, v3
    v_lshrrev_b32 v4, 6, v2                 ; unit
    v_mul_u32_u24 v5, 205, v4
    v_lshrrev_b32 v5, 10, v5
    v_mul_u32_u24 v6, 5, v5
    v_sub_u32 v6, v4, v6                    ; p
    v_and_b32 v7, 15, v2
    v_lshl_add_u32 v7, v5, 4, v7            ; q
    s_mul_i32 s{sT1}, s{sB}, 96
    v_add_u32 v7, s{sT1}, v7
    v_mul_u32_u24 v7, 1280, v7
    v_lshl_add_u32 v7, v6, 6, v7
    v_bfe_u32 v8, v2, 4, 2
    v_lshl_add_u32 v7, v8, 3, v7
    s_mul_i32 s{sT1}, s{sJ}, 320
    v_add_u32 v{vDO}, s{sT1}, v7
    """)
    stamp(a, cfg, 1)
    a.wait_vm(("W", 0), ("X", 0))
    a("s_barrier   ; P")
    stamp(a, cfg, 2)
    a.wait_vm(("W", 1), ("X", 0))
    a.c("wave 7: inbox cleared (its store is older than W1) -> arrive on the group word in d_debug")
    a(f"""
    s_cmp_lg_u32 s{sWAVE}, 7
    s_cbranch_scc1 L_noarr
    s_getreg_b32 s{sT1}, hwreg(HW_REG_XCC_ID, 0, 4)
    s_lshl_b32 s{sT2}, s{sJ}, 2
    s_add_u32 s{sT2}, s{sT2}, 4
    s_lshl_b32 s{sT1}, s{sT1}, s{sT2}
    s_add_u32 s{sT1}, s{sT1}, 1
    s_lshl_b32 s{sT2}, s{sB}, 3
    s_add_u32 s{sT2}, s{sT2}, s{sG}
    s_lshl_b32 s{sT2}, s{sT2}, 2
    v_mov_b32 v2, s{sT1}
    v_mov_b32 v3, s{sT2}
    s_mov_b64 exec, 1
    buffer_atomic_add v2, v3, s[{rDBG}:{rDBG+3}], 0 offen sc1
    s_mov_b64 exec, -1
    """)
    a.label("L_noarr")
    variants = cfg.kv_variants or [(cfg.k_sched, cfg.v_sched)]
    nv = len(variants)
    if nv > 1:
        a(f"s_lshr_b32 s{sT1}, s2, {cfg.kv_sel_shift}")
        if nv == 3:
            a(f"s_mul_i32 s{sT2}, s{sT1}, 86")
            a(f"s_lshr_b32 s{sT2}, s{sT2}, 8")
            a(f"s_mul_i32 s{sT2}, s{sT2}, 3")
            a(f"s_sub_u32 s{sT1}, s{sT1}, s{sT2}")
        else:
            a(f"s_and_b32 s{sT1}, s{sT1}, {nv-1}")
        for v in range(1, nv):
            a(f"s_cmp_eq_u32 s{sT1}, {v}")
            a(f"s_cbranch_scc1 L_kvvar{v}")
    vm0 = list(a.vm)
    tails = []
    for v, (ksch, vsch) in enumerate(variants):
        if v: a.label(f"L_kvvar{v}")
        a.vm = list(vm0)
        for s in range(19):
            a.wait_vm(("W", s + 1), ("X", (s + 1) >> 1))
            a(f"s_barrier   ; B{s}")
            pre = [i for i, ss in enumerate(ksch) if ss == s], [i for i, ss in enumerate(vsch) if ss == s]
            if s + 4 < 20: ldW(s + 4)
            if s & 1 and (s >> 1) + 3 < 10: ldX((s >> 1) + 3)
            for i in pre[0]: ldK(i)
            for i in pre[1]: ldV(i)
            if s in (4, 9, 14): stamp(a, cfg, 3 + (s - 4) // 5)
        if nv > 1:
            a.wait_vm("K")
            tails.append(list(a.vm))
            if v < nv - 1: a("s_branch L_kvjoin")
    if nv > 1:
        a.label("L_kvjoin")
        a.vm = max(tails, key=len)
    a.wait_vm("K")
    stamp(a, cfg, 6)
    a.c("wave 7: check that the 32 workgroups of this batch have cleared their inboxes; same-XCD test")
    a(f"""
    s_cmp_lg_u32 s{sWAVE}, 7
    s_cbranch_scc1 L_nohs
    v_and_b32 v2, 7, v0
    v_lshlrev_b32 v2, 2, v2
    s_lshl_b32 s{sT3}, s{sB}, 5
    """)
    save = list(a.vm)
    def chk():
        a(f"""
        v_and_b32 v4, 7, v3
        v_cmp_eq_u32 vcc, 4, v4
        s_cmp_eq_u64 vcc, -1
        """)
    poll(a, cfg, 2, rDBG, f"s{sT3}", 3, chk)
    a(f"""
    v_readlane_b32 s{sT1}, v3, s{sG}
    s_lshr_b32 s{sT1}, s{sT1}, 4
    s_and_b32 s{sT2}, s{sT1}, 15
    s_mul_i32 s{sT2}, s{sT2}, 0x1111
    s_cmp_eq_u32 s{sT1}, s{sT2}
    s_cselect_b32 s{sT1}, {0 if cfg.force_slow else 1}, 0
    v_mov_b32 v2, {L_FLAG}
    v_mov_b32 v3, s{sT1}
    ds_write_b32 v2, v3
    s_waitcnt lgkmcnt(0)
    """)
    a.label("L_nohs")
    a.vm = save
    a("s_barrier   ; Q")
    a(f"""
    s_cmp_lt_u32 s{sWAVE}, 6
    s_cbranch_scc1 L_phaseB
    """)
    a.c("waves 6,7 during attention: wo prefetch into L2 and the first four wo pairs")
    a.vm = ["V"]
    if cfg.wo_prefetch:
        a.vmem(f"buffer_load_dword v253, v{vPF}, s[{rWO}:{rWO+3}], 0 offen {cfg.polPF}", "pf")
        a(f"s_mov_b32 s{sT0}, 7680")
        a.vmem(f"buffer_load_dword v253, v{vPF}, s[{rWO}:{rWO+3}], s{sT0} offen {cfg.polPF}", "pf")
    ld_wo_pair(a, cfg, 0, True); ld_wo_pair(a, cfg, 1, True)
    a.wait_vm("V")
    a("s_barrier   ; V")
    ld_wo_pair(a, cfg, 2, True); ld_wo_pair(a, cfg, 3, True)
    a.wait_vm(("WO", 0))
    stamp(a, cfg, 12)
    a("s_barrier   ; O1")
    a("s_branch L_loaderC")
    return list(a.vm)


def phaseB(a, cfg):
    a.label("L_phaseB")
    a.reset()
    QF = 88; KF = [112, 136]; S = 16; P = 40; O = 172; VF = 88
    stamp(a, cfg, 7)
    a(f"s_mov_b32 s{sC}, {f32hex(SCALE)}")
    def kread(ks, kt):
        v = vKO if ks & 1 else vKE
        a.ds(f"ds_read_b128 {vr(KF[ks&1]+4*kt)}, v{v} offset:{kt*6144 + (ks>>1)*128}", ("K", ks, kt))
    a.ds(f"ds_read_b128 {vr(QF)}, v{vQR} offset:{L_Q}", ("Q", 0))
    for kt in range(6): kread(0, kt)
    for ks in range(1, 6):
        a.ds(f"ds_read_b128 {vr(QF+4*ks)}, v{vQR} offset:{L_Q + ks*1024}", ("Q", ks))
    a(f"v_mov_b32 v6, {L_FLAG}")
    a.ds("ds_read_b32 v7, v6", "fast")
    for ks in range(6):
        for kt in range(6):
            a.wait_lg(("Q", ks), ("K", ks, kt), *(["fast"] if (ks, kt) == (1, 0) else []))
            a(mfma(S + 4 * kt, KF[ks & 1] + 4 * kt, QF + 4 * ks, first=(ks == 0)))
            if ks < 5: kread(ks + 1, kt)
    a(f"v_readfirstlane_b32 s{sFAST}, v7")
    stamp(a, cfg, 8)
    a("s_waitcnt vmcnt(0)")
    a("s_barrier   ; V")
    stamp(a, cfg, 9)
    def vread(s, Td, slot):
        for e in range(2):
            a.ds(f"ds_read_b64_tr_b16 {vr(VF + 4*slot + 2*e, 2)}, v{vVA[Td & 3]} offset:{(Td>>2)*128 + s*12288 + e*6144}", ("V", s, Td))
    order = [(s, Td) for s in range(3) for Td in range(12)]
    NV = 6
    for i in range(NV): vread(*order[i], i % 18)
    a.c("softmax")
    M, T1, L = 2, 3, 4
    a(f"v_max3_f32 v{M}, v{S}, v{S+1}, v{S+2}")
    for i in range(3, 23, 2):
        a(f"v_max3_f32 v{M}, v{M}, v{S+i}, v{S+i+1}")
    a(f"v_max_f32 v{M}, v{M}, v{S+23}")
    for sw in ("v_permlane16_swap_b32", "v_permlane32_swap_b32"):
        a(f"v_mov_b32 v{T1}, v{M}")
        a(f"{sw} v{M}, v{T1}")
        a(f"v_max_f32 v{M}, v{M}, v{T1}")
    a(f"v_mul_f32 v{M}, s{sC}, v{M}")
    for i in range(24):
        a(f"v_fma_f32 v{S+i}, v{S+i}, s{sC}, -v{M}")
    for i in range(24):
        a(f"v_exp_f32 v{S+i}, v{S+i}")
    for i in range(12):
        a(f"v_cvt_pk_bf16_f32 v{P+i}, v{S+2*i}, v{S+2*i+1}")
    stamp(a, cfg, 10)
    sums = [f"v_add_f32 v{L}, v{S}, v{S+1}", f"v_add_f32 v{L+1}, v{S+2}, v{S+3}"]
    for i in range(4, 24, 2):
        sums.append(f"v_add_f32 v{L}, v{L}, v{S+i}")
        sums.append(f"v_add_f32 v{L+1}, v{L+1}, v{S+i+1}")
    sums.append(f"v_add_f32 v{L}, v{L}, v{L+1}")
    for i, (s, Td) in enumerate(order):
        a.wait_lg(("V", s, Td))
        a(mfma(O + 4 * Td, VF + 4 * (i % 18), P + 4 * s, first=(s == 0)))
        if i + NV < len(order): vread(*order[i + NV], (i + NV) % 18)
        if i >= 6 and sums: a(sums.pop(0))
    while sums: a(sums.pop(0))
    for sw in ("v_permlane16_swap_b32", "v_permlane32_swap_b32"):
        a(f"v_mov_b32 v{T1}, v{L}")
        a(f"{sw} v{L}, v{T1}")
        a(f"v_add_f32 v{L}, v{L}, v{T1}")
    a(f"v_rcp_f32 v{L}, v{L}")
    stamp(a, cfg, 11)
    OB = 88
    for Pp in range(6):
        d = O + 8 * Pp
        for i in range(8): a(f"v_mul_f32 v{d+i}, v{d+i}, v{L}")
        o = OB + 4 * Pp
        for i in range(4): a(f"v_cvt_pk_bf16_f32 v{o+i}, v{d+2*i}, v{d+2*i+1}")
        a.ds(f"ds_write_b128 v{vOL}, {vr(o)} offset:{L_OWN + Pp*6144}", "ow")
    a(f"""
    s_cmp_lg_u32 s{sFAST}, 0
    s_cbranch_scc1 L_ofast
    """)
    for fast in range(2):
        if fast:
            a("s_branch L_odone")
            a.label("L_ofast")
        for Pp in range(6):
            a(f"s_mov_b32 s{sT0}, {cfg.ws_o + Pp*6144}")
            a(f"buffer_store_dwordx4 {vr(OB + 4*Pp)}, v{vOS}, s[{rWS}:{rWS+3}], s{sT0} offen {'' if fast else 'sc0 sc1'}")
    a.label("L_odone")
    a.wait_lg_all()
    stamp(a, cfg, 12)
    a("s_barrier   ; O1")
    a(f"""
    s_cmp_eq_u32 s{sROLE}, 0
    s_cbranch_scc1 L_computeC
    s_waitcnt vmcnt(0)
    """)
    h1_flag(a, cfg, 0)
    a(f"""
    s_mul_i32 s{sT0}, s{sJ}, 3
    s_add_u32 s{sT0}, s{sT0}, 4
    s_cmp_ge_u32 s{sT0}, 12
    s_cselect_b32 s{sT1}, 12, 0
    s_sub_u32 s{sT0}, s{sT0}, s{sT1}
    s_mul_i32 s{sWK}, s{sT0}, 81920
    """)
    a.c("falls through into the phase C loader")


def loaderC(a, cfg, hist):
    a.label("L_loaderC")
    a.reset()
    a.vm = hist
    stamp(a, cfg, 13)
    for p in range(11):
        if p in (1, 2): stamp(a, cfg, 21 + p)
        if p == 2:
            a.c("wait for the siblings' O tiles")
            def chk():
                a(f"v_cmp_eq_u32 vcc, 1, v3")
                a("s_cmp_eq_u64 vcc, -1")
            poll(a, cfg, vP1, rWS, "0", 3, chk)
            if cfg.stamps: a(f"v_writelane_b32 v255, s{sSPIN}, 30")
            stamp(a, cfg, 14)
            for pp in (3, 4, 5): ld_o_pair(a, cfg, pp)
        a.wait_vm(("WO", p + 1), ("O", p + 1))
        if p in (2, 3): stamp(a, cfg, 22 + p)
        a(f"s_barrier   ; C{p}")
        if p + 4 < 12: ld_wo_pair(a, cfg, p + 4, False)
        if p >= 3 and p + 3 < 12: ld_o_pair(a, cfg, p + 3)
        if p in (2, 5, 8): stamp(a, cfg, 15 + (p - 2) // 3)
    stamp(a, cfg, 18)
    a.c("phase D")
    def chk2():
        a(f"v_cmp_eq_u32 vcc, 1, v3")
        a("s_cmp_eq_u64 vcc, -1")
    poll(a, cfg, vP2, rWS, "0", 3, chk2)
    if cfg.stamps: a(f"v_writelane_b32 v255, s{sSPIN}, 31")
    stamp(a, cfg, 19)
    a(f"""
    v_cmp_gt_u32 vcc, 60, v0
    s_and_saveexec_b64 s[{sEX}:{sEX+1}], vcc
    """)
    for g in range(8):
        a(f"s_mov_b32 s{sT0}, {g*30720}")
        a.vmem(f"buffer_load_dwordx4 {vr(16+4*g)}, v{vDL}, s[{rWS}:{rWS+3}], s{sT0} offen sc1", ("p", g))
    A = 48
    a(f"s_mov_b32 s{sT1}, 0xffff0000")
    for g in range(8):
        a.wait_vm(("p", g))
        for i in range(4):
            s = 16 + 4 * g + i
            if g == 0:
                a(f"v_lshlrev_b32 v{A+2*i}, 16, v{s}")
                a(f"v_and_b32 v{A+2*i+1}, s{sT1}, v{s}")
            else:
                a(f"v_lshlrev_b32 v{60+2*i}, 16, v{s}")
                a(f"v_and_b32 v{61+2*i}, s{sT1}, v{s}")
                a(f"v_add_f32 v{A+2*i}, v{A+2*i}, v{60+2*i}")
                a(f"v_add_f32 v{A+2*i+1}, v{A+2*i+1}, v{61+2*i}")
    stamp(a, cfg, 20)
    for i in range(4):
        a(f"v_cvt_pk_bf16_f32 v{16+i}, v{A+2*i}, v{A+2*i+1}")
    a(f"buffer_store_dwordx2 v[16:17], v{vDO}, s[{rOUT}:{rOUT+3}], 0 offen")
    a(f"buffer_store_dwordx2 v[18:19], v{vDO}, s[{rOUT}:{rOUT+3}], 0 offen offset:32")
    a(f"s_mov_b64 exec, s[{sEX}:{sEX+1}]")
    a("s_branch L_fin")


def computeC(a, cfg):
    a.label("L_computeC")
    a.reset()
    ACC = 16
    def acc(T, t): return ACC + (T * 3 + t) * 4
    SETA = [76, 96]; SETB = [116, 128]
    def reads(u):
        st = u & 1
        p = u >> 1
        hi, sl = divmod(p % 4, 2)
        so = sl * 20480 + (u & 1) * 10240
        if u < 6:
            vb, bo = vCB[0], L_OWN + u * 6144
        else:
            vb, bo = vCB[1], ((p - 3) % 3) * 12288 + (u & 1) * 6144
        R = []
        def ra(T):
            R.append((f"ds_read_b64_tr_b16 {vr(SETA[st]+4*T, 2)}, v{vCA[hi][T]} offset:{so}", ("A", u, T)))
            R.append((f"ds_read_b64_tr_b16 {vr(SETA[st]+4*T+2, 2)}, v{vCA[hi][T]} offset:{so+5120}", ("A", u, T)))
        ra(0)
        for t in range(3):
            R.append((f"ds_read_b128 {vr(SETB[st]+4*t)}, v{vb} offset:{bo + t*1024}", ("B", u, t)))
        for T in range(1, 5): ra(T)
        return R
    stamp(a, cfg, 13)
    for ins, tag in reads(0): a.ds(ins, tag)
    for u in range(24):
        if u & 1 and u < 23:
            a.wait_lg_all()
            a(f"s_barrier   ; C{u >> 1}")
        R = reads(u + 1) if u < 23 else []
        st = u & 1
        m = 0
        for T in range(5):
            for t in range(3):
                a.wait_lg(("A", u, T), ("B", u, t))
                a(mfma(acc(T, t), SETA[st] + 4 * T, SETB[st] + 4 * t, first=(u == 0)))
                if m < len(R): a.ds(*R[m])
                m += 1
        if u == cfg.h1_flag_step:
            stamp(a, cfg, 22)
            a("s_waitcnt vmcnt(0)")
            stamp(a, cfg, 23)
            h1_flag(a, cfg, 1)
        if u in (2, 3): stamp(a, cfg, 22 + u)
        if u in (5, 11, 17): stamp(a, cfg, 15 + (u - 5) // 6)
    stamp(a, cfg, 18)
    a.c("partials: wave i=0 -> pairs (0,1),(2,3), half (4) ; i=1 -> half (0), pairs (1,2),(3,4)")
    a(f"""
    s_cmp_lg_u32 s{sI}, 0
    s_cbranch_scc1 L_st1
    """)
    def cv(dst, d):
        a(f"v_cvt_pk_bf16_f32 v{dst}, v{d}, v{d+1}")
        a(f"v_cvt_pk_bf16_f32 v{dst+1}, v{d+2}, v{d+3}")
    for i in range(2):
        if i == 1:
            a("s_branch L_pdone")
            a.label("L_st1")
        pairs = [(0, 1), (2, 3)] if i == 0 else [(1, 2), (3, 4)]
        half = 4 if i == 0 else 0
        n = 0
        for t in range(3):
            for pi, (Ta, Tb) in enumerate(pairs):
                o = 76 + n * 4; n += 1
                cv(o, acc(Ta, t)); cv(o + 2, acc(Tb, t))
                a(f"s_mov_b32 s{sT0}, {t*5120 + pi*1024}")
                a(f"buffer_store_dwordx4 {vr(o)}, v{vPS}, s[{rWS}:{rWS+3}], s{sT0} offen sc0 sc1")
            o = 76 + n * 4; n += 1
            cv(o, acc(half, t))
            a(f"s_mov_b32 s{sT0}, {t*5120}")
            a(f"buffer_store_dwordx2 {vr(o, 2)}, v{vPH}, s[{rWS}:{rWS+3}], s{sT0} offen sc0 sc1")
    a.label("L_pdone")
    stamp(a, cfg, 19)
    a("s_waitcnt vmcnt(0)")
    stamp(a, cfg, 20)
    a(f"""
    s_mov_b64 exec, 15
    buffer_store_dword v{vONE}, v{vF2}, s[{rWS}:{rWS+3}], 0 offen sc0 sc1
    s_mov_b64 exec, -1
    """)


def build(cfg, header=""):
    _lbl[0] = 0
    a = Asm()
    if header: a.raw(header.rstrip("\n"))
    a.raw(f"; @launch grid=(256,1,1) block=(512,1,1) lds={LDS_BYTES}")
    a.raw('.amdgcn_target "amdgcn-amd-amdhsa--gfx950"\n.text')
    prologue(a, cfg)
    computeA(a, cfg)
    hist = loaderA(a, cfg)
    phaseB(a, cfg)
    loaderC(a, cfg, hist)
    computeC(a, cfg)
    a.label("L_fin")
    stamp(a, cfg, 21)
    if cfg.dbg_stamps:
        wg, lst = cfg.dbg_stamps
        srd(a, rDBG, sDBG, 256)
        a(f"s_cmp_lg_u32 s2, {wg}")
        a("s_cbranch_scc1 L_nodbg")
        a(f"v_readlane_b32 s{sT2}, v255, 0")
        for w in sorted(set(x[0] for x in lst)):
            a(f"s_cmp_lg_u32 s{sWAVE}, {w}")
            a(f"s_cbranch_scc1 L_nodbg{w}")
            a("s_mov_b64 exec, 1")
            for i, (ww, idx) in enumerate(lst):
                if ww != w: continue
                a(f"""
                v_readlane_b32 s{sT1}, v255, {idx}
                s_sub_u32 s{sT1}, s{sT1}, s{sT2}
                s_lshr_b32 s{sT1}, s{sT1}, 4
                s_min_u32 s{sT1}, s{sT1}, 4095
                s_lshl_b32 s{sT1}, s{sT1}, 20
                v_mov_b32 v2, s{sT1}
                v_mov_b32 v3, {i*4}
                buffer_atomic_add v2, v3, s[{rDBG}:{rDBG+3}], 0 offen sc1
                """)
            a("s_mov_b64 exec, -1")
            a.label(f"L_nodbg{w}")
        a.label("L_nodbg")
    stamp_flush(a, cfg)
    a.label("L_end")
    a("s_endpgm")
    a.raw(kernel_desc(KN))
    return a.text()


def make(**kw):
    cfg = Cfg()
    for k, v in kw.items(): setattr(cfg, k, v)
    header = open("cdna_kernels/" + NAME + ".s.ref").read().split("; Override launch")[0]
    return build(cfg, header)


if __name__ == "__main__":
    kw = {}
    for kv in sys.argv[2:]:
        k, v = kv.split("=", 1)
        kw[k] = eval(v)
    open(sys.argv[1], "w").write(make(**kw))
```

```python
import sys
from asmgen import *
import gen2
NAME=gen2.NAME
def probe_kernel(off, mb, pol=""):
    a = Asm()
    a.raw(kernel_header("probe_kernel"))
    per = mb * (1 << 20) // 256 // 4 // 1024
    a(f"""
    s_cmp_ge_u32 s2, 256
    s_cbranch_scc1 P_end
    s_load_dwordx2 s[6:7], s[0:1], 56
    v_lshrrev_b32 v1, 6, v0
    s_nop 0
    v_readfirstlane_b32 s20, v1
    v_and_b32 v0, 63, v0
    s_waitcnt lgkmcnt(0)
    """)
    srd(a, 12, 6, 268435456)
    a(f"""
    v_lshlrev_b32 v10, 4, v0
    s_lshl_b32 s42, s2, 2
    s_add_u32 s42, s42, s20
    s_mul_i32 s42, s42, {per*1024}
    s_add_u32 s42, s42, {off}
    s_mov_b32 s41, 0
    """)
    a.label("P_loop")
    a(f"""
    buffer_load_dwordx4 v[12:15], v10, s[12:15], s42 offen {pol}
    s_add_u32 s42, s42, 1024
    s_waitcnt vmcnt(16)
    s_add_u32 s41, s41, 1
    s_cmp_lt_u32 s41, {per}
    s_cbranch_scc1 P_loop
    s_waitcnt vmcnt(0)
    """)
    a.label("P_end")
    a("s_endpgm")
    a.raw(kernel_desc("probe_kernel", vgpr=32, accum=32))
    return a.text()
base = gen2.make(polPF="")
line = "; @launch grid=(256,1,1) block=(512,1,1) lds=163840"
for name, off, mb in [("w0", 0, 0), ("w1", 48 << 20, 32), ("w2", 96 << 20, 32), ("w3", 144 << 20, 32), ("w4", 192 << 20, 32), ("w5", 224 << 20, 32)]:
    l2 = f"; @launch kernel={NAME}_kernel grid=(256,1,1) block=(512,1,1) lds=163840"
    if mb:
        t = base.replace(line, l2 + "\n; @launch kernel=probe_kernel grid=(256,1,1) block=(256,1,1) lds=0") + probe_kernel(off, mb)
    else:
        t = base
    open(name + ".s", "w").write(t)
```

```python
import sys, math, struct
from asmgen import *

NAME = "standalone__gqa_block_cached__near_ridge"
KN = NAME + "_kernel"

X_BYTES = 768 * 640 * 2
KV_BYTES = 8 * 32 * 96 * 192 * 2
W_BYTES = 640 * 6144 * 2
OUT_BYTES = 768 * 640 * 2
WS_BYTES = 268435456
SCALE = 192 ** -0.5 * math.log2(math.e)

def f32hex(x):
    return "0x%08x" % struct.unpack("<I", struct.pack("<f", x))[0]

sX, sK, sV, sWQ, sWO, sOUT, sDBG, sWS = 4, 6, 8, 10, 12, 14, 16, 18
sWAVE, sG, sB, sJ, sH, sBH = 20, 21, 22, 23, 24, 25
sFAST, sSPIN = 26, 27
rX, rWQ, rK, rV, rWS, rWO, rOUT, rDBG = 28, 32, 36, 40, 44, 48, 52, 68
sT0, sT1, sT2, sT3 = 56, 57, 58, 59
sLW, sM0B, sC, sKVB = 60, 61, 62, 63
sI, sJQ, sROLE = 64, 65, 66
sWM0, sWK, sOM0, sOK = 72, 73, 74, 75
sKW, sKX, sRDY, sMSK, sU, sDN = 92, 93, 94, 95, 96, 97
sINB = 76
sSTAMP = 80
sEX = 90

L_W, L_X, L_K, L_V, L_Q = 0, 49152, 86016, 122880, 0
L_FLAG = 159744
L_OWN, L_WO, L_OR = 0, 36864, 122880
LDS_BYTES = 163840


class Cfg:
    stamps = False
    prefetch_code = True
    code_kb = 32
    ws_o = 0x0000000
    ws_p = 0x1000000
    ws_in = 0x2000000
    ws_stamp = 0x4000000
    polW = "nt"
    polX = ""
    polKV = "nt"
    polWO = "nt"
    polPF = "nt"
    wo_prefetch = True
    pretouch = True
    force_slow = False
    k_sched = [14] * 9
    v_sched = [17] * 9
    h1_flag_step = 0
    spin_max = 400000
    epi_rate = 3
    sentinel = False
    poll_sleep = 1
    pf_rounds = 0
    pf_serial = False
    h2_delay = 16
    one_poller = True
    stamp_only = None
    pv_batch = 2
    v_late = False
    skip_ostore = False
    o_fast_pol = ''
    diag_w7 = False
    o_store_late = False
    prio = None
    nv = 6
    s_batch = 2
    own_lds = True
    h1_gate = False
    pd_wait = 0
    clr_step = 2
    clr_drain = 9
    chk_p = 10
    clr_pol = 'sc0 sc1'
    wbl2_step = None
    polO = 'sc1'
    skip_o = False
    skip_wo = False
    pre_wx = False
    rot = (10, 10)
    pf_step = 8
    o_preread = False
    polOP = ''
    inbox_pre = True
    pf2 = True
    pf_at = 'Q'
    polPW = 'nt'
    polPX = ''
    kv_variants = None
    kv_sel_shift = 3
    dbg_stamps = None


def stamp(a, cfg, idx):
    if not cfg.stamps: return
    if cfg.stamp_only is not None and idx not in cfg.stamp_only: return
    a(f"""
    s_memtime s[{sSTAMP}:{sSTAMP+1}]
    s_waitcnt lgkmcnt(0)
    v_writelane_b32 v255, s{sSTAMP}, {idx}
    """)
    a.lg = []

def stamp_flush(a, cfg):
    if not cfg.stamps: return
    a(f"""
    s_memrealtime s[{sSTAMP}:{sSTAMP+1}]
    s_waitcnt lgkmcnt(0)
    v_writelane_b32 v255, s{sSTAMP}, 33
    s_lshl_b32 s{sT0}, s2, 3
    s_add_u32 s{sT0}, s{sT0}, s{sWAVE}
    s_lshl_b32 s{sT0}, s{sT0}, 8
    s_add_u32 s{sT0}, s{sT0}, {cfg.ws_stamp}
    v_mbcnt_lo_u32_b32 v254, -1, 0
    v_mbcnt_hi_u32_b32 v254, -1, v254
    v_lshlrev_b32 v254, 2, v254
    buffer_store_dword v255, v254, s[{rWS}:{rWS+3}], s{sT0} offen
    """)

def wait_kernarg(a, cfg):
    a("s_waitcnt lgkmcnt(0)")
    if cfg.stamps:
        a(f"v_writelane_b32 v255, s{sSTAMP}, 0")
        a(f"v_writelane_b32 v255, s{sSTAMP+2}, 32")

def mfma(d, A, B, first=False):
    c = "0" if first else vr(d)
    return f"v_mfma_f32_16x16x32_bf16 {vr(d)}, {vr(A)}, {vr(B)}, {c}"

_lbl = [0]
def poll(a, cfg, vaddr, rs, soff, vtmp, check):
    _lbl[0] += 1
    n = _lbl[0]
    a(f"s_mov_b32 s{sSPIN}, 0")
    a.label(f"poll{n}")
    a(f"buffer_load_dword v{vtmp}, v{vaddr}, s[{rs}:{rs+3}], {soff} offen sc1")
    a.wait_vm_all()
    check()
    a(f"""
    s_cbranch_scc1 poll{n}_ok
    s_add_u32 s{sSPIN}, s{sSPIN}, 1
    s_cmp_ge_u32 s{sSPIN}, {cfg.spin_max}
    s_cbranch_scc1 poll{n}_ok
    s_sleep {cfg.poll_sleep}
    s_branch poll{n}
    """)
    a.label(f"poll{n}_ok")


vA = [10, 11, 12]; vXe, vXo, vQW = 13, 14, 15
vQR, vKE, vKO, vVA, vOS, vOL, vF1 = 160, 161, 162, [163, 164, 165, 166], 167, 168, 169
vCA = [[220, 221, 222, 223, 224], [225, 226, 227, 228, 229]]; vCB = [230, 231]; vPS, vPH, vF2, vCL = 232, 233, 234, 235
vW = [220, 221, 222]; vXL = [223, 224, 225]; vKA = [226, 227, 228]; vKB = [229, 230, 231]; vV = [232, 233, 234]
vK0 = [235, 236, 237]; vCP = [238, 239, 240]
vWO = [241, 242, 243, 244, 245]; vOR, vDL, vDO, vP1, vP2, vPF = 246, 247, 248, 249, 250, 251
vONE = 252
vOP = 170
vF2L = 171


def prologue(a, cfg):
    a.raw(kernel_header(KN))
    if cfg.stamps:
        a(f"s_memtime s[{sSTAMP}:{sSTAMP+1}]")
        a(f"s_memrealtime s[{sSTAMP+2}:{sSTAMP+3}]")
    a(f"""
    s_cmp_ge_u32 s2, 256
    s_cbranch_scc1 L_end
    s_load_dwordx16 s[4:19], s[0:1], 0
    v_lshrrev_b32 v1, 6, v0
    v_and_b32 v0, 63, v0
    v_readfirstlane_b32 s{sWAVE}, v1
    s_and_b32 s{sG}, s2, 7
    s_lshr_b32 s{sT0}, s2, 3
    s_lshr_b32 s{sB}, s{sT0}, 2
    s_and_b32 s{sJ}, s{sT0}, 3
    s_lshl_b32 s{sH}, s{sG}, 2
    s_add_u32 s{sH}, s{sH}, s{sJ}
    s_lshl_b32 s{sBH}, s{sB}, 5
    s_add_u32 s{sBH}, s{sBH}, s{sH}
    s_lshl_b32 s{sINB}, s{sBH}, 11
    s_add_u32 s{sINB}, s{sINB}, {cfg.ws_in}
    s_cmp_ge_u32 s{sWAVE}, 4
    s_cbranch_scc1 L_loaderA
    """)
    if cfg.prefetch_code:
        a(f"s_getpc_b64 s[{sT2}:{sT2+1}]")
        a.label("L_pc")
        a(f"""
        s_sub_u32 s{sT2}, s{sT2}, L_pc-{KN}
        s_subb_u32 s{sT2+1}, s{sT2+1}, 0
        s_lshl_b32 s{sT0}, s{sWAVE}, 13
        v_lshlrev_b32 v2, 7, v0
        v_add_u32 v2, s{sT0}, v2
        v_min_u32 v2, L_end-{KN}, v2
        global_load_dword v253, v2, s[{sT2}:{sT2+1}]
        """)


def addrB(a, cfg):
    a.c("phase B addresses")
    a(f"""
    v_lshrrev_b32 v2, 4, v0                  ; kq
    v_and_b32 v5, 15, v0                     ; m / n
    s_mul_i32 s{sT2}, s{sWAVE}, 6144
    v_lshlrev_b32 v6, 4, v0
    v_add_u32 v{vQR}, s{sT2}, v6
    v_lshrrev_b32 v7, 1, v5
    v_xor_b32 v7, v7, v2
    v_mul_u32_u24 v8, 384, v5
    v_lshl_add_u32 v8, v7, 4, v8
    v_add_u32 v{vKE}, {L_K}, v8
    v_xor_b32 v{vKO}, 64, v{vKE}
    v_lshrrev_b32 v7, 2, v5                  ; r
    v_lshl_add_u32 v7, v2, 2, v7             ; 4kq + r
    v_mul_u32_u24 v8, 384, v7
    v_and_b32 v3, 3, v0                      ; c
    v_lshl_add_u32 v8, v3, 3, v8
    v_add_u32 v8, {L_V}, v8
    v_bfe_u32 v7, v7, 1, 2                   ; h
    """)
    for i in range(4):
        a(f"v_xor_b32 v3, {i}, v7")
        a(f"v_lshl_add_u32 v{vVA[i]}, v3, 5, v8")
    a(f"""
    s_lshl_b32 s{sT2}, s{sB}, 3
    s_add_u32 s{sT2}, s{sT2}, s{sG}
    s_mul_i32 s{sT2}, s{sT2}, 24
    s_mul_i32 s{sT3}, s{sJ}, 6
    s_add_u32 s{sT2}, s{sT2}, s{sT3}
    s_mul_i32 s{sT2}, s{sT2}, 6144
    s_lshl_b32 s{sT3}, s{sWAVE}, 10
    s_add_u32 s{sT2}, s{sT2}, s{sT3}
    v_add_u32 v{vOS}, s{sT2}, v6
    v_add_u32 v{vOL}, s{sT3}, v6
    s_lshl_b32 s{sT2}, s{sJ}, 11
    s_sub_u32 s{sT2}, s{sINB}, s{sT2}
    s_add_u32 s{sT2}, s{sT2}, 1024
    s_mul_i32 s{sT3}, s{sJ}, 24
    s_add_u32 s{sT2}, s{sT2}, s{sT3}
    s_lshl_b32 s{sT3}, s{sWAVE}, 2
    s_add_u32 s{sT2}, s{sT2}, s{sT3}
    v_and_b32 v3, 3, v0
    v_lshlrev_b32 v3, 11, v3
    v_add_u32 v{vF1}, s{sT2}, v3
    v_mov_b32 v{vONE}, 1
    """)


def h1_flag(a, cfg, n):
    a(f"""
    s_mov_b64 exec, 15
    s_cmp_lg_u32 s{sFAST}, 0
    s_cbranch_scc1 L_f1fast{n}
    """)
    a(f"buffer_store_dword v{vONE}, v{vF1}, s[{rWS}:{rWS+3}], 0 offen sc0 sc1")
    a(f"s_branch L_f1done{n}")
    a.label(f"L_f1fast{n}")
    a.vmem(f"buffer_store_dword v{vONE}, v{vF1}, s[{rWS}:{rWS+3}], 0 offen", "flag")
    a.label(f"L_f1done{n}")
    a("s_mov_b64 exec, -1")


def computeA(a, cfg):
    ACC = 16
    def acc(T, t): return ACC + (T * 6 + t) * 4
    SETA = [88, 124]; SETB = [100, 136]
    a(f"s_mov_b32 s{sROLE}, 0")
    a.c("phase A addresses: v2=kq v3=r v4=c v5=n")
    a(f"""
    v_lshrrev_b32 v2, 4, v0
    v_bfe_u32 v3, v0, 2, 2
    v_and_b32 v4, 3, v0
    v_and_b32 v5, 15, v0
    v_lshlrev_b32 v6, 3, v2
    v_add_u32 v6, v6, v3                     ; k = 8kq + r
    v_mul_u32_u24 v6, 384, v6
    v_lshl_add_u32 v6, v4, 3, v6             ; k*384 + 8c
    v_lshrrev_b32 v7, 1, v3
    v_and_b32 v8, 1, v2
    v_lshl_or_b32 v7, v8, 1, v7              ; h(k)
    s_mul_i32 s{sT0}, s{sWAVE}, 3
    """)
    for T in range(3):
        a(f"""
        s_add_u32 s{sT1}, s{sT0}, {T}
        v_xor_b32 v8, s{sT1}, v7
        v_lshl_add_u32 v{vA[T]}, v8, 5, v6
        """)
    a(f"""
    v_lshrrev_b32 v6, 1, v5                  ; (n>>1)&7
    v_xor_b32 v6, v6, v2
    v_lshlrev_b32 v6, 4, v6
    v_lshl_add_u32 v6, v5, 7, v6
    v_add_u32 v{vXe}, {L_X}, v6
    v_xor_b32 v{vXo}, 64, v{vXe}
    v_lshrrev_b32 v6, 1, v2
    v_lshlrev_b32 v6, 8, v6
    v_lshl_add_u32 v6, v5, 4, v6
    v_and_b32 v7, 1, v2
    v_lshl_add_u32 v6, v7, 3, v6
    s_mul_i32 s{sT0}, s{sWAVE}, 1536
    v_add_u32 v{vQW}, s{sT0}, v6
    """)
    addrB(a, cfg)
    a.c("phase C addresses")
    a(f"""
    s_and_b32 s{sI}, s{sWAVE}, 1
    s_lshr_b32 s{sJQ}, s{sWAVE}, 1
    v_lshrrev_b32 v2, 4, v0                  ; kq
    v_bfe_u32 v3, v0, 2, 2                   ; r
    v_and_b32 v4, 3, v0                      ; c
    v_lshl_add_u32 v6, v2, 2, v3             ; 4kq + r
    v_mul_u32_u24 v6, 320, v6
    v_lshl_add_u32 v6, v4, 3, v6
    v_add_u32 v6, {L_WO}, v6
    v_and_b32 v7, 1, v2
    s_mul_i32 s{sT0}, s{sI}, 5
    """)
    for T in range(5):
        a(f"""
        s_add_u32 s{sT1}, s{sT0}, {T}
        v_xor_b32 v8, s{sT1}, v7
        v_lshl_add_u32 v{vCA[0][T]}, v8, 5, v6
        v_add_u32 v{vCA[1][T]}, 40960, v{vCA[0][T]}
        """)
    a(f"""
    s_mul_i32 s{sT0}, s{sJQ}, 3072
    v_lshlrev_b32 v6, 4, v0
    v_add_u32 v{vCB[0]}, s{sT0}, v6
    v_add_u32 v{vCB[1]}, {L_OR}, v{vCB[0]}
    s_lshl_b32 s{sT0}, s{sB}, 2
    s_add_u32 s{sT0}, s{sT0}, s{sJ}
    s_lshl_b32 s{sT0}, s{sT0}, 3
    s_add_u32 s{sT0}, s{sT0}, s{sG}
    s_lshl_b32 s{sT0}, s{sT0}, 2
    s_add_u32 s{sT0}, s{sT0}, s{sWAVE}
    s_lshl_b32 s{sT0}, s{sT0}, 13
    s_add_u32 s{sT0}, s{sT0}, {cfg.ws_p}
    v_add_u32 v{vPS}, s{sT0}, v6
    v_mov_b32 v{vPH}, v6
    s_lshl_b32 s{sT0}, s{sB}, 5
    s_lshl_b32 s{sT1}, s{sWAVE}, 3
    s_add_u32 s{sT0}, s{sT0}, s{sT1}
    s_add_u32 s{sT0}, s{sT0}, s{sJ}
    s_lshl_b32 s{sT0}, s{sT0}, 11
    s_lshl_b32 s{sT1}, s{sG}, 7
    s_add_u32 s{sT0}, s{sT0}, s{sT1}
    s_add_u32 s{sT0}, s{sT0}, {cfg.ws_in}
    v_and_b32 v3, 1, v0
    v_lshlrev_b32 v3, 13, v3
    v_add_u32 v{vF2}, s{sT0}, v3
    """)
    wait_kernarg(a, cfg)
    srd(a, rWS, sWS, WS_BYTES)
    if cfg.pretouch:
        a(f"""
        s_cmp_lg_u32 s{sWAVE}, 1
        s_cbranch_scc1 L_notouch
        """)
        srd(a, rK, sK, KV_BYTES); srd(a, rV, sV, KV_BYTES); srd(a, rWO, sWO, W_BYTES); srd(a, rOUT, sOUT, OUT_BYTES)
        a(f"""
        s_mov_b64 exec, 3
        v_mul_u32_u24 v2, 36860, v0
        s_mul_i32 s{sT0}, s{sBH}, 36864
        buffer_load_dword v253, v2, s[{rK}:{rK+3}], s{sT0} offen nt
        buffer_load_dword v253, v2, s[{rV}:{rV+3}], s{sT0} offen nt
        v_mul_u32_u24 v2, 983036, v0
        s_mul_i32 s{sT0}, s{sG}, 983040
        buffer_load_dword v253, v2, s[{rWO}:{rWO+3}], s{sT0} offen nt
        buffer_load_dword v253, v2, s[{rOUT}:{rOUT+3}], 0 offen nt
        buffer_load_dword v253, v{vOS}, s[{rWS}:{rWS+3}], 0 offen nt
        buffer_load_dword v253, v{vPS}, s[{rWS}:{rWS+3}], 0 offen nt
        s_mov_b64 exec, -1
        """)
        a.label("L_notouch")
    stamp(a, cfg, 1)

    def reads(s):
        st = s & 1
        wo = L_W + (s % 4) * 12288
        xo = ((s >> 1) % 3) * 12288
        vx = vXo if s & 1 else vXe
        R = []
        def ra(T):
            R.append((f"ds_read_b64_tr_b16 {vr(SETA[st]+4*T, 2)}, v{vA[T]} offset:{wo}", ("A", s, T)))
            R.append((f"ds_read_b64_tr_b16 {vr(SETA[st]+4*T+2, 2)}, v{vA[T]} offset:{wo+1536}", ("A", s, T)))
        ra(0)
        for t in range(6):
            R.append((f"ds_read_b128 {vr(SETB[st]+4*t)}, v{vx} offset:{xo + t*2048}", ("B", s, t)))
        ra(1); ra(2)
        return R

    a("s_barrier   ; P")
    stamp(a, cfg, 2)
    for ins, tag in reads(0): a.ds(ins, tag)
    for s in range(20):
        a.wait_lg_all()
        if s < 19:
            a(f"s_barrier   ; B{s}")
        R = reads(s + 1) if s < 19 else []
        st = s & 1
        m = 0
        for T in range(3):
            for t in range(6):
                a(mfma(acc(T, t), SETA[st] + 4 * T, SETB[st] + 4 * t, first=(s == 0)))
                if m < len(R): a.ds(*R[m])
                m += 1
        if s in (4, 9, 14): stamp(a, cfg, 3 + (s - 4) // 5)
    stamp(a, cfg, 6)
    a.c("Q -> bf16 -> LDS (fragment-major)")
    for T in range(3):
        for t in range(6):
            d = acc(T, t)
            tmp = 88 + ((T * 6 + t) % 8) * 2
            a(f"v_cvt_pk_bf16_f32 v{tmp}, v{d}, v{d+1}")
            a(f"v_cvt_pk_bf16_f32 v{tmp+1}, v{d+2}, v{d+3}")
            a.ds(f"ds_write_b64 v{vQW}, {vr(tmp, 2)} offset:{L_Q + 512*T + 6144*t}", "qw")
    a.wait_lg_all()
    a("s_barrier   ; Q")
    if cfg.prio: a(f"s_setprio {cfg.prio[0]}")
    a("s_branch L_phaseB")


def dma(a, vaddr, rs, soff, ldsoff, tag, base, pol=""):
    a(f"s_add_u32 m0, s{base}, {ldsoff}")
    if isinstance(soff, str):
        so = soff
        a("s_nop 0")
    else:
        a(f"s_mov_b32 s{sT0}, {soff}")
        so = f"s{sT0}"
    a.vmem(f"buffer_load_dwordx4 v{vaddr}, s[{rs}:{rs+3}], {so} offen {pol} lds", tag)


def ld_wo_pair(a, cfg, p, both):
    slot = L_WO + (p % 4) * 20480
    if both:
        for e in range(2):
            a(f"s_add_u32 s{sT3}, s{sWK}, {e*40960}")
            for i in range(5):
                dma(a, vWO[i], rWO, f"s{sT3}", slot + e * 10240 + i * 1024, ("WO", p), sWM0, cfg.polWO)
    else:
        a(f"s_add_u32 s{sT3}, s{sWK}, s{sOK+2}")
        for i in range(0 if cfg.skip_wo else 5):
            dma(a, vWO[i], rWO, f"s{sT3}", slot + i * 1024, ("WO", p), sOK + 3, cfg.polWO)
    a(f"""
    s_add_u32 s{sWK}, s{sWK}, 81920
    s_cmp_eq_u32 s{sWK}, {12*81920}
    s_cselect_b32 s{sWK}, 0, s{sWK}
    """)

def ld_o_pair(a, cfg, p):
    slot = L_OR + ((p - 3) % 3) * 12288
    a(f"s_add_u32 m0, s{sOM0}, {slot}")
    a("s_nop 0")
    for i in range(0 if cfg.skip_o else 3):
        a.vmem(f"buffer_load_dwordx4 v{vOR}, s[{rWS}:{rWS+3}], s{sOK} offen offset:{i*1024} {cfg.polO} lds", ("O", p))
    a(f"""
    s_add_u32 s{sOK}, s{sOK}, 12288
    s_cmp_eq_u32 s{sOK}, {12*12288}
    s_cselect_b32 s{sOK}, 0, s{sOK}
    """)


def loaderA(a, cfg):
    a.label("L_loaderA")
    a.reset()
    if cfg.stamps:
        a(f"s_memtime s[{sSTAMP+4}:{sSTAMP+5}]")
    a(f"s_mov_b32 s{sROLE}, 1")
    a(f"s_sub_u32 s{sLW}, s{sWAVE}, 4")
    if cfg.pre_wx:
        a.c("L2 prefetch of this XCD's share of wq and x: one dword per 128-byte line, k-major")
        a(f"""
        s_mul_i32 s{sT0}, s{sLW}, 60
        v_min_u32 v2, 59, v0
        v_add_u32 v2, s{sT0}, v2
        v_lshlrev_b32 v2, 5, v2
        s_lshr_b32 s{sT0}, s2, 3
        v_add_u32 v2, s{sT0}, v2               ; L in [0,7680)
        v_mov_b32 v6, 5462
        v_mul_lo_u32 v3, v2, v6
        v_lshrrev_b32 v3, 16, v3               ; L/12
        v_mul_u32_u24 v4, 12, v3
        v_sub_u32 v4, v2, v4
        v_mul_u32_u24 v3, 12288, v3
        v_lshl_add_u32 v3, v4, 7, v3
        s_mul_i32 s{sT0}, s{sG}, 1536
        v_add_u32 v8, s{sT0}, v3
        v_lshrrev_b32 v7, 6, v2
        v_mul_u32_u24 v7, 5462, v7
        v_lshrrev_b32 v7, 16, v7               ; L/768
        v_mul_u32_u24 v4, 768, v7
        v_sub_u32 v4, v2, v4
        v_mul_u32_u24 v4, 1280, v4
        v_lshl_add_u32 v9, v7, 7, v4           ; x line
        """)
        wait_kernarg(a, cfg)
        srd(a, rWQ, sWQ, W_BYTES)
        srd(a, rX, sX, X_BYTES)
        a(f"buffer_load_dword v253, v8, s[{rWQ}:{rWQ+3}], 0 offen {cfg.polPW}")
        a(f"buffer_load_dword v253, v9, s[{rX}:{rX+3}], 0 offen {cfg.polPX}")
    a(f"s_mul_i32 s{sT0}, s{sLW}, {8*12288}")
    a(f"s_mul_i32 s{sT1}, s{sH}, 384")
    a(f"s_add_u32 s{sT0}, s{sT0}, s{sT1}")
    a(f"s_and_b32 s{sT1}, s{sLW}, 1")
    a(f"s_lshl_b32 s{sT1}, s{sT1}, 2")
    for i in range(3):
        a(f"""
        v_add_u32 v2, {64*i}, v0
        v_mul_u32_u24 v3, 2731, v2
        v_lshrrev_b32 v{vK0[i]}, 16, v3
        v_mul_u32_u24 v4, 24, v{vK0[i]}
        v_sub_u32 v{vCP[i]}, v2, v4
        v_and_b32 v5, 2, v{vK0[i]}
        v_or_b32 v5, s{sT1}, v5
        v_xor_b32 v5, v5, v{vCP[i]}
        v_mul_u32_u24 v6, 12288, v{vK0[i]}
        v_lshl_add_u32 v6, v5, 4, v6
        v_add_u32 v{vW[i]}, s{sT0}, v6
        """)
    a(f"""
    s_mul_i32 s{sT2}, s{sB}, 96
    s_mul_i32 s{sT3}, s{sLW}, 24
    s_add_u32 s{sT2}, s{sT2}, s{sT3}
    s_mul_i32 s{sT2}, s{sT2}, 1280
    v_lshrrev_b32 v2, 3, v0
    v_mul_u32_u24 v2, 1280, v2
    v_and_b32 v3, 7, v0
    v_lshrrev_b32 v4, 4, v0
    v_xor_b32 v3, v3, v4
    v_xor_b32 v3, s{sT1}, v3
    v_lshl_add_u32 v{vXL[0]}, v3, 4, v2
    v_add_u32 v{vXL[0]}, s{sT2}, v{vXL[0]}
    v_xor_b32 v3, 4, v3
    v_lshl_add_u32 v{vXL[1]}, v3, 4, v2
    s_add_u32 s{sT3}, s{sT2}, {8*1280}
    v_add_u32 v{vXL[1]}, s{sT3}, v{vXL[1]}
    v_add_u32 v{vXL[2]}, {16*1280}, v{vXL[0]}
    s_mul_i32 s{sM0B}, s{sLW}, 3072
    s_mul_i32 s{sT2}, s{sB}, {cfg.rot[0]}
    s_mul_i32 s{sT3}, s{sJ}, {cfg.rot[1]}
    s_add_u32 s{sT2}, s{sT2}, s{sT3}
    s_add_u32 s{sT2}, s{sT2}, 2
    s_lshr_b32 s{sT2}, s{sT2}, 2
    s_cmp_ge_u32 s{sT2}, 20
    s_cselect_b32 s{sT3}, 20, 0
    s_sub_u32 s{sT2}, s{sT2}, s{sT3}
    s_cmp_ge_u32 s{sT2}, 10
    s_cselect_b32 s{sT3}, 10, 0
    s_sub_u32 s{sT2}, s{sT2}, s{sT3}
    s_mul_i32 s{sKW}, s{sT2}, {64*12288}
    s_lshl_b32 s{sKX}, s{sT2}, 7
    """)
    if not cfg.pre_wx:
        wait_kernarg(a, cfg)
        srd(a, rWQ, sWQ, W_BYTES)
        srd(a, rX, sX, X_BYTES)
    if cfg.stamps:
        a("s_waitcnt lgkmcnt(0)")
        a(f"v_writelane_b32 v255, s{sSTAMP+4}, 27")
        stamp(a, cfg, 29)

    def ldW(s):
        for i in range(3): dma(a, vW[i], rWQ, f"s{sKW}", L_W + (s % 4) * 12288 + i * 1024, ("W", s), sM0B, cfg.polW)
        a(f"""
        s_add_u32 s{sKW}, s{sKW}, {32*12288}
        s_cmp_eq_u32 s{sKW}, {640*12288}
        s_cselect_b32 s{sKW}, 0, s{sKW}
        """)
    def ldX(m):
        for i in range(3): dma(a, vXL[i], rX, f"s{sKX}", L_X + (m % 3) * 12288 + i * 1024, ("X", m), sM0B, cfg.polX)
        a(f"""
        s_add_u32 s{sKX}, s{sKX}, 128
        s_cmp_eq_u32 s{sKX}, 1280
        s_cselect_b32 s{sKX}, 0, s{sKX}
        """)
    def ldPF():
        a.vmem(f"buffer_load_dword v253, v{vPF}, s[{rWO}:{rWO+3}], 0 offen {cfg.polPF}", "pf")
    def ldK(i):
        i1, i0 = divmod(i, 3)
        dma(a, (vKB if i1 & 1 else vKA)[i0], rK, i1 * 3072, L_K + i * 1024, "K", sKVB, cfg.polKV)
    def ldV(i):
        i1, i0 = divmod(i, 3)
        dma(a, vV[i0], rV, i1 * 3072, L_V + i * 1024, "V", sKVB, cfg.polKV)

    ldW(0); ldX(0)
    srd(a, rWS, sWS, WS_BYTES)
    srd(a, rDBG, sDBG, 256)
    a.c("wave 7: clear this workgroup's inbox")
    a(f"""
    s_cmp_lg_u32 s{sWAVE}, 7
    s_cbranch_scc1 L_noclr
    v_lshlrev_b32 v2, 4, v0
    v_mov_b32 v4, 0
    v_mov_b32 v5, 0
    v_mov_b32 v6, 0
    v_mov_b32 v7, 0
    buffer_store_dwordx4 v[4:7], v2, s[{rWS}:{rWS+3}], s{sINB} offen sc0 sc1
    s_mov_b64 exec, 0xff
    buffer_store_dwordx4 v[4:7], v2, s[{rWS}:{rWS+3}], s{sINB} offen offset:1024 sc0 sc1
    s_mov_b64 exec, -1
    """)
    a.label("L_noclr")
    ldW(1)
    srd(a, rK, sK, KV_BYTES)
    srd(a, rV, sV, KV_BYTES)
    srd(a, rWO, sWO, W_BYTES)
    srd(a, rOUT, sOUT, OUT_BYTES)
    a(f"""
    s_mul_i32 s{sKVB}, s{sLW}, 9216
    s_mul_i32 s{sT2}, s{sBH}, 36864
    s_add_u32 s{sT2}, s{sT2}, s{sKVB}
    """)
    for i in range(3):
        a(f"""
        v_mul_u32_u24 v6, 384, v{vK0[i]}
        v_add_u32 v6, s{sT2}, v6
        v_lshrrev_b32 v3, 1, v{vK0[i]}
        v_xor_b32 v4, v3, v{vCP[i]}
        v_xor_b32 v4, s{sT1}, v4
        v_lshl_add_u32 v{vKA[i]}, v4, 4, v6
        v_xor_b32 v4, 4, v4
        v_lshl_add_u32 v{vKB[i]}, v4, 4, v6
        v_lshlrev_b32 v3, 1, v3
        v_xor_b32 v4, v3, v{vCP[i]}
        v_lshl_add_u32 v{vV[i]}, v4, 4, v6
        """)
    ldW(2); ldX(1); ldW(3); ldX(2)
    addrB(a, cfg)
    a.c("phase C / D loader addresses")
    a(f"""
    s_and_b32 s{sT1}, s{sLW}, 1
    s_mul_i32 s{sWM0}, s{sT1}, 5120
    s_mul_i32 s{sT1}, s{sT1}, 320
    s_mul_i32 s{sT2}, s{sG}, {768*1280}
    s_mul_i32 s{sT3}, s{sJ}, 320
    s_add_u32 s{sT2}, s{sT2}, s{sT3}
    """)
    for i in range(5):
        a(f"""
        v_add_u32 v2, s{sT1}, v0
        v_add_u32 v2, {64*i}, v2
        v_mul_u32_u24 v3, 3277, v2
        v_lshrrev_b32 v3, 16, v3            ; row = t/20
        v_mul_u32_u24 v4, 20, v3
        v_sub_u32 v4, v2, v4                ; cp
        v_lshrrev_b32 v5, 1, v3
        v_and_b32 v5, 2, v5
        v_xor_b32 v4, v4, v5
        v_mul_u32_u24 v3, 1280, v3
        v_lshl_add_u32 v3, v4, 4, v3
        v_add_u32 v{vWO[i]}, s{sT2}, v3
        """)
    a(f"""
    s_mul_i32 s{sWK}, s{sJ}, {3*81920}
    s_lshr_b32 s{sT1}, s{sLW}, 1
    s_mul_i32 s{sOK+2}, s{sT1}, 40960
    s_mul_i32 s{sOK+3}, s{sT1}, 10240
    s_add_u32 s{sOK+3}, s{sOK+3}, s{sWM0}
    s_add_u32 s{sT1}, s{sJ}, 1
    s_and_b32 s{sT1}, s{sT1}, 3
    s_mul_i32 s{sOK}, s{sT1}, {3*12288}
    s_mul_i32 s{sOM0}, s{sLW}, 3072
    s_lshl_b32 s{sT1}, s{sB}, 3
    s_add_u32 s{sT1}, s{sT1}, s{sG}
    s_mul_i32 s{sT1}, s{sT1}, 147456
    s_add_u32 s{sT1}, s{sT1}, s{sOM0}
    s_add_u32 s{sT1}, s{sT1}, {cfg.ws_o}
    v_lshlrev_b32 v7, 4, v0
    v_add_u32 v{vOR}, s{sT1}, v7
    v_min_u32 v2, 23, v0
    v_lshlrev_b32 v2, 2, v2
    s_add_u32 s{sT1}, s{sINB}, 1024
    v_add_u32 v{vP1}, s{sT1}, v2
    v_min_u32 v2, 7, v0
    v_max_u32 v2, {1 if cfg.own_lds else 0}, v2
    v_add_u32 v2, s{sG}, v2
    v_and_b32 v2, 7, v2
    v_lshlrev_b32 v3, 7, v2
    v_add_u32 v{vP2}, s{sINB}, v3
    s_lshl_b32 s{sT1}, s{sB}, 2
    s_add_u32 s{sT1}, s{sT1}, s{sJ}
    s_mul_i32 s{sT1}, s{sT1}, 30720
    s_mul_i32 s{sT2}, s{sG}, 983040
    s_add_u32 s{sT1}, s{sT1}, s{sT2}
    s_and_b32 s{sT2}, s{sLW}, {1 if cfg.pf_step is None else 3}
    s_mul_i32 s{sT2}, s{sT2}, {15360 if cfg.pf_step is None else 7680}
    s_add_u32 s{sT1}, s{sT1}, s{sT2}
    v_min_u32 v2, 59, v0
    v_lshlrev_b32 v2, 7, v2
    v_add_u32 v{vPF}, s{sT1}, v2
    s_lshl_b32 s{sT1}, s{sB}, 3
    s_add_u32 s{sT1}, s{sT1}, s{sG}
    s_lshl_b32 s{sT1}, s{sT1}, 2
    s_add_u32 s{sT1}, s{sT1}, s{sJ}
    s_mul_i32 s{sT1}, s{sT1}, 36864
    s_and_b32 s{sT2}, s{sLW}, 1
    s_mul_i32 s{sT2}, s{sT2}, 18432
    s_add_u32 s{sT1}, s{sT1}, s{sT2}
    s_add_u32 s{sT1}, s{sT1}, {cfg.ws_o}
    v_min_u32 v2, 47, v0
    v_lshlrev_b32 v2, 7, v2
    v_add_u32 v{vOP}, s{sT1}, v2
    s_and_b32 s{sT0}, s{sG}, 1
    s_lshl_b32 s{sT0}, s{sT0}, 2
    s_add_u32 s{sU}, s{sT0}, s{sLW}
    s_lshl_b32 s{sT2}, s{sB}, 2
    s_add_u32 s{sT2}, s{sT2}, s{sJ}
    s_lshl_b32 s{sT2}, s{sT2}, 5
    s_lshr_b32 s{sT1}, s{sG}, 1
    s_add_u32 s{sT2}, s{sT2}, s{sT1}
    s_lshl_b32 s{sT2}, s{sT2}, 3
    s_add_u32 s{sT2}, s{sT2}, s{sU}
    s_lshl_b32 s{sT2}, s{sT2}, 10
    s_add_u32 s{sT2}, s{sT2}, {cfg.ws_p}
    v_lshlrev_b32 v3, 4, v0
    v_add_u32 v{vDL}, s{sT2}, v3            ; + src*32768
    s_bfe_u32 s{sT0}, s{sG}, 0x10001        ; i
    s_lshr_b32 s{sT1}, s{sG}, 2             ; jq
    s_mul_i32 s{sT1}, s{sT1}, 48
    s_mul_i32 s{sT2}, s{sB}, 96
    s_add_u32 s{sT1}, s{sT1}, s{sT2}
    s_lshr_b32 s{sT2}, s{sU}, 1             ; t (u<6), 3 for u = 6,7
    s_cmp_eq_u32 s{sU}, 6
    s_cselect_b32 s{sT2}, 0, s{sT2}
    s_cmp_eq_u32 s{sU}, 7
    s_cselect_b32 s{sT2}, 2, s{sT2}
    s_lshl_b32 s{sT2}, s{sT2}, 4
    s_add_u32 s{sT1}, s{sT1}, s{sT2}
    s_mul_i32 s{sT1}, s{sT1}, 1280
    s_and_b32 s{sT2}, s{sU}, 1
    s_lshl_b32 s{sT2}, s{sT2}, 6
    s_mul_i32 s{sT3}, s{sT0}, 192           ; (80+16) columns * 2B * i
    s_add_u32 s{sT2}, s{sT2}, s{sT3}
    s_lshl_b32 s{sT3}, s{sT0}, 5
    s_add_u32 s{sT3}, s{sT3}, 128           ; (64 + 16 i) * 2B
    s_cmp_ge_u32 s{sU}, 6
    s_cselect_b32 s{sT2}, s{sT3}, s{sT2}
    s_add_u32 s{sT1}, s{sT1}, s{sT2}
    s_mul_i32 s{sT2}, s{sJ}, 320
    s_add_u32 s{sT1}, s{sT1}, s{sT2}
    v_and_b32 v2, 15, v0
    v_mul_u32_u24 v2, 1280, v2
    v_lshrrev_b32 v3, 4, v0
    v_lshl_add_u32 v2, v3, 3, v2
    v_add_u32 v{vDO}, s{sT1}, v2
    s_mov_b32 s{sDN}, 32
    s_cmp_eq_u32 s{sU}, 6
    s_cselect_b32 s{sDN}, {16*1280}, s{sDN}
    s_cmp_eq_u32 s{sU}, 7
    s_cselect_b32 s{sDN}, 16, s{sDN}
    """)
    stamp(a, cfg, 1)
    a.wait_vm(("W", 0), ("X", 0))
    a("s_barrier   ; P")
    stamp(a, cfg, 2)
    a.wait_vm(("W", 1), ("X", 0))
    a.c("wave 7: inbox cleared (its store is older than W1) -> arrive on the group word in d_debug")
    a(f"""
    s_cmp_lg_u32 s{sWAVE}, 7
    s_cbranch_scc1 L_noarr
    s_getreg_b32 s{sT1}, hwreg(HW_REG_XCC_ID, 0, 4)
    s_lshl_b32 s{sT2}, s{sJ}, 2
    s_add_u32 s{sT2}, s{sT2}, 4
    s_lshl_b32 s{sT1}, s{sT1}, s{sT2}
    s_add_u32 s{sT1}, s{sT1}, 1
    s_lshl_b32 s{sT2}, s{sB}, 3
    s_add_u32 s{sT2}, s{sT2}, s{sG}
    s_lshl_b32 s{sT2}, s{sT2}, 2
    v_mov_b32 v2, s{sT1}
    v_mov_b32 v3, s{sT2}
    s_mov_b64 exec, 1
    buffer_atomic_add v2, v3, s[{rDBG}:{rDBG+3}], 0 offen sc1
    s_mov_b64 exec, -1
    """)
    a.label("L_noarr")
    variants = cfg.kv_variants or [(cfg.k_sched, cfg.v_sched)]
    nv = len(variants)
    if nv > 1:
        a(f"s_lshr_b32 s{sT1}, s2, {cfg.kv_sel_shift}")
        if nv == 3:
            a(f"s_mul_i32 s{sT2}, s{sT1}, 86")
            a(f"s_lshr_b32 s{sT2}, s{sT2}, 8")
            a(f"s_mul_i32 s{sT2}, s{sT2}, 3")
            a(f"s_sub_u32 s{sT1}, s{sT1}, s{sT2}")
        else:
            a(f"s_and_b32 s{sT1}, s{sT1}, {nv-1}")
        for v in range(1, nv):
            a(f"s_cmp_eq_u32 s{sT1}, {v}")
            a(f"s_cbranch_scc1 L_kvvar{v}")
    vm0 = list(a.vm)
    tails = []
    for v, var in enumerate(variants):
        ksch, vsch = var[0], var[1]
        pfs = var[2] if len(var) > 2 else cfg.pf_step
        if v: a.label(f"L_kvvar{v}")
        a.vm = list(vm0)
        for s in range(19):
            a.wait_vm(("W", s + 1), ("X", (s + 1) >> 1))
            a(f"s_barrier   ; B{s}")
            pre = [i for i, ss in enumerate(ksch) if ss == s], [i for i, ss in enumerate(vsch) if ss == s]
            if s + 4 < 20: ldW(s + 4)
            if s & 1 and (s >> 1) + 3 < 10: ldX((s >> 1) + 3)
            if pfs == s and cfg.wo_prefetch: ldPF()
            for i in pre[0]: ldK(i)
            for i in pre[1]: ldV(i)
            if s in (4, 9, 14): stamp(a, cfg, 3 + (s - 4) // 5)
        if nv > 1:
            a.wait_vm("K")
            tails.append(list(a.vm))
            if v < nv - 1: a("s_branch L_kvjoin")
    if nv > 1:
        a.label("L_kvjoin")
        a.vm = max(tails, key=len)
    a.wait_vm("K")
    stamp(a, cfg, 6)
    a.c("wave 7: check that the 32 workgroups of this batch have cleared their inboxes; same-XCD test")
    a(f"""
    s_cmp_lg_u32 s{sWAVE}, 7
    s_cbranch_scc1 L_nohs
    v_and_b32 v2, 7, v0
    v_lshlrev_b32 v2, 2, v2
    s_lshl_b32 s{sT3}, s{sB}, 5
    """)
    save = list(a.vm)
    def chk():
        a(f"""
        v_and_b32 v4, 7, v3
        v_cmp_eq_u32 vcc, 4, v4
        s_cmp_eq_u64 vcc, -1
        """)
    poll(a, cfg, 2, rDBG, f"s{sT3}", 3, chk)
    a(f"""
    v_readlane_b32 s{sT1}, v3, s{sG}
    s_bfe_u32 s{sT1}, s{sT1}, 0x100004
    s_and_b32 s{sT2}, s{sT1}, 15
    s_mul_i32 s{sT2}, s{sT2}, 0x1111
    s_cmp_eq_u32 s{sT1}, s{sT2}
    s_cselect_b32 s{sT1}, {0 if cfg.force_slow else 1}, 0
    v_mov_b32 v2, {L_FLAG}
    v_mov_b32 v3, s{sT1}
    ds_write_b32 v2, v3
    s_waitcnt lgkmcnt(0)
    """)
    a.label("L_nohs")
    a.vm = save
    a("s_barrier   ; Q")
    if cfg.prio: a(f"s_setprio {cfg.prio[2]}")
    a(f"""
    s_cmp_lt_u32 s{sWAVE}, 6
    s_cbranch_scc1 L_phaseB
    """)
    a.c("waves 6,7 during attention: wo prefetch into L2 and the first four wo pairs")
    a.vm = ["V"]
    if cfg.inbox_pre:
        a.vmem(f"buffer_load_dword v253, v{vP1}, s[{rWS}:{rWS+3}], 0 offen sc1", "ib")
    if cfg.pf2:
        a.c("second touch with the default policy keeps the prefetched wo lines in L2")
        a(f"s_lshr_b32 s{sT1}, s{sLW}, 1")
        a(f"s_mul_i32 s{sT1}, s{sT1}, 15360")
        a(f"s_sub_u32 s{sT1}, 0, s{sT1}")
        a(f"v_add_u32 v2, s{sT1}, v{vPF}")
        a(f"s_and_b32 s{sT1}, s{sLW}, 1")
        a(f"s_mul_i32 s{sT1}, s{sT1}, 7680")
        a(f"v_add_u32 v2, s{sT1}, v2")
        a.vmem(f"buffer_load_dword v253, v2, s[{rWO}:{rWO+3}], 0 offen", "pf")
        a(f"s_mov_b32 s{sT0}, 7680")
        a.vmem(f"buffer_load_dword v253, v2, s[{rWO}:{rWO+3}], s{sT0} offen", "pf")
    if cfg.o_preread:
        for i in range(3):
            a(f"s_mov_b32 s{sT0}, {i*6144}")
            a.vmem(f"buffer_load_dword v253, v{vOP}, s[{rWS}:{rWS+3}], s{sT0} offen {cfg.polOP}", "op")
    def pf_late():
        if cfg.pf_rounds:
            R = cfg.pf_rounds; n = 120 // R
            a(f"v_min_u32 v2, {n-1}, v0")
            a(f"v_min_u32 v3, 59, v0")
            a(f"v_sub_u32 v2, v2, v3")
            a(f"v_lshlrev_b32 v2, 7, v2")
            a(f"v_add_u32 v2, v2, v{vPF}")
            for r in range(R + 1):
                if r < R:
                    a(f"s_mov_b32 s{sT0}, {r*n*128}")
                    a.vmem(f"buffer_load_dword v253, v2, s[{rWO}:{rWO+3}], s{sT0} offen nt", ("pfn", r))
                if r > 0:
                    a.wait_vm(("pfn", r - 1))
                    a(f"s_mov_b32 s{sT0}, {(r-1)*n*128}")
                    a.vmem(f"buffer_load_dword v253, v2, s[{rWO}:{rWO+3}], s{sT0} offen", "pf")
                if cfg.pf_serial and r < R and r > 0: pass
        elif cfg.wo_prefetch and cfg.pf_step is None:
            a.vmem(f"buffer_load_dword v253, v{vPF}, s[{rWO}:{rWO+3}], 0 offen {cfg.polPF}", "pf")
            a(f"s_mov_b32 s{sT0}, 7680")
            a.vmem(f"buffer_load_dword v253, v{vPF}, s[{rWO}:{rWO+3}], s{sT0} offen {cfg.polPF}", "pf")
    if cfg.pf_at == 'Q': pf_late()
    ld_wo_pair(a, cfg, 0, True); ld_wo_pair(a, cfg, 1, True)
    a.wait_vm("V")
    stamp(a, cfg, 8)
    a("s_barrier   ; V")
    if cfg.pf_at == 'V': pf_late()
    ld_wo_pair(a, cfg, 2, True); ld_wo_pair(a, cfg, 3, True)
    if cfg.pf_at == 'V2': pf_late()
    if cfg.diag_w7:
        stamp(a, cfg, 10)
        a("s_waitcnt vmcnt(0)")
        stamp(a, cfg, 11)
    a.wait_vm(("WO", 0))
    stamp(a, cfg, 12)
    a("s_barrier   ; O1")
    a("s_branch L_loaderC")
    return list(a.vm)


def phaseB(a, cfg):
    a.label("L_phaseB")
    a.reset()
    QF = 88; KF = [112, 136]; S = 16; P = 40; O = 172; VF = 88; ONES = 52; SUM = 56
    stamp(a, cfg, 7)
    def kread(ks, kt):
        v = vKO if ks & 1 else vKE
        a.ds(f"ds_read_b128 {vr(KF[ks&1]+4*kt)}, v{v} offset:{kt*6144 + (ks>>1)*128}", ("K", ks, kt))
    a.ds(f"ds_read_b128 {vr(QF)}, v{vQR} offset:{L_Q}", ("Q", 0))
    for kt in range(6): kread(0, kt)
    for ks in range(1, 6):
        a.ds(f"ds_read_b128 {vr(QF+4*ks)}, v{vQR} offset:{L_Q + ks*1024}", ("Q", ks))
    a(f"v_mov_b32 v6, {L_FLAG}")
    a.ds("ds_read_b32 v7, v6", "fast")
    for i in range(4): a(f"v_mov_b32 v{ONES+i}, 0x3f803f80")
    for ks in range(6):
        for kt in range(6):
            if kt % cfg.s_batch == 0:
                a.wait_lg(("Q", ks), *[("K", ks, k2) for k2 in range(kt, min(6, kt + cfg.s_batch))], *(["fast"] if (ks, kt) == (1, 0) else []))
            a(mfma(S + 4 * kt, KF[ks & 1] + 4 * kt, QF + 4 * ks, first=(ks == 0)))
            if ks < 5: kread(ks + 1, kt)
    a(f"v_readfirstlane_b32 s{sFAST}, v7")
    stamp(a, cfg, 8)
    a.c("waves 4,5 meet the V barrier before their softmax, waves 0-3 after it (they run one phase apart on a shared SIMD)")
    if cfg.prio:
        a(f"""
        s_cmp_lg_u32 s{sROLE}, 0
        s_cbranch_scc1 L_nopr
        s_setprio {cfg.prio[1]}
        """)
        a.label("L_nopr")
    if not cfg.v_late:
        a(f"""
        s_cmp_eq_u32 s{sROLE}, 0
        s_cbranch_scc1 L_nov1
        s_waitcnt vmcnt(0)
        s_barrier   ; V
        """)
        a.label("L_nov1")
    a.c("softmax")
    M, T1, L = 2, 3, 4
    a(f"v_max3_f32 v{M}, v{S}, v{S+1}, v{S+2}")
    a(f"v_max3_f32 v{T1}, v{S+3}, v{S+4}, v{S+5}")
    for i in range(6, 22, 4):
        a(f"v_max3_f32 v{M}, v{M}, v{S+i}, v{S+i+1}")
        a(f"v_max3_f32 v{T1}, v{T1}, v{S+i+2}, v{S+i+3}")
    a(f"v_max3_f32 v{M}, v{M}, v{S+22}, v{S+23}")
    a(f"v_max_f32 v{M}, v{M}, v{T1}")
    for sw in ("v_permlane16_swap_b32", "v_permlane32_swap_b32"):
        a(f"v_mov_b32 v{T1}, v{M}")
        a(f"{sw} v{M}, v{T1}")
        a(f"v_max_f32 v{M}, v{M}, v{T1}")
    a(f"v_mul_f32 v{M}, {f32hex(-SCALE)}, v{M}")
    for i in range(24 + 3):
        if i < 24: a(f"v_fmamk_f32 v{S+i}, v{S+i}, {f32hex(SCALE)}, v{M}")
        if 1 <= i <= 24: a(f"v_exp_f32 v{S+i-1}, v{S+i-1}")
        if i >= 4 and i % 2 == 0 and (i - 4) // 2 < 12:
            j = (i - 4) // 2
            a(f"v_cvt_pk_bf16_f32 v{P+j}, v{S+2*j}, v{S+2*j+1}")
    stamp(a, cfg, 10)
    if not cfg.v_late:
        a(f"""
        s_cmp_lg_u32 s{sROLE}, 0
        s_cbranch_scc1 L_nov2
        s_barrier   ; V
        """)
        a.label("L_nov2")
    else:
        a("s_waitcnt vmcnt(0)")
        a("s_barrier   ; V")
    stamp(a, cfg, 9)
    def vread(s, Td, slot):
        for e in range(2):
            a.ds(f"ds_read_b64_tr_b16 {vr(VF + 4*slot + 2*e, 2)}, v{vVA[Td & 3]} offset:{(Td>>2)*128 + s*12288 + e*6144}", ("V", s, Td))
    order = [(s, Td) for s in range(3) for Td in range(12)]
    NV = cfg.nv
    for i in range(NV): vread(*order[i], i % 18)
    a.c("row sums through the matrix pipe: ones x P")
    for s in range(3): a(mfma(SUM, ONES, P + 4 * s, first=(s == 0)))
    OB = 88
    epi = []
    def epi_pair(Pp):
        d = O + 8 * Pp; o = OB + 4 * Pp
        r = []
        for i in range(4):
            r.append(f"v_mul_f32 v{d+2*i}, v{d+2*i}, v{L}")
            r.append(f"v_mul_f32 v{d+2*i+1}, v{d+2*i+1}, v{L}")
        for i in range(4): r.append(f"v_cvt_pk_bf16_f32 v{o+i}, v{d+2*i}, v{d+2*i+1}")
        r.append(("ds", f"ds_write_b128 v{vOL}, {vr(o)} offset:{L_OWN + Pp*6144}"))
        return r
    def emit(x):
        if isinstance(x, tuple): a.ds(x[1], "ow")
        else: a(x)
    for i, (s, Td) in enumerate(order):
        if i % cfg.pv_batch == 0:
            a.wait_lg(*[("V",) + order[i2] for i2 in range(i, min(36, i + cfg.pv_batch))])
        a(mfma(O + 4 * Td, VF + 4 * (i % 18), P + 4 * s, first=(s == 0)))
        if i + NV < len(order): vread(*order[i + NV], (i + NV) % 18)
        if i == 8: a(f"v_rcp_f32 v{L}, v{SUM}")
        if s == 2 and Td >= 5 and Td % 2 == 1: epi += epi_pair((Td - 5) // 2)
        if s == 2:
            for _ in range(cfg.epi_rate):
                if epi: emit(epi.pop(0))
    stamp(a, cfg, 11)
    for Pp in (4, 5): epi += epi_pair(Pp)
    for x in epi: emit(x)
    stamp(a, cfg, 27)
    if cfg.o_store_late:
        a.wait_lg_all()
        a("s_barrier   ; O1")
    a(f"""
    s_cmp_lg_u32 s{sFAST}, 0
    s_cbranch_scc1 L_ofast
    """)
    for fast in range(2):
        if fast:
            a("s_branch L_odone")
            a.label("L_ofast")
        for Pp in range(0 if cfg.skip_ostore else 6):
            a(f"s_mov_b32 s{sT0}, {cfg.ws_o + Pp*6144}")
            a(f"buffer_store_dwordx4 {vr(OB + 4*Pp)}, v{vOS}, s[{rWS}:{rWS+3}], s{sT0} offen {cfg.o_fast_pol if fast else 'sc0 sc1'}")
    a.label("L_odone")
    stamp(a, cfg, 28)
    if not cfg.o_store_late:
        a.wait_lg_all()
        stamp(a, cfg, 12)
        a("s_barrier   ; O1")
    a(f"""
    s_cmp_eq_u32 s{sROLE}, 0
    s_cbranch_scc1 L_computeC
    s_waitcnt vmcnt(0)
    """)
    h1_flag(a, cfg, 0)
    a(f"""
    s_mul_i32 s{sT0}, s{sJ}, 3
    s_add_u32 s{sT0}, s{sT0}, 4
    s_cmp_ge_u32 s{sT0}, 12
    s_cselect_b32 s{sT1}, 12, 0
    s_sub_u32 s{sT0}, s{sT0}, s{sT1}
    s_mul_i32 s{sWK}, s{sT0}, 81920
    """)
    a.c("falls through into the phase C loader")


def loaderC(a, cfg, hist):
    a.label("L_loaderC")
    a.reset()
    if cfg.prio: a("s_setprio 0")
    a.vm = hist
    stamp(a, cfg, 13)
    def sib_mask(k):
        a(f"""
        s_add_u32 s{sT1}, s{sJ}, {k}
        s_and_b32 s{sT1}, s{sT1}, 3
        s_mul_i32 s{sT1}, s{sT1}, 6
        s_lshl_b32 s{sMSK}, 63, s{sT1}
        """)
    for p in range(11):
        if p in (1, 2): stamp(a, cfg, 21 + p)
        if p == 2:
            a.c("wait for the first sibling's O tile (all three when not gated)")
            if cfg.h1_gate:
                sib_mask(1)
                def chk():
                    a(f"v_cmp_eq_u32 vcc, 1, v3")
                    a(f"s_mov_b32 s{sRDY}, vcc_lo")
                    a(f"s_and_b32 s{sT1}, vcc_lo, s{sMSK}")
                    a(f"s_cmp_eq_u32 s{sT1}, s{sMSK}")
            else:
                def chk():
                    a(f"v_cmp_eq_u32 vcc, 1, v3")
                    a("s_cmp_eq_u64 vcc, -1")
            poll(a, cfg, vP1, rWS, "0", 3, chk)
            if cfg.stamps: a(f"v_writelane_b32 v255, s{sSPIN}, 30")
            stamp(a, cfg, 14)
            for pp in (3, 4, 5): ld_o_pair(a, cfg, pp)
        a.wait_vm(("WO", p + 1), ("O", p + 1))
        if p in (2, 3): stamp(a, cfg, 22 + p)
        a(f"s_barrier   ; C{p}")
        if p + 4 < 12: ld_wo_pair(a, cfg, p + 4, False)
        if cfg.h1_gate and p in (3, 6):
            k = 2 if p == 3 else 3
            sib_mask(k)
            a(f"s_and_b32 s{sT1}, s{sRDY}, s{sMSK}")
            a(f"s_cmp_eq_u32 s{sT1}, s{sMSK}")
            a(f"s_cbranch_scc1 L_sib{k}")
            save = list(a.vm)
            poll(a, cfg, vP1, rWS, "0", 3, chk)
            a.vm = save
            a.label(f"L_sib{k}")
        if p >= 3 and p + 3 < 12: ld_o_pair(a, cfg, p + 3)
        if p in (2, 5, 8): stamp(a, cfg, 15 + (p - 2) // 3)
    stamp(a, cfg, 18)
    a.c("phase D")
    A = 48
    a("s_barrier   ; PD")
    stamp(a, cfg, 26)
    if cfg.own_lds:
        a(f"s_lshl_b32 s{sT0}, s{sLW}, 10")
        a(f"v_lshlrev_b32 v2, 4, v0")
        a(f"v_add_u32 v2, s{sT0}, v2")
        a.ds(f"ds_read_b128 v[16:19], v2 offset:{L_OWN}", "own")
    if cfg.h2_delay:
        a(f"s_sleep {cfg.h2_delay}")
    def chk2():
        a(f"v_cmp_eq_u32 vcc, 1, v3")
        a("s_cmp_eq_u64 vcc, -1")
    if cfg.one_poller:
        a(f"s_cmp_lg_u32 s{sWAVE}, 4")
        a("s_cbranch_scc1 L_nopoll2")
    poll(a, cfg, vP2, rWS, "0", 3, chk2)
    if cfg.one_poller:
        a.label("L_nopoll2")
        a("s_barrier   ; PE")
    if cfg.stamps: a(f"v_writelane_b32 v255, s{sSPIN}, 31")
    stamp(a, cfg, 19)
    a(f"""
    s_cmp_eq_u32 s{sU}, 7
    s_cselect_b32 exec_hi, 0, -1
    """)
    a.vm = []
    for k in range(1 if cfg.own_lds else 0, 8):
        a(f"""
        s_add_u32 s{sT0}, s{sG}, {k}
        s_and_b32 s{sT0}, s{sT0}, 7
        s_lshl_b32 s{sT0}, s{sT0}, 15
        """)
        a.vmem(f"buffer_load_dwordx4 {vr(16+4*k)}, v{vDL}, s[{rWS}:{rWS+3}], s{sT0} offen sc1", ("p", k))
    a(f"s_mov_b32 s{sT1}, 0xffff0000")
    for k in range(8):
        if k == 0 and cfg.own_lds: a.wait_lg_all()
        a.wait_vm(("p", k))
        for i in range(4):
            s = 16 + 4 * k + i
            if k == 0:
                a(f"v_lshlrev_b32 v{A+2*i}, 16, v{s}")
                a(f"v_and_b32 v{A+2*i+1}, s{sT1}, v{s}")
            else:
                a(f"v_lshlrev_b32 v{60+2*i}, 16, v{s}")
                a(f"v_and_b32 v{61+2*i}, s{sT1}, v{s}")
                a(f"v_add_f32 v{A+2*i}, v{A+2*i}, v{60+2*i}")
                a(f"v_add_f32 v{A+2*i+1}, v{A+2*i+1}, v{61+2*i}")
    stamp(a, cfg, 20)
    for i in range(4):
        a(f"v_cvt_pk_bf16_f32 v{16+i}, v{A+2*i}, v{A+2*i+1}")
    a(f"buffer_store_dwordx2 v[16:17], v{vDO}, s[{rOUT}:{rOUT+3}], 0 offen")
    a(f"buffer_store_dwordx2 v[18:19], v{vDO}, s[{rOUT}:{rOUT+3}], s{sDN} offen")
    a("s_mov_b64 exec, -1")
    a("s_branch L_fin")


def computeC(a, cfg):
    a.label("L_computeC")
    a.reset()
    if cfg.prio: a(f"s_setprio {cfg.prio[3]}")
    ACC = 16
    def acc(T, t): return ACC + (T * 3 + t) * 4
    SETA = [76, 96]; SETB = [116, 128]
    def reads(u):
        st = u & 1
        p = u >> 1
        hi, sl = divmod(p % 4, 2)
        so = sl * 20480 + (u & 1) * 10240
        if u < 6:
            vb, bo = vCB[0], L_OWN + u * 6144
        else:
            vb, bo = vCB[1], ((p - 3) % 3) * 12288 + (u & 1) * 6144
        R = []
        def ra(T):
            R.append((f"ds_read_b64_tr_b16 {vr(SETA[st]+4*T, 2)}, v{vCA[hi][T]} offset:{so}", ("A", u, T)))
            R.append((f"ds_read_b64_tr_b16 {vr(SETA[st]+4*T+2, 2)}, v{vCA[hi][T]} offset:{so+5120}", ("A", u, T)))
        ra(0)
        for t in range(3):
            R.append((f"ds_read_b128 {vr(SETB[st]+4*t)}, v{vb} offset:{bo + t*1024}", ("B", u, t)))
        for T in range(1, 5): ra(T)
        return R
    stamp(a, cfg, 13)
    for ins, tag in reads(0): a.ds(ins, tag)
    for u in range(24):
        if u & 1 and u < 23:
            a.wait_lg_all()
            a(f"s_barrier   ; C{u >> 1}")
        R = reads(u + 1) if u < 23 else []
        st = u & 1
        m = 0
        for T in range(5):
            for t in range(3):
                a.wait_lg(("A", u, T), ("B", u, t))
                a(mfma(acc(T, t), SETA[st] + 4 * T, SETB[st] + 4 * t, first=(u == 0)))
                if m < len(R): a.ds(*R[m])
                m += 1
        if u == cfg.h1_flag_step:
            stamp(a, cfg, 22)
            a("s_waitcnt vmcnt(0)")
            stamp(a, cfg, 23)
            h1_flag(a, cfg, 1)
        if u == cfg.wbl2_step:
            a(f"""
            s_lshr_b32 s{sT0}, s2, 3
            s_lshl_b32 s{sT0}, s{sT0}, 2
            s_add_u32 s{sT0}, s{sT0}, s{sWAVE}
            s_cmp_lg_u32 s{sT0}, 0
            s_cbranch_scc1 L_nowb
            buffer_wbl2 sc1
            """)
            a.label("L_nowb")
        if u in (2, 3): stamp(a, cfg, 22 + u)
        if u in (5, 11, 17): stamp(a, cfg, 15 + (u - 5) // 6)
    stamp(a, cfg, 18)
    a.c("partials, 8 units per wave: 6 tile pairs, the odd tile of q tiles 0|1, the odd tile of q tile 2 (32 lanes)")
    a(f"""
    s_cmp_lg_u32 s{sI}, 0
    s_cbranch_scc1 L_st1
    """)
    def cv(dst, d):
        a(f"v_cvt_pk_bf16_f32 v{dst}, v{d}, v{d+1}")
        a(f"v_cvt_pk_bf16_f32 v{dst+1}, v{d+2}, v{d+3}")
    U = 76
    for i in range(2):
        if i == 1:
            a("s_branch L_cvdone")
            a.label("L_st1")
        pairs = [(0, 1), (2, 3)] if i == 0 else [(1, 2), (3, 4)]
        odd = 4 if i == 0 else 0
        for t in range(3):
            for pi, (Ta, Tb) in enumerate(pairs):
                o = U + (2 * t + pi) * 4
                cv(o, acc(Ta, t)); cv(o + 2, acc(Tb, t))
        cv(U + 24, acc(odd, 0)); cv(U + 26, acc(odd, 1))
        cv(U + 28, acc(odd, 2))
    a.label("L_cvdone")
    a(f"v_permlane32_swap_b32 v{U+28}, v{U+30}")
    a(f"v_permlane32_swap_b32 v{U+29}, v{U+31}")
    a(f"s_lshr_b32 s{sT1}, s{sG}, 1")
    a(f"s_and_b32 s{sT2}, s{sG}, 1")
    for half in range(2):
        if cfg.own_lds:
            a(f"""
            s_cmp_lg_u32 s{sT1}, s{sWAVE}
            s_cbranch_scc1 L_rem{half}
            s_cmp_lg_u32 s{sT2}, {half}
            s_cbranch_scc1 L_rem{half}
            """)
            for k in range(4):
                a(f"ds_write_b128 v{vPH}, {vr(U + (4*half + k)*4)} offset:{L_OWN + k*1024}")
            a(f"s_branch L_remdone{half}")
            a.label(f"L_rem{half}")
        for k in range(4):
            u = 4 * half + k
            if u == 7: a("s_mov_b32 exec_hi, 0")
            a(f"s_mov_b32 s{sT0}, {u*1024}")
            a(f"buffer_store_dwordx4 {vr(U + u*4)}, v{vPS}, s[{rWS}:{rWS+3}], s{sT0} offen sc0 sc1")
            if u == 7: a("s_mov_b32 exec_hi, -1")
        if cfg.own_lds: a.label(f"L_remdone{half}")
    stamp(a, cfg, 19)
    a("s_waitcnt lgkmcnt(0)")
    a("s_barrier   ; PD")
    a("s_waitcnt vmcnt(0)")
    stamp(a, cfg, 20)
    a(f"""
    s_mov_b64 exec, 3
    buffer_store_dword v{vONE}, v{vF2}, s[{rWS}:{rWS+3}], 0 offen sc0 sc1
    s_mov_b64 exec, -1
    """)


def build(cfg, header=""):
    _lbl[0] = 0
    a = Asm()
    if header: a.raw(header.rstrip("\n"))
    a.raw(f"; @launch grid=(256,1,1) block=(512,1,1) lds={LDS_BYTES}")
    a.raw('.amdgcn_target "amdgcn-amd-amdhsa--gfx950"\n.text')
    prologue(a, cfg)
    computeA(a, cfg)
    hist = loaderA(a, cfg)
    phaseB(a, cfg)
    loaderC(a, cfg, hist)
    computeC(a, cfg)
    a.label("L_fin")
    stamp(a, cfg, 21)
    if cfg.dbg_stamps:
        wg, lst = cfg.dbg_stamps
        srd(a, rDBG, sDBG, 256)
        a(f"s_cmp_lg_u32 s2, {wg}")
        a("s_cbranch_scc1 L_nodbg")
        a(f"v_readlane_b32 s{sT2}, v255, 0")
        for w in sorted(set(x[0] for x in lst)):
            a(f"s_cmp_lg_u32 s{sWAVE}, {w}")
            a(f"s_cbranch_scc1 L_nodbg{w}")
            a("s_mov_b64 exec, 1")
            for i, (ww, idx) in enumerate(lst):
                if ww != w: continue
                a(f"""
                v_readlane_b32 s{sT1}, v255, {idx}
                s_sub_u32 s{sT1}, s{sT1}, s{sT2}
                s_lshr_b32 s{sT1}, s{sT1}, 4
                s_min_u32 s{sT1}, s{sT1}, 4095
                s_lshl_b32 s{sT1}, s{sT1}, 20
                v_mov_b32 v2, s{sT1}
                v_mov_b32 v3, {i*4}
                buffer_atomic_add v2, v3, s[{rDBG}:{rDBG+3}], 0 offen sc1
                """)
            a("s_mov_b64 exec, -1")
            a.label(f"L_nodbg{w}")
        a.label("L_nodbg")
    stamp_flush(a, cfg)
    a.label("L_end")
    a("s_endpgm")
    a.raw(kernel_desc(KN))
    return a.text()


def make(**kw):
    cfg = Cfg()
    for k, v in kw.items(): setattr(cfg, k, v)
    header = open("cdna_kernels/" + NAME + ".s.ref").read().split("; Override launch")[0]
    return build(cfg, header)


if __name__ == "__main__":
    kw = {}
    for kv in sys.argv[2:]:
        k, v = kv.split("=", 1)
        kw[k] = eval(v)
    open(sys.argv[1], "w").write(make(**kw))
```

```python
import sys, math, struct
from asmgen import *

NAME = "standalone__gqa_block_cached__near_ridge"
KN = NAME + "_kernel"

X_BYTES = 768 * 640 * 2
KV_BYTES = 8 * 32 * 96 * 192 * 2
W_BYTES = 640 * 6144 * 2
OUT_BYTES = 768 * 640 * 2
WS_BYTES = 268435456
SCALE = 192 ** -0.5 * math.log2(math.e)

def f32hex(x):
    return "0x%08x" % struct.unpack("<I", struct.pack("<f", x))[0]

sX, sK, sV, sWQ, sWO, sOUT, sDBG, sWS = 4, 6, 8, 10, 12, 14, 16, 18
sWAVE, sG, sB, sJ, sH, sBH = 20, 21, 22, 23, 24, 25
sFAST, sSPIN = 26, 27
rX, rWQ, rK, rV, rWS, rWO, rOUT, rDBG = 28, 32, 36, 40, 44, 48, 52, 68
sT0, sT1, sT2, sT3 = 56, 57, 58, 59
sLW, sM0B, sC, sKVB = 60, 61, 62, 63
sI, sJQ, sROLE = 64, 65, 66
sWM0, sWK, sOM0, sOK = 72, 73, 74, 75
sKW, sKX, sRDY, sMSK, sU, sDN = 92, 93, 94, 95, 96, 97
sINB = 76
sSTAMP = 80
sEX = 90

L_W, L_X, L_K, L_V, L_Q = 0, 49152, 86016, 122880, 0
L_FLAG = 159744
L_OWN, L_WO, L_OR = 0, 36864, 122880
LDS_BYTES = 163840


class Cfg:
    stamps = False
    prefetch_code = True
    code_kb = 32
    ws_o = 0x0000000
    ws_p = 0x1000000
    ws_in = 0x2000000
    ws_stamp = 0x4000000
    polW = "nt"
    polX = ""
    polKV = "nt"
    polWO = "nt"
    polPF = "nt"
    wo_prefetch = True
    pretouch = True
    force_slow = False
    k_sched = [14] * 9
    v_sched = [17] * 9
    h1_flag_step = 0
    spin_max = 400000
    epi_rate = 3
    sentinel = False
    poll_sleep = 1
    pf_rounds = 0
    pf_serial = False
    h2_delay = 16
    one_poller = True
    stamp_only = None
    pv_batch = 2
    v_late = False
    amp = None
    skip_ostore = False
    o_fast_pol = ''
    diag_w7 = False
    o_store_late = False
    prio = None
    nv = 6
    s_batch = 2
    own_lds = True
    h1_gate = False
    pd_wait = 0
    clr_step = 2
    clr_drain = 9
    chk_p = 10
    clr_pol = 'sc0 sc1'
    wbl2_step = None
    polO = 'sc1'
    skip_o = False
    skip_wo = False
    pre_wx = False
    rot = (10, 10)
    pf_step = 8
    o_preread = False
    polOP = ''
    inbox_pre = True
    pf2 = True
    pf_at = 'Q'
    polPW = 'nt'
    polPX = ''
    kv_variants = None
    kv_sel_shift = 3
    dbg_stamps = None


def stamp(a, cfg, idx):
    if not cfg.stamps: return
    if cfg.stamp_only is not None and idx not in cfg.stamp_only: return
    a(f"""
    s_memtime s[{sSTAMP}:{sSTAMP+1}]
    s_waitcnt lgkmcnt(0)
    v_writelane_b32 v255, s{sSTAMP}, {idx}
    """)
    a.lg = []

def stamp_flush(a, cfg):
    if not cfg.stamps: return
    a(f"""
    s_memrealtime s[{sSTAMP}:{sSTAMP+1}]
    s_waitcnt lgkmcnt(0)
    v_writelane_b32 v255, s{sSTAMP}, 33
    s_lshl_b32 s{sT0}, s2, 3
    s_add_u32 s{sT0}, s{sT0}, s{sWAVE}
    s_lshl_b32 s{sT0}, s{sT0}, 8
    s_add_u32 s{sT0}, s{sT0}, {cfg.ws_stamp}
    v_mbcnt_lo_u32_b32 v254, -1, 0
    v_mbcnt_hi_u32_b32 v254, -1, v254
    v_lshlrev_b32 v254, 2, v254
    buffer_store_dword v255, v254, s[{rWS}:{rWS+3}], s{sT0} offen
    """)

def wait_kernarg(a, cfg):
    a("s_waitcnt lgkmcnt(0)")
    if cfg.stamps:
        a(f"v_writelane_b32 v255, s{sSTAMP}, 0")
        a(f"v_writelane_b32 v255, s{sSTAMP+2}, 32")

def mfma(d, A, B, first=False):
    c = "0" if first else vr(d)
    return f"v_mfma_f32_16x16x32_bf16 {vr(d)}, {vr(A)}, {vr(B)}, {c}"

_lbl = [0]
def poll(a, cfg, vaddr, rs, soff, vtmp, check):
    _lbl[0] += 1
    n = _lbl[0]
    a(f"s_mov_b32 s{sSPIN}, 0")
    a.label(f"poll{n}")
    a(f"buffer_load_dword v{vtmp}, v{vaddr}, s[{rs}:{rs+3}], {soff} offen sc1")
    a.wait_vm_all()
    check()
    a(f"""
    s_cbranch_scc1 poll{n}_ok
    s_add_u32 s{sSPIN}, s{sSPIN}, 1
    s_cmp_ge_u32 s{sSPIN}, {cfg.spin_max}
    s_cbranch_scc1 poll{n}_ok
    s_sleep {cfg.poll_sleep}
    s_branch poll{n}
    """)
    a.label(f"poll{n}_ok")


vA = [10, 11, 12]; vXe, vXo, vQW = 13, 14, 15
vQR, vKE, vKO, vVA, vOS, vOL, vF1 = 160, 161, 162, [163, 164, 165, 166], 167, 168, 169
vCA = [[220, 221, 222, 223, 224], [225, 226, 227, 228, 229]]; vCB = [230, 231]; vPS, vPH, vF2, vCL = 232, 233, 234, 235
vW = [220, 221, 222]; vXL = [223, 224, 225]; vKA = [226, 227, 228]; vKB = [229, 230, 231]; vV = [232, 233, 234]
vK0 = [235, 236, 237]; vCP = [238, 239, 240]
vWO = [241, 242, 243, 244, 245]; vOR, vDL, vDO, vP1, vP2, vPF = 246, 247, 248, 249, 250, 251
vONE = 252
vOP = 170
vF2L = 171


def prologue(a, cfg):
    a.raw(kernel_header(KN))
    if cfg.stamps:
        a(f"s_memtime s[{sSTAMP}:{sSTAMP+1}]")
        a(f"s_memrealtime s[{sSTAMP+2}:{sSTAMP+3}]")
    a(f"""
    s_cmp_ge_u32 s2, 256
    s_cbranch_scc1 L_end
    s_load_dwordx16 s[4:19], s[0:1], 0
    v_lshrrev_b32 v1, 6, v0
    v_and_b32 v0, 63, v0
    v_readfirstlane_b32 s{sWAVE}, v1
    s_and_b32 s{sG}, s2, 7
    s_lshr_b32 s{sT0}, s2, 3
    s_lshr_b32 s{sB}, s{sT0}, 2
    s_and_b32 s{sJ}, s{sT0}, 3
    s_lshl_b32 s{sH}, s{sG}, 2
    s_add_u32 s{sH}, s{sH}, s{sJ}
    s_lshl_b32 s{sBH}, s{sB}, 5
    s_add_u32 s{sBH}, s{sBH}, s{sH}
    s_lshl_b32 s{sINB}, s{sBH}, 11
    s_add_u32 s{sINB}, s{sINB}, {cfg.ws_in}
    s_cmp_ge_u32 s{sWAVE}, 4
    s_cbranch_scc1 L_loaderA
    """)
    if cfg.prefetch_code:
        a(f"s_getpc_b64 s[{sT2}:{sT2+1}]")
        a.label("L_pc")
        a(f"""
        s_sub_u32 s{sT2}, s{sT2}, L_pc-{KN}
        s_subb_u32 s{sT2+1}, s{sT2+1}, 0
        s_lshl_b32 s{sT0}, s{sWAVE}, 13
        v_lshlrev_b32 v2, 7, v0
        v_add_u32 v2, s{sT0}, v2
        v_min_u32 v2, L_end-{KN}, v2
        global_load_dword v253, v2, s[{sT2}:{sT2+1}]
        """)


def addrB(a, cfg):
    a.c("phase B addresses")
    a(f"""
    v_lshrrev_b32 v2, 4, v0                  ; kq
    v_and_b32 v5, 15, v0                     ; m / n
    s_mul_i32 s{sT2}, s{sWAVE}, 6144
    v_lshlrev_b32 v6, 4, v0
    v_add_u32 v{vQR}, s{sT2}, v6
    v_lshrrev_b32 v7, 1, v5
    v_xor_b32 v7, v7, v2
    v_mul_u32_u24 v8, 384, v5
    v_lshl_add_u32 v8, v7, 4, v8
    v_add_u32 v{vKE}, {L_K}, v8
    v_xor_b32 v{vKO}, 64, v{vKE}
    v_lshrrev_b32 v7, 2, v5                  ; r
    v_lshl_add_u32 v7, v2, 2, v7             ; 4kq + r
    v_mul_u32_u24 v8, 384, v7
    v_and_b32 v3, 3, v0                      ; c
    v_lshl_add_u32 v8, v3, 3, v8
    v_add_u32 v8, {L_V}, v8
    v_bfe_u32 v7, v7, 1, 2                   ; h
    """)
    for i in range(4):
        a(f"v_xor_b32 v3, {i}, v7")
        a(f"v_lshl_add_u32 v{vVA[i]}, v3, 5, v8")
    a(f"""
    s_lshl_b32 s{sT2}, s{sB}, 3
    s_add_u32 s{sT2}, s{sT2}, s{sG}
    s_mul_i32 s{sT2}, s{sT2}, 24
    s_mul_i32 s{sT3}, s{sJ}, 6
    s_add_u32 s{sT2}, s{sT2}, s{sT3}
    s_mul_i32 s{sT2}, s{sT2}, 6144
    s_lshl_b32 s{sT3}, s{sWAVE}, 10
    s_add_u32 s{sT2}, s{sT2}, s{sT3}
    v_add_u32 v{vOS}, s{sT2}, v6
    v_add_u32 v{vOL}, s{sT3}, v6
    s_lshl_b32 s{sT2}, s{sJ}, 11
    s_sub_u32 s{sT2}, s{sINB}, s{sT2}
    s_add_u32 s{sT2}, s{sT2}, 1024
    s_mul_i32 s{sT3}, s{sJ}, 24
    s_add_u32 s{sT2}, s{sT2}, s{sT3}
    s_lshl_b32 s{sT3}, s{sWAVE}, 2
    s_add_u32 s{sT2}, s{sT2}, s{sT3}
    v_and_b32 v3, 3, v0
    v_lshlrev_b32 v3, 11, v3
    v_add_u32 v{vF1}, s{sT2}, v3
    v_mov_b32 v{vONE}, 1
    """)


def h1_flag(a, cfg, n):
    a(f"""
    s_mov_b64 exec, 15
    s_cmp_lg_u32 s{sFAST}, 0
    s_cbranch_scc1 L_f1fast{n}
    """)
    a(f"buffer_store_dword v{vONE}, v{vF1}, s[{rWS}:{rWS+3}], 0 offen sc0 sc1")
    a(f"s_branch L_f1done{n}")
    a.label(f"L_f1fast{n}")
    a.vmem(f"buffer_store_dword v{vONE}, v{vF1}, s[{rWS}:{rWS+3}], 0 offen", "flag")
    a.label(f"L_f1done{n}")
    a("s_mov_b64 exec, -1")


def computeA(a, cfg):
    ACC = 16
    def acc(T, t): return ACC + (T * 6 + t) * 4
    SETA = [88, 124]; SETB = [100, 136]
    a(f"s_mov_b32 s{sROLE}, 0")
    a.c("phase A addresses: v2=kq v3=r v4=c v5=n")
    a(f"""
    v_lshrrev_b32 v2, 4, v0
    v_bfe_u32 v3, v0, 2, 2
    v_and_b32 v4, 3, v0
    v_and_b32 v5, 15, v0
    v_lshlrev_b32 v6, 3, v2
    v_add_u32 v6, v6, v3                     ; k = 8kq + r
    v_mul_u32_u24 v6, 384, v6
    v_lshl_add_u32 v6, v4, 3, v6             ; k*384 + 8c
    v_lshrrev_b32 v7, 1, v3
    v_and_b32 v8, 1, v2
    v_lshl_or_b32 v7, v8, 1, v7              ; h(k)
    s_mul_i32 s{sT0}, s{sWAVE}, 3
    """)
    for T in range(3):
        a(f"""
        s_add_u32 s{sT1}, s{sT0}, {T}
        v_xor_b32 v8, s{sT1}, v7
        v_lshl_add_u32 v{vA[T]}, v8, 5, v6
        """)
    a(f"""
    v_lshrrev_b32 v6, 1, v5                  ; (n>>1)&7
    v_xor_b32 v6, v6, v2
    v_lshlrev_b32 v6, 4, v6
    v_lshl_add_u32 v6, v5, 7, v6
    v_add_u32 v{vXe}, {L_X}, v6
    v_xor_b32 v{vXo}, 64, v{vXe}
    v_lshrrev_b32 v6, 1, v2
    v_lshlrev_b32 v6, 8, v6
    v_lshl_add_u32 v6, v5, 4, v6
    v_and_b32 v7, 1, v2
    v_lshl_add_u32 v6, v7, 3, v6
    s_mul_i32 s{sT0}, s{sWAVE}, 1536
    v_add_u32 v{vQW}, s{sT0}, v6
    """)
    addrB(a, cfg)
    a.c("phase C addresses")
    a(f"""
    s_and_b32 s{sI}, s{sWAVE}, 1
    s_lshr_b32 s{sJQ}, s{sWAVE}, 1
    v_lshrrev_b32 v2, 4, v0                  ; kq
    v_bfe_u32 v3, v0, 2, 2                   ; r
    v_and_b32 v4, 3, v0                      ; c
    v_lshl_add_u32 v6, v2, 2, v3             ; 4kq + r
    v_mul_u32_u24 v6, 320, v6
    v_lshl_add_u32 v6, v4, 3, v6
    v_add_u32 v6, {L_WO}, v6
    v_and_b32 v7, 1, v2
    s_mul_i32 s{sT0}, s{sI}, 5
    """)
    for T in range(5):
        a(f"""
        s_add_u32 s{sT1}, s{sT0}, {T}
        v_xor_b32 v8, s{sT1}, v7
        v_lshl_add_u32 v{vCA[0][T]}, v8, 5, v6
        v_add_u32 v{vCA[1][T]}, 40960, v{vCA[0][T]}
        """)
    a(f"""
    s_mul_i32 s{sT0}, s{sJQ}, 3072
    v_lshlrev_b32 v6, 4, v0
    v_add_u32 v{vCB[0]}, s{sT0}, v6
    v_add_u32 v{vCB[1]}, {L_OR}, v{vCB[0]}
    s_lshl_b32 s{sT0}, s{sB}, 2
    s_add_u32 s{sT0}, s{sT0}, s{sJ}
    s_lshl_b32 s{sT0}, s{sT0}, 3
    s_add_u32 s{sT0}, s{sT0}, s{sG}
    s_lshl_b32 s{sT0}, s{sT0}, 2
    s_add_u32 s{sT0}, s{sT0}, s{sWAVE}
    s_lshl_b32 s{sT0}, s{sT0}, 13
    s_add_u32 s{sT0}, s{sT0}, {cfg.ws_p}
    v_add_u32 v{vPS}, s{sT0}, v6
    v_mov_b32 v{vPH}, v6
    s_lshl_b32 s{sT0}, s{sB}, 5
    s_lshl_b32 s{sT1}, s{sWAVE}, 3
    s_add_u32 s{sT0}, s{sT0}, s{sT1}
    s_add_u32 s{sT0}, s{sT0}, s{sJ}
    s_lshl_b32 s{sT0}, s{sT0}, 11
    s_lshl_b32 s{sT1}, s{sG}, 7
    s_add_u32 s{sT0}, s{sT0}, s{sT1}
    s_add_u32 s{sT0}, s{sT0}, {cfg.ws_in}
    v_and_b32 v3, 1, v0
    v_lshlrev_b32 v3, 13, v3
    v_add_u32 v{vF2}, s{sT0}, v3
    """)
    wait_kernarg(a, cfg)
    srd(a, rWS, sWS, WS_BYTES)
    if cfg.pretouch:
        a(f"""
        s_cmp_lg_u32 s{sWAVE}, 1
        s_cbranch_scc1 L_notouch
        """)
        srd(a, rK, sK, KV_BYTES); srd(a, rV, sV, KV_BYTES); srd(a, rWO, sWO, W_BYTES); srd(a, rOUT, sOUT, OUT_BYTES)
        a(f"""
        s_mov_b64 exec, 3
        v_mul_u32_u24 v2, 36860, v0
        s_mul_i32 s{sT0}, s{sBH}, 36864
        buffer_load_dword v253, v2, s[{rK}:{rK+3}], s{sT0} offen nt
        buffer_load_dword v253, v2, s[{rV}:{rV+3}], s{sT0} offen nt
        v_mul_u32_u24 v2, 983036, v0
        s_mul_i32 s{sT0}, s{sG}, 983040
        buffer_load_dword v253, v2, s[{rWO}:{rWO+3}], s{sT0} offen nt
        buffer_load_dword v253, v2, s[{rOUT}:{rOUT+3}], 0 offen nt
        buffer_load_dword v253, v{vOS}, s[{rWS}:{rWS+3}], 0 offen nt
        buffer_load_dword v253, v{vPS}, s[{rWS}:{rWS+3}], 0 offen nt
        s_mov_b64 exec, -1
        """)
        a.label("L_notouch")
    stamp(a, cfg, 1)

    def reads(s):
        st = s & 1
        wo = L_W + (s % 4) * 12288
        xo = ((s >> 1) % 3) * 12288
        vx = vXo if s & 1 else vXe
        R = []
        def ra(T):
            R.append((f"ds_read_b64_tr_b16 {vr(SETA[st]+4*T, 2)}, v{vA[T]} offset:{wo}", ("A", s, T)))
            R.append((f"ds_read_b64_tr_b16 {vr(SETA[st]+4*T+2, 2)}, v{vA[T]} offset:{wo+1536}", ("A", s, T)))
        ra(0)
        for t in range(6):
            R.append((f"ds_read_b128 {vr(SETB[st]+4*t)}, v{vx} offset:{xo + t*2048}", ("B", s, t)))
        ra(1); ra(2)
        return R

    a("s_barrier   ; P")
    stamp(a, cfg, 2)
    for ins, tag in reads(0): a.ds(ins, tag)
    for s in range(20):
        a.wait_lg_all()
        if s < 19:
            a(f"s_barrier   ; B{s}")
        R = reads(s + 1) if s < 19 else []
        st = s & 1
        m = 0
        for T in range(3):
            for t in range(6):
                a(mfma(acc(T, t), SETA[st] + 4 * T, SETB[st] + 4 * t, first=(s == 0)))
                if m < len(R): a.ds(*R[m])
                m += 1
        if s in (4, 9, 14): stamp(a, cfg, 3 + (s - 4) // 5)
    stamp(a, cfg, 6)
    a.c("Q -> bf16 -> LDS (fragment-major)")
    for T in range(3):
        for t in range(6):
            d = acc(T, t)
            tmp = 88 + ((T * 6 + t) % 8) * 2
            a(f"v_cvt_pk_bf16_f32 v{tmp}, v{d}, v{d+1}")
            a(f"v_cvt_pk_bf16_f32 v{tmp+1}, v{d+2}, v{d+3}")
            a.ds(f"ds_write_b64 v{vQW}, {vr(tmp, 2)} offset:{L_Q + 512*T + 6144*t}", "qw")
    a.wait_lg_all()
    a("s_barrier   ; Q")
    if cfg.prio: a(f"s_setprio {cfg.prio[0]}")
    a("s_branch L_phaseB")


def dma(a, vaddr, rs, soff, ldsoff, tag, base, pol=""):
    a(f"s_add_u32 m0, s{base}, {ldsoff}")
    if isinstance(soff, str):
        so = soff
        a("s_nop 0")
    else:
        a(f"s_mov_b32 s{sT0}, {soff}")
        so = f"s{sT0}"
    a.vmem(f"buffer_load_dwordx4 v{vaddr}, s[{rs}:{rs+3}], {so} offen {pol} lds", tag)


def ld_wo_pair(a, cfg, p, both):
    slot = L_WO + (p % 4) * 20480
    if both:
        for e in range(2):
            a(f"s_add_u32 s{sT3}, s{sWK}, {e*40960}")
            for i in range(5):
                dma(a, vWO[i], rWO, f"s{sT3}", slot + e * 10240 + i * 1024, ("WO", p), sWM0, cfg.polWO)
    else:
        a(f"s_add_u32 s{sT3}, s{sWK}, s{sOK+2}")
        for i in range(0 if cfg.skip_wo else 5):
            dma(a, vWO[i], rWO, f"s{sT3}", slot + i * 1024, ("WO", p), sOK + 3, cfg.polWO)
    a(f"""
    s_add_u32 s{sWK}, s{sWK}, 81920
    s_cmp_eq_u32 s{sWK}, {12*81920}
    s_cselect_b32 s{sWK}, 0, s{sWK}
    """)

def ld_o_pair(a, cfg, p):
    slot = L_OR + ((p - 3) % 3) * 12288
    a(f"s_add_u32 m0, s{sOM0}, {slot}")
    a("s_nop 0")
    for i in range(0 if cfg.skip_o else 3):
        a.vmem(f"buffer_load_dwordx4 v{vOR}, s[{rWS}:{rWS+3}], s{sOK} offen offset:{i*1024} {cfg.polO} lds", ("O", p))
    a(f"""
    s_add_u32 s{sOK}, s{sOK}, 12288
    s_cmp_eq_u32 s{sOK}, {12*12288}
    s_cselect_b32 s{sOK}, 0, s{sOK}
    """)


def loaderA(a, cfg):
    a.label("L_loaderA")
    a.reset()
    if cfg.stamps:
        a(f"s_memtime s[{sSTAMP+4}:{sSTAMP+5}]")
    a(f"s_mov_b32 s{sROLE}, 1")
    a(f"s_sub_u32 s{sLW}, s{sWAVE}, 4")
    if cfg.pre_wx:
        a.c("L2 prefetch of this XCD's share of wq and x: one dword per 128-byte line, k-major")
        a(f"""
        s_mul_i32 s{sT0}, s{sLW}, 60
        v_min_u32 v2, 59, v0
        v_add_u32 v2, s{sT0}, v2
        v_lshlrev_b32 v2, 5, v2
        s_lshr_b32 s{sT0}, s2, 3
        v_add_u32 v2, s{sT0}, v2               ; L in [0,7680)
        v_mov_b32 v6, 5462
        v_mul_lo_u32 v3, v2, v6
        v_lshrrev_b32 v3, 16, v3               ; L/12
        v_mul_u32_u24 v4, 12, v3
        v_sub_u32 v4, v2, v4
        v_mul_u32_u24 v3, 12288, v3
        v_lshl_add_u32 v3, v4, 7, v3
        s_mul_i32 s{sT0}, s{sG}, 1536
        v_add_u32 v8, s{sT0}, v3
        v_lshrrev_b32 v7, 6, v2
        v_mul_u32_u24 v7, 5462, v7
        v_lshrrev_b32 v7, 16, v7               ; L/768
        v_mul_u32_u24 v4, 768, v7
        v_sub_u32 v4, v2, v4
        v_mul_u32_u24 v4, 1280, v4
        v_lshl_add_u32 v9, v7, 7, v4           ; x line
        """)
        wait_kernarg(a, cfg)
        srd(a, rWQ, sWQ, W_BYTES)
        srd(a, rX, sX, X_BYTES)
        a(f"buffer_load_dword v253, v8, s[{rWQ}:{rWQ+3}], 0 offen {cfg.polPW}")
        a(f"buffer_load_dword v253, v9, s[{rX}:{rX+3}], 0 offen {cfg.polPX}")
    a(f"s_mul_i32 s{sT0}, s{sLW}, {8*12288}")
    a(f"s_mul_i32 s{sT1}, s{sH}, 384")
    a(f"s_add_u32 s{sT0}, s{sT0}, s{sT1}")
    a(f"s_and_b32 s{sT1}, s{sLW}, 1")
    a(f"s_lshl_b32 s{sT1}, s{sT1}, 2")
    for i in range(3):
        a(f"""
        v_add_u32 v2, {64*i}, v0
        v_mul_u32_u24 v3, 2731, v2
        v_lshrrev_b32 v{vK0[i]}, 16, v3
        v_mul_u32_u24 v4, 24, v{vK0[i]}
        v_sub_u32 v{vCP[i]}, v2, v4
        v_and_b32 v5, 2, v{vK0[i]}
        v_or_b32 v5, s{sT1}, v5
        v_xor_b32 v5, v5, v{vCP[i]}
        v_mul_u32_u24 v6, 12288, v{vK0[i]}
        v_lshl_add_u32 v6, v5, 4, v6
        v_add_u32 v{vW[i]}, s{sT0}, v6
        """)
    a(f"""
    s_mul_i32 s{sT2}, s{sB}, 96
    s_mul_i32 s{sT3}, s{sLW}, 24
    s_add_u32 s{sT2}, s{sT2}, s{sT3}
    s_mul_i32 s{sT2}, s{sT2}, 1280
    v_lshrrev_b32 v2, 3, v0
    v_mul_u32_u24 v2, 1280, v2
    v_and_b32 v3, 7, v0
    v_lshrrev_b32 v4, 4, v0
    v_xor_b32 v3, v3, v4
    v_xor_b32 v3, s{sT1}, v3
    v_lshl_add_u32 v{vXL[0]}, v3, 4, v2
    v_add_u32 v{vXL[0]}, s{sT2}, v{vXL[0]}
    v_xor_b32 v3, 4, v3
    v_lshl_add_u32 v{vXL[1]}, v3, 4, v2
    s_add_u32 s{sT3}, s{sT2}, {8*1280}
    v_add_u32 v{vXL[1]}, s{sT3}, v{vXL[1]}
    v_add_u32 v{vXL[2]}, {16*1280}, v{vXL[0]}
    s_mul_i32 s{sM0B}, s{sLW}, 3072
    s_mul_i32 s{sT2}, s{sB}, {cfg.rot[0]}
    s_mul_i32 s{sT3}, s{sJ}, {cfg.rot[1]}
    s_add_u32 s{sT2}, s{sT2}, s{sT3}
    s_add_u32 s{sT2}, s{sT2}, 2
    s_lshr_b32 s{sT2}, s{sT2}, 2
    s_cmp_ge_u32 s{sT2}, 20
    s_cselect_b32 s{sT3}, 20, 0
    s_sub_u32 s{sT2}, s{sT2}, s{sT3}
    s_cmp_ge_u32 s{sT2}, 10
    s_cselect_b32 s{sT3}, 10, 0
    s_sub_u32 s{sT2}, s{sT2}, s{sT3}
    s_mul_i32 s{sKW}, s{sT2}, {64*12288}
    s_lshl_b32 s{sKX}, s{sT2}, 7
    """)
    if not cfg.pre_wx:
        wait_kernarg(a, cfg)
        srd(a, rWQ, sWQ, W_BYTES)
        srd(a, rX, sX, X_BYTES)
    if cfg.stamps:
        a("s_waitcnt lgkmcnt(0)")
        a(f"v_writelane_b32 v255, s{sSTAMP+4}, 27")
        stamp(a, cfg, 29)

    def ldW(s):
        for i in range(3): dma(a, vW[i], rWQ, f"s{sKW}", L_W + (s % 4) * 12288 + i * 1024, ("W", s), sM0B, cfg.polW)
        a(f"""
        s_add_u32 s{sKW}, s{sKW}, {32*12288}
        s_cmp_eq_u32 s{sKW}, {640*12288}
        s_cselect_b32 s{sKW}, 0, s{sKW}
        """)
    def ldX(m):
        for i in range(3): dma(a, vXL[i], rX, f"s{sKX}", L_X + (m % 3) * 12288 + i * 1024, ("X", m), sM0B, cfg.polX)
        a(f"""
        s_add_u32 s{sKX}, s{sKX}, 128
        s_cmp_eq_u32 s{sKX}, 1280
        s_cselect_b32 s{sKX}, 0, s{sKX}
        """)
    def ldPF():
        a.vmem(f"buffer_load_dword v253, v{vPF}, s[{rWO}:{rWO+3}], 0 offen {cfg.polPF}", "pf")
    def ldK(i):
        i1, i0 = divmod(i, 3)
        dma(a, (vKB if i1 & 1 else vKA)[i0], rK, i1 * 3072, L_K + i * 1024, "K", sKVB, cfg.polKV)
    def ldV(i):
        i1, i0 = divmod(i, 3)
        dma(a, vV[i0], rV, i1 * 3072, L_V + i * 1024, "V", sKVB, cfg.polKV)

    ldW(0); ldX(0)
    srd(a, rWS, sWS, WS_BYTES)
    srd(a, rDBG, sDBG, 256)
    a.c("wave 7: clear this workgroup's inbox")
    a(f"""
    s_cmp_lg_u32 s{sWAVE}, 7
    s_cbranch_scc1 L_noclr
    v_lshlrev_b32 v2, 4, v0
    v_mov_b32 v4, 0
    v_mov_b32 v5, 0
    v_mov_b32 v6, 0
    v_mov_b32 v7, 0
    buffer_store_dwordx4 v[4:7], v2, s[{rWS}:{rWS+3}], s{sINB} offen sc0 sc1
    s_mov_b64 exec, 0xff
    buffer_store_dwordx4 v[4:7], v2, s[{rWS}:{rWS+3}], s{sINB} offen offset:1024 sc0 sc1
    s_mov_b64 exec, -1
    """)
    a.label("L_noclr")
    ldW(1)
    srd(a, rK, sK, KV_BYTES)
    srd(a, rV, sV, KV_BYTES)
    srd(a, rWO, sWO, W_BYTES)
    srd(a, rOUT, sOUT, OUT_BYTES)
    a(f"""
    s_mul_i32 s{sKVB}, s{sLW}, 9216
    s_mul_i32 s{sT2}, s{sBH}, 36864
    s_add_u32 s{sT2}, s{sT2}, s{sKVB}
    """)
    for i in range(3):
        a(f"""
        v_mul_u32_u24 v6, 384, v{vK0[i]}
        v_add_u32 v6, s{sT2}, v6
        v_lshrrev_b32 v3, 1, v{vK0[i]}
        v_xor_b32 v4, v3, v{vCP[i]}
        v_xor_b32 v4, s{sT1}, v4
        v_lshl_add_u32 v{vKA[i]}, v4, 4, v6
        v_xor_b32 v4, 4, v4
        v_lshl_add_u32 v{vKB[i]}, v4, 4, v6
        v_lshlrev_b32 v3, 1, v3
        v_xor_b32 v4, v3, v{vCP[i]}
        v_lshl_add_u32 v{vV[i]}, v4, 4, v6
        """)
    ldW(2); ldX(1); ldW(3); ldX(2)
    addrB(a, cfg)
    a.c("phase C / D loader addresses")
    a(f"""
    s_and_b32 s{sT1}, s{sLW}, 1
    s_mul_i32 s{sWM0}, s{sT1}, 5120
    s_mul_i32 s{sT1}, s{sT1}, 320
    s_mul_i32 s{sT2}, s{sG}, {768*1280}
    s_mul_i32 s{sT3}, s{sJ}, 320
    s_add_u32 s{sT2}, s{sT2}, s{sT3}
    """)
    for i in range(5):
        a(f"""
        v_add_u32 v2, s{sT1}, v0
        v_add_u32 v2, {64*i}, v2
        v_mul_u32_u24 v3, 3277, v2
        v_lshrrev_b32 v3, 16, v3            ; row = t/20
        v_mul_u32_u24 v4, 20, v3
        v_sub_u32 v4, v2, v4                ; cp
        v_lshrrev_b32 v5, 1, v3
        v_and_b32 v5, 2, v5
        v_xor_b32 v4, v4, v5
        v_mul_u32_u24 v3, 1280, v3
        v_lshl_add_u32 v3, v4, 4, v3
        v_add_u32 v{vWO[i]}, s{sT2}, v3
        """)
    a(f"""
    s_mul_i32 s{sWK}, s{sJ}, {3*81920}
    s_lshr_b32 s{sT1}, s{sLW}, 1
    s_mul_i32 s{sOK+2}, s{sT1}, 40960
    s_mul_i32 s{sOK+3}, s{sT1}, 10240
    s_add_u32 s{sOK+3}, s{sOK+3}, s{sWM0}
    s_add_u32 s{sT1}, s{sJ}, 1
    s_and_b32 s{sT1}, s{sT1}, 3
    s_mul_i32 s{sOK}, s{sT1}, {3*12288}
    s_mul_i32 s{sOM0}, s{sLW}, 3072
    s_lshl_b32 s{sT1}, s{sB}, 3
    s_add_u32 s{sT1}, s{sT1}, s{sG}
    s_mul_i32 s{sT1}, s{sT1}, 147456
    s_add_u32 s{sT1}, s{sT1}, s{sOM0}
    s_add_u32 s{sT1}, s{sT1}, {cfg.ws_o}
    v_lshlrev_b32 v7, 4, v0
    v_add_u32 v{vOR}, s{sT1}, v7
    v_min_u32 v2, 23, v0
    v_lshlrev_b32 v2, 2, v2
    s_add_u32 s{sT1}, s{sINB}, 1024
    v_add_u32 v{vP1}, s{sT1}, v2
    v_min_u32 v2, 7, v0
    v_max_u32 v2, {1 if cfg.own_lds else 0}, v2
    v_add_u32 v2, s{sG}, v2
    v_and_b32 v2, 7, v2
    v_lshlrev_b32 v3, 7, v2
    v_add_u32 v{vP2}, s{sINB}, v3
    s_lshl_b32 s{sT1}, s{sB}, 2
    s_add_u32 s{sT1}, s{sT1}, s{sJ}
    s_mul_i32 s{sT1}, s{sT1}, 30720
    s_mul_i32 s{sT2}, s{sG}, 983040
    s_add_u32 s{sT1}, s{sT1}, s{sT2}
    s_and_b32 s{sT2}, s{sLW}, {1 if cfg.pf_step is None else 3}
    s_mul_i32 s{sT2}, s{sT2}, {15360 if cfg.pf_step is None else 7680}
    s_add_u32 s{sT1}, s{sT1}, s{sT2}
    v_min_u32 v2, 59, v0
    v_lshlrev_b32 v2, 7, v2
    v_add_u32 v{vPF}, s{sT1}, v2
    s_lshl_b32 s{sT1}, s{sB}, 3
    s_add_u32 s{sT1}, s{sT1}, s{sG}
    s_lshl_b32 s{sT1}, s{sT1}, 2
    s_add_u32 s{sT1}, s{sT1}, s{sJ}
    s_mul_i32 s{sT1}, s{sT1}, 36864
    s_and_b32 s{sT2}, s{sLW}, 1
    s_mul_i32 s{sT2}, s{sT2}, 18432
    s_add_u32 s{sT1}, s{sT1}, s{sT2}
    s_add_u32 s{sT1}, s{sT1}, {cfg.ws_o}
    v_min_u32 v2, 47, v0
    v_lshlrev_b32 v2, 7, v2
    v_add_u32 v{vOP}, s{sT1}, v2
    s_and_b32 s{sT0}, s{sG}, 1
    s_lshl_b32 s{sT0}, s{sT0}, 2
    s_add_u32 s{sU}, s{sT0}, s{sLW}
    s_lshl_b32 s{sT2}, s{sB}, 2
    s_add_u32 s{sT2}, s{sT2}, s{sJ}
    s_lshl_b32 s{sT2}, s{sT2}, 5
    s_lshr_b32 s{sT1}, s{sG}, 1
    s_add_u32 s{sT2}, s{sT2}, s{sT1}
    s_lshl_b32 s{sT2}, s{sT2}, 3
    s_add_u32 s{sT2}, s{sT2}, s{sU}
    s_lshl_b32 s{sT2}, s{sT2}, 10
    s_add_u32 s{sT2}, s{sT2}, {cfg.ws_p}
    v_lshlrev_b32 v3, 4, v0
    v_add_u32 v{vDL}, s{sT2}, v3            ; + src*32768
    s_bfe_u32 s{sT0}, s{sG}, 0x10001        ; i
    s_lshr_b32 s{sT1}, s{sG}, 2             ; jq
    s_mul_i32 s{sT1}, s{sT1}, 48
    s_mul_i32 s{sT2}, s{sB}, 96
    s_add_u32 s{sT1}, s{sT1}, s{sT2}
    s_lshr_b32 s{sT2}, s{sU}, 1             ; t (u<6), 3 for u = 6,7
    s_cmp_eq_u32 s{sU}, 6
    s_cselect_b32 s{sT2}, 0, s{sT2}
    s_cmp_eq_u32 s{sU}, 7
    s_cselect_b32 s{sT2}, 2, s{sT2}
    s_lshl_b32 s{sT2}, s{sT2}, 4
    s_add_u32 s{sT1}, s{sT1}, s{sT2}
    s_mul_i32 s{sT1}, s{sT1}, 1280
    s_and_b32 s{sT2}, s{sU}, 1
    s_lshl_b32 s{sT2}, s{sT2}, 6
    s_mul_i32 s{sT3}, s{sT0}, 192           ; (80+16) columns * 2B * i
    s_add_u32 s{sT2}, s{sT2}, s{sT3}
    s_lshl_b32 s{sT3}, s{sT0}, 5
    s_add_u32 s{sT3}, s{sT3}, 128           ; (64 + 16 i) * 2B
    s_cmp_ge_u32 s{sU}, 6
    s_cselect_b32 s{sT2}, s{sT3}, s{sT2}
    s_add_u32 s{sT1}, s{sT1}, s{sT2}
    s_mul_i32 s{sT2}, s{sJ}, 320
    s_add_u32 s{sT1}, s{sT1}, s{sT2}
    v_and_b32 v2, 15, v0
    v_mul_u32_u24 v2, 1280, v2
    v_lshrrev_b32 v3, 4, v0
    v_lshl_add_u32 v2, v3, 3, v2
    v_add_u32 v{vDO}, s{sT1}, v2
    s_mov_b32 s{sDN}, 32
    s_cmp_eq_u32 s{sU}, 6
    s_cselect_b32 s{sDN}, {16*1280}, s{sDN}
    s_cmp_eq_u32 s{sU}, 7
    s_cselect_b32 s{sDN}, 16, s{sDN}
    """)
    stamp(a, cfg, 1)
    a.wait_vm(("W", 0), ("X", 0))
    a("s_barrier   ; P")
    stamp(a, cfg, 2)
    a.wait_vm(("W", 1), ("X", 0))
    a.c("wave 7: inbox cleared (its store is older than W1) -> arrive on the group word in d_debug")
    a(f"""
    s_cmp_lg_u32 s{sWAVE}, 7
    s_cbranch_scc1 L_noarr
    s_getreg_b32 s{sT1}, hwreg(HW_REG_XCC_ID, 0, 4)
    s_lshl_b32 s{sT2}, s{sJ}, 2
    s_add_u32 s{sT2}, s{sT2}, 4
    s_lshl_b32 s{sT1}, s{sT1}, s{sT2}
    s_add_u32 s{sT1}, s{sT1}, 1
    s_lshl_b32 s{sT2}, s{sB}, 3
    s_add_u32 s{sT2}, s{sT2}, s{sG}
    s_lshl_b32 s{sT2}, s{sT2}, 2
    v_mov_b32 v2, s{sT1}
    v_mov_b32 v3, s{sT2}
    s_mov_b64 exec, 1
    buffer_atomic_add v2, v3, s[{rDBG}:{rDBG+3}], 0 offen sc1
    s_mov_b64 exec, -1
    """)
    a.label("L_noarr")
    variants = cfg.kv_variants or [(cfg.k_sched, cfg.v_sched)]
    nv = len(variants)
    if nv > 1:
        a(f"s_lshr_b32 s{sT1}, s2, {cfg.kv_sel_shift}")
        if nv == 3:
            a(f"s_mul_i32 s{sT2}, s{sT1}, 86")
            a(f"s_lshr_b32 s{sT2}, s{sT2}, 8")
            a(f"s_mul_i32 s{sT2}, s{sT2}, 3")
            a(f"s_sub_u32 s{sT1}, s{sT1}, s{sT2}")
        else:
            a(f"s_and_b32 s{sT1}, s{sT1}, {nv-1}")
        for v in range(1, nv):
            a(f"s_cmp_eq_u32 s{sT1}, {v}")
            a(f"s_cbranch_scc1 L_kvvar{v}")
    vm0 = list(a.vm)
    tails = []
    for v, var in enumerate(variants):
        ksch, vsch = var[0], var[1]
        pfs = var[2] if len(var) > 2 else cfg.pf_step
        if v: a.label(f"L_kvvar{v}")
        a.vm = list(vm0)
        for s in range(19):
            a.wait_vm(("W", s + 1), ("X", (s + 1) >> 1))
            a(f"s_barrier   ; B{s}")
            pre = [i for i, ss in enumerate(ksch) if ss == s], [i for i, ss in enumerate(vsch) if ss == s]
            if s + 4 < 20: ldW(s + 4)
            if s & 1 and (s >> 1) + 3 < 10: ldX((s >> 1) + 3)
            if pfs == s and cfg.wo_prefetch: ldPF()
            for i in pre[0]: ldK(i)
            for i in pre[1]: ldV(i)
            if s in (4, 9, 14): stamp(a, cfg, 3 + (s - 4) // 5)
        if nv > 1:
            a.wait_vm("K")
            tails.append(list(a.vm))
            if v < nv - 1: a("s_branch L_kvjoin")
    if nv > 1:
        a.label("L_kvjoin")
        a.vm = max(tails, key=len)
    a.wait_vm("K")
    stamp(a, cfg, 6)
    a.c("wave 7: check that the 32 workgroups of this batch have cleared their inboxes; same-XCD test")
    a(f"""
    s_cmp_lg_u32 s{sWAVE}, 7
    s_cbranch_scc1 L_nohs
    v_and_b32 v2, 7, v0
    v_lshlrev_b32 v2, 2, v2
    s_lshl_b32 s{sT3}, s{sB}, 5
    """)
    save = list(a.vm)
    def chk():
        a(f"""
        v_and_b32 v4, 7, v3
        v_cmp_eq_u32 vcc, 4, v4
        s_cmp_eq_u64 vcc, -1
        """)
    poll(a, cfg, 2, rDBG, f"s{sT3}", 3, chk)
    a(f"""
    v_readlane_b32 s{sT1}, v3, s{sG}
    s_bfe_u32 s{sT1}, s{sT1}, 0x100004
    s_and_b32 s{sT2}, s{sT1}, 15
    s_mul_i32 s{sT2}, s{sT2}, 0x1111
    s_cmp_eq_u32 s{sT1}, s{sT2}
    s_cselect_b32 s{sT1}, {0 if cfg.force_slow else 1}, 0
    v_mov_b32 v2, {L_FLAG}
    v_mov_b32 v3, s{sT1}
    ds_write_b32 v2, v3
    s_waitcnt lgkmcnt(0)
    """)
    a.label("L_nohs")
    a.vm = save
    a("s_barrier   ; Q")
    if cfg.prio: a(f"s_setprio {cfg.prio[2]}")
    a(f"""
    s_cmp_lt_u32 s{sWAVE}, 6
    s_cbranch_scc1 L_phaseB
    """)
    a.c("waves 6,7 during attention: wo prefetch into L2 and the first four wo pairs")
    a.vm = ["V"]
    if cfg.inbox_pre:
        a.vmem(f"buffer_load_dword v253, v{vP1}, s[{rWS}:{rWS+3}], 0 offen sc1", "ib")
    if cfg.pf2:
        a.c("second touch with the default policy keeps the prefetched wo lines in L2")
        a(f"s_lshr_b32 s{sT1}, s{sLW}, 1")
        a(f"s_mul_i32 s{sT1}, s{sT1}, 15360")
        a(f"s_sub_u32 s{sT1}, 0, s{sT1}")
        a(f"v_add_u32 v2, s{sT1}, v{vPF}")
        a(f"s_and_b32 s{sT1}, s{sLW}, 1")
        a(f"s_mul_i32 s{sT1}, s{sT1}, 7680")
        a(f"v_add_u32 v2, s{sT1}, v2")
        a.vmem(f"buffer_load_dword v253, v2, s[{rWO}:{rWO+3}], 0 offen", "pf")
        a(f"s_mov_b32 s{sT0}, 7680")
        a.vmem(f"buffer_load_dword v253, v2, s[{rWO}:{rWO+3}], s{sT0} offen", "pf")
    if cfg.o_preread:
        for i in range(3):
            a(f"s_mov_b32 s{sT0}, {i*6144}")
            a.vmem(f"buffer_load_dword v253, v{vOP}, s[{rWS}:{rWS+3}], s{sT0} offen {cfg.polOP}", "op")
    def pf_late():
        if cfg.pf_rounds:
            R = cfg.pf_rounds; n = 120 // R
            a(f"v_min_u32 v2, {n-1}, v0")
            a(f"v_min_u32 v3, 59, v0")
            a(f"v_sub_u32 v2, v2, v3")
            a(f"v_lshlrev_b32 v2, 7, v2")
            a(f"v_add_u32 v2, v2, v{vPF}")
            for r in range(R + 1):
                if r < R:
                    a(f"s_mov_b32 s{sT0}, {r*n*128}")
                    a.vmem(f"buffer_load_dword v253, v2, s[{rWO}:{rWO+3}], s{sT0} offen nt", ("pfn", r))
                if r > 0:
                    a.wait_vm(("pfn", r - 1))
                    a(f"s_mov_b32 s{sT0}, {(r-1)*n*128}")
                    a.vmem(f"buffer_load_dword v253, v2, s[{rWO}:{rWO+3}], s{sT0} offen", "pf")
                if cfg.pf_serial and r < R and r > 0: pass
        elif cfg.wo_prefetch and cfg.pf_step is None:
            a.vmem(f"buffer_load_dword v253, v{vPF}, s[{rWO}:{rWO+3}], 0 offen {cfg.polPF}", "pf")
            a(f"s_mov_b32 s{sT0}, 7680")
            a.vmem(f"buffer_load_dword v253, v{vPF}, s[{rWO}:{rWO+3}], s{sT0} offen {cfg.polPF}", "pf")
    if cfg.pf_at == 'Q': pf_late()
    ld_wo_pair(a, cfg, 0, True); ld_wo_pair(a, cfg, 1, True)
    a.wait_vm("V")
    stamp(a, cfg, 8)
    a("s_barrier   ; V")
    if cfg.pf_at == 'V': pf_late()
    ld_wo_pair(a, cfg, 2, True); ld_wo_pair(a, cfg, 3, True)
    if cfg.pf_at == 'V2': pf_late()
    if cfg.diag_w7:
        stamp(a, cfg, 10)
        a("s_waitcnt vmcnt(0)")
        stamp(a, cfg, 11)
    a.wait_vm(("WO", 0))
    stamp(a, cfg, 12)
    a("s_barrier   ; O1")
    a("s_branch L_loaderC")
    return list(a.vm)


def phaseB(a, cfg):
    a.label("L_phaseB")
    a.reset()
    QF = 88; KF = [112, 136]; S = 16; P = 40; O = 172; VF = 88; ONES = 52; SUM = 56
    stamp(a, cfg, 7)
    def kread(ks, kt):
        v = vKO if ks & 1 else vKE
        a.ds(f"ds_read_b128 {vr(KF[ks&1]+4*kt)}, v{v} offset:{kt*6144 + (ks>>1)*128}", ("K", ks, kt))
    a.ds(f"ds_read_b128 {vr(QF)}, v{vQR} offset:{L_Q}", ("Q", 0))
    for kt in range(6): kread(0, kt)
    for ks in range(1, 6):
        a.ds(f"ds_read_b128 {vr(QF+4*ks)}, v{vQR} offset:{L_Q + ks*1024}", ("Q", ks))
    a(f"v_mov_b32 v6, {L_FLAG}")
    a.ds("ds_read_b32 v7, v6", "fast")
    for i in range(4): a(f"v_mov_b32 v{ONES+i}, 0x3f803f80")
    for ks in range(6):
        for kt in range(6):
            if kt % cfg.s_batch == 0:
                a.wait_lg(("Q", ks), *[("K", ks, k2) for k2 in range(kt, min(6, kt + cfg.s_batch))], *(["fast"] if (ks, kt) == (1, 0) else []))
            a(mfma(S + 4 * kt, KF[ks & 1] + 4 * kt, QF + 4 * ks, first=(ks == 0)))
            if ks < 5: kread(ks + 1, kt)
    a(f"v_readfirstlane_b32 s{sFAST}, v7")
    stamp(a, cfg, 8)
    a.c("waves 4,5 meet the V barrier before their softmax, waves 0-3 after it (they run one phase apart on a shared SIMD)")
    if cfg.prio:
        a(f"""
        s_cmp_lg_u32 s{sROLE}, 0
        s_cbranch_scc1 L_nopr
        s_setprio {cfg.prio[1]}
        """)
        a.label("L_nopr")
    if not cfg.v_late:
        a(f"""
        s_cmp_eq_u32 s{sROLE}, 0
        s_cbranch_scc1 L_nov1
        s_waitcnt vmcnt(0)
        s_barrier   ; V
        """)
        a.label("L_nov1")
    a.c("softmax")
    M, T1, L = 2, 3, 4
    a(f"v_max3_f32 v{M}, v{S}, v{S+1}, v{S+2}")
    a(f"v_max3_f32 v{T1}, v{S+3}, v{S+4}, v{S+5}")
    for i in range(6, 22, 4):
        a(f"v_max3_f32 v{M}, v{M}, v{S+i}, v{S+i+1}")
        a(f"v_max3_f32 v{T1}, v{T1}, v{S+i+2}, v{S+i+3}")
    a(f"v_max3_f32 v{M}, v{M}, v{S+22}, v{S+23}")
    a(f"v_max_f32 v{M}, v{M}, v{T1}")
    for sw in ("v_permlane16_swap_b32", "v_permlane32_swap_b32"):
        a(f"v_mov_b32 v{T1}, v{M}")
        a(f"{sw} v{M}, v{T1}")
        a(f"v_max_f32 v{M}, v{M}, v{T1}")
    a(f"v_mul_f32 v{M}, {f32hex(-SCALE)}, v{M}")
    for i in range(24 + 3):
        if i < 24: a(f"v_fmamk_f32 v{S+i}, v{S+i}, {f32hex(SCALE)}, v{M}")
        if 1 <= i <= 24: a(f"v_exp_f32 v{S+i-1}, v{S+i-1}")
        if i >= 4 and i % 2 == 0 and (i - 4) // 2 < 12:
            j = (i - 4) // 2
            a(f"v_cvt_pk_bf16_f32 v{P+j}, v{S+2*j}, v{S+2*j+1}")
    stamp(a, cfg, 10)
    if not cfg.v_late:
        a(f"""
        s_cmp_lg_u32 s{sROLE}, 0
        s_cbranch_scc1 L_nov2
        s_barrier   ; V
        """)
        a.label("L_nov2")
    else:
        a("s_waitcnt vmcnt(0)")
        a("s_barrier   ; V")
    stamp(a, cfg, 9)
    def vread(s, Td, slot):
        for e in range(2):
            a.ds(f"ds_read_b64_tr_b16 {vr(VF + 4*slot + 2*e, 2)}, v{vVA[Td & 3]} offset:{(Td>>2)*128 + s*12288 + e*6144}", ("V", s, Td))
    order = [(s, Td) for s in range(3) for Td in range(12)]
    NV = cfg.nv
    for i in range(NV): vread(*order[i], i % 18)
    a.c("row sums through the matrix pipe: ones x P")
    for s in range(3): a(mfma(SUM, ONES, P + 4 * s, first=(s == 0)))
    OB = 88
    epi = []
    def epi_pair(Pp):
        d = O + 8 * Pp; o = OB + 4 * Pp
        r = []
        for i in range(4):
            r.append(f"v_mul_f32 v{d+2*i}, v{d+2*i}, v{L}")
            r.append(f"v_mul_f32 v{d+2*i+1}, v{d+2*i+1}, v{L}")
        for i in range(4): r.append(f"v_cvt_pk_bf16_f32 v{o+i}, v{d+2*i}, v{d+2*i+1}")
        r.append(("ds", f"ds_write_b128 v{vOL}, {vr(o)} offset:{L_OWN + Pp*6144}"))
        return r
    def emit(x):
        if isinstance(x, tuple): a.ds(x[1], "ow")
        else: a(x)
    for i, (s, Td) in enumerate(order):
        if i % cfg.pv_batch == 0:
            a.wait_lg(*[("V",) + order[i2] for i2 in range(i, min(36, i + cfg.pv_batch))])
        a(mfma(O + 4 * Td, VF + 4 * (i % 18), P + 4 * s, first=(s == 0)))
        if i + NV < len(order): vread(*order[i + NV], (i + NV) % 18)
        if i == 8: a(f"v_rcp_f32 v{L}, v{SUM}")
        if s == 2 and Td >= 5 and Td % 2 == 1: epi += epi_pair((Td - 5) // 2)
        if s == 2:
            for _ in range(cfg.epi_rate):
                if epi: emit(epi.pop(0))
    stamp(a, cfg, 11)
    for Pp in (4, 5): epi += epi_pair(Pp)
    for x in epi: emit(x)
    stamp(a, cfg, 27)
    if cfg.o_store_late:
        a.wait_lg_all()
        a("s_barrier   ; O1")
    a(f"""
    s_cmp_lg_u32 s{sFAST}, 0
    s_cbranch_scc1 L_ofast
    """)
    for fast in range(2):
        if fast:
            a("s_branch L_odone")
            a.label("L_ofast")
        for Pp in range(0 if cfg.skip_ostore else 6):
            a(f"s_mov_b32 s{sT0}, {cfg.ws_o + Pp*6144}")
            a(f"buffer_store_dwordx4 {vr(OB + 4*Pp)}, v{vOS}, s[{rWS}:{rWS+3}], s{sT0} offen {cfg.o_fast_pol if fast else 'sc0 sc1'}")
    a.label("L_odone")
    stamp(a, cfg, 28)
    if not cfg.o_store_late:
        a.wait_lg_all()
        stamp(a, cfg, 12)
        a("s_barrier   ; O1")
    a(f"""
    s_cmp_eq_u32 s{sROLE}, 0
    s_cbranch_scc1 L_computeC
    s_waitcnt vmcnt(0)
    """)
    h1_flag(a, cfg, 0)
    a(f"""
    s_mul_i32 s{sT0}, s{sJ}, 3
    s_add_u32 s{sT0}, s{sT0}, 4
    s_cmp_ge_u32 s{sT0}, 12
    s_cselect_b32 s{sT1}, 12, 0
    s_sub_u32 s{sT0}, s{sT0}, s{sT1}
    s_mul_i32 s{sWK}, s{sT0}, 81920
    """)
    a.c("falls through into the phase C loader")


def loaderC(a, cfg, hist):
    a.label("L_loaderC")
    a.reset()
    if cfg.prio: a("s_setprio 0")
    a.vm = hist
    stamp(a, cfg, 13)
    def sib_mask(k):
        a(f"""
        s_add_u32 s{sT1}, s{sJ}, {k}
        s_and_b32 s{sT1}, s{sT1}, 3
        s_mul_i32 s{sT1}, s{sT1}, 6
        s_lshl_b32 s{sMSK}, 63, s{sT1}
        """)
    for p in range(11):
        if p in (1, 2): stamp(a, cfg, 21 + p)
        if p == 2:
            a.c("wait for the first sibling's O tile (all three when not gated)")
            if cfg.h1_gate:
                sib_mask(1)
                def chk():
                    a(f"v_cmp_eq_u32 vcc, 1, v3")
                    a(f"s_mov_b32 s{sRDY}, vcc_lo")
                    a(f"s_and_b32 s{sT1}, vcc_lo, s{sMSK}")
                    a(f"s_cmp_eq_u32 s{sT1}, s{sMSK}")
            else:
                def chk():
                    a(f"v_cmp_eq_u32 vcc, 1, v3")
                    a("s_cmp_eq_u64 vcc, -1")
            poll(a, cfg, vP1, rWS, "0", 3, chk)
            if cfg.stamps: a(f"v_writelane_b32 v255, s{sSPIN}, 30")
            stamp(a, cfg, 14)
            for pp in (3, 4, 5): ld_o_pair(a, cfg, pp)
        a.wait_vm(("WO", p + 1), ("O", p + 1))
        if p in (2, 3): stamp(a, cfg, 22 + p)
        a(f"s_barrier   ; C{p}")
        if p + 4 < 12: ld_wo_pair(a, cfg, p + 4, False)
        if cfg.h1_gate and p in (3, 6):
            k = 2 if p == 3 else 3
            sib_mask(k)
            a(f"s_and_b32 s{sT1}, s{sRDY}, s{sMSK}")
            a(f"s_cmp_eq_u32 s{sT1}, s{sMSK}")
            a(f"s_cbranch_scc1 L_sib{k}")
            save = list(a.vm)
            poll(a, cfg, vP1, rWS, "0", 3, chk)
            a.vm = save
            a.label(f"L_sib{k}")
        if p >= 3 and p + 3 < 12: ld_o_pair(a, cfg, p + 3)
        if p in (2, 5, 8): stamp(a, cfg, 15 + (p - 2) // 3)
    stamp(a, cfg, 18)
    a.c("phase D")
    A = 48
    a("s_barrier   ; PD")
    stamp(a, cfg, 26)
    if cfg.own_lds:
        a(f"s_lshl_b32 s{sT0}, s{sLW}, 10")
        a(f"v_lshlrev_b32 v2, 4, v0")
        a(f"v_add_u32 v2, s{sT0}, v2")
        a.ds(f"ds_read_b128 v[16:19], v2 offset:{L_OWN}", "own")
    if cfg.h2_delay:
        a(f"s_sleep {cfg.h2_delay}")
    def chk2():
        a(f"v_cmp_eq_u32 vcc, 1, v3")
        a("s_cmp_eq_u64 vcc, -1")
    if cfg.one_poller:
        a(f"s_cmp_lg_u32 s{sWAVE}, 4")
        a("s_cbranch_scc1 L_nopoll2")
    poll(a, cfg, vP2, rWS, "0", 3, chk2)
    if cfg.one_poller:
        a.label("L_nopoll2")
        a("s_barrier   ; PE")
    if cfg.stamps: a(f"v_writelane_b32 v255, s{sSPIN}, 31")
    stamp(a, cfg, 19)
    a(f"""
    s_cmp_eq_u32 s{sU}, 7
    s_cselect_b32 exec_hi, 0, -1
    """)
    a.vm = []
    for k in range(1 if cfg.own_lds else 0, 8):
        a(f"""
        s_add_u32 s{sT0}, s{sG}, {k}
        s_and_b32 s{sT0}, s{sT0}, 7
        s_lshl_b32 s{sT0}, s{sT0}, 15
        """)
        a.vmem(f"buffer_load_dwordx4 {vr(16+4*k)}, v{vDL}, s[{rWS}:{rWS+3}], s{sT0} offen sc1", ("p", k))
    a(f"s_mov_b32 s{sT1}, 0xffff0000")
    for k in range(8):
        if k == 0 and cfg.own_lds: a.wait_lg_all()
        a.wait_vm(("p", k))
        for i in range(4):
            s = 16 + 4 * k + i
            if k == 0:
                a(f"v_lshlrev_b32 v{A+2*i}, 16, v{s}")
                a(f"v_and_b32 v{A+2*i+1}, s{sT1}, v{s}")
            else:
                a(f"v_lshlrev_b32 v{60+2*i}, 16, v{s}")
                a(f"v_and_b32 v{61+2*i}, s{sT1}, v{s}")
                a(f"v_add_f32 v{A+2*i}, v{A+2*i}, v{60+2*i}")
                a(f"v_add_f32 v{A+2*i+1}, v{A+2*i+1}, v{61+2*i}")
    stamp(a, cfg, 20)
    for i in range(4):
        a(f"v_cvt_pk_bf16_f32 v{16+i}, v{A+2*i}, v{A+2*i+1}")
    a(f"buffer_store_dwordx2 v[16:17], v{vDO}, s[{rOUT}:{rOUT+3}], 0 offen")
    a(f"buffer_store_dwordx2 v[18:19], v{vDO}, s[{rOUT}:{rOUT+3}], s{sDN} offen")
    a("s_mov_b64 exec, -1")
    a("s_branch L_fin")


def computeC(a, cfg):
    a.label("L_computeC")
    a.reset()
    if cfg.prio: a(f"s_setprio {cfg.prio[3]}")
    ACC = 16
    def acc(T, t): return ACC + (T * 3 + t) * 4
    SETA = [76, 96]; SETB = [116, 128]
    def reads(u):
        st = u & 1
        p = u >> 1
        hi, sl = divmod(p % 4, 2)
        so = sl * 20480 + (u & 1) * 10240
        if u < 6:
            vb, bo = vCB[0], L_OWN + u * 6144
        else:
            vb, bo = vCB[1], ((p - 3) % 3) * 12288 + (u & 1) * 6144
        R = []
        def ra(T):
            R.append((f"ds_read_b64_tr_b16 {vr(SETA[st]+4*T, 2)}, v{vCA[hi][T]} offset:{so}", ("A", u, T)))
            R.append((f"ds_read_b64_tr_b16 {vr(SETA[st]+4*T+2, 2)}, v{vCA[hi][T]} offset:{so+5120}", ("A", u, T)))
        ra(0)
        for t in range(3):
            R.append((f"ds_read_b128 {vr(SETB[st]+4*t)}, v{vb} offset:{bo + t*1024}", ("B", u, t)))
        for T in range(1, 5): ra(T)
        return R
    stamp(a, cfg, 13)
    for ins, tag in reads(0): a.ds(ins, tag)
    for u in range(24):
        if u & 1 and u < 23:
            a.wait_lg_all()
            a(f"s_barrier   ; C{u >> 1}")
        R = reads(u + 1) if u < 23 else []
        st = u & 1
        m = 0
        for T in range(5):
            for t in range(3):
                a.wait_lg(("A", u, T), ("B", u, t))
                a(mfma(acc(T, t), SETA[st] + 4 * T, SETB[st] + 4 * t, first=(u == 0)))
                if m < len(R): a.ds(*R[m])
                m += 1
        if u == cfg.h1_flag_step:
            stamp(a, cfg, 22)
            a("s_waitcnt vmcnt(0)")
            stamp(a, cfg, 23)
            h1_flag(a, cfg, 1)
        if u == cfg.wbl2_step:
            a(f"""
            s_lshr_b32 s{sT0}, s2, 3
            s_lshl_b32 s{sT0}, s{sT0}, 2
            s_add_u32 s{sT0}, s{sT0}, s{sWAVE}
            s_cmp_lg_u32 s{sT0}, 0
            s_cbranch_scc1 L_nowb
            buffer_wbl2 sc1
            """)
            a.label("L_nowb")
        if u in (2, 3): stamp(a, cfg, 22 + u)
        if u in (5, 11, 17): stamp(a, cfg, 15 + (u - 5) // 6)
    stamp(a, cfg, 18)
    a.c("partials, 8 units per wave: 6 tile pairs, the odd tile of q tiles 0|1, the odd tile of q tile 2 (32 lanes)")
    a(f"""
    s_cmp_lg_u32 s{sI}, 0
    s_cbranch_scc1 L_st1
    """)
    def cv(dst, d):
        a(f"v_cvt_pk_bf16_f32 v{dst}, v{d}, v{d+1}")
        a(f"v_cvt_pk_bf16_f32 v{dst+1}, v{d+2}, v{d+3}")
    U = 76
    for i in range(2):
        if i == 1:
            a("s_branch L_cvdone")
            a.label("L_st1")
        pairs = [(0, 1), (2, 3)] if i == 0 else [(1, 2), (3, 4)]
        odd = 4 if i == 0 else 0
        for t in range(3):
            for pi, (Ta, Tb) in enumerate(pairs):
                o = U + (2 * t + pi) * 4
                cv(o, acc(Ta, t)); cv(o + 2, acc(Tb, t))
        cv(U + 24, acc(odd, 0)); cv(U + 26, acc(odd, 1))
        cv(U + 28, acc(odd, 2))
    a.label("L_cvdone")
    a(f"v_permlane32_swap_b32 v{U+28}, v{U+30}")
    a(f"v_permlane32_swap_b32 v{U+29}, v{U+31}")
    a(f"s_lshr_b32 s{sT1}, s{sG}, 1")
    a(f"s_and_b32 s{sT2}, s{sG}, 1")
    for half in range(2):
        if cfg.own_lds:
            a(f"""
            s_cmp_lg_u32 s{sT1}, s{sWAVE}
            s_cbranch_scc1 L_rem{half}
            s_cmp_lg_u32 s{sT2}, {half}
            s_cbranch_scc1 L_rem{half}
            """)
            for k in range(4):
                a(f"ds_write_b128 v{vPH}, {vr(U + (4*half + k)*4)} offset:{L_OWN + k*1024}")
            a(f"s_branch L_remdone{half}")
            a.label(f"L_rem{half}")
        for k in range(4):
            u = 4 * half + k
            if u == 7: a("s_mov_b32 exec_hi, 0")
            a(f"s_mov_b32 s{sT0}, {u*1024}")
            a(f"buffer_store_dwordx4 {vr(U + u*4)}, v{vPS}, s[{rWS}:{rWS+3}], s{sT0} offen sc0 sc1")
            if u == 7: a("s_mov_b32 exec_hi, -1")
        if cfg.own_lds: a.label(f"L_remdone{half}")
    stamp(a, cfg, 19)
    a("s_waitcnt lgkmcnt(0)")
    a("s_barrier   ; PD")
    a("s_waitcnt vmcnt(0)")
    stamp(a, cfg, 20)
    a(f"""
    s_mov_b64 exec, 3
    buffer_store_dword v{vONE}, v{vF2}, s[{rWS}:{rWS+3}], 0 offen sc0 sc1
    s_mov_b64 exec, -1
    """)


def build(cfg, header=""):
    _lbl[0] = 0
    a = Asm()
    if header: a.raw(header.rstrip("\n"))
    a.raw(f"; @launch grid=(256,1,1) block=(512,1,1) lds={LDS_BYTES}")
    a.raw('.amdgcn_target "amdgcn-amd-amdhsa--gfx950"\n.text')
    prologue(a, cfg)
    computeA(a, cfg)
    hist = loaderA(a, cfg)
    phaseB(a, cfg)
    loaderC(a, cfg, hist)
    computeC(a, cfg)
    a.label("L_fin")
    stamp(a, cfg, 21)
    if cfg.dbg_stamps:
        wg, lst = cfg.dbg_stamps
        srd(a, rDBG, sDBG, 256)
        a(f"s_cmp_lg_u32 s2, {wg}")
        a("s_cbranch_scc1 L_nodbg")
        a(f"v_readlane_b32 s{sT2}, v255, 0")
        for w in sorted(set(x[0] for x in lst)):
            a(f"s_cmp_lg_u32 s{sWAVE}, {w}")
            a(f"s_cbranch_scc1 L_nodbg{w}")
            a("s_mov_b64 exec, 1")
            for i, (ww, idx) in enumerate(lst):
                if ww != w: continue
                a(f"""
                v_readlane_b32 s{sT1}, v255, {idx}
                s_sub_u32 s{sT1}, s{sT1}, s{sT2}
                s_lshr_b32 s{sT1}, s{sT1}, 4
                s_min_u32 s{sT1}, s{sT1}, 4095
                s_lshl_b32 s{sT1}, s{sT1}, 20
                v_mov_b32 v2, s{sT1}
                v_mov_b32 v3, {i*4}
                buffer_atomic_add v2, v3, s[{rDBG}:{rDBG+3}], 0 offen sc1
                """)
            a("s_mov_b64 exec, -1")
            a.label(f"L_nodbg{w}")
        a.label("L_nodbg")
    if cfg.amp:
        w, ia, ib, A = cfg.amp
        a(f"""
        s_cmp_lg_u32 s{sWAVE}, {w}
        s_cbranch_scc1 L_noamp
        v_readlane_b32 s{sT0}, v255, {ia}
        v_readlane_b32 s{sT1}, v255, {ib}
        s_sub_u32 s{sT0}, s{sT1}, s{sT0}
        s_mul_i32 s{sT0}, s{sT0}, {A}
        s_memtime s[{sSTAMP}:{sSTAMP+1}]
        s_waitcnt lgkmcnt(0)
        s_add_u32 s{sT0}, s{sT0}, s{sSTAMP}
        """)
        a.label("L_amp")
        a(f"""
        s_memtime s[{sSTAMP}:{sSTAMP+1}]
        s_waitcnt lgkmcnt(0)
        s_sub_u32 s{sT1}, s{sSTAMP}, s{sT0}
        s_cmp_lt_i32 s{sT1}, 0
        s_cbranch_scc1 L_amp
        """)
        a.label("L_noamp")
    else:
        stamp_flush(a, cfg)
    a.label("L_end")
    a("s_endpgm")
    a.raw(kernel_desc(KN))
    return a.text()


def make(**kw):
    cfg = Cfg()
    for k, v in kw.items(): setattr(cfg, k, v)
    header = open("cdna_kernels/" + NAME + ".s.ref").read().split("; Override launch")[0]
    return build(cfg, header)


if __name__ == "__main__":
    kw = {}
    for kv in sys.argv[2:]:
        k, v = kv.split("=", 1)
        kw[k] = eval(v)
    open(sys.argv[1], "w").write(make(**kw))
```

```python
import sys, math, struct
from asmgen import *

NAME = "standalone__gqa_block_cached__near_ridge"
KN = NAME + "_kernel"

X_BYTES = 768 * 640 * 2
KV_BYTES = 8 * 32 * 96 * 192 * 2
W_BYTES = 640 * 6144 * 2
OUT_BYTES = 768 * 640 * 2
WS_BYTES = 268435456
SCALE = 192 ** -0.5 * math.log2(math.e)

def f32hex(x):
    return "0x%08x" % struct.unpack("<I", struct.pack("<f", x))[0]

sX, sK, sV, sWQ, sWO, sOUT, sDBG, sWS = 4, 6, 8, 10, 12, 14, 16, 18
sWAVE, sG, sB, sJ, sH, sBH = 20, 21, 22, 23, 24, 25
sFAST, sSPIN = 26, 27
rX, rWQ, rK, rV, rWS, rWO, rOUT, rDBG = 28, 32, 36, 40, 44, 48, 52, 68
sT0, sT1, sT2, sT3 = 56, 57, 58, 59
sLW, sM0B, sC, sKVB = 60, 61, 62, 63
sI, sJQ, sROLE = 64, 65, 66
sWM0, sWK, sOM0, sOK = 72, 73, 74, 75
sKW, sKX, sRDY, sMSK, sU, sDN = 92, 93, 94, 95, 96, 97
sINB = 76
sSTAMP = 80
sEX = 90

L_W, L_X, L_K, L_V, L_Q = 0, 49152, 86016, 122880, 0
L_FLAG = 159744
L_OWN, L_WO, L_OR = 0, 36864, 122880
LDS_BYTES = 163840


class Cfg:
    stamps = False
    prefetch_code = True
    code_kb = 32
    ws_o = 0xE000000
    ws_p = 0xF000000
    ws_in = 0xFC00000
    ws_stamp = 0x4000000
    polW = ""
    polX = ""
    polKV = "nt"
    polWO = ""
    polPF = ""
    wo_prefetch = True
    pretouch = True
    force_slow = False
    k_sched = [12] * 9
    v_sched = [16] * 9
    h1_flag_step = 0
    spin_max = 400000
    epi_rate = 3
    sentinel = False
    poll_sleep = 1
    pf_rounds = 0
    pf_serial = False
    h2_delay = 16
    one_poller = True
    stamp_only = None
    pv_batch = 2
    v_late = False
    amp = None
    skip_ostore = False
    o_fast_pol = 'sc1'
    diag_w7 = False
    o_store_late = False
    prio = None
    nv = 6
    s_batch = 2
    own_lds = True
    h1_gate = False
    pd_wait = 0
    clr_step = 2
    clr_drain = 9
    chk_p = 10
    clr_pol = 'sc0 sc1'
    wbl2_step = None
    polO = 'sc1'
    skip_o = False
    skip_wo = False
    pre_wx = False
    rot = (10, 10)
    pf_step = None
    o_preread = False
    polOP = ''
    inbox_pre = True
    pf2 = False
    pf_at = 'V'
    polPW = 'nt'
    polPX = ''
    kv_variants = None
    kv_sel_shift = 3
    dbg_stamps = None


def stamp(a, cfg, idx):
    if not cfg.stamps: return
    if cfg.stamp_only is not None and idx not in cfg.stamp_only: return
    a(f"""
    s_memtime s[{sSTAMP}:{sSTAMP+1}]
    s_waitcnt lgkmcnt(0)
    v_writelane_b32 v255, s{sSTAMP}, {idx}
    """)
    a.lg = []

def stamp_flush(a, cfg):
    if not cfg.stamps: return
    a(f"""
    s_memrealtime s[{sSTAMP}:{sSTAMP+1}]
    s_waitcnt lgkmcnt(0)
    v_writelane_b32 v255, s{sSTAMP}, 33
    s_lshl_b32 s{sT0}, s2, 3
    s_add_u32 s{sT0}, s{sT0}, s{sWAVE}
    s_lshl_b32 s{sT0}, s{sT0}, 8
    s_add_u32 s{sT0}, s{sT0}, {cfg.ws_stamp}
    v_mbcnt_lo_u32_b32 v254, -1, 0
    v_mbcnt_hi_u32_b32 v254, -1, v254
    v_lshlrev_b32 v254, 2, v254
    buffer_store_dword v255, v254, s[{rWS}:{rWS+3}], s{sT0} offen
    """)

def wait_kernarg(a, cfg):
    a("s_waitcnt lgkmcnt(0)")
    if cfg.stamps:
        a(f"v_writelane_b32 v255, s{sSTAMP}, 0")
        a(f"v_writelane_b32 v255, s{sSTAMP+2}, 32")

def mfma(d, A, B, first=False):
    c = "0" if first else vr(d)
    return f"v_mfma_f32_16x16x32_bf16 {vr(d)}, {vr(A)}, {vr(B)}, {c}"

_lbl = [0]
def poll(a, cfg, vaddr, rs, soff, vtmp, check):
    _lbl[0] += 1
    n = _lbl[0]
    a(f"s_mov_b32 s{sSPIN}, 0")
    a.label(f"poll{n}")
    a(f"buffer_load_dword v{vtmp}, v{vaddr}, s[{rs}:{rs+3}], {soff} offen sc1")
    a.wait_vm_all()
    check()
    a(f"""
    s_cbranch_scc1 poll{n}_ok
    s_add_u32 s{sSPIN}, s{sSPIN}, 1
    s_cmp_ge_u32 s{sSPIN}, {cfg.spin_max}
    s_cbranch_scc1 poll{n}_ok
    s_sleep {cfg.poll_sleep}
    s_branch poll{n}
    """)
    a.label(f"poll{n}_ok")


vA = [10, 11, 12]; vXe, vXo, vQW = 13, 14, 15
vQR, vKE, vKO, vVA, vOS, vOL, vF1 = 160, 161, 162, [163, 164, 165, 166], 167, 168, 169
vCA = [[220, 221, 222, 223, 224], [225, 226, 227, 228, 229]]; vCB = [230, 231]; vPS, vPH, vF2, vCL = 232, 233, 234, 235
vW = [220, 221, 222]; vXL = [223, 224, 225]; vKA = [226, 227, 228]; vKB = [229, 230, 231]; vV = [232, 233, 234]
vK0 = [235, 236, 237]; vCP = [238, 239, 240]
vWO = [241, 242, 243, 244, 245]; vOR, vDL, vDO, vP1, vP2, vPF = 246, 247, 248, 249, 250, 251
vONE = 252
vOP = 170
vF2L = 171


def prologue(a, cfg):
    a.raw(kernel_header(KN))
    if cfg.stamps:
        a(f"s_memtime s[{sSTAMP}:{sSTAMP+1}]")
        a(f"s_memrealtime s[{sSTAMP+2}:{sSTAMP+3}]")
    a(f"""
    s_cmp_ge_u32 s2, 256
    s_cbranch_scc1 L_end
    s_load_dwordx16 s[4:19], s[0:1], 0
    v_lshrrev_b32 v1, 6, v0
    v_and_b32 v0, 63, v0
    v_readfirstlane_b32 s{sWAVE}, v1
    s_and_b32 s{sG}, s2, 7
    s_lshr_b32 s{sT0}, s2, 3
    s_lshr_b32 s{sB}, s{sT0}, 2
    s_and_b32 s{sJ}, s{sT0}, 3
    s_lshl_b32 s{sH}, s{sG}, 2
    s_add_u32 s{sH}, s{sH}, s{sJ}
    s_lshl_b32 s{sBH}, s{sB}, 5
    s_add_u32 s{sBH}, s{sBH}, s{sH}
    s_lshl_b32 s{sINB}, s{sBH}, 11
    s_add_u32 s{sINB}, s{sINB}, {cfg.ws_in}
    s_cmp_ge_u32 s{sWAVE}, 4
    s_cbranch_scc1 L_loaderA
    """)
    if cfg.prefetch_code:
        a(f"s_getpc_b64 s[{sT2}:{sT2+1}]")
        a.label("L_pc")
        a(f"""
        s_sub_u32 s{sT2}, s{sT2}, L_pc-{KN}
        s_subb_u32 s{sT2+1}, s{sT2+1}, 0
        s_lshl_b32 s{sT0}, s{sWAVE}, 13
        v_lshlrev_b32 v2, 7, v0
        v_add_u32 v2, s{sT0}, v2
        v_min_u32 v2, L_end-{KN}, v2
        global_load_dword v253, v2, s[{sT2}:{sT2+1}]
        """)


def addrB(a, cfg):
    a.c("phase B addresses")
    a(f"""
    v_lshrrev_b32 v2, 4, v0                  ; kq
    v_and_b32 v5, 15, v0                     ; m / n
    s_mul_i32 s{sT2}, s{sWAVE}, 6144
    v_lshlrev_b32 v6, 4, v0
    v_add_u32 v{vQR}, s{sT2}, v6
    v_lshrrev_b32 v7, 1, v5
    v_xor_b32 v7, v7, v2
    v_mul_u32_u24 v8, 384, v5
    v_lshl_add_u32 v8, v7, 4, v8
    v_add_u32 v{vKE}, {L_K}, v8
    v_xor_b32 v{vKO}, 64, v{vKE}
    v_lshrrev_b32 v7, 2, v5                  ; r
    v_lshl_add_u32 v7, v2, 2, v7             ; 4kq + r
    v_mul_u32_u24 v8, 384, v7
    v_and_b32 v3, 3, v0                      ; c
    v_lshl_add_u32 v8, v3, 3, v8
    v_add_u32 v8, {L_V}, v8
    v_bfe_u32 v7, v7, 1, 2                   ; h
    """)
    for i in range(4):
        a(f"v_xor_b32 v3, {i}, v7")
        a(f"v_lshl_add_u32 v{vVA[i]}, v3, 5, v8")
    a(f"""
    s_lshl_b32 s{sT2}, s{sB}, 3
    s_add_u32 s{sT2}, s{sT2}, s{sG}
    s_mul_i32 s{sT2}, s{sT2}, 24
    s_mul_i32 s{sT3}, s{sJ}, 6
    s_add_u32 s{sT2}, s{sT2}, s{sT3}
    s_mul_i32 s{sT2}, s{sT2}, 6144
    s_lshl_b32 s{sT3}, s{sWAVE}, 10
    s_add_u32 s{sT2}, s{sT2}, s{sT3}
    v_add_u32 v{vOS}, s{sT2}, v6
    v_add_u32 v{vOL}, s{sT3}, v6
    s_lshl_b32 s{sT2}, s{sJ}, 11
    s_sub_u32 s{sT2}, s{sINB}, s{sT2}
    s_add_u32 s{sT2}, s{sT2}, 1024
    s_mul_i32 s{sT3}, s{sJ}, 24
    s_add_u32 s{sT2}, s{sT2}, s{sT3}
    s_lshl_b32 s{sT3}, s{sWAVE}, 2
    s_add_u32 s{sT2}, s{sT2}, s{sT3}
    v_and_b32 v3, 3, v0
    v_lshlrev_b32 v3, 11, v3
    v_add_u32 v{vF1}, s{sT2}, v3
    v_mov_b32 v{vONE}, 1
    """)


def h1_flag(a, cfg, n):
    a(f"""
    s_mov_b64 exec, 15
    s_cmp_lg_u32 s{sFAST}, 0
    s_cbranch_scc1 L_f1fast{n}
    """)
    a(f"buffer_store_dword v{vONE}, v{vF1}, s[{rWS}:{rWS+3}], 0 offen sc0 sc1")
    a(f"s_branch L_f1done{n}")
    a.label(f"L_f1fast{n}")
    a.vmem(f"buffer_store_dword v{vONE}, v{vF1}, s[{rWS}:{rWS+3}], 0 offen", "flag")
    a.label(f"L_f1done{n}")
    a("s_mov_b64 exec, -1")


def computeA(a, cfg):
    ACC = 16
    def acc(T, t): return ACC + (T * 6 + t) * 4
    SETA = [88, 124]; SETB = [100, 136]
    a(f"s_mov_b32 s{sROLE}, 0")
    a.c("phase A addresses: v2=kq v3=r v4=c v5=n")
    a(f"""
    v_lshrrev_b32 v2, 4, v0
    v_bfe_u32 v3, v0, 2, 2
    v_and_b32 v4, 3, v0
    v_and_b32 v5, 15, v0
    v_lshlrev_b32 v6, 3, v2
    v_add_u32 v6, v6, v3                     ; k = 8kq + r
    v_mul_u32_u24 v6, 384, v6
    v_lshl_add_u32 v6, v4, 3, v6             ; k*384 + 8c
    v_lshrrev_b32 v7, 1, v3
    v_and_b32 v8, 1, v2
    v_lshl_or_b32 v7, v8, 1, v7              ; h(k)
    s_mul_i32 s{sT0}, s{sWAVE}, 3
    """)
    for T in range(3):
        a(f"""
        s_add_u32 s{sT1}, s{sT0}, {T}
        v_xor_b32 v8, s{sT1}, v7
        v_lshl_add_u32 v{vA[T]}, v8, 5, v6
        """)
    a(f"""
    v_lshrrev_b32 v6, 1, v5                  ; (n>>1)&7
    v_xor_b32 v6, v6, v2
    v_lshlrev_b32 v6, 4, v6
    v_lshl_add_u32 v6, v5, 7, v6
    v_add_u32 v{vXe}, {L_X}, v6
    v_xor_b32 v{vXo}, 64, v{vXe}
    v_lshrrev_b32 v6, 1, v2
    v_lshlrev_b32 v6, 8, v6
    v_lshl_add_u32 v6, v5, 4, v6
    v_and_b32 v7, 1, v2
    v_lshl_add_u32 v6, v7, 3, v6
    s_mul_i32 s{sT0}, s{sWAVE}, 1536
    v_add_u32 v{vQW}, s{sT0}, v6
    """)
    addrB(a, cfg)
    a.c("phase C addresses")
    a(f"""
    s_and_b32 s{sI}, s{sWAVE}, 1
    s_lshr_b32 s{sJQ}, s{sWAVE}, 1
    v_lshrrev_b32 v2, 4, v0                  ; kq
    v_bfe_u32 v3, v0, 2, 2                   ; r
    v_and_b32 v4, 3, v0                      ; c
    v_lshl_add_u32 v6, v2, 2, v3             ; 4kq + r
    v_mul_u32_u24 v6, 320, v6
    v_lshl_add_u32 v6, v4, 3, v6
    v_add_u32 v6, {L_WO}, v6
    v_and_b32 v7, 1, v2
    s_mul_i32 s{sT0}, s{sI}, 5
    """)
    for T in range(5):
        a(f"""
        s_add_u32 s{sT1}, s{sT0}, {T}
        v_xor_b32 v8, s{sT1}, v7
        v_lshl_add_u32 v{vCA[0][T]}, v8, 5, v6
        v_add_u32 v{vCA[1][T]}, 40960, v{vCA[0][T]}
        """)
    a(f"""
    s_mul_i32 s{sT0}, s{sJQ}, 3072
    v_lshlrev_b32 v6, 4, v0
    v_add_u32 v{vCB[0]}, s{sT0}, v6
    v_add_u32 v{vCB[1]}, {L_OR}, v{vCB[0]}
    s_lshl_b32 s{sT0}, s{sB}, 2
    s_add_u32 s{sT0}, s{sT0}, s{sJ}
    s_lshl_b32 s{sT0}, s{sT0}, 3
    s_add_u32 s{sT0}, s{sT0}, s{sG}
    s_lshl_b32 s{sT0}, s{sT0}, 2
    s_add_u32 s{sT0}, s{sT0}, s{sWAVE}
    s_lshl_b32 s{sT0}, s{sT0}, 13
    s_add_u32 s{sT0}, s{sT0}, {cfg.ws_p}
    v_add_u32 v{vPS}, s{sT0}, v6
    v_mov_b32 v{vPH}, v6
    s_lshl_b32 s{sT0}, s{sB}, 5
    s_lshl_b32 s{sT1}, s{sWAVE}, 3
    s_add_u32 s{sT0}, s{sT0}, s{sT1}
    s_add_u32 s{sT0}, s{sT0}, s{sJ}
    s_lshl_b32 s{sT0}, s{sT0}, 11
    s_lshl_b32 s{sT1}, s{sG}, 7
    s_add_u32 s{sT0}, s{sT0}, s{sT1}
    s_add_u32 s{sT0}, s{sT0}, {cfg.ws_in}
    v_and_b32 v3, 1, v0
    v_lshlrev_b32 v3, 13, v3
    v_add_u32 v{vF2}, s{sT0}, v3
    """)
    wait_kernarg(a, cfg)
    srd(a, rWS, sWS, WS_BYTES)
    if cfg.pretouch:
        a(f"""
        s_cmp_lg_u32 s{sWAVE}, 1
        s_cbranch_scc1 L_notouch
        """)
        srd(a, rK, sK, KV_BYTES); srd(a, rV, sV, KV_BYTES); srd(a, rWO, sWO, W_BYTES); srd(a, rOUT, sOUT, OUT_BYTES)
        a(f"""
        s_mov_b64 exec, 3
        v_mul_u32_u24 v2, 36860, v0
        s_mul_i32 s{sT0}, s{sBH}, 36864
        buffer_load_dword v253, v2, s[{rK}:{rK+3}], s{sT0} offen nt
        buffer_load_dword v253, v2, s[{rV}:{rV+3}], s{sT0} offen nt
        v_mul_u32_u24 v2, 983036, v0
        s_mul_i32 s{sT0}, s{sG}, 983040
        buffer_load_dword v253, v2, s[{rWO}:{rWO+3}], s{sT0} offen nt
        buffer_load_dword v253, v2, s[{rOUT}:{rOUT+3}], 0 offen nt
        buffer_load_dword v253, v{vOS}, s[{rWS}:{rWS+3}], 0 offen nt
        buffer_load_dword v253, v{vPS}, s[{rWS}:{rWS+3}], 0 offen nt
        s_mov_b64 exec, -1
        """)
        a.label("L_notouch")
    stamp(a, cfg, 1)

    def reads(s):
        st = s & 1
        wo = L_W + (s % 4) * 12288
        xo = ((s >> 1) % 3) * 12288
        vx = vXo if s & 1 else vXe
        R = []
        def ra(T):
            R.append((f"ds_read_b64_tr_b16 {vr(SETA[st]+4*T, 2)}, v{vA[T]} offset:{wo}", ("A", s, T)))
            R.append((f"ds_read_b64_tr_b16 {vr(SETA[st]+4*T+2, 2)}, v{vA[T]} offset:{wo+1536}", ("A", s, T)))
        ra(0)
        for t in range(6):
            R.append((f"ds_read_b128 {vr(SETB[st]+4*t)}, v{vx} offset:{xo + t*2048}", ("B", s, t)))
        ra(1); ra(2)
        return R

    a("s_barrier   ; P")
    stamp(a, cfg, 2)
    for ins, tag in reads(0): a.ds(ins, tag)
    for s in range(20):
        a.wait_lg_all()
        if s < 19:
            a(f"s_barrier   ; B{s}")
        R = reads(s + 1) if s < 19 else []
        st = s & 1
        m = 0
        for T in range(3):
            for t in range(6):
                a(mfma(acc(T, t), SETA[st] + 4 * T, SETB[st] + 4 * t, first=(s == 0)))
                if m < len(R): a.ds(*R[m])
                m += 1
        if s in (4, 9, 14): stamp(a, cfg, 3 + (s - 4) // 5)
    stamp(a, cfg, 6)
    a.c("Q -> bf16 -> LDS (fragment-major)")
    for T in range(3):
        for t in range(6):
            d = acc(T, t)
            tmp = 88 + ((T * 6 + t) % 8) * 2
            a(f"v_cvt_pk_bf16_f32 v{tmp}, v{d}, v{d+1}")
            a(f"v_cvt_pk_bf16_f32 v{tmp+1}, v{d+2}, v{d+3}")
            a.ds(f"ds_write_b64 v{vQW}, {vr(tmp, 2)} offset:{L_Q + 512*T + 6144*t}", "qw")
    a.wait_lg_all()
    a("s_barrier   ; Q")
    if cfg.prio: a(f"s_setprio {cfg.prio[0]}")
    a("s_branch L_phaseB")


def dma(a, vaddr, rs, soff, ldsoff, tag, base, pol=""):
    a(f"s_add_u32 m0, s{base}, {ldsoff}")
    if isinstance(soff, str):
        so = soff
        a("s_nop 0")
    else:
        a(f"s_mov_b32 s{sT0}, {soff}")
        so = f"s{sT0}"
    a.vmem(f"buffer_load_dwordx4 v{vaddr}, s[{rs}:{rs+3}], {so} offen {pol} lds", tag)


def ld_wo_pair(a, cfg, p, both):
    slot = L_WO + (p % 4) * 20480
    if both:
        for e in range(2):
            a(f"s_add_u32 s{sT3}, s{sWK}, {e*40960}")
            for i in range(5):
                dma(a, vWO[i], rWO, f"s{sT3}", slot + e * 10240 + i * 1024, ("WO", p), sWM0, cfg.polWO)
    else:
        a(f"s_add_u32 s{sT3}, s{sWK}, s{sOK+2}")
        for i in range(0 if cfg.skip_wo else 5):
            dma(a, vWO[i], rWO, f"s{sT3}", slot + i * 1024, ("WO", p), sOK + 3, cfg.polWO)
    a(f"""
    s_add_u32 s{sWK}, s{sWK}, 81920
    s_cmp_eq_u32 s{sWK}, {12*81920}
    s_cselect_b32 s{sWK}, 0, s{sWK}
    """)

def ld_o_pair(a, cfg, p):
    slot = L_OR + ((p - 3) % 3) * 12288
    a(f"s_add_u32 m0, s{sOM0}, {slot}")
    a("s_nop 0")
    for i in range(0 if cfg.skip_o else 3):
        a.vmem(f"buffer_load_dwordx4 v{vOR}, s[{rWS}:{rWS+3}], s{sOK} offen offset:{i*1024} {cfg.polO} lds", ("O", p))
    a(f"""
    s_add_u32 s{sOK}, s{sOK}, 12288
    s_cmp_eq_u32 s{sOK}, {12*12288}
    s_cselect_b32 s{sOK}, 0, s{sOK}
    """)


def loaderA(a, cfg):
    a.label("L_loaderA")
    a.reset()
    if cfg.stamps:
        a(f"s_memtime s[{sSTAMP+4}:{sSTAMP+5}]")
    a(f"s_mov_b32 s{sROLE}, 1")
    a(f"s_sub_u32 s{sLW}, s{sWAVE}, 4")
    if cfg.pre_wx:
        a.c("L2 prefetch of this XCD's share of wq and x: one dword per 128-byte line, k-major")
        a(f"""
        s_mul_i32 s{sT0}, s{sLW}, 60
        v_min_u32 v2, 59, v0
        v_add_u32 v2, s{sT0}, v2
        v_lshlrev_b32 v2, 5, v2
        s_lshr_b32 s{sT0}, s2, 3
        v_add_u32 v2, s{sT0}, v2               ; L in [0,7680)
        v_mov_b32 v6, 5462
        v_mul_lo_u32 v3, v2, v6
        v_lshrrev_b32 v3, 16, v3               ; L/12
        v_mul_u32_u24 v4, 12, v3
        v_sub_u32 v4, v2, v4
        v_mul_u32_u24 v3, 12288, v3
        v_lshl_add_u32 v3, v4, 7, v3
        s_mul_i32 s{sT0}, s{sG}, 1536
        v_add_u32 v8, s{sT0}, v3
        v_lshrrev_b32 v7, 6, v2
        v_mul_u32_u24 v7, 5462, v7
        v_lshrrev_b32 v7, 16, v7               ; L/768
        v_mul_u32_u24 v4, 768, v7
        v_sub_u32 v4, v2, v4
        v_mul_u32_u24 v4, 1280, v4
        v_lshl_add_u32 v9, v7, 7, v4           ; x line
        """)
        wait_kernarg(a, cfg)
        srd(a, rWQ, sWQ, W_BYTES)
        srd(a, rX, sX, X_BYTES)
        a(f"buffer_load_dword v253, v8, s[{rWQ}:{rWQ+3}], 0 offen {cfg.polPW}")
        a(f"buffer_load_dword v253, v9, s[{rX}:{rX+3}], 0 offen {cfg.polPX}")
    a(f"s_mul_i32 s{sT0}, s{sLW}, {8*12288}")
    a(f"s_mul_i32 s{sT1}, s{sH}, 384")
    a(f"s_add_u32 s{sT0}, s{sT0}, s{sT1}")
    a(f"s_and_b32 s{sT1}, s{sLW}, 1")
    a(f"s_lshl_b32 s{sT1}, s{sT1}, 2")
    for i in range(3):
        a(f"""
        v_add_u32 v2, {64*i}, v0
        v_mul_u32_u24 v3, 2731, v2
        v_lshrrev_b32 v{vK0[i]}, 16, v3
        v_mul_u32_u24 v4, 24, v{vK0[i]}
        v_sub_u32 v{vCP[i]}, v2, v4
        v_and_b32 v5, 2, v{vK0[i]}
        v_or_b32 v5, s{sT1}, v5
        v_xor_b32 v5, v5, v{vCP[i]}
        v_mul_u32_u24 v6, 12288, v{vK0[i]}
        v_lshl_add_u32 v6, v5, 4, v6
        v_add_u32 v{vW[i]}, s{sT0}, v6
        """)
    a(f"""
    s_mul_i32 s{sT2}, s{sB}, 96
    s_mul_i32 s{sT3}, s{sLW}, 24
    s_add_u32 s{sT2}, s{sT2}, s{sT3}
    s_mul_i32 s{sT2}, s{sT2}, 1280
    v_lshrrev_b32 v2, 3, v0
    v_mul_u32_u24 v2, 1280, v2
    v_and_b32 v3, 7, v0
    v_lshrrev_b32 v4, 4, v0
    v_xor_b32 v3, v3, v4
    v_xor_b32 v3, s{sT1}, v3
    v_lshl_add_u32 v{vXL[0]}, v3, 4, v2
    v_add_u32 v{vXL[0]}, s{sT2}, v{vXL[0]}
    v_xor_b32 v3, 4, v3
    v_lshl_add_u32 v{vXL[1]}, v3, 4, v2
    s_add_u32 s{sT3}, s{sT2}, {8*1280}
    v_add_u32 v{vXL[1]}, s{sT3}, v{vXL[1]}
    v_add_u32 v{vXL[2]}, {16*1280}, v{vXL[0]}
    s_mul_i32 s{sM0B}, s{sLW}, 3072
    s_mul_i32 s{sT2}, s{sB}, {cfg.rot[0]}
    s_mul_i32 s{sT3}, s{sJ}, {cfg.rot[1]}
    s_add_u32 s{sT2}, s{sT2}, s{sT3}
    s_add_u32 s{sT2}, s{sT2}, 2
    s_lshr_b32 s{sT2}, s{sT2}, 2
    s_cmp_ge_u32 s{sT2}, 20
    s_cselect_b32 s{sT3}, 20, 0
    s_sub_u32 s{sT2}, s{sT2}, s{sT3}
    s_cmp_ge_u32 s{sT2}, 10
    s_cselect_b32 s{sT3}, 10, 0
    s_sub_u32 s{sT2}, s{sT2}, s{sT3}
    s_mul_i32 s{sKW}, s{sT2}, {64*12288}
    s_lshl_b32 s{sKX}, s{sT2}, 7
    """)
    if not cfg.pre_wx:
        wait_kernarg(a, cfg)
        srd(a, rWQ, sWQ, W_BYTES)
        srd(a, rX, sX, X_BYTES)
    if cfg.stamps:
        a("s_waitcnt lgkmcnt(0)")
        a(f"v_writelane_b32 v255, s{sSTAMP+4}, 27")
        stamp(a, cfg, 29)

    def ldW(s):
        for i in range(3): dma(a, vW[i], rWQ, f"s{sKW}", L_W + (s % 4) * 12288 + i * 1024, ("W", s), sM0B, cfg.polW)
        a(f"""
        s_add_u32 s{sKW}, s{sKW}, {32*12288}
        s_cmp_eq_u32 s{sKW}, {640*12288}
        s_cselect_b32 s{sKW}, 0, s{sKW}
        """)
    def ldX(m):
        for i in range(3): dma(a, vXL[i], rX, f"s{sKX}", L_X + (m % 3) * 12288 + i * 1024, ("X", m), sM0B, cfg.polX)
        a(f"""
        s_add_u32 s{sKX}, s{sKX}, 128
        s_cmp_eq_u32 s{sKX}, 1280
        s_cselect_b32 s{sKX}, 0, s{sKX}
        """)
    def ldPF():
        a.vmem(f"buffer_load_dword v253, v{vPF}, s[{rWO}:{rWO+3}], 0 offen {cfg.polPF}", "pf")
    def ldK(i):
        i1, i0 = divmod(i, 3)
        dma(a, (vKB if i1 & 1 else vKA)[i0], rK, i1 * 3072, L_K + i * 1024, "K", sKVB, cfg.polKV)
    def ldV(i):
        i1, i0 = divmod(i, 3)
        dma(a, vV[i0], rV, i1 * 3072, L_V + i * 1024, "V", sKVB, cfg.polKV)

    ldW(0); ldX(0)
    srd(a, rWS, sWS, WS_BYTES)
    srd(a, rDBG, sDBG, 256)
    a.c("wave 7: clear this workgroup's inbox")
    a(f"""
    s_cmp_lg_u32 s{sWAVE}, 7
    s_cbranch_scc1 L_noclr
    v_lshlrev_b32 v2, 4, v0
    v_mov_b32 v4, 0
    v_mov_b32 v5, 0
    v_mov_b32 v6, 0
    v_mov_b32 v7, 0
    buffer_store_dwordx4 v[4:7], v2, s[{rWS}:{rWS+3}], s{sINB} offen sc0 sc1
    s_mov_b64 exec, 0xff
    buffer_store_dwordx4 v[4:7], v2, s[{rWS}:{rWS+3}], s{sINB} offen offset:1024 sc0 sc1
    s_mov_b64 exec, -1
    """)
    a.label("L_noclr")
    ldW(1)
    srd(a, rK, sK, KV_BYTES)
    srd(a, rV, sV, KV_BYTES)
    srd(a, rWO, sWO, W_BYTES)
    srd(a, rOUT, sOUT, OUT_BYTES)
    a(f"""
    s_mul_i32 s{sKVB}, s{sLW}, 9216
    s_mul_i32 s{sT2}, s{sBH}, 36864
    s_add_u32 s{sT2}, s{sT2}, s{sKVB}
    """)
    for i in range(3):
        a(f"""
        v_mul_u32_u24 v6, 384, v{vK0[i]}
        v_add_u32 v6, s{sT2}, v6
        v_lshrrev_b32 v3, 1, v{vK0[i]}
        v_xor_b32 v4, v3, v{vCP[i]}
        v_xor_b32 v4, s{sT1}, v4
        v_lshl_add_u32 v{vKA[i]}, v4, 4, v6
        v_xor_b32 v4, 4, v4
        v_lshl_add_u32 v{vKB[i]}, v4, 4, v6
        v_lshlrev_b32 v3, 1, v3
        v_xor_b32 v4, v3, v{vCP[i]}
        v_lshl_add_u32 v{vV[i]}, v4, 4, v6
        """)
    ldW(2); ldX(1); ldW(3); ldX(2)
    addrB(a, cfg)
    a.c("phase C / D loader addresses")
    a(f"""
    s_and_b32 s{sT1}, s{sLW}, 1
    s_mul_i32 s{sWM0}, s{sT1}, 5120
    s_mul_i32 s{sT1}, s{sT1}, 320
    s_mul_i32 s{sT2}, s{sG}, {768*1280}
    s_mul_i32 s{sT3}, s{sJ}, 320
    s_add_u32 s{sT2}, s{sT2}, s{sT3}
    """)
    for i in range(5):
        a(f"""
        v_add_u32 v2, s{sT1}, v0
        v_add_u32 v2, {64*i}, v2
        v_mul_u32_u24 v3, 3277, v2
        v_lshrrev_b32 v3, 16, v3            ; row = t/20
        v_mul_u32_u24 v4, 20, v3
        v_sub_u32 v4, v2, v4                ; cp
        v_lshrrev_b32 v5, 1, v3
        v_and_b32 v5, 2, v5
        v_xor_b32 v4, v4, v5
        v_mul_u32_u24 v3, 1280, v3
        v_lshl_add_u32 v3, v4, 4, v3
        v_add_u32 v{vWO[i]}, s{sT2}, v3
        """)
    a(f"""
    s_mul_i32 s{sWK}, s{sJ}, {3*81920}
    s_lshr_b32 s{sT1}, s{sLW}, 1
    s_mul_i32 s{sOK+2}, s{sT1}, 40960
    s_mul_i32 s{sOK+3}, s{sT1}, 10240
    s_add_u32 s{sOK+3}, s{sOK+3}, s{sWM0}
    s_add_u32 s{sT1}, s{sJ}, 1
    s_and_b32 s{sT1}, s{sT1}, 3
    s_mul_i32 s{sOK}, s{sT1}, {3*12288}
    s_mul_i32 s{sOM0}, s{sLW}, 3072
    s_lshl_b32 s{sT1}, s{sB}, 3
    s_add_u32 s{sT1}, s{sT1}, s{sG}
    s_mul_i32 s{sT1}, s{sT1}, 147456
    s_add_u32 s{sT1}, s{sT1}, s{sOM0}
    s_add_u32 s{sT1}, s{sT1}, {cfg.ws_o}
    v_lshlrev_b32 v7, 4, v0
    v_add_u32 v{vOR}, s{sT1}, v7
    v_min_u32 v2, 23, v0
    v_lshlrev_b32 v2, 2, v2
    s_add_u32 s{sT1}, s{sINB}, 1024
    v_add_u32 v{vP1}, s{sT1}, v2
    v_min_u32 v2, 7, v0
    v_max_u32 v2, {1 if cfg.own_lds else 0}, v2
    v_add_u32 v2, s{sG}, v2
    v_and_b32 v2, 7, v2
    v_lshlrev_b32 v3, 7, v2
    v_add_u32 v{vP2}, s{sINB}, v3
    s_lshl_b32 s{sT1}, s{sB}, 2
    s_add_u32 s{sT1}, s{sT1}, s{sJ}
    s_mul_i32 s{sT1}, s{sT1}, 30720
    s_mul_i32 s{sT2}, s{sG}, 983040
    s_add_u32 s{sT1}, s{sT1}, s{sT2}
    s_and_b32 s{sT2}, s{sLW}, {1 if cfg.pf_step is None else 3}
    s_mul_i32 s{sT2}, s{sT2}, {15360 if cfg.pf_step is None else 7680}
    s_add_u32 s{sT1}, s{sT1}, s{sT2}
    v_min_u32 v2, 59, v0
    v_lshlrev_b32 v2, 7, v2
    v_add_u32 v{vPF}, s{sT1}, v2
    s_lshl_b32 s{sT1}, s{sB}, 3
    s_add_u32 s{sT1}, s{sT1}, s{sG}
    s_lshl_b32 s{sT1}, s{sT1}, 2
    s_add_u32 s{sT1}, s{sT1}, s{sJ}
    s_mul_i32 s{sT1}, s{sT1}, 36864
    s_and_b32 s{sT2}, s{sLW}, 1
    s_mul_i32 s{sT2}, s{sT2}, 18432
    s_add_u32 s{sT1}, s{sT1}, s{sT2}
    s_add_u32 s{sT1}, s{sT1}, {cfg.ws_o}
    v_min_u32 v2, 47, v0
    v_lshlrev_b32 v2, 7, v2
    v_add_u32 v{vOP}, s{sT1}, v2
    s_and_b32 s{sT0}, s{sG}, 1
    s_lshl_b32 s{sT0}, s{sT0}, 2
    s_add_u32 s{sU}, s{sT0}, s{sLW}
    s_lshl_b32 s{sT2}, s{sB}, 2
    s_add_u32 s{sT2}, s{sT2}, s{sJ}
    s_lshl_b32 s{sT2}, s{sT2}, 5
    s_lshr_b32 s{sT1}, s{sG}, 1
    s_add_u32 s{sT2}, s{sT2}, s{sT1}
    s_lshl_b32 s{sT2}, s{sT2}, 3
    s_add_u32 s{sT2}, s{sT2}, s{sU}
    s_lshl_b32 s{sT2}, s{sT2}, 10
    s_add_u32 s{sT2}, s{sT2}, {cfg.ws_p}
    v_lshlrev_b32 v3, 4, v0
    v_add_u32 v{vDL}, s{sT2}, v3            ; + src*32768
    s_bfe_u32 s{sT0}, s{sG}, 0x10001        ; i
    s_lshr_b32 s{sT1}, s{sG}, 2             ; jq
    s_mul_i32 s{sT1}, s{sT1}, 48
    s_mul_i32 s{sT2}, s{sB}, 96
    s_add_u32 s{sT1}, s{sT1}, s{sT2}
    s_lshr_b32 s{sT2}, s{sU}, 1             ; t (u<6), 3 for u = 6,7
    s_cmp_eq_u32 s{sU}, 6
    s_cselect_b32 s{sT2}, 0, s{sT2}
    s_cmp_eq_u32 s{sU}, 7
    s_cselect_b32 s{sT2}, 2, s{sT2}
    s_lshl_b32 s{sT2}, s{sT2}, 4
    s_add_u32 s{sT1}, s{sT1}, s{sT2}
    s_mul_i32 s{sT1}, s{sT1}, 1280
    s_and_b32 s{sT2}, s{sU}, 1
    s_lshl_b32 s{sT2}, s{sT2}, 6
    s_mul_i32 s{sT3}, s{sT0}, 192           ; (80+16) columns * 2B * i
    s_add_u32 s{sT2}, s{sT2}, s{sT3}
    s_lshl_b32 s{sT3}, s{sT0}, 5
    s_add_u32 s{sT3}, s{sT3}, 128           ; (64 + 16 i) * 2B
    s_cmp_ge_u32 s{sU}, 6
    s_cselect_b32 s{sT2}, s{sT3}, s{sT2}
    s_add_u32 s{sT1}, s{sT1}, s{sT2}
    s_mul_i32 s{sT2}, s{sJ}, 320
    s_add_u32 s{sT1}, s{sT1}, s{sT2}
    v_and_b32 v2, 15, v0
    v_mul_u32_u24 v2, 1280, v2
    v_lshrrev_b32 v3, 4, v0
    v_lshl_add_u32 v2, v3, 3, v2
    v_add_u32 v{vDO}, s{sT1}, v2
    s_mov_b32 s{sDN}, 32
    s_cmp_eq_u32 s{sU}, 6
    s_cselect_b32 s{sDN}, {16*1280}, s{sDN}
    s_cmp_eq_u32 s{sU}, 7
    s_cselect_b32 s{sDN}, 16, s{sDN}
    """)
    stamp(a, cfg, 1)
    a.wait_vm(("W", 0), ("X", 0))
    a("s_barrier   ; P")
    stamp(a, cfg, 2)
    a.wait_vm(("W", 1), ("X", 0))
    a.c("wave 7: inbox cleared (its store is older than W1) -> arrive on the group word in d_debug")
    a(f"""
    s_cmp_lg_u32 s{sWAVE}, 7
    s_cbranch_scc1 L_noarr
    s_getreg_b32 s{sT1}, hwreg(HW_REG_XCC_ID, 0, 4)
    s_lshl_b32 s{sT2}, s{sJ}, 2
    s_add_u32 s{sT2}, s{sT2}, 4
    s_lshl_b32 s{sT1}, s{sT1}, s{sT2}
    s_add_u32 s{sT1}, s{sT1}, 1
    s_lshl_b32 s{sT2}, s{sB}, 3
    s_add_u32 s{sT2}, s{sT2}, s{sG}
    s_lshl_b32 s{sT2}, s{sT2}, 2
    v_mov_b32 v2, s{sT1}
    v_mov_b32 v3, s{sT2}
    s_mov_b64 exec, 1
    buffer_atomic_add v2, v3, s[{rDBG}:{rDBG+3}], 0 offen sc1
    s_mov_b64 exec, -1
    """)
    a.label("L_noarr")
    variants = cfg.kv_variants or [(cfg.k_sched, cfg.v_sched)]
    nv = len(variants)
    if nv > 1:
        a(f"s_lshr_b32 s{sT1}, s2, {cfg.kv_sel_shift}")
        if nv == 3:
            a(f"s_mul_i32 s{sT2}, s{sT1}, 86")
            a(f"s_lshr_b32 s{sT2}, s{sT2}, 8")
            a(f"s_mul_i32 s{sT2}, s{sT2}, 3")
            a(f"s_sub_u32 s{sT1}, s{sT1}, s{sT2}")
        else:
            a(f"s_and_b32 s{sT1}, s{sT1}, {nv-1}")
        for v in range(1, nv):
            a(f"s_cmp_eq_u32 s{sT1}, {v}")
            a(f"s_cbranch_scc1 L_kvvar{v}")
    vm0 = list(a.vm)
    tails = []
    for v, var in enumerate(variants):
        ksch, vsch = var[0], var[1]
        pfs = var[2] if len(var) > 2 else cfg.pf_step
        if v: a.label(f"L_kvvar{v}")
        a.vm = list(vm0)
        for s in range(19):
            a.wait_vm(("W", s + 1), ("X", (s + 1) >> 1))
            a(f"s_barrier   ; B{s}")
            pre = [i for i, ss in enumerate(ksch) if ss == s], [i for i, ss in enumerate(vsch) if ss == s]
            if s + 4 < 20: ldW(s + 4)
            if s & 1 and (s >> 1) + 3 < 10: ldX((s >> 1) + 3)
            if pfs == s and cfg.wo_prefetch: ldPF()
            for i in pre[0]: ldK(i)
            for i in pre[1]: ldV(i)
            if s in (4, 9, 14): stamp(a, cfg, 3 + (s - 4) // 5)
        if nv > 1:
            a.wait_vm("K")
            tails.append(list(a.vm))
            if v < nv - 1: a("s_branch L_kvjoin")
    if nv > 1:
        a.label("L_kvjoin")
        a.vm = max(tails, key=len)
    a.wait_vm("K")
    stamp(a, cfg, 6)
    a.c("wave 7: check that the 32 workgroups of this batch have cleared their inboxes; same-XCD test")
    a(f"""
    s_cmp_lg_u32 s{sWAVE}, 7
    s_cbranch_scc1 L_nohs
    v_and_b32 v2, 7, v0
    v_lshlrev_b32 v2, 2, v2
    s_lshl_b32 s{sT3}, s{sB}, 5
    """)
    save = list(a.vm)
    def chk():
        a(f"""
        v_and_b32 v4, 7, v3
        v_cmp_eq_u32 vcc, 4, v4
        s_cmp_eq_u64 vcc, -1
        """)
    poll(a, cfg, 2, rDBG, f"s{sT3}", 3, chk)
    a(f"""
    v_readlane_b32 s{sT1}, v3, s{sG}
    s_bfe_u32 s{sT1}, s{sT1}, 0x100004
    s_and_b32 s{sT2}, s{sT1}, 15
    s_mul_i32 s{sT2}, s{sT2}, 0x1111
    s_cmp_eq_u32 s{sT1}, s{sT2}
    s_cselect_b32 s{sT1}, {0 if cfg.force_slow else 1}, 0
    v_mov_b32 v2, {L_FLAG}
    v_mov_b32 v3, s{sT1}
    ds_write_b32 v2, v3
    s_waitcnt lgkmcnt(0)
    """)
    a.label("L_nohs")
    a.vm = save
    a("s_barrier   ; Q")
    if cfg.prio: a(f"s_setprio {cfg.prio[2]}")
    a(f"""
    s_cmp_lt_u32 s{sWAVE}, 6
    s_cbranch_scc1 L_phaseB
    """)
    a.c("waves 6,7 during attention: wo prefetch into L2 and the first four wo pairs")
    a.vm = ["V"]
    if cfg.inbox_pre:
        a.vmem(f"buffer_load_dword v253, v{vP1}, s[{rWS}:{rWS+3}], 0 offen sc1", "ib")
    if cfg.pf2:
        a.c("second touch with the default policy keeps the prefetched wo lines in L2")
        a(f"s_lshr_b32 s{sT1}, s{sLW}, 1")
        a(f"s_mul_i32 s{sT1}, s{sT1}, 15360")
        a(f"s_sub_u32 s{sT1}, 0, s{sT1}")
        a(f"v_add_u32 v2, s{sT1}, v{vPF}")
        a(f"s_and_b32 s{sT1}, s{sLW}, 1")
        a(f"s_mul_i32 s{sT1}, s{sT1}, 7680")
        a(f"v_add_u32 v2, s{sT1}, v2")
        a.vmem(f"buffer_load_dword v253, v2, s[{rWO}:{rWO+3}], 0 offen", "pf")
        a(f"s_mov_b32 s{sT0}, 7680")
        a.vmem(f"buffer_load_dword v253, v2, s[{rWO}:{rWO+3}], s{sT0} offen", "pf")
    if cfg.o_preread:
        for i in range(3):
            a(f"s_mov_b32 s{sT0}, {i*6144}")
            a.vmem(f"buffer_load_dword v253, v{vOP}, s[{rWS}:{rWS+3}], s{sT0} offen {cfg.polOP}", "op")
    def pf_late():
        if cfg.pf_rounds:
            R = cfg.pf_rounds; n = 120 // R
            a(f"v_min_u32 v2, {n-1}, v0")
            a(f"v_min_u32 v3, 59, v0")
            a(f"v_sub_u32 v2, v2, v3")
            a(f"v_lshlrev_b32 v2, 7, v2")
            a(f"v_add_u32 v2, v2, v{vPF}")
            for r in range(R + 1):
                if r < R:
                    a(f"s_mov_b32 s{sT0}, {r*n*128}")
                    a.vmem(f"buffer_load_dword v253, v2, s[{rWO}:{rWO+3}], s{sT0} offen nt", ("pfn", r))
                if r > 0:
                    a.wait_vm(("pfn", r - 1))
                    a(f"s_mov_b32 s{sT0}, {(r-1)*n*128}")
                    a.vmem(f"buffer_load_dword v253, v2, s[{rWO}:{rWO+3}], s{sT0} offen", "pf")
                if cfg.pf_serial and r < R and r > 0: pass
        elif cfg.wo_prefetch and cfg.pf_step is None:
            a.vmem(f"buffer_load_dword v253, v{vPF}, s[{rWO}:{rWO+3}], 0 offen {cfg.polPF}", "pf")
            a(f"s_mov_b32 s{sT0}, 7680")
            a.vmem(f"buffer_load_dword v253, v{vPF}, s[{rWO}:{rWO+3}], s{sT0} offen {cfg.polPF}", "pf")
    if cfg.pf_at == 'Q': pf_late()
    ld_wo_pair(a, cfg, 0, True); ld_wo_pair(a, cfg, 1, True)
    a.wait_vm("V")
    stamp(a, cfg, 8)
    a("s_barrier   ; V")
    if cfg.pf_at == 'V': pf_late()
    ld_wo_pair(a, cfg, 2, True); ld_wo_pair(a, cfg, 3, True)
    if cfg.pf_at == 'V2': pf_late()
    if cfg.diag_w7:
        stamp(a, cfg, 10)
        a("s_waitcnt vmcnt(0)")
        stamp(a, cfg, 11)
    a.wait_vm(("WO", 0))
    stamp(a, cfg, 12)
    a("s_barrier   ; O1")
    a("s_branch L_loaderC")
    return list(a.vm)


def phaseB(a, cfg):
    a.label("L_phaseB")
    a.reset()
    QF = 88; KF = [112, 136]; S = 16; P = 40; O = 172; VF = 88; ONES = 52; SUM = 56
    stamp(a, cfg, 7)
    def kread(ks, kt):
        v = vKO if ks & 1 else vKE
        a.ds(f"ds_read_b128 {vr(KF[ks&1]+4*kt)}, v{v} offset:{kt*6144 + (ks>>1)*128}", ("K", ks, kt))
    a.ds(f"ds_read_b128 {vr(QF)}, v{vQR} offset:{L_Q}", ("Q", 0))
    for kt in range(6): kread(0, kt)
    for ks in range(1, 6):
        a.ds(f"ds_read_b128 {vr(QF+4*ks)}, v{vQR} offset:{L_Q + ks*1024}", ("Q", ks))
    a(f"v_mov_b32 v6, {L_FLAG}")
    a.ds("ds_read_b32 v7, v6", "fast")
    for i in range(4): a(f"v_mov_b32 v{ONES+i}, 0x3f803f80")
    for ks in range(6):
        for kt in range(6):
            if kt % cfg.s_batch == 0:
                a.wait_lg(("Q", ks), *[("K", ks, k2) for k2 in range(kt, min(6, kt + cfg.s_batch))], *(["fast"] if (ks, kt) == (1, 0) else []))
            a(mfma(S + 4 * kt, KF[ks & 1] + 4 * kt, QF + 4 * ks, first=(ks == 0)))
            if ks < 5: kread(ks + 1, kt)
    a(f"v_readfirstlane_b32 s{sFAST}, v7")
    stamp(a, cfg, 8)
    a.c("waves 4,5 meet the V barrier before their softmax, waves 0-3 after it (they run one phase apart on a shared SIMD)")
    if cfg.prio:
        a(f"""
        s_cmp_lg_u32 s{sROLE}, 0
        s_cbranch_scc1 L_nopr
        s_setprio {cfg.prio[1]}
        """)
        a.label("L_nopr")
    if not cfg.v_late:
        a(f"""
        s_cmp_eq_u32 s{sROLE}, 0
        s_cbranch_scc1 L_nov1
        s_waitcnt vmcnt(0)
        s_barrier   ; V
        """)
        a.label("L_nov1")
    a.c("softmax")
    M, T1, L = 2, 3, 4
    a(f"v_max3_f32 v{M}, v{S}, v{S+1}, v{S+2}")
    a(f"v_max3_f32 v{T1}, v{S+3}, v{S+4}, v{S+5}")
    for i in range(6, 22, 4):
        a(f"v_max3_f32 v{M}, v{M}, v{S+i}, v{S+i+1}")
        a(f"v_max3_f32 v{T1}, v{T1}, v{S+i+2}, v{S+i+3}")
    a(f"v_max3_f32 v{M}, v{M}, v{S+22}, v{S+23}")
    a(f"v_max_f32 v{M}, v{M}, v{T1}")
    for sw in ("v_permlane16_swap_b32", "v_permlane32_swap_b32"):
        a(f"v_mov_b32 v{T1}, v{M}")
        a(f"{sw} v{M}, v{T1}")
        a(f"v_max_f32 v{M}, v{M}, v{T1}")
    a(f"v_mul_f32 v{M}, {f32hex(-SCALE)}, v{M}")
    for i in range(24 + 3):
        if i < 24: a(f"v_fmamk_f32 v{S+i}, v{S+i}, {f32hex(SCALE)}, v{M}")
        if 1 <= i <= 24: a(f"v_exp_f32 v{S+i-1}, v{S+i-1}")
        if i >= 4 and i % 2 == 0 and (i - 4) // 2 < 12:
            j = (i - 4) // 2
            a(f"v_cvt_pk_bf16_f32 v{P+j}, v{S+2*j}, v{S+2*j+1}")
    stamp(a, cfg, 10)
    if not cfg.v_late:
        a(f"""
        s_cmp_lg_u32 s{sROLE}, 0
        s_cbranch_scc1 L_nov2
        s_barrier   ; V
        """)
        a.label("L_nov2")
    else:
        a("s_waitcnt vmcnt(0)")
        a("s_barrier   ; V")
    stamp(a, cfg, 9)
    def vread(s, Td, slot):
        for e in range(2):
            a.ds(f"ds_read_b64_tr_b16 {vr(VF + 4*slot + 2*e, 2)}, v{vVA[Td & 3]} offset:{(Td>>2)*128 + s*12288 + e*6144}", ("V", s, Td))
    order = [(s, Td) for s in range(3) for Td in range(12)]
    NV = cfg.nv
    for i in range(NV): vread(*order[i], i % 18)
    a.c("row sums through the matrix pipe: ones x P")
    for s in range(3): a(mfma(SUM, ONES, P + 4 * s, first=(s == 0)))
    OB = 88
    epi = []
    def epi_pair(Pp):
        d = O + 8 * Pp; o = OB + 4 * Pp
        r = []
        for i in range(4):
            r.append(f"v_mul_f32 v{d+2*i}, v{d+2*i}, v{L}")
            r.append(f"v_mul_f32 v{d+2*i+1}, v{d+2*i+1}, v{L}")
        for i in range(4): r.append(f"v_cvt_pk_bf16_f32 v{o+i}, v{d+2*i}, v{d+2*i+1}")
        r.append(("ds", f"ds_write_b128 v{vOL}, {vr(o)} offset:{L_OWN + Pp*6144}"))
        return r
    def emit(x):
        if isinstance(x, tuple): a.ds(x[1], "ow")
        else: a(x)
    for i, (s, Td) in enumerate(order):
        if i % cfg.pv_batch == 0:
            a.wait_lg(*[("V",) + order[i2] for i2 in range(i, min(36, i + cfg.pv_batch))])
        a(mfma(O + 4 * Td, VF + 4 * (i % 18), P + 4 * s, first=(s == 0)))
        if i + NV < len(order): vread(*order[i + NV], (i + NV) % 18)
        if i == 8: a(f"v_rcp_f32 v{L}, v{SUM}")
        if s == 2 and Td >= 5 and Td % 2 == 1: epi += epi_pair((Td - 5) // 2)
        if s == 2:
            for _ in range(cfg.epi_rate):
                if epi: emit(epi.pop(0))
    stamp(a, cfg, 11)
    for Pp in (4, 5): epi += epi_pair(Pp)
    for x in epi: emit(x)
    stamp(a, cfg, 27)
    if cfg.o_store_late:
        a.wait_lg_all()
        a("s_barrier   ; O1")
    a(f"""
    s_cmp_lg_u32 s{sFAST}, 0
    s_cbranch_scc1 L_ofast
    """)
    for fast in range(2):
        if fast:
            a("s_branch L_odone")
            a.label("L_ofast")
        for Pp in range(0 if cfg.skip_ostore else 6):
            a(f"s_mov_b32 s{sT0}, {cfg.ws_o + Pp*6144}")
            a(f"buffer_store_dwordx4 {vr(OB + 4*Pp)}, v{vOS}, s[{rWS}:{rWS+3}], s{sT0} offen {cfg.o_fast_pol if fast else 'sc0 sc1'}")
    a.label("L_odone")
    stamp(a, cfg, 28)
    if not cfg.o_store_late:
        a.wait_lg_all()
        stamp(a, cfg, 12)
        a("s_barrier   ; O1")
    a(f"""
    s_cmp_eq_u32 s{sROLE}, 0
    s_cbranch_scc1 L_computeC
    s_waitcnt vmcnt(0)
    """)
    h1_flag(a, cfg, 0)
    a(f"""
    s_mul_i32 s{sT0}, s{sJ}, 3
    s_add_u32 s{sT0}, s{sT0}, 4
    s_cmp_ge_u32 s{sT0}, 12
    s_cselect_b32 s{sT1}, 12, 0
    s_sub_u32 s{sT0}, s{sT0}, s{sT1}
    s_mul_i32 s{sWK}, s{sT0}, 81920
    """)
    a.c("falls through into the phase C loader")


def loaderC(a, cfg, hist):
    a.label("L_loaderC")
    a.reset()
    if cfg.prio: a("s_setprio 0")
    a.vm = hist
    stamp(a, cfg, 13)
    def sib_mask(k):
        a(f"""
        s_add_u32 s{sT1}, s{sJ}, {k}
        s_and_b32 s{sT1}, s{sT1}, 3
        s_mul_i32 s{sT1}, s{sT1}, 6
        s_lshl_b32 s{sMSK}, 63, s{sT1}
        """)
    for p in range(11):
        if p in (1, 2): stamp(a, cfg, 21 + p)
        if p == 2:
            a.c("wait for the first sibling's O tile (all three when not gated)")
            if cfg.h1_gate:
                sib_mask(1)
                def chk():
                    a(f"v_cmp_eq_u32 vcc, 1, v3")
                    a(f"s_mov_b32 s{sRDY}, vcc_lo")
                    a(f"s_and_b32 s{sT1}, vcc_lo, s{sMSK}")
                    a(f"s_cmp_eq_u32 s{sT1}, s{sMSK}")
            else:
                def chk():
                    a(f"v_cmp_eq_u32 vcc, 1, v3")
                    a("s_cmp_eq_u64 vcc, -1")
            poll(a, cfg, vP1, rWS, "0", 3, chk)
            if cfg.stamps: a(f"v_writelane_b32 v255, s{sSPIN}, 30")
            stamp(a, cfg, 14)
            for pp in (3, 4, 5): ld_o_pair(a, cfg, pp)
        a.wait_vm(("WO", p + 1), ("O", p + 1))
        if p in (2, 3): stamp(a, cfg, 22 + p)
        a(f"s_barrier   ; C{p}")
        if p + 4 < 12: ld_wo_pair(a, cfg, p + 4, False)
        if cfg.h1_gate and p in (3, 6):
            k = 2 if p == 3 else 3
            sib_mask(k)
            a(f"s_and_b32 s{sT1}, s{sRDY}, s{sMSK}")
            a(f"s_cmp_eq_u32 s{sT1}, s{sMSK}")
            a(f"s_cbranch_scc1 L_sib{k}")
            save = list(a.vm)
            poll(a, cfg, vP1, rWS, "0", 3, chk)
            a.vm = save
            a.label(f"L_sib{k}")
        if p >= 3 and p + 3 < 12: ld_o_pair(a, cfg, p + 3)
        if p in (2, 5, 8): stamp(a, cfg, 15 + (p - 2) // 3)
    stamp(a, cfg, 18)
    a.c("phase D")
    A = 48
    a("s_barrier   ; PD")
    stamp(a, cfg, 26)
    if cfg.own_lds:
        a(f"s_lshl_b32 s{sT0}, s{sLW}, 10")
        a(f"v_lshlrev_b32 v2, 4, v0")
        a(f"v_add_u32 v2, s{sT0}, v2")
        a.ds(f"ds_read_b128 v[16:19], v2 offset:{L_OWN}", "own")
    if cfg.h2_delay:
        a(f"s_sleep {cfg.h2_delay}")
    def chk2():
        a(f"v_cmp_eq_u32 vcc, 1, v3")
        a("s_cmp_eq_u64 vcc, -1")
    if cfg.one_poller:
        a(f"s_cmp_lg_u32 s{sWAVE}, 4")
        a("s_cbranch_scc1 L_nopoll2")
    poll(a, cfg, vP2, rWS, "0", 3, chk2)
    if cfg.one_poller:
        a.label("L_nopoll2")
        a("s_barrier   ; PE")
    if cfg.stamps: a(f"v_writelane_b32 v255, s{sSPIN}, 31")
    stamp(a, cfg, 19)
    a(f"""
    s_cmp_eq_u32 s{sU}, 7
    s_cselect_b32 exec_hi, 0, -1
    """)
    a.vm = []
    for k in range(1 if cfg.own_lds else 0, 8):
        a(f"""
        s_add_u32 s{sT0}, s{sG}, {k}
        s_and_b32 s{sT0}, s{sT0}, 7
        s_lshl_b32 s{sT0}, s{sT0}, 15
        """)
        a.vmem(f"buffer_load_dwordx4 {vr(16+4*k)}, v{vDL}, s[{rWS}:{rWS+3}], s{sT0} offen sc1", ("p", k))
    a(f"s_mov_b32 s{sT1}, 0xffff0000")
    for k in range(8):
        if k == 0 and cfg.own_lds: a.wait_lg_all()
        a.wait_vm(("p", k))
        for i in range(4):
            s = 16 + 4 * k + i
            if k == 0:
                a(f"v_lshlrev_b32 v{A+2*i}, 16, v{s}")
                a(f"v_and_b32 v{A+2*i+1}, s{sT1}, v{s}")
            else:
                a(f"v_lshlrev_b32 v{60+2*i}, 16, v{s}")
                a(f"v_and_b32 v{61+2*i}, s{sT1}, v{s}")
                a(f"v_add_f32 v{A+2*i}, v{A+2*i}, v{60+2*i}")
                a(f"v_add_f32 v{A+2*i+1}, v{A+2*i+1}, v{61+2*i}")
    stamp(a, cfg, 20)
    for i in range(4):
        a(f"v_cvt_pk_bf16_f32 v{16+i}, v{A+2*i}, v{A+2*i+1}")
    a(f"buffer_store_dwordx2 v[16:17], v{vDO}, s[{rOUT}:{rOUT+3}], 0 offen")
    a(f"buffer_store_dwordx2 v[18:19], v{vDO}, s[{rOUT}:{rOUT+3}], s{sDN} offen")
    a("s_mov_b64 exec, -1")
    a("s_branch L_fin")


def computeC(a, cfg):
    a.label("L_computeC")
    a.reset()
    if cfg.prio: a(f"s_setprio {cfg.prio[3]}")
    ACC = 16
    def acc(T, t): return ACC + (T * 3 + t) * 4
    SETA = [76, 96]; SETB = [116, 128]
    def reads(u):
        st = u & 1
        p = u >> 1
        hi, sl = divmod(p % 4, 2)
        so = sl * 20480 + (u & 1) * 10240
        if u < 6:
            vb, bo = vCB[0], L_OWN + u * 6144
        else:
            vb, bo = vCB[1], ((p - 3) % 3) * 12288 + (u & 1) * 6144
        R = []
        def ra(T):
            R.append((f"ds_read_b64_tr_b16 {vr(SETA[st]+4*T, 2)}, v{vCA[hi][T]} offset:{so}", ("A", u, T)))
            R.append((f"ds_read_b64_tr_b16 {vr(SETA[st]+4*T+2, 2)}, v{vCA[hi][T]} offset:{so+5120}", ("A", u, T)))
        ra(0)
        for t in range(3):
            R.append((f"ds_read_b128 {vr(SETB[st]+4*t)}, v{vb} offset:{bo + t*1024}", ("B", u, t)))
        for T in range(1, 5): ra(T)
        return R
    stamp(a, cfg, 13)
    for ins, tag in reads(0): a.ds(ins, tag)
    for u in range(24):
        if u & 1 and u < 23:
            a.wait_lg_all()
            a(f"s_barrier   ; C{u >> 1}")
        R = reads(u + 1) if u < 23 else []
        st = u & 1
        m = 0
        for T in range(5):
            for t in range(3):
                a.wait_lg(("A", u, T), ("B", u, t))
                a(mfma(acc(T, t), SETA[st] + 4 * T, SETB[st] + 4 * t, first=(u == 0)))
                if m < len(R): a.ds(*R[m])
                m += 1
        if u == cfg.h1_flag_step:
            stamp(a, cfg, 22)
            a("s_waitcnt vmcnt(0)")
            stamp(a, cfg, 23)
            h1_flag(a, cfg, 1)
        if u == cfg.wbl2_step:
            a(f"""
            s_lshr_b32 s{sT0}, s2, 3
            s_lshl_b32 s{sT0}, s{sT0}, 2
            s_add_u32 s{sT0}, s{sT0}, s{sWAVE}
            s_cmp_lg_u32 s{sT0}, 0
            s_cbranch_scc1 L_nowb
            buffer_wbl2 sc1
            """)
            a.label("L_nowb")
        if u in (2, 3): stamp(a, cfg, 22 + u)
        if u in (5, 11, 17): stamp(a, cfg, 15 + (u - 5) // 6)
    stamp(a, cfg, 18)
    a.c("partials, 8 units per wave: 6 tile pairs, the odd tile of q tiles 0|1, the odd tile of q tile 2 (32 lanes)")
    a(f"""
    s_cmp_lg_u32 s{sI}, 0
    s_cbranch_scc1 L_st1
    """)
    def cv(dst, d):
        a(f"v_cvt_pk_bf16_f32 v{dst}, v{d}, v{d+1}")
        a(f"v_cvt_pk_bf16_f32 v{dst+1}, v{d+2}, v{d+3}")
    U = 76
    for i in range(2):
        if i == 1:
            a("s_branch L_cvdone")
            a.label("L_st1")
        pairs = [(0, 1), (2, 3)] if i == 0 else [(1, 2), (3, 4)]
        odd = 4 if i == 0 else 0
        for t in range(3):
            for pi, (Ta, Tb) in enumerate(pairs):
                o = U + (2 * t + pi) * 4
                cv(o, acc(Ta, t)); cv(o + 2, acc(Tb, t))
        cv(U + 24, acc(odd, 0)); cv(U + 26, acc(odd, 1))
        cv(U + 28, acc(odd, 2))
    a.label("L_cvdone")
    a(f"v_permlane32_swap_b32 v{U+28}, v{U+30}")
    a(f"v_permlane32_swap_b32 v{U+29}, v{U+31}")
    a(f"s_lshr_b32 s{sT1}, s{sG}, 1")
    a(f"s_and_b32 s{sT2}, s{sG}, 1")
    for half in range(2):
        if cfg.own_lds:
            a(f"""
            s_cmp_lg_u32 s{sT1}, s{sWAVE}
            s_cbranch_scc1 L_rem{half}
            s_cmp_lg_u32 s{sT2}, {half}
            s_cbranch_scc1 L_rem{half}
            """)
            for k in range(4):
                a(f"ds_write_b128 v{vPH}, {vr(U + (4*half + k)*4)} offset:{L_OWN + k*1024}")
            a(f"s_branch L_remdone{half}")
            a.label(f"L_rem{half}")
        for k in range(4):
            u = 4 * half + k
            if u == 7: a("s_mov_b32 exec_hi, 0")
            a(f"s_mov_b32 s{sT0}, {u*1024}")
            a(f"buffer_store_dwordx4 {vr(U + u*4)}, v{vPS}, s[{rWS}:{rWS+3}], s{sT0} offen sc0 sc1")
            if u == 7: a("s_mov_b32 exec_hi, -1")
        if cfg.own_lds: a.label(f"L_remdone{half}")
    stamp(a, cfg, 19)
    a("s_waitcnt lgkmcnt(0)")
    a("s_barrier   ; PD")
    a("s_waitcnt vmcnt(0)")
    stamp(a, cfg, 20)
    a(f"""
    s_mov_b64 exec, 3
    buffer_store_dword v{vONE}, v{vF2}, s[{rWS}:{rWS+3}], 0 offen sc0 sc1
    s_mov_b64 exec, -1
    """)


def build(cfg, header=""):
    _lbl[0] = 0
    a = Asm()
    if header: a.raw(header.rstrip("\n"))
    a.raw(f"; @launch grid=(256,1,1) block=(512,1,1) lds={LDS_BYTES}")
    a.raw('.amdgcn_target "amdgcn-amd-amdhsa--gfx950"\n.text')
    prologue(a, cfg)
    computeA(a, cfg)
    hist = loaderA(a, cfg)
    phaseB(a, cfg)
    loaderC(a, cfg, hist)
    computeC(a, cfg)
    a.label("L_fin")
    stamp(a, cfg, 21)
    if cfg.dbg_stamps:
        wg, lst = cfg.dbg_stamps
        srd(a, rDBG, sDBG, 256)
        a(f"s_cmp_lg_u32 s2, {wg}")
        a("s_cbranch_scc1 L_nodbg")
        a(f"v_readlane_b32 s{sT2}, v255, 0")
        for w in sorted(set(x[0] for x in lst)):
            a(f"s_cmp_lg_u32 s{sWAVE}, {w}")
            a(f"s_cbranch_scc1 L_nodbg{w}")
            a("s_mov_b64 exec, 1")
            for i, (ww, idx) in enumerate(lst):
                if ww != w: continue
                a(f"""
                v_readlane_b32 s{sT1}, v255, {idx}
                s_sub_u32 s{sT1}, s{sT1}, s{sT2}
                s_lshr_b32 s{sT1}, s{sT1}, 4
                s_min_u32 s{sT1}, s{sT1}, 4095
                s_lshl_b32 s{sT1}, s{sT1}, 20
                v_mov_b32 v2, s{sT1}
                v_mov_b32 v3, {i*4}
                buffer_atomic_add v2, v3, s[{rDBG}:{rDBG+3}], 0 offen sc1
                """)
            a("s_mov_b64 exec, -1")
            a.label(f"L_nodbg{w}")
        a.label("L_nodbg")
    if cfg.amp:
        w, ia, ib, A = cfg.amp
        a(f"""
        s_cmp_lg_u32 s{sWAVE}, {w}
        s_cbranch_scc1 L_noamp
        v_readlane_b32 s{sT0}, v255, {ia}
        v_readlane_b32 s{sT1}, v255, {ib}
        s_sub_u32 s{sT0}, s{sT1}, s{sT0}
        s_mul_i32 s{sT0}, s{sT0}, {A}
        s_memtime s[{sSTAMP}:{sSTAMP+1}]
        s_waitcnt lgkmcnt(0)
        s_add_u32 s{sT0}, s{sT0}, s{sSTAMP}
        """)
        a.label("L_amp")
        a(f"""
        s_memtime s[{sSTAMP}:{sSTAMP+1}]
        s_waitcnt lgkmcnt(0)
        s_sub_u32 s{sT1}, s{sSTAMP}, s{sT0}
        s_cmp_lt_i32 s{sT1}, 0
        s_cbranch_scc1 L_amp
        """)
        a.label("L_noamp")
    else:
        stamp_flush(a, cfg)
    a.label("L_end")
    a("s_endpgm")
    a.raw(kernel_desc(KN))
    return a.text()


def make(**kw):
    cfg = Cfg()
    for k, v in kw.items(): setattr(cfg, k, v)
    header = open("cdna_kernels/" + NAME + ".s.ref").read().split("; Override launch")[0]
    return build(cfg, header)


if __name__ == "__main__":
    kw = {}
    for kv in sys.argv[2:]:
        k, v = kv.split("=", 1)
        kw[k] = eval(v)
    open(sys.argv[1], "w").write(make(**kw))
```

```python
import sys, math, struct
from asmgen import *

NAME = "standalone__gqa_block_cached__near_ridge"
KN = NAME + "_kernel"

X_BYTES = 768 * 640 * 2
KV_BYTES = 8 * 32 * 96 * 192 * 2
W_BYTES = 640 * 6144 * 2
OUT_BYTES = 768 * 640 * 2
WS_BYTES = 268435456
SCALE = 192 ** -0.5 * math.log2(math.e)

def f32hex(x):
    return "0x%08x" % struct.unpack("<I", struct.pack("<f", x))[0]

sX, sK, sV, sWQ, sWO, sOUT, sDBG, sWS = 4, 6, 8, 10, 12, 14, 16, 18
sWAVE, sG, sB, sJ, sH, sBH = 20, 21, 22, 23, 24, 25
sFAST, sSPIN = 26, 27
rX, rWQ, rK, rV, rWS, rWO, rOUT, rDBG = 28, 32, 36, 40, 44, 48, 52, 68
sT0, sT1, sT2, sT3 = 56, 57, 58, 59
sLW, sM0B, sKVB = 60, 61, 63
sI, sJQ, sROLE = 64, 65, 66
sOB, sPS = 62, 67
sWK, sOM0, sOK, sINB, sWE, sWM = 73, 74, 75, 76, 77, 78
sSTAMP = 80
sKW, sKX, sWC, sOC, sU, sDN, sJ4 = 92, 93, 94, 95, 96, 97, 98

L_W, L_X, L_K, L_V, L_Q = 0, 49152, 86016, 122880, 0
L_FLAG = 159744
L_OWN, L_WO, L_OR = 0, 36864, 122880
LDS_BYTES = 163840


class Cfg:
    stamps = False
    stamp_only = None
    amp = None
    prefetch_code = True
    pretouch = True
    ws_o = 0xE000000
    ws_p = 0xF000000
    ws_in = 0xFC00000
    ws_stamp = 0x4000000
    polW = ""; polX = ""; polKV = "nt"; polWO = ""; polPF = ""; polO = "sc1"
    o_fast_pol = ""
    force_slow = False
    rot = (10, 10)
    k_sched = [12] * 9
    v_sched = [16] * 9
    kv_variants = None
    kv_sel_shift = 3
    wo_prefetch = True
    pf_at = 'V'
    staged = ()
    early = 1
    mid = 4
    late = 4
    wrot = False
    h1_flag_step = 0
    h2_delay = 16
    poll_sleep = 1
    spin_max = 400000
    fill_s = 1
    fill_pv = 5
    fill_last = 5
    pk_tail = True
    skip_o = False; skip_wo = False; skip_ostore = False
    prio_c = 0


def stamp(a, cfg, idx):
    if not cfg.stamps: return
    if cfg.stamp_only is not None and idx not in cfg.stamp_only: return
    a(f"""
    s_memtime s[{sSTAMP}:{sSTAMP+1}]
    s_waitcnt lgkmcnt(0)
    v_writelane_b32 v255, s{sSTAMP}, {idx}
    """)
    a.lg = []

def stamp_flush(a, cfg):
    a(f"""
    s_memrealtime s[{sSTAMP}:{sSTAMP+1}]
    s_waitcnt lgkmcnt(0)
    v_writelane_b32 v255, s{sSTAMP}, 33
    s_lshl_b32 s{sT0}, s2, 3
    s_add_u32 s{sT0}, s{sT0}, s{sWAVE}
    s_lshl_b32 s{sT0}, s{sT0}, 8
    s_add_u32 s{sT0}, s{sT0}, {cfg.ws_stamp}
    v_mbcnt_lo_u32_b32 v254, -1, 0
    v_mbcnt_hi_u32_b32 v254, -1, v254
    v_lshlrev_b32 v254, 2, v254
    buffer_store_dword v255, v254, s[{rWS}:{rWS+3}], s{sT0} offen
    """)

def wait_kernarg(a, cfg):
    a("s_waitcnt lgkmcnt(0)")
    if cfg.stamps:
        a(f"v_writelane_b32 v255, s{sSTAMP}, 0")
        a(f"v_writelane_b32 v255, s{sSTAMP+2}, 32")

def mfma(d, A, B, first=False):
    c = "0" if first else vr(d)
    return f"v_mfma_f32_16x16x32_bf16 {vr(d)}, {vr(A)}, {vr(B)}, {c}"

def mfma32(d, A, B, first=False):
    c = "0" if first else vr(d, 16)
    return f"v_mfma_f32_32x32x16_bf16 {vr(d, 16)}, {vr(A)}, {vr(B)}, {c}"

_lbl = [0]
def poll(a, cfg, vaddr, rs, soff, vtmp, check):
    _lbl[0] += 1
    n = _lbl[0]
    a(f"s_mov_b32 s{sSPIN}, 0")
    a.label(f"poll{n}")
    a(f"buffer_load_dword v{vtmp}, v{vaddr}, s[{rs}:{rs+3}], {soff} offen sc1")
    a.wait_vm_all()
    check()
    a(f"""
    s_cbranch_scc1 poll{n}_ok
    s_add_u32 s{sSPIN}, s{sSPIN}, 1
    s_cmp_ge_u32 s{sSPIN}, {cfg.spin_max}
    s_cbranch_scc1 poll{n}_ok
    s_sleep {cfg.poll_sleep}
    s_branch poll{n}
    """)
    a.label(f"poll{n}_ok")

def dma(a, vaddr, rs, soff, ldsoff, tag, base, pol=""):
    a(f"s_add_u32 m0, s{base}, {ldsoff}")
    if isinstance(soff, str):
        so = soff
        a("s_nop 0")
    else:
        a(f"s_mov_b32 s{sT0}, {soff}")
        so = f"s{sT0}"
    a.vmem(f"buffer_load_dwordx4 v{vaddr}, s[{rs}:{rs+3}], {so} offen {pol} lds", tag)


vA = [10, 11, 12]; vXe, vXo, vQW = 13, 14, 15
vK0c, vV0, vOL = 232, 233, 234
vCA0 = [235, 236, 237, 238, 239]; vL16, vF1, vF2 = 240, 241, 242
vCA1 = [140, 141, 142, 143, 144]; vCB = [145, 146]
vONE = 252
vW = [220, 221, 222]; vXL = [223, 224, 225]; vKA = [226, 227, 228]; vKB = [229, 230, 231]; vV = [232, 233, 234]
vK0 = [235, 236, 237]; vCP = [238, 239, 240]
vWO = [241, 242, 243, 244, 245]; vOR, vDL, vDO, vP1, vP2, vPF = 246, 247, 248, 249, 250, 251
vSW = [218, 219]
STG = 16


def prologue(a, cfg):
    a.raw(kernel_header(KN))
    if cfg.stamps:
        a(f"s_memtime s[{sSTAMP}:{sSTAMP+1}]")
        a(f"s_memrealtime s[{sSTAMP+2}:{sSTAMP+3}]")
    a(f"""
    s_cmp_ge_u32 s2, 256
    s_cbranch_scc1 L_end
    s_load_dwordx16 s[4:19], s[0:1], 0
    v_lshrrev_b32 v1, 6, v0
    v_and_b32 v0, 63, v0
    v_readfirstlane_b32 s{sWAVE}, v1
    s_and_b32 s{sG}, s2, 7
    s_lshr_b32 s{sT0}, s2, 3
    s_lshr_b32 s{sB}, s{sT0}, 2
    s_and_b32 s{sJ}, s{sT0}, 3
    s_lshl_b32 s{sH}, s{sG}, 2
    s_add_u32 s{sH}, s{sH}, s{sJ}
    s_lshl_b32 s{sBH}, s{sB}, 5
    s_add_u32 s{sBH}, s{sBH}, s{sH}
    s_lshl_b32 s{sINB}, s{sBH}, 11
    s_add_u32 s{sINB}, s{sINB}, {cfg.ws_in}
    s_cmp_lt_u32 s{sWAVE}, 4
    s_cbranch_scc1 L_computeA
    """)


def next_pair(a, cfg, p, sDst, sCnt, stride):
    if p + 1 >= 12: return
    if p + 1 < 4 or not cfg.wrot:
        a(f"""
        s_add_u32 s{sDst}, s{sDst}, {stride}
        s_cmp_eq_u32 s{sDst}, {12*stride}
        s_cselect_b32 s{sDst}, 0, s{sDst}
        """)
    else:
        a(f"""
        s_add_u32 s{sDst}, s{sJ4}, s{sCnt}
        s_cmp_ge_u32 s{sDst}, 12
        s_cselect_b32 s{sT0}, 12, 0
        s_sub_u32 s{sDst}, s{sDst}, s{sT0}
        s_mul_i32 s{sDst}, s{sDst}, {stride}
        s_add_u32 s{sCnt}, s{sCnt}, 1
        s_and_b32 s{sCnt}, s{sCnt}, 7
        """)

def ld_wo_pair(a, cfg, p):
    slot = L_WO + (p % 4) * 20480
    a(f"s_add_u32 s{sT3}, s{sWK}, s{sWE}")
    for i in range(0 if cfg.skip_wo else 5):
        if p in cfg.staged:
            d = STG + (cfg.staged.index(p) * 5 + i) * 4
            a.vmem(f"buffer_load_dwordx4 {vr(d)}, v{vWO[i]}, s[{rWO}:{rWO+3}], s{sT3} offen {cfg.polWO}", ("WO", p))
        else:
            dma(a, vWO[i], rWO, f"s{sT3}", slot + i * 1024, ("WO", p), sWM, cfg.polWO)
    next_pair(a, cfg, p, sWK, sWC, 81920)

def put_wo_pair(a, cfg, p):
    a.wait_vm(("WO", p))
    hi, sl = divmod(p % 4, 2)
    for i in range(0 if cfg.skip_wo else 5):
        d = STG + (cfg.staged.index(p) * 5 + i) * 4
        a.ds(f"ds_write_b128 v{vSW[hi]}, {vr(d)} offset:{sl*20480 + i*1024}", ("WOL", p))

def ld_o_pair(a, cfg, p):
    slot = L_OR + ((p - 3) % 3) * 12288
    a(f"s_add_u32 m0, s{sOM0}, {slot}")
    a("s_nop 0")
    for i in range(0 if cfg.skip_o else 3):
        a.vmem(f"buffer_load_dwordx4 v{vOR}, s[{rWS}:{rWS+3}], s{sOK} offen offset:{i*1024} {cfg.polO} lds", ("O", p))
    next_pair(a, cfg, p, sOK, sOC, 12288)


def loader(a, cfg):
    a.reset()
    a(f"s_mov_b32 s{sROLE}, 1")
    a(f"s_sub_u32 s{sLW}, s{sWAVE}, 4")
    a(f"s_mul_i32 s{sT0}, s{sLW}, {8*12288}")
    a(f"s_mul_i32 s{sT1}, s{sH}, 384")
    a(f"s_add_u32 s{sT0}, s{sT0}, s{sT1}")
    a(f"s_and_b32 s{sT1}, s{sLW}, 1")
    a(f"s_lshl_b32 s{sT1}, s{sT1}, 2")
    for i in range(3):
        a(f"""
        v_add_u32 v2, {64*i}, v0
        v_mul_u32_u24 v3, 2731, v2
        v_lshrrev_b32 v{vK0[i]}, 16, v3
        v_mul_u32_u24 v4, 24, v{vK0[i]}
        v_sub_u32 v{vCP[i]}, v2, v4
        v_and_b32 v5, 2, v{vK0[i]}
        v_or_b32 v5, s{sT1}, v5
        v_xor_b32 v5, v5, v{vCP[i]}
        v_mul_u32_u24 v6, 12288, v{vK0[i]}
        v_lshl_add_u32 v6, v5, 4, v6
        v_add_u32 v{vW[i]}, s{sT0}, v6
        """)
    a(f"""
    s_mul_i32 s{sT2}, s{sB}, 96
    s_mul_i32 s{sT3}, s{sLW}, 24
    s_add_u32 s{sT2}, s{sT2}, s{sT3}
    s_mul_i32 s{sT2}, s{sT2}, 1280
    v_lshrrev_b32 v2, 3, v0
    v_mul_u32_u24 v2, 1280, v2
    v_and_b32 v3, 7, v0
    v_lshrrev_b32 v4, 4, v0
    v_xor_b32 v3, v3, v4
    v_xor_b32 v3, s{sT1}, v3
    v_lshl_add_u32 v{vXL[0]}, v3, 4, v2
    v_add_u32 v{vXL[0]}, s{sT2}, v{vXL[0]}
    v_xor_b32 v3, 4, v3
    v_lshl_add_u32 v{vXL[1]}, v3, 4, v2
    s_add_u32 s{sT3}, s{sT2}, {8*1280}
    v_add_u32 v{vXL[1]}, s{sT3}, v{vXL[1]}
    v_add_u32 v{vXL[2]}, {16*1280}, v{vXL[0]}
    s_mul_i32 s{sM0B}, s{sLW}, 3072
    s_mul_i32 s{sT2}, s{sB}, {cfg.rot[0]}
    s_mul_i32 s{sT3}, s{sJ}, {cfg.rot[1]}
    s_add_u32 s{sT2}, s{sT2}, s{sT3}
    s_add_u32 s{sT2}, s{sT2}, 2
    s_lshr_b32 s{sT2}, s{sT2}, 2
    s_cmp_ge_u32 s{sT2}, 20
    s_cselect_b32 s{sT3}, 20, 0
    s_sub_u32 s{sT2}, s{sT2}, s{sT3}
    s_cmp_ge_u32 s{sT2}, 10
    s_cselect_b32 s{sT3}, 10, 0
    s_sub_u32 s{sT2}, s{sT2}, s{sT3}
    s_mul_i32 s{sKW}, s{sT2}, {64*12288}
    s_lshl_b32 s{sKX}, s{sT2}, 7
    """)
    assert (7 * cfg.rot[0] + 3 * cfg.rot[1] + 2) // 4 < 30
    wait_kernarg(a, cfg)
    srd(a, rWQ, sWQ, W_BYTES)
    srd(a, rX, sX, X_BYTES)
    stamp(a, cfg, 29)

    def ldW(s):
        for i in range(3): dma(a, vW[i], rWQ, f"s{sKW}", L_W + (s % 4) * 12288 + i * 1024, ("W", s), sM0B, cfg.polW)
        a(f"""
        s_add_u32 s{sKW}, s{sKW}, {32*12288}
        s_cmp_eq_u32 s{sKW}, {640*12288}
        s_cselect_b32 s{sKW}, 0, s{sKW}
        """)
    def ldX(m):
        for i in range(3): dma(a, vXL[i], rX, f"s{sKX}", L_X + (m % 3) * 12288 + i * 1024, ("X", m), sM0B, cfg.polX)
        a(f"""
        s_add_u32 s{sKX}, s{sKX}, 128
        s_cmp_eq_u32 s{sKX}, 1280
        s_cselect_b32 s{sKX}, 0, s{sKX}
        """)
    def ldK(i):
        i1, i0 = divmod(i, 3)
        dma(a, (vKB if i1 & 1 else vKA)[i0], rK, i1 * 3072, L_K + i * 1024, "K", sKVB, cfg.polKV)
    def ldV(i):
        i1, i0 = divmod(i, 3)
        dma(a, vV[i0], rV, i1 * 3072, L_V + i * 1024, "V", sKVB, cfg.polKV)

    ldW(0); ldX(0)
    srd(a, rWS, sWS, WS_BYTES)
    srd(a, rDBG, sDBG, 256)
    a.c("wave 7: clear this workgroup's inbox")
    a(f"""
    s_cmp_lg_u32 s{sWAVE}, 7
    s_cbranch_scc1 L_noclr
    v_lshlrev_b32 v2, 4, v0
    v_mov_b32 v4, 0
    v_mov_b32 v5, 0
    v_mov_b32 v6, 0
    v_mov_b32 v7, 0
    buffer_store_dwordx4 v[4:7], v2, s[{rWS}:{rWS+3}], s{sINB} offen sc0 sc1
    s_mov_b64 exec, 0xff
    buffer_store_dwordx4 v[4:7], v2, s[{rWS}:{rWS+3}], s{sINB} offen offset:1024 sc0 sc1
    s_mov_b64 exec, -1
    """)
    a.label("L_noclr")
    ldW(1)
    srd(a, rK, sK, KV_BYTES)
    srd(a, rV, sV, KV_BYTES)
    srd(a, rWO, sWO, W_BYTES)
    srd(a, rOUT, sOUT, OUT_BYTES)
    a(f"""
    s_mul_i32 s{sKVB}, s{sLW}, 9216
    s_mul_i32 s{sT2}, s{sBH}, 36864
    s_add_u32 s{sT2}, s{sT2}, s{sKVB}
    """)
    for i in range(3):
        a(f"""
        v_mul_u32_u24 v6, 384, v{vK0[i]}
        v_add_u32 v6, s{sT2}, v6
        v_lshrrev_b32 v3, 1, v{vK0[i]}
        v_xor_b32 v4, v3, v{vCP[i]}
        v_xor_b32 v4, s{sT1}, v4
        v_lshl_add_u32 v{vKA[i]}, v4, 4, v6
        v_xor_b32 v4, 4, v4
        v_lshl_add_u32 v{vKB[i]}, v4, 4, v6
        v_and_b32 v3, 1, v3
        v_lshlrev_b32 v3, 2, v3
        v_xor_b32 v4, v3, v{vCP[i]}
        v_lshl_add_u32 v{vV[i]}, v4, 4, v6
        """)
    ldW(2); ldX(1); ldW(3); ldX(2)
    a.c("phase C / D loader addresses")
    a(f"""
    s_and_b32 s{sT1}, s{sLW}, 1
    s_lshr_b32 s{sT2}, s{sLW}, 1
    s_mul_i32 s{sWE}, s{sT2}, 40960
    s_mul_i32 s{sWM}, s{sLW}, 5120
    s_mul_i32 s{sT1}, s{sT1}, 320
    s_mul_i32 s{sT2}, s{sG}, {768*1280}
    s_mul_i32 s{sT3}, s{sJ}, 320
    s_add_u32 s{sT2}, s{sT2}, s{sT3}
    """)
    for i in range(5):
        a(f"""
        v_add_u32 v2, s{sT1}, v0
        v_add_u32 v2, {64*i}, v2
        v_mul_u32_u24 v3, 3277, v2
        v_lshrrev_b32 v3, 16, v3            ; row = t/20
        v_mul_u32_u24 v4, 20, v3
        v_sub_u32 v4, v2, v4                ; cp
        v_lshrrev_b32 v5, 1, v3
        v_and_b32 v5, 2, v5
        v_xor_b32 v4, v4, v5
        v_mul_u32_u24 v3, 1280, v3
        v_lshl_add_u32 v3, v4, 4, v3
        v_add_u32 v{vWO[i]}, s{sT2}, v3
        """)
    a(f"""
    s_mul_i32 s{sWK}, s{sJ}, {3*81920}
    s_mul_i32 s{sJ4}, s{sJ}, 3
    s_add_u32 s{sJ4}, s{sJ4}, 4
    s_mov_b32 s{sWC}, s{sB}
    s_mov_b32 s{sOC}, s{sB}
    v_lshlrev_b32 v7, 4, v0
    s_add_u32 s{sT1}, s{sWM}, {L_WO}
    v_add_u32 v{vSW[0]}, s{sT1}, v7
    v_add_u32 v{vSW[1]}, 40960, v{vSW[0]}
    s_add_u32 s{sT1}, s{sJ}, 1
    s_and_b32 s{sT1}, s{sT1}, 3
    s_mul_i32 s{sOK}, s{sT1}, {3*12288}
    s_mul_i32 s{sOM0}, s{sLW}, 3072
    s_lshl_b32 s{sT1}, s{sB}, 3
    s_add_u32 s{sT1}, s{sT1}, s{sG}
    s_mul_i32 s{sT1}, s{sT1}, 147456
    s_add_u32 s{sT1}, s{sT1}, s{sOM0}
    s_add_u32 s{sT1}, s{sT1}, {cfg.ws_o}
    v_add_u32 v{vOR}, s{sT1}, v7
    v_min_u32 v2, 11, v0
    v_lshlrev_b32 v2, 2, v2
    s_add_u32 s{sT1}, s{sINB}, 1024
    v_add_u32 v{vP1}, s{sT1}, v2
    v_min_u32 v2, 7, v0
    v_max_u32 v2, 1, v2
    v_add_u32 v2, s{sG}, v2
    v_and_b32 v2, 7, v2
    v_lshlrev_b32 v3, 7, v2
    v_add_u32 v{vP2}, s{sINB}, v3
    s_lshr_b32 s{sT1}, s2, 3
    s_lshl_b32 s{sT1}, s{sT1}, 2
    s_add_u32 s{sT1}, s{sT1}, s{sLW}
    s_mul_i32 s{sT1}, s{sT1}, 7680
    s_mul_i32 s{sT2}, s{sG}, 983040
    s_add_u32 s{sT1}, s{sT1}, s{sT2}
    v_min_u32 v2, 59, v0
    v_lshlrev_b32 v2, 7, v2
    v_add_u32 v{vPF}, s{sT1}, v2
    s_and_b32 s{sT0}, s{sG}, 1
    s_lshl_b32 s{sT0}, s{sT0}, 2
    s_add_u32 s{sU}, s{sT0}, s{sLW}
    s_lshl_b32 s{sT2}, s{sB}, 2
    s_add_u32 s{sT2}, s{sT2}, s{sJ}
    s_lshl_b32 s{sT2}, s{sT2}, 5
    s_lshr_b32 s{sT1}, s{sG}, 1
    s_add_u32 s{sT2}, s{sT2}, s{sT1}
    s_lshl_b32 s{sT2}, s{sT2}, 3
    s_add_u32 s{sT2}, s{sT2}, s{sU}
    s_lshl_b32 s{sT2}, s{sT2}, 10
    s_add_u32 s{sT2}, s{sT2}, {cfg.ws_p}
    v_add_u32 v{vDL}, s{sT2}, v7            ; + src*32768
    s_bfe_u32 s{sT0}, s{sG}, 0x10001        ; i
    s_lshr_b32 s{sT1}, s{sG}, 2             ; jq
    s_mul_i32 s{sT1}, s{sT1}, 48
    s_mul_i32 s{sT2}, s{sB}, 96
    s_add_u32 s{sT1}, s{sT1}, s{sT2}
    s_lshr_b32 s{sT2}, s{sU}, 1             ; t (u<6)
    s_cmp_eq_u32 s{sU}, 6
    s_cselect_b32 s{sT2}, 0, s{sT2}
    s_cmp_eq_u32 s{sU}, 7
    s_cselect_b32 s{sT2}, 2, s{sT2}
    s_lshl_b32 s{sT2}, s{sT2}, 4
    s_add_u32 s{sT1}, s{sT1}, s{sT2}
    s_mul_i32 s{sT1}, s{sT1}, 1280
    s_and_b32 s{sT2}, s{sU}, 1
    s_lshl_b32 s{sT2}, s{sT2}, 6
    s_mul_i32 s{sT3}, s{sT0}, 192           ; (80+16) columns * 2B * i
    s_add_u32 s{sT2}, s{sT2}, s{sT3}
    s_lshl_b32 s{sT3}, s{sT0}, 5
    s_add_u32 s{sT3}, s{sT3}, 128           ; (64 + 16 i) * 2B
    s_cmp_ge_u32 s{sU}, 6
    s_cselect_b32 s{sT2}, s{sT3}, s{sT2}
    s_add_u32 s{sT1}, s{sT1}, s{sT2}
    s_mul_i32 s{sT2}, s{sJ}, 320
    s_add_u32 s{sT1}, s{sT1}, s{sT2}
    v_and_b32 v2, 15, v0
    v_mul_u32_u24 v2, 1280, v2
    v_lshrrev_b32 v3, 4, v0
    v_lshl_add_u32 v2, v3, 3, v2
    v_add_u32 v{vDO}, s{sT1}, v2
    s_mov_b32 s{sDN}, 32
    s_cmp_eq_u32 s{sU}, 6
    s_cselect_b32 s{sDN}, {16*1280}, s{sDN}
    s_cmp_eq_u32 s{sU}, 7
    s_cselect_b32 s{sDN}, 16, s{sDN}
    """)
    stamp(a, cfg, 1)
    a.wait_vm(("W", 0), ("X", 0))
    a("s_barrier   ; P")
    stamp(a, cfg, 2)
    a.wait_vm(("W", 1), ("X", 0))
    a.c("wave 7: inbox cleared (its stores are older than W1) -> arrive on the group word in d_debug")
    a(f"""
    s_cmp_lg_u32 s{sWAVE}, 7
    s_cbranch_scc1 L_noarr
    s_getreg_b32 s{sT1}, hwreg(HW_REG_XCC_ID, 0, 4)
    s_lshl_b32 s{sT2}, s{sJ}, 2
    s_add_u32 s{sT2}, s{sT2}, 4
    s_lshl_b32 s{sT1}, s{sT1}, s{sT2}
    s_add_u32 s{sT1}, s{sT1}, 1
    s_lshl_b32 s{sT2}, s{sB}, 3
    s_add_u32 s{sT2}, s{sT2}, s{sG}
    s_lshl_b32 s{sT2}, s{sT2}, 2
    v_mov_b32 v2, s{sT1}
    v_mov_b32 v3, s{sT2}
    s_mov_b64 exec, 1
    buffer_atomic_add v2, v3, s[{rDBG}:{rDBG+3}], 0 offen sc1
    s_mov_b64 exec, -1
    """)
    a.label("L_noarr")
    variants = cfg.kv_variants or [(cfg.k_sched, cfg.v_sched)]
    nv = len(variants)
    if nv > 1:
        a(f"s_lshr_b32 s{sT1}, s2, {cfg.kv_sel_shift}")
        a(f"s_and_b32 s{sT1}, s{sT1}, {nv-1}")
        for v in range(1, nv):
            a(f"s_cmp_eq_u32 s{sT1}, {v}")
            a(f"s_cbranch_scc1 L_kvvar{v}")
    vm0 = list(a.vm)
    for v, var in enumerate(variants):
        ksch, vsch = var[0], var[1]
        pfs = var[2] if len(var) > 2 else cfg.pf_at
        if v: a.label(f"L_kvvar{v}")
        a.vm = list(vm0)
        for s in range(19):
            a.wait_vm(("W", s + 1), ("X", (s + 1) >> 1))
            a(f"s_barrier   ; B{s}")
            if s + 4 < 20: ldW(s + 4)
            if s & 1 and (s >> 1) + 3 < 10: ldX((s >> 1) + 3)
            if cfg.wo_prefetch and pfs == s:
                a.vmem(f"buffer_load_dword v253, v{vPF}, s[{rWO}:{rWO+3}], 0 offen {cfg.polPF}", "pf")
            for i, ss in enumerate(ksch):
                if ss == s: ldK(i)
            for i, ss in enumerate(vsch):
                if ss == s: ldV(i)
            if s in (4, 9, 14): stamp(a, cfg, 3 + (s - 4) // 5)
        a.wait_vm("K")
        if v < nv - 1: a("s_branch L_kvjoin")
    if nv > 1: a.label("L_kvjoin")
    stamp(a, cfg, 6)
    a("s_barrier   ; Q")
    a.vm = ["V"]
    def pf():
        if cfg.wo_prefetch:
            a.vmem(f"buffer_load_dword v253, v{vPF}, s[{rWO}:{rWO+3}], 0 offen {cfg.polPF}", "pf")
    a.c("have the 32 workgroups of this batch cleared their inboxes?  (read now, looked at before the V barrier)")
    a(f"""
    v_and_b32 v2, 7, v0
    v_lshlrev_b32 v2, 2, v2
    s_lshl_b32 s{sSPIN}, s{sB}, 5
    v_add_u32 v2, s{sSPIN}, v2
    """)
    a.vmem(f"buffer_load_dword v3, v2, s[{rDBG}:{rDBG+3}], 0 offen sc1", "hs")
    if cfg.pf_at == "Q": pf()
    nxt = 0
    def issue_upto(n):
        nonlocal nxt
        while nxt < n:
            ld_wo_pair(a, cfg, nxt); nxt += 1
    for p in range(2, cfg.early): assert p in cfg.staged
    issue_upto(cfg.early)
    a.wait_vm("hs")
    def chk():
        a(f"""
        v_and_b32 v4, 7, v3
        v_cmp_eq_u32 vcc, 4, v4
        s_cmp_eq_u64 vcc, -1
        """)
    chk()
    a("s_cbranch_scc1 L_hsok")
    save = list(a.vm)
    poll(a, cfg, 2, rDBG, "0", 3, chk)
    a.vm = save
    a.label("L_hsok")
    a(f"""
    s_cmp_lg_u32 s{sWAVE}, 7
    s_cbranch_scc1 L_nohs
    v_readlane_b32 s{sT1}, v3, s{sG}
    s_bfe_u32 s{sT1}, s{sT1}, 0x100004
    s_and_b32 s{sT2}, s{sT1}, 15
    s_mul_i32 s{sT2}, s{sT2}, 0x1111
    s_cmp_eq_u32 s{sT1}, s{sT2}
    s_cselect_b32 s{sT1}, {0 if cfg.force_slow else 1}, 0
    v_mov_b32 v2, {L_FLAG}
    v_mov_b32 v3, s{sT1}
    ds_write_b32 v2, v3
    buffer_load_dword v253, v{vP1}, s[{rWS}:{rWS+3}], 0 offen sc1
    s_waitcnt lgkmcnt(0)
    """)
    a.label("L_nohs")
    stamp(a, cfg, 8)
    a("s_barrier   ; V")
    if cfg.pf_at == "V": pf()
    for p in (2, 3):
        if p in cfg.staged and p < nxt: put_wo_pair(a, cfg, p)
    issue_upto(max(4, cfg.mid))
    for p in (2, 3):
        if p in cfg.staged and not any(t == ("WOL", p) for t in a.lg) and p >= cfg.early: put_wo_pair(a, cfg, p)
    if cfg.pf_at == "V2": pf()
    stamp(a, cfg, 10)
    a.wait_vm(("WO", 0))
    stamp(a, cfg, 12)
    a("s_barrier   ; O1")
    stamp(a, cfg, 13)
    for p in range(nxt, cfg.late): assert p in cfg.staged
    issue_upto(cfg.late)
    def chk1():
        a(f"v_cmp_eq_u32 vcc, 1, v3")
        a("s_cmp_eq_u64 vcc, -1")
    for p in range(11):
        if p in (1, 2): stamp(a, cfg, 21 + p)
        if p == 2:
            a.c("wait for the siblings' O tiles")
            poll(a, cfg, vP1, rWS, "0", 3, chk1)
            if cfg.stamps: a(f"v_writelane_b32 v255, s{sSPIN}, 30")
            stamp(a, cfg, 14)
            for pp in (3, 4, 5): ld_o_pair(a, cfg, pp)
        a.wait_vm(("WO", p + 1), ("O", p + 1))
        a.wait_lg(("WOL", p + 1))
        if p in (2, 3): stamp(a, cfg, 22 + p)
        a(f"s_barrier   ; C{p}")
        if p + 4 < 12:
            issue_upto(p + 5)
            if p + 4 in cfg.staged: put_wo_pair(a, cfg, p + 4)
        if p >= 3 and p + 3 < 12: ld_o_pair(a, cfg, p + 3)
        if p in (2, 5, 8): stamp(a, cfg, 15 + (p - 2) // 3)
    stamp(a, cfg, 18)
    a.c("phase D")
    A = 48
    a("s_barrier   ; PD")
    stamp(a, cfg, 26)
    a(f"s_lshl_b32 s{sT0}, s{sLW}, 10")
    a(f"v_lshlrev_b32 v2, 4, v0")
    a(f"v_add_u32 v2, s{sT0}, v2")
    a.ds(f"ds_read_b128 v[16:19], v2 offset:{L_OWN}", "own")
    a(f"s_cmp_lg_u32 s{sWAVE}, 4")
    a("s_cbranch_scc1 L_nopoll2")
    if cfg.h2_delay: a(f"s_sleep {cfg.h2_delay}")
    def chk2():
        a(f"v_cmp_eq_u32 vcc, 1, v3")
        a("s_cmp_eq_u64 vcc, -1")
    poll(a, cfg, vP2, rWS, "0", 3, chk2)
    a.label("L_nopoll2")
    a("s_barrier   ; PE")
    if cfg.stamps: a(f"v_writelane_b32 v255, s{sSPIN}, 31")
    stamp(a, cfg, 19)
    a(f"""
    s_cmp_eq_u32 s{sU}, 7
    s_cselect_b32 exec_hi, 0, -1
    """)
    a.vm = []
    for k in range(1, 8):
        a(f"""
        s_add_u32 s{sT0}, s{sG}, {k}
        s_and_b32 s{sT0}, s{sT0}, 7
        s_lshl_b32 s{sT0}, s{sT0}, 15
        """)
        a.vmem(f"buffer_load_dwordx4 {vr(16+4*k)}, v{vDL}, s[{rWS}:{rWS+3}], s{sT0} offen sc1", ("p", k))
    a(f"s_mov_b32 s{sT1}, 0xffff0000")
    for k in range(8):
        if k == 0: a.wait_lg_all()
        a.wait_vm(("p", k))
        for i in range(4):
            s = 16 + 4 * k + i
            if k == 0:
                a(f"v_lshlrev_b32 v{A+2*i}, 16, v{s}")
                a(f"v_and_b32 v{A+2*i+1}, s{sT1}, v{s}")
            else:
                a(f"v_lshlrev_b32 v{60+2*i}, 16, v{s}")
                a(f"v_and_b32 v{61+2*i}, s{sT1}, v{s}")
                a(f"v_add_f32 v{A+2*i}, v{A+2*i}, v{60+2*i}")
                a(f"v_add_f32 v{A+2*i+1}, v{A+2*i+1}, v{61+2*i}")
    stamp(a, cfg, 20)
    for i in range(4):
        a(f"v_cvt_pk_bf16_f32 v{16+i}, v{A+2*i}, v{A+2*i+1}")
    a(f"buffer_store_dwordx2 v[16:17], v{vDO}, s[{rOUT}:{rOUT+3}], 0 offen")
    a(f"buffer_store_dwordx2 v[18:19], v{vDO}, s[{rOUT}:{rOUT+3}], s{sDN} offen")
    a("s_mov_b64 exec, -1")
    a("s_branch L_fin")


def computeA(a, cfg):
    a.label("L_computeA")
    a.reset()
    a(f"s_mov_b32 s{sROLE}, 0")
    if cfg.prefetch_code:
        a.c("wave w warms L2 with 8 KB of this kernel's code (one dword per 128-byte line)")
        a(f"s_getpc_b64 s[{sT2}:{sT2+1}]")
        a.label("L_pc")
        a(f"""
        s_sub_u32 s{sT2}, s{sT2}, L_pc-{KN}
        s_subb_u32 s{sT2+1}, s{sT2+1}, 0
        s_lshl_b32 s{sT0}, s{sWAVE}, 13
        v_lshlrev_b32 v2, 7, v0
        v_add_u32 v2, s{sT0}, v2
        v_min_u32 v2, L_end-{KN}, v2
        global_load_dword v253, v2, s[{sT2}:{sT2+1}]
        """)
    ACC = 16
    def acc(T, t): return ACC + (T * 6 + t) * 4
    SETA = [88, 124]; SETB = [100, 136]
    a.c("phase A addresses: v2=kq v3=r v4=c v5=n")
    a(f"""
    v_lshrrev_b32 v2, 4, v0
    v_bfe_u32 v3, v0, 2, 2
    v_and_b32 v4, 3, v0
    v_and_b32 v5, 15, v0
    v_lshlrev_b32 v6, 3, v2
    v_add_u32 v6, v6, v3                     ; k = 8kq + r
    v_mul_u32_u24 v6, 384, v6
    v_lshl_add_u32 v6, v4, 3, v6             ; k*384 + 8c
    v_lshrrev_b32 v7, 1, v3
    v_and_b32 v8, 1, v2
    v_lshl_or_b32 v7, v8, 1, v7              ; h(k)
    s_mul_i32 s{sT0}, s{sWAVE}, 3
    """)
    for T in range(3):
        a(f"""
        s_add_u32 s{sT1}, s{sT0}, {T}
        v_xor_b32 v8, s{sT1}, v7
        v_lshl_add_u32 v{vA[T]}, v8, 5, v6
        """)
    a(f"""
    v_lshrrev_b32 v6, 1, v5                  ; (n>>1)&7
    v_xor_b32 v6, v6, v2
    v_lshlrev_b32 v6, 4, v6
    v_lshl_add_u32 v6, v5, 7, v6
    v_add_u32 v{vXe}, {L_X}, v6
    v_xor_b32 v{vXo}, 64, v{vXe}
    v_lshrrev_b32 v6, 1, v2
    v_lshlrev_b32 v6, 9, v6
    v_lshl_add_u32 v6, v5, 4, v6
    v_and_b32 v7, 1, v2
    v_lshl_add_u32 v6, v7, 3, v6
    s_mul_i32 s{sT0}, s{sWAVE}, 3072
    v_add_u32 v{vQW}, s{sT0}, v6
    v_lshlrev_b32 v{vL16}, 4, v0
    v_mov_b32 v{vONE}, 1
    v_and_b32 v6, 31, v0
    v_lshrrev_b32 v7, 5, v0
    v_bfe_u32 v8, v0, 1, 3                   ; (m>>1)&7
    v_xor_b32 v8, v8, v7
    v_mul_u32_u24 v9, 384, v6
    v_lshl_add_u32 v9, v8, 4, v9
    v_add_u32 v{vK0c}, {L_K}, v9
    v_lshl_add_u32 v8, v7, 2, v3
    v_mul_u32_u24 v8, 384, v8
    v_lshl_add_u32 v8, v4, 3, v8             ; + 8c
    v_and_b32 v9, 2, v3                      ; hh
    v_and_b32 v6, 1, v2                      ; dh
    v_or_b32 v9, v9, v6
    v_lshl_add_u32 v8, v9, 5, v8
    v_add_u32 v{vV0}, {L_V}, v8
    v_lshlrev_b32 v8, 10, v6                 ; (n>>4)*1024
    v_lshl_add_u32 v8, v7, 8, v8             ; + hi*256
    v_lshl_add_u32 v8, v5, 4, v8             ; + (n&15)*16
    s_lshl_b32 s{sT0}, s{sWAVE}, 11
    v_add_u32 v{vOL}, s{sT0}, v8
    s_lshl_b32 s{sT2}, s{sB}, 3
    s_add_u32 s{sT2}, s{sT2}, s{sG}
    s_lshl_b32 s{sT2}, s{sT2}, 2
    s_add_u32 s{sT2}, s{sT2}, s{sJ}
    s_mul_i32 s{sOB}, s{sT2}, 36864
    s_add_u32 s{sOB}, s{sOB}, {cfg.ws_o}
    s_lshl_b32 s{sT2}, s{sJ}, 11
    s_sub_u32 s{sT2}, s{sINB}, s{sT2}
    s_add_u32 s{sT2}, s{sT2}, 1024
    s_mul_i32 s{sT3}, s{sJ}, 12
    s_add_u32 s{sT2}, s{sT2}, s{sT3}
    s_lshl_b32 s{sT3}, s{sWAVE}, 2
    s_add_u32 s{sT2}, s{sT2}, s{sT3}
    v_lshlrev_b32 v8, 11, v4
    v_add_u32 v{vF1}, s{sT2}, v8
    s_and_b32 s{sI}, s{sWAVE}, 1
    s_lshr_b32 s{sJQ}, s{sWAVE}, 1
    v_lshrrev_b32 v6, 1, v2
    v_lshlrev_b32 v6, 4, v6
    v_and_b32 v7, 1, v2
    v_lshl_add_u32 v6, v7, 2, v6
    v_add_u32 v6, v6, v3
    v_mul_u32_u24 v6, 320, v6
    v_lshl_add_u32 v6, v4, 3, v6
    v_add_u32 v6, {L_WO}, v6
    s_mul_i32 s{sT0}, s{sI}, 5
    """)
    for T in range(5):
        a(f"""
        s_add_u32 s{sT1}, s{sT0}, {T}
        v_xor_b32 v8, s{sT1}, v7
        v_lshl_add_u32 v{vCA0[T]}, v8, 5, v6
        """)
    a(f"""
    s_lshl_b32 s{sT0}, s{sB}, 2
    s_add_u32 s{sT0}, s{sT0}, s{sJ}
    s_lshl_b32 s{sT0}, s{sT0}, 3
    s_add_u32 s{sT0}, s{sT0}, s{sG}
    s_lshl_b32 s{sT0}, s{sT0}, 2
    s_add_u32 s{sT0}, s{sT0}, s{sWAVE}
    s_lshl_b32 s{sT0}, s{sT0}, 13
    s_add_u32 s{sPS}, s{sT0}, {cfg.ws_p}
    s_lshl_b32 s{sT0}, s{sB}, 5
    s_lshl_b32 s{sT1}, s{sWAVE}, 3
    s_add_u32 s{sT0}, s{sT0}, s{sT1}
    s_add_u32 s{sT0}, s{sT0}, s{sJ}
    s_lshl_b32 s{sT0}, s{sT0}, 11
    s_lshl_b32 s{sT1}, s{sG}, 7
    s_add_u32 s{sT0}, s{sT0}, s{sT1}
    s_add_u32 s{sT0}, s{sT0}, {cfg.ws_in}
    v_and_b32 v3, 1, v0
    v_lshlrev_b32 v3, 13, v3
    v_add_u32 v{vF2}, s{sT0}, v3
    """)
    wait_kernarg(a, cfg)
    srd(a, rWS, sWS, WS_BYTES)
    if cfg.pretouch:
        a.c("wave 1 touches the pages used later so that their translations are resident")
        a(f"""
        s_cmp_lg_u32 s{sWAVE}, 1
        s_cbranch_scc1 L_notouch
        """)
        srd(a, rK, sK, KV_BYTES); srd(a, rV, sV, KV_BYTES); srd(a, rWO, sWO, W_BYTES); srd(a, rOUT, sOUT, OUT_BYTES)
        a(f"""
        s_mov_b64 exec, 3
        v_mul_u32_u24 v2, 36860, v0
        s_mul_i32 s{sT0}, s{sBH}, 36864
        buffer_load_dword v253, v2, s[{rK}:{rK+3}], s{sT0} offen nt
        buffer_load_dword v253, v2, s[{rV}:{rV+3}], s{sT0} offen nt
        v_mul_u32_u24 v2, 983036, v0
        s_mul_i32 s{sT0}, s{sG}, 983040
        buffer_load_dword v253, v2, s[{rWO}:{rWO+3}], s{sT0} offen
        buffer_load_dword v253, v2, s[{rOUT}:{rOUT+3}], 0 offen nt
        buffer_load_dword v253, v{vL16}, s[{rWS}:{rWS+3}], s{sOB} offen nt
        buffer_load_dword v253, v{vL16}, s[{rWS}:{rWS+3}], s{sPS} offen nt
        s_mov_b64 exec, -1
        """)
        a.label("L_notouch")
    stamp(a, cfg, 1)

    def reads(s):
        st = s & 1
        wo = L_W + (s % 4) * 12288
        xo = ((s >> 1) % 3) * 12288
        vx = vXo if s & 1 else vXe
        R = []
        def ra(T):
            R.append((f"ds_read_b64_tr_b16 {vr(SETA[st]+4*T, 2)}, v{vA[T]} offset:{wo}", ("A", s, T)))
            R.append((f"ds_read_b64_tr_b16 {vr(SETA[st]+4*T+2, 2)}, v{vA[T]} offset:{wo+1536}", ("A", s, T)))
        ra(0)
        for t in range(6):
            R.append((f"ds_read_b128 {vr(SETB[st]+4*t)}, v{vx} offset:{xo + t*2048}", ("B", s, t)))
        ra(1); ra(2)
        return R

    a("s_barrier   ; P")
    stamp(a, cfg, 2)
    for ins, tag in reads(0): a.ds(ins, tag)
    def qwrite(T, t):
        d = acc(T, t)
        tmp = 88 + ((T * 6 + t) % 8) * 2
        return [f"v_cvt_pk_bf16_f32 v{tmp}, v{d}, v{d+1}", f"v_cvt_pk_bf16_f32 v{tmp+1}, v{d+2}, v{d+3}",
                ("ds", f"ds_write_b64 v{vQW}, {vr(tmp, 2)} offset:{L_Q + 1024*T + 12288*(t >> 1) + 256*(t & 1)}")]
    for s in range(20):
        a.wait_lg_all()
        if s < 19:
            a(f"s_barrier   ; B{s}")
        R = reads(s + 1) if s < 19 else []
        st = s & 1
        m = 0
        qq = []
        for T in range(3):
            for t in range(6):
                a(mfma(acc(T, t), SETA[st] + 4 * T, SETB[st] + 4 * t, first=(s == 0)))
                if m < len(R): a.ds(*R[m])
                if s == 19:
                    if m >= 6:
                        T2, t2 = divmod(m - 6, 6)
                        qq += qwrite(T2, t2)
                    for _ in range(2):
                        if qq:
                            x = qq.pop(0)
                            a.ds(x[1], "qw") if isinstance(x, tuple) else a(x)
                m += 1
        if s in (4, 9, 14): stamp(a, cfg, 3 + (s - 4) // 5)
    stamp(a, cfg, 6)
    a.c("Q -> bf16 -> LDS (fragment-major)")
    for m in range(12, 18): qq += qwrite(*divmod(m, 6))
    for x in qq:
        a.ds(x[1], "qw") if isinstance(x, tuple) else a(x)
    a.wait_lg_all()
    a("s_barrier   ; Q")
    a(f"""
    s_cmp_lt_u32 s{sWAVE}, 3
    s_cbranch_scc1 L_phaseB
    s_barrier   ; V
    s_barrier   ; O1
    s_branch L_computeC
    """)


def phaseB(a, cfg):
    a.label("L_phaseB")
    a.reset()
    S = 16; P = 64; QF = 72; KF = 120; O = 136; VF = 72; OB = 16
    vQR = 10; vKa = [vK0c, 11, 12, 13]; vVa = [vV0, 14]
    M, T1, L0, L1 = 2, 3, 4, 5
    stamp(a, cfg, 7)
    a(f"s_mul_i32 s{sT0}, s{sWAVE}, 12288")
    a(f"v_add_u32 v{vQR}, s{sT0}, v{vL16}")
    def qread(ks): a.ds(f"ds_read_b128 {vr(QF+4*ks)}, v{vQR} offset:{L_Q + ks*1024}", ("Q", ks))
    def kread(i):
        kt, ks = divmod(i, 12)
        a.ds(f"ds_read_b128 {vr(KF + 4*(i % 4))}, v{vKa[ks & 3]} offset:{kt*12288 + (ks >> 2)*128}", ("K", i))
    qread(0); kread(0)
    for x in range(1, 4): a(f"v_xor_b32 v{vKa[x]}, {32*x}, v{vK0c}")
    qread(1); kread(1); qread(2); kread(2); kread(3)
    a(f"v_xor_b32 v{vVa[1]}, 64, v{vV0}")
    def maxops(kt):
        b = S + 16 * kt
        d = M if kt != 1 else T1
        r = []
        if kt < 2: r.append(f"v_max3_f32 v{d}, v{b}, v{b+1}, v{b+2}")
        else: r.append(f"v_max3_f32 v{M}, v{M}, v{T1}, v{b}"); r.append(f"v_max3_f32 v{T1}, v{b+1}, v{b+2}, v{b+3}")
        if kt < 2:
            for i in range(3, 15, 2): r.append(f"v_max3_f32 v{d}, v{d}, v{b+i}, v{b+i+1}")
            r.append(f"v_max_f32 v{d}, v{d}, v{b+15}")
        else:
            for i in range(4, 16, 4):
                r.append(f"v_max3_f32 v{M}, v{M}, v{b+i}, v{b+i+1}")
                r.append(f"v_max3_f32 v{T1}, v{T1}, v{b+i+2}, v{b+i+3}")
            r.append(f"v_max_f32 v{M}, v{M}, v{T1}")
        return r
    fill = []
    for i in range(36):
        kt, ks = divmod(i, 12)
        a.wait_lg(("Q", ks), ("K", i))
        a(mfma32(S + 16 * kt, KF + 4 * (i % 4), QF + 4 * ks, first=(ks == 0)))
        if i + 4 < 36: kread(i + 4)
        if i + 3 < 12: qread(i + 3)
        if i == 16: fill += maxops(0)
        if i == 27: fill += maxops(1)
        for _ in range(cfg.fill_s):
            if fill: a(fill.pop(0))
    stamp(a, cfg, 8)
    a("s_barrier   ; V")
    stamp(a, cfg, 9)
    def vread(i):
        s, Td = divmod(i, 6)
        for e in range(2):
            a.ds(f"ds_read_b64_tr_b16 {vr(VF + 4*(i % 12) + 2*e, 2)}, v{vVa[Td & 1]} offset:{(Td >> 1)*128 + s*6144 + e*3072}", ("V", i))
    NV = 6
    for i in range(NV): vread(i)
    a(f"v_mov_b32 v6, {L_FLAG}")
    a.ds("ds_read_b32 v7, v6", "fast")
    for x in fill + maxops(2): a(x)
    a(f"v_mov_b32 v{T1}, v{M}")
    a(f"v_permlane32_swap_b32 v{M}, v{T1}")
    a(f"v_max_f32 v{M}, v{M}, v{T1}")
    a(f"v_mul_f32 v{M}, {f32hex(-SCALE)}, v{M}")
    def pops(s):
        b = S + 8 * s; d = P + 4 * (s & 1)
        r = []
        for i in range(8 + 3):
            if i < 8: r.append(f"v_fmamk_f32 v{b+i}, v{b+i}, {f32hex(SCALE)}, v{M}")
            if 1 <= i <= 8: r.append(f"v_exp_f32 v{b+i-1}, v{b+i-1}")
            if i >= 4 and i % 2 == 0: r.append(f"v_cvt_pk_bf16_f32 v{d+(i-4)//2}, v{b+i-4}, v{b+i-3}")
        sums = []
        for i in range(0, 8, 2):
            if s == 0 and i == 0:
                sums.append(f"v_mov_b32 v{L0}, v{b}"); sums.append(f"v_mov_b32 v{L1}, v{b+1}")
            else:
                sums.append(f"v_add_f32 v{L0}, v{L0}, v{b+i}"); sums.append(f"v_add_f32 v{L1}, v{L1}, v{b+i+1}")
        return r, sums
    r0, pend_sums = pops(0)
    for x in r0: a(x)
    stamp(a, cfg, 10)
    a.wait_lg("fast")
    a(f"v_readfirstlane_b32 s{sFAST}, v7")
    a(f"s_cmp_lg_u32 s{sFAST}, 0")
    a("s_cselect_b64 vcc, -1, 0")
    nst = [0]
    def ostore(Td, e):
        o = OB + (2 * Td + e) * 4
        r = [("ds", f"ds_write_b128 v{vOL}, {vr(o)} offset:{L_OWN + Td*6144 + e*512}")]
        if not cfg.skip_ostore:
            nst[0] += 1
            n = nst[0]
            st = f"buffer_store_dwordx4 {vr(o)}, v{vOL}, s[{rWS}:{rWS+3}], s{sT0} offen"
            if cfg.o_fast_pol in ("sc1", "sc0 sc1"):
                r.append(("blk", f"s_add_u32 s{sT0}, s{sOB}, {Td*6144 + e*512}\n{st} sc0 sc1"))
            else:
                r.append(("blk", f"s_add_u32 s{sT0}, s{sOB}, {Td*6144 + e*512}\ns_cbranch_vccnz L_os{n}\n{st} sc0 sc1\ns_branch L_od{n}\nL_os{n}:\n{st} {cfg.o_fast_pol}\nL_od{n}:"))
        return r
    def epi(Td, pk):
        d = O + 16 * Td
        r = []
        for e in range(2):
            o = OB + (2 * Td + e) * 4
            for i in range(0, 8, 2):
                x = d + 8 * e + i
                if pk: r.append(f"v_pk_mul_f32 v[{x}:{x+1}], v[{x}:{x+1}], v[{L0}:{L0+1}] op_sel_hi:[1,0]")
                else:
                    r.append(f"v_mul_f32 v{x}, v{x}, v{L0}"); r.append(f"v_mul_f32 v{x+1}, v{x+1}, v{L0}")
            for i in range(4): r.append(f"v_cvt_pk_bf16_f32 v{o+i}, v{d+8*e+2*i}, v{d+8*e+2*i+1}")
            r += ostore(Td, e)
        return r
    def emit(x):
        if isinstance(x, tuple):
            if x[0] == "ds": a.ds(x[1], "ow")
            else: a(x[1])
        else: a(x)
    fill = []
    for i in range(36):
        s, Td = divmod(i, 6)
        if Td == 0:
            for x in fill: emit(x)
            fill = []
            if s < 5:
                r, sums = pops(s + 1)
                fill = pend_sums + r
                pend_sums = sums
            else:
                fill = pend_sums + [f"v_add_f32 v{L0}, v{L0}, v{L1}", f"v_mov_b32 v{T1}, v{L0}", "s_nop 0",
                                    f"v_permlane32_swap_b32 v{L0}, v{T1}", f"v_add_f32 v{L0}, v{L0}, v{T1}", f"v_rcp_f32 v{L0}, v{L0}"]
        if i % 2 == 0: a.wait_lg(("V", i), ("V", i + 1))
        a(mfma32(O + 16 * Td, VF + 4 * (i % 12), P + 4 * (s & 1), first=(s == 0)))
        if i + NV < 36: vread(i + NV)
        if s == 5 and Td >= 3: fill += epi(Td - 3, False)
        for _ in range(cfg.fill_pv if s < 5 else cfg.fill_last):
            if fill: emit(fill.pop(0))
    stamp(a, cfg, 11)
    for x in fill: emit(x)
    for Td in (3, 4, 5):
        for x in epi(Td, cfg.pk_tail and Td > 3): emit(x)
    stamp(a, cfg, 27)
    a.wait_lg_all()
    stamp(a, cfg, 12)
    a("s_barrier   ; O1")
    a.c("falls through into phase C")


def computeC(a, cfg):
    a.label("L_computeC")
    a.reset()
    if cfg.prio_c: a(f"s_setprio {cfg.prio_c}")
    ACC = 16
    def acc(T, t): return ACC + (T * 3 + t) * 4
    SETA = [76, 96]; SETB = [116, 128]
    vCA = [vCA0, vCA1]
    a(f"s_mul_i32 s{sT0}, s{sJQ}, 3072")
    a(f"v_add_u32 v{vCB[0]}, s{sT0}, v{vL16}")
    def reads(u):
        st = u & 1
        p = u >> 1
        hi, sl = divmod(p % 4, 2)
        so = sl * 20480 + (u & 1) * 10240
        if u < 6:
            vb, bo = vCB[0], L_OWN + u * 6144
        else:
            vb, bo = vCB[1], ((p - 3) % 3) * 12288 + (u & 1) * 6144
        R = []
        def ra(T):
            R.append((f"ds_read_b64_tr_b16 {vr(SETA[st]+4*T, 2)}, v{vCA[hi][T]} offset:{so}", ("A", u, T)))
            R.append((f"ds_read_b64_tr_b16 {vr(SETA[st]+4*T+2, 2)}, v{vCA[hi][T]} offset:{so+2560}", ("A", u, T)))
        ra(0)
        for t in range(3):
            R.append((f"ds_read_b128 {vr(SETB[st]+4*t)}, v{vb} offset:{bo + t*1024}", ("B", u, t)))
        for T in range(1, 5): ra(T)
        return R
    stamp(a, cfg, 13)
    for ins, tag in reads(0): a.ds(ins, tag)
    a(f"v_add_u32 v{vCB[1]}, {L_OR}, v{vCB[0]}")
    for T in range(5): a(f"v_add_u32 v{vCA1[T]}, 40960, v{vCA0[T]}")
    for u in range(24):
        if u & 1 and u < 23:
            a.wait_lg_all()
            a(f"s_barrier   ; C{u >> 1}")
        R = reads(u + 1) if u < 23 else []
        st = u & 1
        m = 0
        for T in range(5):
            for t in range(3):
                a.wait_lg(("A", u, T), ("B", u, t))
                a(mfma(acc(T, t), SETA[st] + 4 * T, SETB[st] + 4 * t, first=(u == 0)))
                if m < len(R): a.ds(*R[m])
                m += 1
        if u == cfg.h1_flag_step:
            a.c("waves 0-2 publish their O tile once its stores have drained")
            stamp(a, cfg, 22)
            a(f"""
            s_cmp_eq_u32 s{sWAVE}, 3
            s_cbranch_scc1 L_f1done
            s_waitcnt vmcnt(0)
            s_mov_b64 exec, 15
            s_cmp_lg_u32 s{sFAST}, 0
            s_cbranch_scc1 L_f1fast
            buffer_store_dword v{vONE}, v{vF1}, s[{rWS}:{rWS+3}], 0 offen sc0 sc1
            s_branch L_f1ex
            """)
            a.label("L_f1fast")
            a(f"buffer_store_dword v{vONE}, v{vF1}, s[{rWS}:{rWS+3}], 0 offen")
            a.label("L_f1ex")
            a("s_mov_b64 exec, -1")
            a.label("L_f1done")
            stamp(a, cfg, 23)
        if u in (2, 3): stamp(a, cfg, 22 + u)
        if u in (5, 11, 17): stamp(a, cfg, 15 + (u - 5) // 6)
    stamp(a, cfg, 18)
    a.c("partials, 8 units per wave: 6 tile pairs, the odd tile of q tiles 0|1, the odd tile of q tile 2 (32 lanes)")
    a(f"""
    s_cmp_lg_u32 s{sI}, 0
    s_cbranch_scc1 L_st1
    """)
    def cv(dst, d):
        a(f"v_cvt_pk_bf16_f32 v{dst}, v{d}, v{d+1}")
        a(f"v_cvt_pk_bf16_f32 v{dst+1}, v{d+2}, v{d+3}")
    U = 76
    for i in range(2):
        if i == 1:
            a("s_branch L_cvdone")
            a.label("L_st1")
        pairs = [(0, 1), (2, 3)] if i == 0 else [(1, 2), (3, 4)]
        odd = 4 if i == 0 else 0
        for t in range(3):
            for pi, (Ta, Tb) in enumerate(pairs):
                o = U + (2 * t + pi) * 4
                cv(o, acc(Ta, t)); cv(o + 2, acc(Tb, t))
        cv(U + 24, acc(odd, 0)); cv(U + 26, acc(odd, 1))
        cv(U + 28, acc(odd, 2))
    a.label("L_cvdone")
    a(f"v_permlane32_swap_b32 v{U+28}, v{U+30}")
    a(f"v_permlane32_swap_b32 v{U+29}, v{U+31}")
    a(f"s_lshr_b32 s{sT1}, s{sG}, 1")
    a(f"s_and_b32 s{sT2}, s{sG}, 1")
    for half in range(2):
        a(f"""
        s_cmp_lg_u32 s{sT1}, s{sWAVE}
        s_cbranch_scc1 L_rem{half}
        s_cmp_lg_u32 s{sT2}, {half}
        s_cbranch_scc1 L_rem{half}
        """)
        for k in range(4):
            a(f"ds_write_b128 v{vL16}, {vr(U + (4*half + k)*4)} offset:{L_OWN + k*1024}")
        a(f"s_branch L_remdone{half}")
        a.label(f"L_rem{half}")
        for k in range(4):
            u = 4 * half + k
            if u == 7: a("s_mov_b32 exec_hi, 0")
            a(f"s_add_u32 s{sT0}, s{sPS}, {u*1024}")
            a(f"buffer_store_dwordx4 {vr(U + u*4)}, v{vL16}, s[{rWS}:{rWS+3}], s{sT0} offen sc0 sc1")
            if u == 7: a("s_mov_b32 exec_hi, -1")
        a.label(f"L_remdone{half}")
    stamp(a, cfg, 19)
    a("s_waitcnt lgkmcnt(0)")
    a("s_barrier   ; PD")
    a("s_waitcnt vmcnt(0)")
    stamp(a, cfg, 20)
    a(f"""
    s_mov_b64 exec, 3
    buffer_store_dword v{vONE}, v{vF2}, s[{rWS}:{rWS+3}], 0 offen sc0 sc1
    s_mov_b64 exec, -1
    """)


def build(cfg, header=""):
    _lbl[0] = 0
    a = Asm()
    if header: a.raw(header.rstrip("\n"))
    a.raw(f"; @launch grid=(256,1,1) block=(512,1,1) lds={LDS_BYTES}")
    a.raw('.amdgcn_target "amdgcn-amd-amdhsa--gfx950"\n.text')
    prologue(a, cfg)
    loader(a, cfg)
    computeA(a, cfg)
    phaseB(a, cfg)
    computeC(a, cfg)
    a.label("L_fin")
    stamp(a, cfg, 21)
    if cfg.amp:
        w, ia, ib, A = cfg.amp
        a(f"""
        s_cmp_lg_u32 s{sWAVE}, {w}
        s_cbranch_scc1 L_noamp
        v_readlane_b32 s{sT0}, v255, {ia}
        v_readlane_b32 s{sT1}, v255, {ib}
        s_sub_u32 s{sT0}, s{sT1}, s{sT0}
        s_mul_i32 s{sT0}, s{sT0}, {A}
        s_memtime s[{sSTAMP}:{sSTAMP+1}]
        s_waitcnt lgkmcnt(0)
        s_add_u32 s{sT0}, s{sT0}, s{sSTAMP}
        """)
        a.label("L_amp")
        a(f"""
        s_memtime s[{sSTAMP}:{sSTAMP+1}]
        s_waitcnt lgkmcnt(0)
        s_sub_u32 s{sT1}, s{sSTAMP}, s{sT0}
        s_cmp_lt_i32 s{sT1}, 0
        s_cbranch_scc1 L_amp
        """)
        a.label("L_noamp")
    elif cfg.stamps:
        stamp_flush(a, cfg)
    a.label("L_end")
    a("s_endpgm")
    a.raw(kernel_desc(KN))
    return a.text()


def make(**kw):
    cfg = Cfg()
    for k, v in kw.items():
        assert hasattr(cfg, k), k
        setattr(cfg, k, v)
    header = open("cdna_kernels/" + NAME + ".s.ref").read().split("; Override launch")[0]
    return build(cfg, header)


if __name__ == "__main__":
    kw = {}
    for kv in sys.argv[2:]:
        k, v = kv.split("=", 1)
        kw[k] = eval(v)
    open(sys.argv[1], "w").write(make(**kw))
```

```python
import sys, math, struct
from asmgen import *

NAME = "standalone__gqa_block_cached__near_ridge"
KN = NAME + "_kernel"

X_BYTES = 768 * 640 * 2
KV_BYTES = 8 * 32 * 96 * 192 * 2
W_BYTES = 640 * 6144 * 2
OUT_BYTES = 768 * 640 * 2
WS_BYTES = 268435456
SCALE = 192 ** -0.5 * math.log2(math.e)

def f32hex(x):
    return "0x%08x" % struct.unpack("<I", struct.pack("<f", x))[0]

sX, sK, sV, sWQ, sWO, sOUT, sDBG, sWS = 4, 6, 8, 10, 12, 14, 16, 18
sWAVE, sG, sB, sJ, sH, sBH = 20, 21, 22, 23, 24, 25
sFAST, sSPIN = 26, 27
rX, rWQ, rK, rV, rWS, rWO, rOUT, rDBG = 28, 32, 36, 40, 44, 48, 52, 68
sT0, sT1, sT2, sT3 = 56, 57, 58, 59
sLW, sM0B, sKVB = 60, 61, 63
sI, sJQ, sROLE = 64, 65, 66
sOB, sPS = 62, 67
sWK, sOM0, sOK, sINB, sWE, sWM = 73, 74, 75, 76, 77, 78
sSTAMP = 80
sKW, sKX, sWC, sOC, sU, sDN, sJ4 = 92, 93, 94, 95, 96, 97, 98

L_W, L_X, L_K, L_V, L_Q = 0, 49152, 86016, 122880, 0
L_FLAG = 159744
L_OWN, L_WO, L_OR = 0, 36864, 122880
LDS_BYTES = 163840


class Cfg:
    stamps = False
    stamp_only = None
    amp = None
    prefetch_code = True
    pretouch = True
    ws_o = 0xE000000
    ws_p = 0xF000000
    ws_in = 0xFC00000
    ws_stamp = 0x4000000
    polW = ""; polX = ""; polKV = "nt"; polWO = ""; polPF = ""; polO = "sc1"
    o_fast_pol = ""
    force_slow = False
    rot = (10, 10)
    k_sched = [12] * 9
    v_sched = [16] * 9
    kv_variants = [([7] * 9, [16] * 9), ([11] * 9, [16] * 9)]
    kv_sel_shift = 3
    wo_prefetch = True
    pf_at = 'Q'
    staged = ()
    early = 1
    mid = 4
    late = 4
    wrot = False
    h1_flag_step = 0
    h2_delay = 20
    poll_sleep = 1
    spin_max = 400000
    fill_s = 5
    fill_pv = 2
    fill_last = 5
    pk_tail = True
    skip_o = False; skip_wo = False; skip_ostore = False
    prio_c = 0


def stamp(a, cfg, idx):
    if not cfg.stamps: return
    if cfg.stamp_only is not None and idx not in cfg.stamp_only: return
    a(f"""
    s_memtime s[{sSTAMP}:{sSTAMP+1}]
    s_waitcnt lgkmcnt(0)
    v_writelane_b32 v255, s{sSTAMP}, {idx}
    """)
    a.lg = []

def stamp_flush(a, cfg):
    a(f"""
    s_memrealtime s[{sSTAMP}:{sSTAMP+1}]
    s_waitcnt lgkmcnt(0)
    v_writelane_b32 v255, s{sSTAMP}, 33
    s_lshl_b32 s{sT0}, s2, 3
    s_add_u32 s{sT0}, s{sT0}, s{sWAVE}
    s_lshl_b32 s{sT0}, s{sT0}, 8
    s_add_u32 s{sT0}, s{sT0}, {cfg.ws_stamp}
    v_mbcnt_lo_u32_b32 v254, -1, 0
    v_mbcnt_hi_u32_b32 v254, -1, v254
    v_lshlrev_b32 v254, 2, v254
    buffer_store_dword v255, v254, s[{rWS}:{rWS+3}], s{sT0} offen
    """)

def wait_kernarg(a, cfg):
    a("s_waitcnt lgkmcnt(0)")
    if cfg.stamps:
        a(f"v_writelane_b32 v255, s{sSTAMP}, 0")
        a(f"v_writelane_b32 v255, s{sSTAMP+2}, 32")

def mfma(d, A, B, first=False):
    c = "0" if first else vr(d)
    return f"v_mfma_f32_16x16x32_bf16 {vr(d)}, {vr(A)}, {vr(B)}, {c}"

def mfma32(d, A, B, first=False):
    c = "0" if first else vr(d, 16)
    return f"v_mfma_f32_32x32x16_bf16 {vr(d, 16)}, {vr(A)}, {vr(B)}, {c}"

_lbl = [0]
def poll(a, cfg, vaddr, rs, soff, vtmp, check):
    _lbl[0] += 1
    n = _lbl[0]
    a(f"s_mov_b32 s{sSPIN}, 0")
    a.label(f"poll{n}")
    a(f"buffer_load_dword v{vtmp}, v{vaddr}, s[{rs}:{rs+3}], {soff} offen sc1")
    a.wait_vm_all()
    check()
    a(f"""
    s_cbranch_scc1 poll{n}_ok
    s_add_u32 s{sSPIN}, s{sSPIN}, 1
    s_cmp_ge_u32 s{sSPIN}, {cfg.spin_max}
    s_cbranch_scc1 poll{n}_ok
    s_sleep {cfg.poll_sleep}
    s_branch poll{n}
    """)
    a.label(f"poll{n}_ok")

def dma(a, vaddr, rs, soff, ldsoff, tag, base, pol=""):
    a(f"s_add_u32 m0, s{base}, {ldsoff}")
    if isinstance(soff, str):
        so = soff
        a("s_nop 0")
    else:
        a(f"s_mov_b32 s{sT0}, {soff}")
        so = f"s{sT0}"
    a.vmem(f"buffer_load_dwordx4 v{vaddr}, s[{rs}:{rs+3}], {so} offen {pol} lds", tag)


vA = [10, 11, 12]; vXe, vXo, vQW = 13, 14, 15
vK0c, vV0, vOL = 232, 233, 234
vCA0 = [235, 236, 237, 238, 239]; vL16, vF1, vF2 = 240, 241, 242
vCA1 = [140, 141, 142, 143, 144]; vCB = [145, 146]
vONE = 252
vW = [220, 221, 222]; vXL = [223, 224, 225]; vKA = [226, 227, 228]; vKB = [229, 230, 231]; vV = [232, 233, 234]
vK0 = [235, 236, 237]; vCP = [238, 239, 240]
vWO = [241, 242, 243, 244, 245]; vOR, vDL, vDO, vP1, vP2, vPF = 246, 247, 248, 249, 250, 251
vSW = [218, 219]
STG = 16


def prologue(a, cfg):
    a.raw(kernel_header(KN))
    if cfg.stamps:
        a(f"s_memtime s[{sSTAMP}:{sSTAMP+1}]")
        a(f"s_memrealtime s[{sSTAMP+2}:{sSTAMP+3}]")
    a(f"""
    s_cmp_ge_u32 s2, 256
    s_cbranch_scc1 L_end
    s_load_dwordx16 s[4:19], s[0:1], 0
    v_lshrrev_b32 v1, 6, v0
    v_and_b32 v0, 63, v0
    v_readfirstlane_b32 s{sWAVE}, v1
    s_and_b32 s{sG}, s2, 7
    s_lshr_b32 s{sT0}, s2, 3
    s_lshr_b32 s{sB}, s{sT0}, 2
    s_and_b32 s{sJ}, s{sT0}, 3
    s_lshl_b32 s{sH}, s{sG}, 2
    s_add_u32 s{sH}, s{sH}, s{sJ}
    s_lshl_b32 s{sBH}, s{sB}, 5
    s_add_u32 s{sBH}, s{sBH}, s{sH}
    s_lshl_b32 s{sINB}, s{sBH}, 11
    s_add_u32 s{sINB}, s{sINB}, {cfg.ws_in}
    s_cmp_lt_u32 s{sWAVE}, 4
    s_cbranch_scc1 L_computeA
    """)


def next_pair(a, cfg, p, sDst, sCnt, stride):
    if p + 1 >= 12: return
    if p + 1 < 4 or not cfg.wrot:
        a(f"""
        s_add_u32 s{sDst}, s{sDst}, {stride}
        s_cmp_eq_u32 s{sDst}, {12*stride}
        s_cselect_b32 s{sDst}, 0, s{sDst}
        """)
    else:
        a(f"""
        s_add_u32 s{sDst}, s{sJ4}, s{sCnt}
        s_cmp_ge_u32 s{sDst}, 12
        s_cselect_b32 s{sT0}, 12, 0
        s_sub_u32 s{sDst}, s{sDst}, s{sT0}
        s_mul_i32 s{sDst}, s{sDst}, {stride}
        s_add_u32 s{sCnt}, s{sCnt}, 1
        s_and_b32 s{sCnt}, s{sCnt}, 7
        """)

def ld_wo_pair(a, cfg, p):
    slot = L_WO + (p % 4) * 20480
    a(f"s_add_u32 s{sT3}, s{sWK}, s{sWE}")
    for i in range(0 if cfg.skip_wo else 5):
        if p in cfg.staged:
            d = STG + (cfg.staged.index(p) * 5 + i) * 4
            a.vmem(f"buffer_load_dwordx4 {vr(d)}, v{vWO[i]}, s[{rWO}:{rWO+3}], s{sT3} offen {cfg.polWO}", ("WO", p))
        else:
            dma(a, vWO[i], rWO, f"s{sT3}", slot + i * 1024, ("WO", p), sWM, cfg.polWO)
    next_pair(a, cfg, p, sWK, sWC, 81920)

def put_wo_pair(a, cfg, p):
    a.wait_vm(("WO", p))
    hi, sl = divmod(p % 4, 2)
    for i in range(0 if cfg.skip_wo else 5):
        d = STG + (cfg.staged.index(p) * 5 + i) * 4
        a.ds(f"ds_write_b128 v{vSW[hi]}, {vr(d)} offset:{sl*20480 + i*1024}", ("WOL", p))

def ld_o_pair(a, cfg, p):
    slot = L_OR + ((p - 3) % 3) * 12288
    a(f"s_add_u32 m0, s{sOM0}, {slot}")
    a("s_nop 0")
    for i in range(0 if cfg.skip_o else 3):
        a.vmem(f"buffer_load_dwordx4 v{vOR}, s[{rWS}:{rWS+3}], s{sOK} offen offset:{i*1024} {cfg.polO} lds", ("O", p))
    next_pair(a, cfg, p, sOK, sOC, 12288)


def loader(a, cfg):
    a.reset()
    a(f"s_mov_b32 s{sROLE}, 1")
    a(f"s_sub_u32 s{sLW}, s{sWAVE}, 4")
    a(f"s_mul_i32 s{sT0}, s{sLW}, {8*12288}")
    a(f"s_mul_i32 s{sT1}, s{sH}, 384")
    a(f"s_add_u32 s{sT0}, s{sT0}, s{sT1}")
    a(f"s_and_b32 s{sT1}, s{sLW}, 1")
    a(f"s_lshl_b32 s{sT1}, s{sT1}, 2")
    for i in range(3):
        a(f"""
        v_add_u32 v2, {64*i}, v0
        v_mul_u32_u24 v3, 2731, v2
        v_lshrrev_b32 v{vK0[i]}, 16, v3
        v_mul_u32_u24 v4, 24, v{vK0[i]}
        v_sub_u32 v{vCP[i]}, v2, v4
        v_and_b32 v5, 2, v{vK0[i]}
        v_or_b32 v5, s{sT1}, v5
        v_xor_b32 v5, v5, v{vCP[i]}
        v_mul_u32_u24 v6, 12288, v{vK0[i]}
        v_lshl_add_u32 v6, v5, 4, v6
        v_add_u32 v{vW[i]}, s{sT0}, v6
        """)
    a(f"""
    s_mul_i32 s{sT2}, s{sB}, 96
    s_mul_i32 s{sT3}, s{sLW}, 24
    s_add_u32 s{sT2}, s{sT2}, s{sT3}
    s_mul_i32 s{sT2}, s{sT2}, 1280
    v_lshrrev_b32 v2, 3, v0
    v_mul_u32_u24 v2, 1280, v2
    v_and_b32 v3, 7, v0
    v_lshrrev_b32 v4, 4, v0
    v_xor_b32 v3, v3, v4
    v_xor_b32 v3, s{sT1}, v3
    v_lshl_add_u32 v{vXL[0]}, v3, 4, v2
    v_add_u32 v{vXL[0]}, s{sT2}, v{vXL[0]}
    v_xor_b32 v3, 4, v3
    v_lshl_add_u32 v{vXL[1]}, v3, 4, v2
    s_add_u32 s{sT3}, s{sT2}, {8*1280}
    v_add_u32 v{vXL[1]}, s{sT3}, v{vXL[1]}
    v_add_u32 v{vXL[2]}, {16*1280}, v{vXL[0]}
    s_mul_i32 s{sM0B}, s{sLW}, 3072
    s_mul_i32 s{sT2}, s{sB}, {cfg.rot[0]}
    s_mul_i32 s{sT3}, s{sJ}, {cfg.rot[1]}
    s_add_u32 s{sT2}, s{sT2}, s{sT3}
    s_add_u32 s{sT2}, s{sT2}, 2
    s_lshr_b32 s{sT2}, s{sT2}, 2
    s_cmp_ge_u32 s{sT2}, 20
    s_cselect_b32 s{sT3}, 20, 0
    s_sub_u32 s{sT2}, s{sT2}, s{sT3}
    s_cmp_ge_u32 s{sT2}, 10
    s_cselect_b32 s{sT3}, 10, 0
    s_sub_u32 s{sT2}, s{sT2}, s{sT3}
    s_mul_i32 s{sKW}, s{sT2}, {64*12288}
    s_lshl_b32 s{sKX}, s{sT2}, 7
    """)
    assert (7 * cfg.rot[0] + 3 * cfg.rot[1] + 2) // 4 < 30
    wait_kernarg(a, cfg)
    srd(a, rWQ, sWQ, W_BYTES)
    srd(a, rX, sX, X_BYTES)
    stamp(a, cfg, 29)

    def ldW(s):
        for i in range(3): dma(a, vW[i], rWQ, f"s{sKW}", L_W + (s % 4) * 12288 + i * 1024, ("W", s), sM0B, cfg.polW)
        a(f"""
        s_add_u32 s{sKW}, s{sKW}, {32*12288}
        s_cmp_eq_u32 s{sKW}, {640*12288}
        s_cselect_b32 s{sKW}, 0, s{sKW}
        """)
    def ldX(m):
        for i in range(3): dma(a, vXL[i], rX, f"s{sKX}", L_X + (m % 3) * 12288 + i * 1024, ("X", m), sM0B, cfg.polX)
        a(f"""
        s_add_u32 s{sKX}, s{sKX}, 128
        s_cmp_eq_u32 s{sKX}, 1280
        s_cselect_b32 s{sKX}, 0, s{sKX}
        """)
    def ldK(i):
        i1, i0 = divmod(i, 3)
        dma(a, (vKB if i1 & 1 else vKA)[i0], rK, i1 * 3072, L_K + i * 1024, "K", sKVB, cfg.polKV)
    def ldV(i):
        i1, i0 = divmod(i, 3)
        dma(a, vV[i0], rV, i1 * 3072, L_V + i * 1024, "V", sKVB, cfg.polKV)

    ldW(0); ldX(0)
    srd(a, rWS, sWS, WS_BYTES)
    srd(a, rDBG, sDBG, 256)
    a.c("wave 7: clear this workgroup's inbox")
    a(f"""
    s_cmp_lg_u32 s{sWAVE}, 7
    s_cbranch_scc1 L_noclr
    v_lshlrev_b32 v2, 4, v0
    v_mov_b32 v4, 0
    v_mov_b32 v5, 0
    v_mov_b32 v6, 0
    v_mov_b32 v7, 0
    buffer_store_dwordx4 v[4:7], v2, s[{rWS}:{rWS+3}], s{sINB} offen sc0 sc1
    s_mov_b64 exec, 0xff
    buffer_store_dwordx4 v[4:7], v2, s[{rWS}:{rWS+3}], s{sINB} offen offset:1024 sc0 sc1
    s_mov_b64 exec, -1
    """)
    a.label("L_noclr")
    ldW(1)
    srd(a, rK, sK, KV_BYTES)
    srd(a, rV, sV, KV_BYTES)
    srd(a, rWO, sWO, W_BYTES)
    srd(a, rOUT, sOUT, OUT_BYTES)
    a(f"""
    s_mul_i32 s{sKVB}, s{sLW}, 9216
    s_mul_i32 s{sT2}, s{sBH}, 36864
    s_add_u32 s{sT2}, s{sT2}, s{sKVB}
    """)
    for i in range(3):
        a(f"""
        v_mul_u32_u24 v6, 384, v{vK0[i]}
        v_add_u32 v6, s{sT2}, v6
        v_lshrrev_b32 v3, 1, v{vK0[i]}
        v_xor_b32 v4, v3, v{vCP[i]}
        v_xor_b32 v4, s{sT1}, v4
        v_lshl_add_u32 v{vKA[i]}, v4, 4, v6
        v_xor_b32 v4, 4, v4
        v_lshl_add_u32 v{vKB[i]}, v4, 4, v6
        v_and_b32 v3, 1, v3
        v_lshlrev_b32 v3, 2, v3
        v_xor_b32 v4, v3, v{vCP[i]}
        v_lshl_add_u32 v{vV[i]}, v4, 4, v6
        """)
    ldW(2); ldX(1); ldW(3); ldX(2)
    a.c("phase C / D loader addresses")
    a(f"""
    s_and_b32 s{sT1}, s{sLW}, 1
    s_lshr_b32 s{sT2}, s{sLW}, 1
    s_mul_i32 s{sWE}, s{sT2}, 40960
    s_mul_i32 s{sWM}, s{sLW}, 5120
    s_mul_i32 s{sT1}, s{sT1}, 320
    s_mul_i32 s{sT2}, s{sG}, {768*1280}
    s_mul_i32 s{sT3}, s{sJ}, 320
    s_add_u32 s{sT2}, s{sT2}, s{sT3}
    """)
    for i in range(5):
        a(f"""
        v_add_u32 v2, s{sT1}, v0
        v_add_u32 v2, {64*i}, v2
        v_mul_u32_u24 v3, 3277, v2
        v_lshrrev_b32 v3, 16, v3            ; row = t/20
        v_mul_u32_u24 v4, 20, v3
        v_sub_u32 v4, v2, v4                ; cp
        v_lshrrev_b32 v5, 1, v3
        v_and_b32 v5, 2, v5
        v_xor_b32 v4, v4, v5
        v_mul_u32_u24 v3, 1280, v3
        v_lshl_add_u32 v3, v4, 4, v3
        v_add_u32 v{vWO[i]}, s{sT2}, v3
        """)
    a(f"""
    s_mul_i32 s{sWK}, s{sJ}, {3*81920}
    s_mul_i32 s{sJ4}, s{sJ}, 3
    s_add_u32 s{sJ4}, s{sJ4}, 4
    s_mov_b32 s{sWC}, s{sB}
    s_mov_b32 s{sOC}, s{sB}
    v_lshlrev_b32 v7, 4, v0
    s_add_u32 s{sT1}, s{sWM}, {L_WO}
    v_add_u32 v{vSW[0]}, s{sT1}, v7
    v_add_u32 v{vSW[1]}, 40960, v{vSW[0]}
    s_add_u32 s{sT1}, s{sJ}, 1
    s_and_b32 s{sT1}, s{sT1}, 3
    s_mul_i32 s{sOK}, s{sT1}, {3*12288}
    s_mul_i32 s{sOM0}, s{sLW}, 3072
    s_lshl_b32 s{sT1}, s{sB}, 3
    s_add_u32 s{sT1}, s{sT1}, s{sG}
    s_mul_i32 s{sT1}, s{sT1}, 147456
    s_add_u32 s{sT1}, s{sT1}, s{sOM0}
    s_add_u32 s{sT1}, s{sT1}, {cfg.ws_o}
    v_add_u32 v{vOR}, s{sT1}, v7
    v_min_u32 v2, 11, v0
    v_lshlrev_b32 v2, 2, v2
    s_add_u32 s{sT1}, s{sINB}, 1024
    v_add_u32 v{vP1}, s{sT1}, v2
    v_min_u32 v2, 7, v0
    v_max_u32 v2, 1, v2
    v_add_u32 v2, s{sG}, v2
    v_and_b32 v2, 7, v2
    v_lshlrev_b32 v3, 7, v2
    v_add_u32 v{vP2}, s{sINB}, v3
    s_lshr_b32 s{sT1}, s2, 3
    s_lshl_b32 s{sT1}, s{sT1}, 2
    s_add_u32 s{sT1}, s{sT1}, s{sLW}
    s_mul_i32 s{sT1}, s{sT1}, 7680
    s_mul_i32 s{sT2}, s{sG}, 983040
    s_add_u32 s{sT1}, s{sT1}, s{sT2}
    v_min_u32 v2, 59, v0
    v_lshlrev_b32 v2, 7, v2
    v_add_u32 v{vPF}, s{sT1}, v2
    s_and_b32 s{sT0}, s{sG}, 1
    s_lshl_b32 s{sT0}, s{sT0}, 2
    s_add_u32 s{sU}, s{sT0}, s{sLW}
    s_lshl_b32 s{sT2}, s{sB}, 2
    s_add_u32 s{sT2}, s{sT2}, s{sJ}
    s_lshl_b32 s{sT2}, s{sT2}, 5
    s_lshr_b32 s{sT1}, s{sG}, 1
    s_add_u32 s{sT2}, s{sT2}, s{sT1}
    s_lshl_b32 s{sT2}, s{sT2}, 3
    s_add_u32 s{sT2}, s{sT2}, s{sU}
    s_lshl_b32 s{sT2}, s{sT2}, 10
    s_add_u32 s{sT2}, s{sT2}, {cfg.ws_p}
    v_add_u32 v{vDL}, s{sT2}, v7            ; + src*32768
    s_bfe_u32 s{sT0}, s{sG}, 0x10001        ; i
    s_lshr_b32 s{sT1}, s{sG}, 2             ; jq
    s_mul_i32 s{sT1}, s{sT1}, 48
    s_mul_i32 s{sT2}, s{sB}, 96
    s_add_u32 s{sT1}, s{sT1}, s{sT2}
    s_lshr_b32 s{sT2}, s{sU}, 1             ; t (u<6)
    s_cmp_eq_u32 s{sU}, 6
    s_cselect_b32 s{sT2}, 0, s{sT2}
    s_cmp_eq_u32 s{sU}, 7
    s_cselect_b32 s{sT2}, 2, s{sT2}
    s_lshl_b32 s{sT2}, s{sT2}, 4
    s_add_u32 s{sT1}, s{sT1}, s{sT2}
    s_mul_i32 s{sT1}, s{sT1}, 1280
    s_and_b32 s{sT2}, s{sU}, 1
    s_lshl_b32 s{sT2}, s{sT2}, 6
    s_mul_i32 s{sT3}, s{sT0}, 192           ; (80+16) columns * 2B * i
    s_add_u32 s{sT2}, s{sT2}, s{sT3}
    s_lshl_b32 s{sT3}, s{sT0}, 5
    s_add_u32 s{sT3}, s{sT3}, 128           ; (64 + 16 i) * 2B
    s_cmp_ge_u32 s{sU}, 6
    s_cselect_b32 s{sT2}, s{sT3}, s{sT2}
    s_add_u32 s{sT1}, s{sT1}, s{sT2}
    s_mul_i32 s{sT2}, s{sJ}, 320
    s_add_u32 s{sT1}, s{sT1}, s{sT2}
    v_and_b32 v2, 15, v0
    v_mul_u32_u24 v2, 1280, v2
    v_lshrrev_b32 v3, 4, v0
    v_lshl_add_u32 v2, v3, 3, v2
    v_add_u32 v{vDO}, s{sT1}, v2
    s_mov_b32 s{sDN}, 32
    s_cmp_eq_u32 s{sU}, 6
    s_cselect_b32 s{sDN}, {16*1280}, s{sDN}
    s_cmp_eq_u32 s{sU}, 7
    s_cselect_b32 s{sDN}, 16, s{sDN}
    """)
    stamp(a, cfg, 1)
    a.wait_vm(("W", 0), ("X", 0))
    a("s_barrier   ; P")
    stamp(a, cfg, 2)
    a.wait_vm(("W", 1), ("X", 0))
    a.c("wave 7: inbox cleared (its stores are older than W1) -> arrive on the group word in d_debug")
    a(f"""
    s_cmp_lg_u32 s{sWAVE}, 7
    s_cbranch_scc1 L_noarr
    s_getreg_b32 s{sT1}, hwreg(HW_REG_XCC_ID, 0, 4)
    s_lshl_b32 s{sT2}, s{sJ}, 2
    s_add_u32 s{sT2}, s{sT2}, 4
    s_lshl_b32 s{sT1}, s{sT1}, s{sT2}
    s_add_u32 s{sT1}, s{sT1}, 1
    s_lshl_b32 s{sT2}, s{sB}, 3
    s_add_u32 s{sT2}, s{sT2}, s{sG}
    s_lshl_b32 s{sT2}, s{sT2}, 2
    v_mov_b32 v2, s{sT1}
    v_mov_b32 v3, s{sT2}
    s_mov_b64 exec, 1
    buffer_atomic_add v2, v3, s[{rDBG}:{rDBG+3}], 0 offen sc1
    s_mov_b64 exec, -1
    """)
    a.label("L_noarr")
    variants = cfg.kv_variants or [(cfg.k_sched, cfg.v_sched)]
    nv = len(variants)
    if nv > 1:
        a(f"s_lshr_b32 s{sT1}, s2, {cfg.kv_sel_shift}")
        a(f"s_and_b32 s{sT1}, s{sT1}, {nv-1}")
        for v in range(1, nv):
            a(f"s_cmp_eq_u32 s{sT1}, {v}")
            a(f"s_cbranch_scc1 L_kvvar{v}")
    vm0 = list(a.vm)
    for v, var in enumerate(variants):
        ksch, vsch = var[0], var[1]
        pfs = var[2] if len(var) > 2 else cfg.pf_at
        if v: a.label(f"L_kvvar{v}")
        a.vm = list(vm0)
        for s in range(19):
            a.wait_vm(("W", s + 1), ("X", (s + 1) >> 1))
            a(f"s_barrier   ; B{s}")
            if s + 4 < 20: ldW(s + 4)
            if s & 1 and (s >> 1) + 3 < 10: ldX((s >> 1) + 3)
            if cfg.wo_prefetch and pfs == s:
                a.vmem(f"buffer_load_dword v253, v{vPF}, s[{rWO}:{rWO+3}], 0 offen {cfg.polPF}", "pf")
            for i, ss in enumerate(ksch):
                if ss == s: ldK(i)
            for i, ss in enumerate(vsch):
                if ss == s: ldV(i)
            if s in (4, 9, 14): stamp(a, cfg, 3 + (s - 4) // 5)
        a.wait_vm("K")
        if v < nv - 1: a("s_branch L_kvjoin")
    if nv > 1: a.label("L_kvjoin")
    stamp(a, cfg, 6)
    a("s_barrier   ; Q")
    a.vm = ["V"]
    def pf():
        if cfg.wo_prefetch:
            a.vmem(f"buffer_load_dword v253, v{vPF}, s[{rWO}:{rWO+3}], 0 offen {cfg.polPF}", "pf")
    a.c("have the 32 workgroups of this batch cleared their inboxes?  (read now, looked at before the V barrier)")
    a(f"""
    v_and_b32 v2, 7, v0
    v_lshlrev_b32 v2, 2, v2
    s_lshl_b32 s{sSPIN}, s{sB}, 5
    v_add_u32 v2, s{sSPIN}, v2
    """)
    a.vmem(f"buffer_load_dword v3, v2, s[{rDBG}:{rDBG+3}], 0 offen sc1", "hs")
    if cfg.pf_at == "Q": pf()
    nxt = 0
    def issue_upto(n):
        nonlocal nxt
        while nxt < n:
            ld_wo_pair(a, cfg, nxt); nxt += 1
    for p in range(2, cfg.early): assert p in cfg.staged
    issue_upto(cfg.early)
    a.wait_vm("hs")
    def chk():
        a(f"""
        v_and_b32 v4, 7, v3
        v_cmp_eq_u32 vcc, 4, v4
        s_cmp_eq_u64 vcc, -1
        """)
    chk()
    a("s_cbranch_scc1 L_hsok")
    save = list(a.vm)
    poll(a, cfg, 2, rDBG, "0", 3, chk)
    a.vm = save
    a.label("L_hsok")
    a(f"""
    s_cmp_lg_u32 s{sWAVE}, 7
    s_cbranch_scc1 L_nohs
    v_readlane_b32 s{sT1}, v3, s{sG}
    s_bfe_u32 s{sT1}, s{sT1}, 0x100004
    s_and_b32 s{sT2}, s{sT1}, 15
    s_mul_i32 s{sT2}, s{sT2}, 0x1111
    s_cmp_eq_u32 s{sT1}, s{sT2}
    s_cselect_b32 s{sT1}, {0 if cfg.force_slow else 1}, 0
    v_mov_b32 v2, {L_FLAG}
    v_mov_b32 v3, s{sT1}
    ds_write_b32 v2, v3
    buffer_load_dword v253, v{vP1}, s[{rWS}:{rWS+3}], 0 offen sc1
    s_waitcnt lgkmcnt(0)
    """)
    a.label("L_nohs")
    stamp(a, cfg, 8)
    a("s_barrier   ; V")
    if cfg.pf_at == "V": pf()
    for p in (2, 3):
        if p in cfg.staged and p < nxt: put_wo_pair(a, cfg, p)
    issue_upto(cfg.mid)
    for p in (2, 3):
        if p in cfg.staged and not any(t == ("WOL", p) for t in a.lg) and p >= cfg.early: put_wo_pair(a, cfg, p)
    if cfg.pf_at == "V2": pf()
    stamp(a, cfg, 10)
    a.wait_vm(("WO", 0))
    stamp(a, cfg, 12)
    a("s_barrier   ; O1")
    stamp(a, cfg, 13)
    for p in range(max(nxt, 4), cfg.late): assert p in cfg.staged
    issue_upto(max(4, cfg.late))
    def chk1():
        a(f"v_cmp_eq_u32 vcc, 1, v3")
        a("s_cmp_eq_u64 vcc, -1")
    for p in range(11):
        if p in (1, 2): stamp(a, cfg, 21 + p)
        if p == 2:
            a.c("wait for the siblings' O tiles")
            poll(a, cfg, vP1, rWS, "0", 3, chk1)
            if cfg.stamps: a(f"v_writelane_b32 v255, s{sSPIN}, 30")
            stamp(a, cfg, 14)
            for pp in (3, 4, 5): ld_o_pair(a, cfg, pp)
        a.wait_vm(("WO", p + 1), ("O", p + 1))
        a.wait_lg(("WOL", p + 1))
        if p in (2, 3): stamp(a, cfg, 22 + p)
        a(f"s_barrier   ; C{p}")
        if p + 4 < 12:
            issue_upto(p + 5)
            if p + 4 in cfg.staged: put_wo_pair(a, cfg, p + 4)
        if p >= 3 and p + 3 < 12: ld_o_pair(a, cfg, p + 3)
        if p in (2, 5, 8): stamp(a, cfg, 15 + (p - 2) // 3)
    stamp(a, cfg, 18)
    a.c("phase D")
    A = 48
    a("s_barrier   ; PD")
    stamp(a, cfg, 26)
    a(f"s_lshl_b32 s{sT0}, s{sLW}, 10")
    a(f"v_lshlrev_b32 v2, 4, v0")
    a(f"v_add_u32 v2, s{sT0}, v2")
    a.ds(f"ds_read_b128 v[16:19], v2 offset:{L_OWN}", "own")
    a(f"s_cmp_lg_u32 s{sWAVE}, 4")
    a("s_cbranch_scc1 L_nopoll2")
    if cfg.h2_delay: a(f"s_sleep {cfg.h2_delay}")
    def chk2():
        a(f"v_cmp_eq_u32 vcc, 1, v3")
        a("s_cmp_eq_u64 vcc, -1")
    poll(a, cfg, vP2, rWS, "0", 3, chk2)
    a.label("L_nopoll2")
    a("s_barrier   ; PE")
    if cfg.stamps: a(f"v_writelane_b32 v255, s{sSPIN}, 31")
    stamp(a, cfg, 19)
    a(f"""
    s_cmp_eq_u32 s{sU}, 7
    s_cselect_b32 exec_hi, 0, -1
    """)
    a.vm = []
    for k in range(1, 8):
        a(f"""
        s_add_u32 s{sT0}, s{sG}, {k}
        s_and_b32 s{sT0}, s{sT0}, 7
        s_lshl_b32 s{sT0}, s{sT0}, 15
        """)
        a.vmem(f"buffer_load_dwordx4 {vr(16+4*k)}, v{vDL}, s[{rWS}:{rWS+3}], s{sT0} offen sc1", ("p", k))
    a(f"s_mov_b32 s{sT1}, 0xffff0000")
    for k in range(8):
        if k == 0: a.wait_lg_all()
        a.wait_vm(("p", k))
        for i in range(4):
            s = 16 + 4 * k + i
            if k == 0:
                a(f"v_lshlrev_b32 v{A+2*i}, 16, v{s}")
                a(f"v_and_b32 v{A+2*i+1}, s{sT1}, v{s}")
            else:
                a(f"v_lshlrev_b32 v{60+2*i}, 16, v{s}")
                a(f"v_and_b32 v{61+2*i}, s{sT1}, v{s}")
                a(f"v_add_f32 v{A+2*i}, v{A+2*i}, v{60+2*i}")
                a(f"v_add_f32 v{A+2*i+1}, v{A+2*i+1}, v{61+2*i}")
    stamp(a, cfg, 20)
    for i in range(4):
        a(f"v_cvt_pk_bf16_f32 v{16+i}, v{A+2*i}, v{A+2*i+1}")
    a(f"buffer_store_dwordx2 v[16:17], v{vDO}, s[{rOUT}:{rOUT+3}], 0 offen")
    a(f"buffer_store_dwordx2 v[18:19], v{vDO}, s[{rOUT}:{rOUT+3}], s{sDN} offen")
    a("s_mov_b64 exec, -1")
    a("s_branch L_fin")


def computeA(a, cfg):
    a.label("L_computeA")
    a.reset()
    a(f"s_mov_b32 s{sROLE}, 0")
    if cfg.prefetch_code:
        a.c("wave w warms L2 with 8 KB of this kernel's code (one dword per 128-byte line)")
        a(f"s_getpc_b64 s[{sT2}:{sT2+1}]")
        a.label("L_pc")
        a(f"""
        s_sub_u32 s{sT2}, s{sT2}, L_pc-{KN}
        s_subb_u32 s{sT2+1}, s{sT2+1}, 0
        s_lshl_b32 s{sT0}, s{sWAVE}, 13
        v_lshlrev_b32 v2, 7, v0
        v_add_u32 v2, s{sT0}, v2
        v_min_u32 v2, L_end-{KN}, v2
        global_load_dword v253, v2, s[{sT2}:{sT2+1}]
        """)
    ACC = 16
    def acc(T, t): return ACC + (T * 6 + t) * 4
    SETA = [88, 124]; SETB = [100, 136]
    a.c("phase A addresses: v2=kq v3=r v4=c v5=n")
    a(f"""
    v_lshrrev_b32 v2, 4, v0
    v_bfe_u32 v3, v0, 2, 2
    v_and_b32 v4, 3, v0
    v_and_b32 v5, 15, v0
    v_lshlrev_b32 v6, 3, v2
    v_add_u32 v6, v6, v3                     ; k = 8kq + r
    v_mul_u32_u24 v6, 384, v6
    v_lshl_add_u32 v6, v4, 3, v6             ; k*384 + 8c
    v_lshrrev_b32 v7, 1, v3
    v_and_b32 v8, 1, v2
    v_lshl_or_b32 v7, v8, 1, v7              ; h(k)
    s_mul_i32 s{sT0}, s{sWAVE}, 3
    """)
    for T in range(3):
        a(f"""
        s_add_u32 s{sT1}, s{sT0}, {T}
        v_xor_b32 v8, s{sT1}, v7
        v_lshl_add_u32 v{vA[T]}, v8, 5, v6
        """)
    a(f"""
    v_lshrrev_b32 v6, 1, v5                  ; (n>>1)&7
    v_xor_b32 v6, v6, v2
    v_lshlrev_b32 v6, 4, v6
    v_lshl_add_u32 v6, v5, 7, v6
    v_add_u32 v{vXe}, {L_X}, v6
    v_xor_b32 v{vXo}, 64, v{vXe}
    v_lshrrev_b32 v6, 1, v2
    v_lshlrev_b32 v6, 9, v6
    v_lshl_add_u32 v6, v5, 4, v6
    v_and_b32 v7, 1, v2
    v_lshl_add_u32 v6, v7, 3, v6
    s_mul_i32 s{sT0}, s{sWAVE}, 3072
    v_add_u32 v{vQW}, s{sT0}, v6
    v_lshlrev_b32 v{vL16}, 4, v0
    v_mov_b32 v{vONE}, 1
    v_and_b32 v6, 31, v0
    v_lshrrev_b32 v7, 5, v0
    v_bfe_u32 v8, v0, 1, 3                   ; (m>>1)&7
    v_xor_b32 v8, v8, v7
    v_mul_u32_u24 v9, 384, v6
    v_lshl_add_u32 v9, v8, 4, v9
    v_add_u32 v{vK0c}, {L_K}, v9
    v_lshl_add_u32 v8, v7, 2, v3
    v_mul_u32_u24 v8, 384, v8
    v_lshl_add_u32 v8, v4, 3, v8             ; + 8c
    v_and_b32 v9, 2, v3                      ; hh
    v_and_b32 v6, 1, v2                      ; dh
    v_or_b32 v9, v9, v6
    v_lshl_add_u32 v8, v9, 5, v8
    v_add_u32 v{vV0}, {L_V}, v8
    v_lshlrev_b32 v8, 10, v6                 ; (n>>4)*1024
    v_lshl_add_u32 v8, v7, 8, v8             ; + hi*256
    v_lshl_add_u32 v8, v5, 4, v8             ; + (n&15)*16
    s_lshl_b32 s{sT0}, s{sWAVE}, 11
    v_add_u32 v{vOL}, s{sT0}, v8
    s_lshl_b32 s{sT2}, s{sB}, 3
    s_add_u32 s{sT2}, s{sT2}, s{sG}
    s_lshl_b32 s{sT2}, s{sT2}, 2
    s_add_u32 s{sT2}, s{sT2}, s{sJ}
    s_mul_i32 s{sOB}, s{sT2}, 36864
    s_add_u32 s{sOB}, s{sOB}, {cfg.ws_o}
    s_lshl_b32 s{sT2}, s{sJ}, 11
    s_sub_u32 s{sT2}, s{sINB}, s{sT2}
    s_add_u32 s{sT2}, s{sT2}, 1024
    s_mul_i32 s{sT3}, s{sJ}, 12
    s_add_u32 s{sT2}, s{sT2}, s{sT3}
    s_lshl_b32 s{sT3}, s{sWAVE}, 2
    s_add_u32 s{sT2}, s{sT2}, s{sT3}
    v_lshlrev_b32 v8, 11, v4
    v_add_u32 v{vF1}, s{sT2}, v8
    s_and_b32 s{sI}, s{sWAVE}, 1
    s_lshr_b32 s{sJQ}, s{sWAVE}, 1
    v_lshrrev_b32 v6, 1, v2
    v_lshlrev_b32 v6, 4, v6
    v_and_b32 v7, 1, v2
    v_lshl_add_u32 v6, v7, 2, v6
    v_add_u32 v6, v6, v3
    v_mul_u32_u24 v6, 320, v6
    v_lshl_add_u32 v6, v4, 3, v6
    v_add_u32 v6, {L_WO}, v6
    s_mul_i32 s{sT0}, s{sI}, 5
    """)
    for T in range(5):
        a(f"""
        s_add_u32 s{sT1}, s{sT0}, {T}
        v_xor_b32 v8, s{sT1}, v7
        v_lshl_add_u32 v{vCA0[T]}, v8, 5, v6
        """)
    a(f"""
    s_lshl_b32 s{sT0}, s{sB}, 2
    s_add_u32 s{sT0}, s{sT0}, s{sJ}
    s_lshl_b32 s{sT0}, s{sT0}, 3
    s_add_u32 s{sT0}, s{sT0}, s{sG}
    s_lshl_b32 s{sT0}, s{sT0}, 2
    s_add_u32 s{sT0}, s{sT0}, s{sWAVE}
    s_lshl_b32 s{sT0}, s{sT0}, 13
    s_add_u32 s{sPS}, s{sT0}, {cfg.ws_p}
    s_lshl_b32 s{sT0}, s{sB}, 5
    s_lshl_b32 s{sT1}, s{sWAVE}, 3
    s_add_u32 s{sT0}, s{sT0}, s{sT1}
    s_add_u32 s{sT0}, s{sT0}, s{sJ}
    s_lshl_b32 s{sT0}, s{sT0}, 11
    s_lshl_b32 s{sT1}, s{sG}, 7
    s_add_u32 s{sT0}, s{sT0}, s{sT1}
    s_add_u32 s{sT0}, s{sT0}, {cfg.ws_in}
    v_and_b32 v3, 1, v0
    v_lshlrev_b32 v3, 13, v3
    v_add_u32 v{vF2}, s{sT0}, v3
    """)
    wait_kernarg(a, cfg)
    srd(a, rWS, sWS, WS_BYTES)
    if cfg.pretouch:
        a.c("wave 1 touches the pages used later so that their translations are resident")
        a(f"""
        s_cmp_lg_u32 s{sWAVE}, 1
        s_cbranch_scc1 L_notouch
        """)
        srd(a, rK, sK, KV_BYTES); srd(a, rV, sV, KV_BYTES); srd(a, rWO, sWO, W_BYTES); srd(a, rOUT, sOUT, OUT_BYTES)
        a(f"""
        s_mov_b64 exec, 3
        v_mul_u32_u24 v2, 36860, v0
        s_mul_i32 s{sT0}, s{sBH}, 36864
        buffer_load_dword v253, v2, s[{rK}:{rK+3}], s{sT0} offen nt
        buffer_load_dword v253, v2, s[{rV}:{rV+3}], s{sT0} offen nt
        v_mul_u32_u24 v2, 983036, v0
        s_mul_i32 s{sT0}, s{sG}, 983040
        buffer_load_dword v253, v2, s[{rWO}:{rWO+3}], s{sT0} offen
        buffer_load_dword v253, v2, s[{rOUT}:{rOUT+3}], 0 offen nt
        buffer_load_dword v253, v{vL16}, s[{rWS}:{rWS+3}], s{sOB} offen nt
        buffer_load_dword v253, v{vL16}, s[{rWS}:{rWS+3}], s{sPS} offen nt
        s_mov_b64 exec, -1
        """)
        a.label("L_notouch")
    stamp(a, cfg, 1)

    def reads(s):
        st = s & 1
        wo = L_W + (s % 4) * 12288
        xo = ((s >> 1) % 3) * 12288
        vx = vXo if s & 1 else vXe
        R = []
        def ra(T):
            R.append((f"ds_read_b64_tr_b16 {vr(SETA[st]+4*T, 2)}, v{vA[T]} offset:{wo}", ("A", s, T)))
            R.append((f"ds_read_b64_tr_b16 {vr(SETA[st]+4*T+2, 2)}, v{vA[T]} offset:{wo+1536}", ("A", s, T)))
        ra(0)
        for t in range(6):
            R.append((f"ds_read_b128 {vr(SETB[st]+4*t)}, v{vx} offset:{xo + t*2048}", ("B", s, t)))
        ra(1); ra(2)
        return R

    a("s_barrier   ; P")
    stamp(a, cfg, 2)
    for ins, tag in reads(0): a.ds(ins, tag)
    def qwrite(T, t):
        d = acc(T, t)
        tmp = 88 + ((T * 6 + t) % 8) * 2
        return [f"v_cvt_pk_bf16_f32 v{tmp}, v{d}, v{d+1}", f"v_cvt_pk_bf16_f32 v{tmp+1}, v{d+2}, v{d+3}",
                ("ds", f"ds_write_b64 v{vQW}, {vr(tmp, 2)} offset:{L_Q + 1024*T + 12288*(t >> 1) + 256*(t & 1)}")]
    for s in range(20):
        a.wait_lg_all()
        if s < 19:
            a(f"s_barrier   ; B{s}")
        R = reads(s + 1) if s < 19 else []
        st = s & 1
        m = 0
        qq = []
        for T in range(3):
            for t in range(6):
                a(mfma(acc(T, t), SETA[st] + 4 * T, SETB[st] + 4 * t, first=(s == 0)))
                if m < len(R): a.ds(*R[m])
                if s == 19:
                    if m >= 6:
                        T2, t2 = divmod(m - 6, 6)
                        qq += qwrite(T2, t2)
                    for _ in range(2):
                        if qq:
                            x = qq.pop(0)
                            a.ds(x[1], "qw") if isinstance(x, tuple) else a(x)
                m += 1
        if s in (4, 9, 14): stamp(a, cfg, 3 + (s - 4) // 5)
    stamp(a, cfg, 6)
    a.c("Q -> bf16 -> LDS (fragment-major)")
    for m in range(12, 18): qq += qwrite(*divmod(m, 6))
    for x in qq:
        a.ds(x[1], "qw") if isinstance(x, tuple) else a(x)
    a.wait_lg_all()
    a("s_barrier   ; Q")
    a(f"""
    s_cmp_lt_u32 s{sWAVE}, 3
    s_cbranch_scc1 L_phaseB
    s_barrier   ; V
    s_barrier   ; O1
    s_branch L_computeC
    """)


def phaseB(a, cfg):
    a.label("L_phaseB")
    a.reset()
    S = 16; QF = 72; KF = 120; P = 64; VF = 88; O = 136; OB = 184
    vQR = 10; vKa = [vK0c, 11, 12, 13]; vVa = [vV0, 14]
    M, T1 = 2, 3
    N = [4, 5, 6]; LA = [7, 9, 10]; LB = [8, 15, 11]
    sC2 = sSTAMP + 8
    stamp(a, cfg, 7)
    a(f"s_mul_i32 s{sT0}, s{sWAVE}, 12288")
    a(f"v_add_u32 v{vQR}, s{sT0}, v{vL16}")
    def qread(ks): a.ds(f"ds_read_b128 {vr(QF+4*ks)}, v{vQR} offset:{L_Q + ks*1024}", ("Q", ks))
    def kread(i):
        kt, ks = divmod(i, 12)
        a.ds(f"ds_read_b128 {vr(KF + 4*(i % 4))}, v{vKa[ks & 3]} offset:{kt*12288 + (ks >> 2)*128}", ("K", i))
    qread(0); kread(0)
    for x in range(1, 4): a(f"v_xor_b32 v{vKa[x]}, {32*x}, v{vK0c}")
    qread(1); kread(1); qread(2); kread(2); kread(3)
    a(f"v_xor_b32 v{vVa[1]}, 64, v{vV0}")
    a(f"s_mov_b32 s{sC2}, {f32hex(SCALE)}")
    a(f"s_mov_b32 s{sC2+1}, {f32hex(SCALE)}")
    def maxops(kt):
        b = S + 16 * kt
        r = []
        if kt == 0:
            r.append(f"v_max3_f32 v{M}, v{b}, v{b+1}, v{b+2}"); r.append(f"v_max3_f32 v{T1}, v{b+3}, v{b+4}, v{b+5}")
            rest = list(range(6, 16))
        else:
            r.append(f"v_max3_f32 v{T1}, v{b}, v{b+1}, v{b+2}")
            rest = list(range(3, 16))
        tog = 0
        while len(rest) >= 2:
            d = (M, T1)[tog]; tog ^= 1
            r.append(f"v_max3_f32 v{d}, v{d}, v{b+rest[0]}, v{b+rest[1]}"); rest = rest[2:]
        if rest: r.append(f"v_max3_f32 v{M}, v{M}, v{T1}, v{b+rest[0]}")
        else: r.append(f"v_max_f32 v{M}, v{M}, v{T1}")
        r += [f"v_mov_b32 v{T1}, v{M}", "s_nop 1", f"v_permlane32_swap_b32 v{M}, v{T1}", f"v_max_f32 v{M}, v{M}, v{T1}",
              f"v_mul_f32 v{N[kt]}, {f32hex(-SCALE)}, v{M}"]
        return r
    def expops(kt):
        b = S + 16 * kt
        r = []
        for i in range(16 + 3):
            if i < 16: r.append(f"v_fmamk_f32 v{b+i}, v{b+i}, {f32hex(SCALE)}, v{N[kt]}")
            if 1 <= i <= 16: r.append(f"v_exp_f32 v{b+i-1}, v{b+i-1}")
            j = i - 3
            if j == 1: r.append(f"v_add_f32 v{LA[kt]}, v{b}, v{b+1}")
            elif j == 3: r.append(f"v_add_f32 v{LB[kt]}, v{b+2}, v{b+3}")
            elif j >= 4: r.append(f"v_add_f32 v{(LA if j % 2 == 0 else LB)[kt]}, v{(LA if j % 2 == 0 else LB)[kt]}, v{b+j}")
        return r
    fill = []
    for i in range(36):
        kt, ks = divmod(i, 12)
        if i % 2 == 0: a.wait_lg(("Q", ks), ("K", i), ("Q", ks + 1), ("K", i + 1))
        a(mfma32(S + 16 * kt, KF + 4 * (i % 4), QF + 4 * ks, first=(ks == 0)))
        if i + 4 < 36: kread(i + 4)
        if i + 3 < 12: qread(i + 3)
        if i == 14: fill += maxops(0) + expops(0)
        if i == 26: fill += maxops(1) + expops(1)
        for _ in range(cfg.fill_s):
            if fill: a(fill.pop(0))
    stamp(a, cfg, 8)
    a("s_barrier   ; V")
    stamp(a, cfg, 9)
    def vread(i):
        Td, s = divmod(i, 6)
        for e in range(2):
            a.ds(f"ds_read_b64_tr_b16 {vr(VF + 4*(i % 12) + 2*e, 2)}, v{vVa[Td & 1]} offset:{(Td >> 1)*128 + s*6144 + e*3072}", ("V", i))
    NV = 6
    for i in range(NV): vread(i)
    a(f"v_mov_b32 v1, {L_FLAG}")
    a.ds("ds_read_b32 v1, v1", "fast")
    for x in fill + maxops(2): a(x)
    b = S + 32
    a(f"v_sub_f32 v{N[0]}, v{N[2]}, v{N[0]}")
    a(f"v_sub_f32 v{N[1]}, v{N[2]}, v{N[1]}")
    for i in range(0, 16, 2):
        a(f"v_pk_fma_f32 v[{b+i}:{b+i+1}], v[{b+i}:{b+i+1}], s[{sC2}:{sC2+1}], v[{N[2]}:{N[2]+1}] op_sel_hi:[1,1,0]")
    a(f"v_exp_f32 v{N[0]}, v{N[0]}")
    a(f"v_exp_f32 v{N[1]}, v{N[1]}")
    a(f"v_add_f32 v{LA[0]}, v{LA[0]}, v{LB[0]}")
    a(f"v_add_f32 v{LA[1]}, v{LA[1]}, v{LB[1]}")
    for i in range(16):
        a(f"v_exp_f32 v{b+i}, v{b+i}")
    a(f"v_mul_f32 v{LA[0]}, v{LA[0]}, v{N[0]}")
    a(f"v_fmac_f32 v{LA[0]}, v{LA[1]}, v{N[1]}")
    a(f"v_pk_add_f32 v[{LA[2]}:{LA[2]+1}], v[{b}:{b+1}], v[{b+2}:{b+3}]")
    a(f"v_pk_add_f32 v[{M}:{M+1}], v[{b+4}:{b+5}], v[{b+6}:{b+7}]")
    for i in range(8, 16, 4):
        a(f"v_pk_add_f32 v[{LA[2]}:{LA[2]+1}], v[{LA[2]}:{LA[2]+1}], v[{b+i}:{b+i+1}]")
        a(f"v_pk_add_f32 v[{M}:{M+1}], v[{M}:{M+1}], v[{b+i+2}:{b+i+3}]")
    a(f"v_pk_add_f32 v[{M}:{M+1}], v[{M}:{M+1}], v[{LA[2]}:{LA[2]+1}]")
    a(f"v_add_f32 v{M}, v{M}, v{T1}")
    a(f"v_add_f32 v{M}, v{M}, v{LA[0]}")
    a(f"v_mov_b32 v{T1}, v{M}")
    a(f"v_permlane32_swap_b32 v{M}, v{T1}")
    a(f"v_add_f32 v{M}, v{M}, v{T1}")
    a(f"v_rcp_f32 v{N[2]}, v{M}")
    a.wait_lg("fast")
    a(f"v_readfirstlane_b32 s{sFAST}, v1")
    a(f"v_mul_f32 v{N[0]}, v{N[0]}, v{N[2]}")
    a(f"v_mul_f32 v{N[1]}, v{N[1]}, v{N[2]}")
    a(f"s_cmp_lg_u32 s{sFAST}, 0")
    a("s_cselect_b64 vcc, -1, 0")
    for s in range(6):
        kt = s >> 1
        g = N[kt]
        pair, sel = (g & ~1, g & 1)
        b = S + 8 * s
        for i in range(0, 8, 2):
            a(f"v_pk_mul_f32 v[{b+i}:{b+i+1}], v[{b+i}:{b+i+1}], v[{pair}:{pair+1}] op_sel:[0,{sel}] op_sel_hi:[1,{sel}]")
        for i in range(4):
            a(f"v_cvt_pk_bf16_f32 v{P+4*s+i}, v{b+2*i}, v{b+2*i+1}")
    stamp(a, cfg, 10)
    nst = [0]
    def epi(Td):
        d = O + 16 * (Td % 3)
        r = []
        for e in range(2):
            o = OB + (2 * (Td % 2) + e) * 4
            for i in range(4): r.append(f"v_cvt_pk_bf16_f32 v{o+i}, v{d+8*e+2*i}, v{d+8*e+2*i+1}")
            r.append(("ds", f"ds_write_b128 v{vOL}, {vr(o)} offset:{L_OWN + Td*6144 + e*512}"))
            if not cfg.skip_ostore:
                nst[0] += 1
                n = nst[0]
                st = f"buffer_store_dwordx4 {vr(o)}, v{vOL}, s[{rWS}:{rWS+3}], s{sT0} offen"
                if cfg.o_fast_pol in ("sc1", "sc0 sc1"):
                    r.append(("blk", f"s_add_u32 s{sT0}, s{sOB}, {Td*6144 + e*512}\n{st} sc0 sc1"))
                else:
                    r.append(("blk", f"s_add_u32 s{sT0}, s{sOB}, {Td*6144 + e*512}\ns_cbranch_vccnz L_os{n}\n{st} sc0 sc1\ns_branch L_od{n}\nL_os{n}:\n{st} {cfg.o_fast_pol}\nL_od{n}:"))
        return r
    def emit(x):
        if isinstance(x, tuple):
            if x[0] == "ds": a.ds(x[1], "ow")
            else: a(x[1])
        else: a(x)
    fill = []
    for i in range(36):
        Td, s = divmod(i, 6)
        if i % 2 == 0: a.wait_lg(("V", i), ("V", i + 1))
        a(mfma32(O + 16 * (Td % 3), VF + 4 * (i % 12), P + 4 * s, first=(s == 0)))
        if i + NV < 36: vread(i + NV)
        if Td >= 1 and s == 3: fill += epi(Td - 1)
        for _ in range(cfg.fill_pv):
            if fill: emit(fill.pop(0))
    stamp(a, cfg, 11)
    for x in fill + epi(5): emit(x)
    stamp(a, cfg, 27)
    a.wait_lg_all()
    stamp(a, cfg, 12)
    a("s_barrier   ; O1")
    a.c("falls through into phase C")


def computeC(a, cfg):
    a.label("L_computeC")
    a.reset()
    if cfg.prio_c: a(f"s_setprio {cfg.prio_c}")
    ACC = 16
    def acc(T, t): return ACC + (T * 3 + t) * 4
    SETA = [76, 96]; SETB = [116, 128]
    vCA = [vCA0, vCA1]
    a(f"s_mul_i32 s{sT0}, s{sJQ}, 3072")
    a(f"v_add_u32 v{vCB[0]}, s{sT0}, v{vL16}")
    def reads(u):
        st = u & 1
        p = u >> 1
        hi, sl = divmod(p % 4, 2)
        so = sl * 20480 + (u & 1) * 10240
        if u < 6:
            vb, bo = vCB[0], L_OWN + u * 6144
        else:
            vb, bo = vCB[1], ((p - 3) % 3) * 12288 + (u & 1) * 6144
        R = []
        def ra(T):
            R.append((f"ds_read_b64_tr_b16 {vr(SETA[st]+4*T, 2)}, v{vCA[hi][T]} offset:{so}", ("A", u, T)))
            R.append((f"ds_read_b64_tr_b16 {vr(SETA[st]+4*T+2, 2)}, v{vCA[hi][T]} offset:{so+2560}", ("A", u, T)))
        ra(0)
        for t in range(3):
            R.append((f"ds_read_b128 {vr(SETB[st]+4*t)}, v{vb} offset:{bo + t*1024}", ("B", u, t)))
        for T in range(1, 5): ra(T)
        return R
    stamp(a, cfg, 13)
    for ins, tag in reads(0): a.ds(ins, tag)
    a(f"v_add_u32 v{vCB[1]}, {L_OR}, v{vCB[0]}")
    for T in range(5): a(f"v_add_u32 v{vCA1[T]}, 40960, v{vCA0[T]}")
    for u in range(24):
        if u & 1 and u < 23:
            a.wait_lg_all()
            a(f"s_barrier   ; C{u >> 1}")
        R = reads(u + 1) if u < 23 else []
        st = u & 1
        m = 0
        for T in range(5):
            for t in range(3):
                a.wait_lg(("A", u, T), ("B", u, t))
                a(mfma(acc(T, t), SETA[st] + 4 * T, SETB[st] + 4 * t, first=(u == 0)))
                if m < len(R): a.ds(*R[m])
                m += 1
        if u == cfg.h1_flag_step:
            a.c("waves 0-2 publish their O tile once its stores have drained")
            stamp(a, cfg, 22)
            a(f"""
            s_cmp_eq_u32 s{sWAVE}, 3
            s_cbranch_scc1 L_f1done
            s_waitcnt vmcnt(0)
            s_mov_b64 exec, 15
            s_cmp_lg_u32 s{sFAST}, 0
            s_cbranch_scc1 L_f1fast
            buffer_store_dword v{vONE}, v{vF1}, s[{rWS}:{rWS+3}], 0 offen sc0 sc1
            s_branch L_f1ex
            """)
            a.label("L_f1fast")
            a(f"buffer_store_dword v{vONE}, v{vF1}, s[{rWS}:{rWS+3}], 0 offen")
            a.label("L_f1ex")
            a("s_mov_b64 exec, -1")
            a.label("L_f1done")
            stamp(a, cfg, 23)
        if u in (2, 3): stamp(a, cfg, 22 + u)
        if u in (5, 11, 17): stamp(a, cfg, 15 + (u - 5) // 6)
    stamp(a, cfg, 18)
    a.c("partials, 8 units per wave: 6 tile pairs, the odd tile of q tiles 0|1, the odd tile of q tile 2 (32 lanes)")
    a(f"""
    s_cmp_lg_u32 s{sI}, 0
    s_cbranch_scc1 L_st1
    """)
    def cv(dst, d):
        a(f"v_cvt_pk_bf16_f32 v{dst}, v{d}, v{d+1}")
        a(f"v_cvt_pk_bf16_f32 v{dst+1}, v{d+2}, v{d+3}")
    U = 76
    for i in range(2):
        if i == 1:
            a("s_branch L_cvdone")
            a.label("L_st1")
        pairs = [(0, 1), (2, 3)] if i == 0 else [(1, 2), (3, 4)]
        odd = 4 if i == 0 else 0
        for t in range(3):
            for pi, (Ta, Tb) in enumerate(pairs):
                o = U + (2 * t + pi) * 4
                cv(o, acc(Ta, t)); cv(o + 2, acc(Tb, t))
        cv(U + 24, acc(odd, 0)); cv(U + 26, acc(odd, 1))
        cv(U + 28, acc(odd, 2))
    a.label("L_cvdone")
    a(f"v_permlane32_swap_b32 v{U+28}, v{U+30}")
    a(f"v_permlane32_swap_b32 v{U+29}, v{U+31}")
    a(f"s_lshr_b32 s{sT1}, s{sG}, 1")
    a(f"s_and_b32 s{sT2}, s{sG}, 1")
    for half in range(2):
        a(f"""
        s_cmp_lg_u32 s{sT1}, s{sWAVE}
        s_cbranch_scc1 L_rem{half}
        s_cmp_lg_u32 s{sT2}, {half}
        s_cbranch_scc1 L_rem{half}
        """)
        for k in range(4):
            a(f"ds_write_b128 v{vL16}, {vr(U + (4*half + k)*4)} offset:{L_OWN + k*1024}")
        a(f"s_branch L_remdone{half}")
        a.label(f"L_rem{half}")
        for k in range(4):
            u = 4 * half + k
            if u == 7: a("s_mov_b32 exec_hi, 0")
            a(f"s_add_u32 s{sT0}, s{sPS}, {u*1024}")
            a(f"buffer_store_dwordx4 {vr(U + u*4)}, v{vL16}, s[{rWS}:{rWS+3}], s{sT0} offen sc0 sc1")
            if u == 7: a("s_mov_b32 exec_hi, -1")
        a.label(f"L_remdone{half}")
    stamp(a, cfg, 19)
    a("s_waitcnt lgkmcnt(0)")
    a("s_barrier   ; PD")
    a("s_waitcnt vmcnt(0)")
    stamp(a, cfg, 20)
    a(f"""
    s_mov_b64 exec, 3
    buffer_store_dword v{vONE}, v{vF2}, s[{rWS}:{rWS+3}], 0 offen sc0 sc1
    s_mov_b64 exec, -1
    """)


def build(cfg, header=""):
    _lbl[0] = 0
    a = Asm()
    if header: a.raw(header.rstrip("\n"))
    a.raw(f"; @launch grid=(256,1,1) block=(512,1,1) lds={LDS_BYTES}")
    a.raw('.amdgcn_target "amdgcn-amd-amdhsa--gfx950"\n.text')
    prologue(a, cfg)
    loader(a, cfg)
    computeA(a, cfg)
    phaseB(a, cfg)
    computeC(a, cfg)
    a.label("L_fin")
    stamp(a, cfg, 21)
    if cfg.amp:
        w, ia, ib, A = cfg.amp
        a(f"""
        s_cmp_lg_u32 s{sWAVE}, {w}
        s_cbranch_scc1 L_noamp
        v_readlane_b32 s{sT0}, v255, {ia}
        v_readlane_b32 s{sT1}, v255, {ib}
        s_sub_u32 s{sT0}, s{sT1}, s{sT0}
        s_mul_i32 s{sT0}, s{sT0}, {A}
        s_memtime s[{sSTAMP}:{sSTAMP+1}]
        s_waitcnt lgkmcnt(0)
        s_add_u32 s{sT0}, s{sT0}, s{sSTAMP}
        """)
        a.label("L_amp")
        a(f"""
        s_memtime s[{sSTAMP}:{sSTAMP+1}]
        s_waitcnt lgkmcnt(0)
        s_sub_u32 s{sT1}, s{sSTAMP}, s{sT0}
        s_cmp_lt_i32 s{sT1}, 0
        s_cbranch_scc1 L_amp
        """)
        a.label("L_noamp")
    elif cfg.stamps:
        stamp_flush(a, cfg)
    a.label("L_end")
    a("s_endpgm")
    a.raw(kernel_desc(KN))
    return a.text()


def make(**kw):
    cfg = Cfg()
    for k, v in kw.items():
        assert hasattr(cfg, k), k
        setattr(cfg, k, v)
    header = open("cdna_kernels/" + NAME + ".s.ref").read().split("; Override launch")[0]
    return build(cfg, header)


if __name__ == "__main__":
    kw = {}
    for kv in sys.argv[2:]:
        k, v = kv.split("=", 1)
        kw[k] = eval(v)
    open(sys.argv[1], "w").write(make(**kw))
```

```python
import sys, math, struct
from asmgen import *

NAME = "standalone__gqa_block_cached__near_ridge"
KN = NAME + "_kernel"

X_BYTES = 768 * 640 * 2
KV_BYTES = 8 * 32 * 96 * 192 * 2
W_BYTES = 640 * 6144 * 2
OUT_BYTES = 768 * 640 * 2
WS_BYTES = 268435456
SCALE = 192 ** -0.5 * math.log2(math.e)

def f32hex(x):
    return "0x%08x" % struct.unpack("<I", struct.pack("<f", x))[0]

sX, sK, sV, sWQ, sWO, sOUT, sDBG, sWS = 4, 6, 8, 10, 12, 14, 16, 18
sWAVE, sG, sB, sJ, sH, sBH = 20, 21, 22, 23, 24, 25
sFAST, sSPIN = 26, 27
rX, rWQ, rK, rV, rWS, rWO, rOUT, rDBG = 28, 32, 36, 40, 44, 48, 52, 68
sT0, sT1, sT2, sT3 = 56, 57, 58, 59
sLW, sM0B, sKVB = 60, 61, 63
sI, sJQ, sROLE = 64, 65, 66
sOB, sPS = 62, 67
sWK, sOM0, sOK, sINB, sWE, sWM = 73, 74, 75, 76, 77, 78
sSTAMP = 80
sKW, sKX, sWC, sOC, sU, sDN, sJ4 = 92, 93, 94, 95, 96, 97, 98

L_W, L_X, L_K, L_V, L_Q = 0, 49152, 86016, 122880, 0
L_FLAG = 159744
L_OWN, L_WO, L_OR = 0, 36864, 122880
LDS_BYTES = 163840


class Cfg:
    stamps = False
    stamp_only = None
    amp = None
    prefetch_code = True
    pretouch = True
    ws_o = 0xE000000
    ws_p = 0xF000000
    ws_in = 0xFC00000
    ws_stamp = 0x4000000
    polW = ""; polX = ""; polKV = "nt"; polWO = ""; polPF = ""; polO = "sc1"
    o_fast_pol = "sc1"
    force_slow = False
    rot = (10, 10)
    k_sched = [12] * 9
    v_sched = [16] * 9
    kv_variants = [([7] * 9, [16] * 9), ([11] * 9, [16] * 9)]
    kv_sel_shift = 3
    wo_prefetch = True
    pf_at = 'Q'
    staged = ()
    early = 1
    mid = 4
    late = 4
    wrot = False
    h1_flag_step = 0
    h2_delay = 20
    poll_sleep = 1
    spin_max = 400000
    fill_s = 5
    fill_pv = 2
    fill_last = 5
    pk_tail = True
    skip_o = False; skip_wo = False; skip_ostore = False
    prio_c = 0
    polOut = ''


def stamp(a, cfg, idx):
    if not cfg.stamps: return
    if cfg.stamp_only is not None and idx not in cfg.stamp_only: return
    a(f"""
    s_memtime s[{sSTAMP}:{sSTAMP+1}]
    s_waitcnt lgkmcnt(0)
    v_writelane_b32 v255, s{sSTAMP}, {idx}
    """)
    a.lg = []

def stamp_flush(a, cfg):
    a(f"""
    s_memrealtime s[{sSTAMP}:{sSTAMP+1}]
    s_waitcnt lgkmcnt(0)
    v_writelane_b32 v255, s{sSTAMP}, 33
    s_lshl_b32 s{sT0}, s2, 3
    s_add_u32 s{sT0}, s{sT0}, s{sWAVE}
    s_lshl_b32 s{sT0}, s{sT0}, 8
    s_add_u32 s{sT0}, s{sT0}, {cfg.ws_stamp}
    v_mbcnt_lo_u32_b32 v254, -1, 0
    v_mbcnt_hi_u32_b32 v254, -1, v254
    v_lshlrev_b32 v254, 2, v254
    buffer_store_dword v255, v254, s[{rWS}:{rWS+3}], s{sT0} offen
    """)

def wait_kernarg(a, cfg):
    a("s_waitcnt lgkmcnt(0)")
    if cfg.stamps:
        a(f"v_writelane_b32 v255, s{sSTAMP}, 0")
        a(f"v_writelane_b32 v255, s{sSTAMP+2}, 32")

def mfma(d, A, B, first=False):
    c = "0" if first else vr(d)
    return f"v_mfma_f32_16x16x32_bf16 {vr(d)}, {vr(A)}, {vr(B)}, {c}"

def mfma32(d, A, B, first=False):
    c = "0" if first else vr(d, 16)
    return f"v_mfma_f32_32x32x16_bf16 {vr(d, 16)}, {vr(A)}, {vr(B)}, {c}"

_lbl = [0]
def poll(a, cfg, vaddr, rs, soff, vtmp, check):
    _lbl[0] += 1
    n = _lbl[0]
    a(f"s_mov_b32 s{sSPIN}, 0")
    a.label(f"poll{n}")
    a(f"buffer_load_dword v{vtmp}, v{vaddr}, s[{rs}:{rs+3}], {soff} offen sc1")
    a.wait_vm_all()
    check()
    a(f"""
    s_cbranch_scc1 poll{n}_ok
    s_add_u32 s{sSPIN}, s{sSPIN}, 1
    s_cmp_ge_u32 s{sSPIN}, {cfg.spin_max}
    s_cbranch_scc1 poll{n}_ok
    s_sleep {cfg.poll_sleep}
    s_branch poll{n}
    """)
    a.label(f"poll{n}_ok")

def dma(a, vaddr, rs, soff, ldsoff, tag, base, pol=""):
    a(f"s_add_u32 m0, s{base}, {ldsoff}")
    if isinstance(soff, str):
        so = soff
        a("s_nop 0")
    else:
        a(f"s_mov_b32 s{sT0}, {soff}")
        so = f"s{sT0}"
    a.vmem(f"buffer_load_dwordx4 v{vaddr}, s[{rs}:{rs+3}], {so} offen {pol} lds", tag)


vA = [10, 11, 12]; vXe, vXo, vQW = 13, 14, 15
vK0c, vV0, vOL = 232, 233, 234
vCA0 = [235, 236, 237, 238, 239]; vL16, vF1, vF2 = 240, 241, 242
vCA1 = [140, 141, 142, 143, 144]; vCB = [145, 146]
vONE = 252
vW = [220, 221, 222]; vXL = [223, 224, 225]; vKA = [226, 227, 228]; vKB = [229, 230, 231]; vV = [232, 233, 234]
vK0 = [235, 236, 237]; vCP = [238, 239, 240]
vWO = [241, 242, 243, 244, 245]; vOR, vDL, vDO, vP1, vP2, vPF = 246, 247, 248, 249, 250, 251
vSW = [218, 219]
STG = 16


def prologue(a, cfg):
    a.raw(kernel_header(KN))
    if cfg.stamps:
        a(f"s_memtime s[{sSTAMP}:{sSTAMP+1}]")
        a(f"s_memrealtime s[{sSTAMP+2}:{sSTAMP+3}]")
    a(f"""
    s_cmp_ge_u32 s2, 256
    s_cbranch_scc1 L_end
    s_load_dwordx16 s[4:19], s[0:1], 0
    v_lshrrev_b32 v1, 6, v0
    v_and_b32 v0, 63, v0
    v_readfirstlane_b32 s{sWAVE}, v1
    s_and_b32 s{sG}, s2, 7
    s_lshr_b32 s{sT0}, s2, 3
    s_lshr_b32 s{sB}, s{sT0}, 2
    s_and_b32 s{sJ}, s{sT0}, 3
    s_lshl_b32 s{sH}, s{sG}, 2
    s_add_u32 s{sH}, s{sH}, s{sJ}
    s_lshl_b32 s{sBH}, s{sB}, 5
    s_add_u32 s{sBH}, s{sBH}, s{sH}
    s_lshl_b32 s{sINB}, s{sBH}, 11
    s_add_u32 s{sINB}, s{sINB}, {cfg.ws_in}
    s_cmp_lt_u32 s{sWAVE}, 4
    s_cbranch_scc1 L_computeA
    """)


def next_pair(a, cfg, p, sDst, sCnt, stride):
    if p + 1 >= 12: return
    if p + 1 < 4 or not cfg.wrot:
        a(f"""
        s_add_u32 s{sDst}, s{sDst}, {stride}
        s_cmp_eq_u32 s{sDst}, {12*stride}
        s_cselect_b32 s{sDst}, 0, s{sDst}
        """)
    else:
        a(f"""
        s_add_u32 s{sDst}, s{sJ4}, s{sCnt}
        s_cmp_ge_u32 s{sDst}, 12
        s_cselect_b32 s{sT0}, 12, 0
        s_sub_u32 s{sDst}, s{sDst}, s{sT0}
        s_mul_i32 s{sDst}, s{sDst}, {stride}
        s_add_u32 s{sCnt}, s{sCnt}, 1
        s_and_b32 s{sCnt}, s{sCnt}, 7
        """)

def ld_wo_pair(a, cfg, p):
    slot = L_WO + (p % 4) * 20480
    a(f"s_add_u32 s{sT3}, s{sWK}, s{sWE}")
    for i in range(0 if cfg.skip_wo else 5):
        if p in cfg.staged:
            d = STG + (cfg.staged.index(p) * 5 + i) * 4
            a.vmem(f"buffer_load_dwordx4 {vr(d)}, v{vWO[i]}, s[{rWO}:{rWO+3}], s{sT3} offen {cfg.polWO}", ("WO", p))
        else:
            dma(a, vWO[i], rWO, f"s{sT3}", slot + i * 1024, ("WO", p), sWM, cfg.polWO)
    next_pair(a, cfg, p, sWK, sWC, 81920)

def put_wo_pair(a, cfg, p):
    a.wait_vm(("WO", p))
    hi, sl = divmod(p % 4, 2)
    for i in range(0 if cfg.skip_wo else 5):
        d = STG + (cfg.staged.index(p) * 5 + i) * 4
        a.ds(f"ds_write_b128 v{vSW[hi]}, {vr(d)} offset:{sl*20480 + i*1024}", ("WOL", p))

def ld_o_pair(a, cfg, p):
    slot = L_OR + ((p - 3) % 3) * 12288
    a(f"s_add_u32 m0, s{sOM0}, {slot}")
    a("s_nop 0")
    for i in range(0 if cfg.skip_o else 3):
        a.vmem(f"buffer_load_dwordx4 v{vOR}, s[{rWS}:{rWS+3}], s{sOK} offen offset:{i*1024} {cfg.polO} lds", ("O", p))
    next_pair(a, cfg, p, sOK, sOC, 12288)


def loader(a, cfg):
    a.reset()
    a(f"s_mov_b32 s{sROLE}, 1")
    a(f"s_sub_u32 s{sLW}, s{sWAVE}, 4")
    a(f"s_mul_i32 s{sT0}, s{sLW}, {8*12288}")
    a(f"s_mul_i32 s{sT1}, s{sH}, 384")
    a(f"s_add_u32 s{sT0}, s{sT0}, s{sT1}")
    a(f"s_and_b32 s{sT1}, s{sLW}, 1")
    a(f"s_lshl_b32 s{sT1}, s{sT1}, 2")
    for i in range(3):
        a(f"""
        v_add_u32 v2, {64*i}, v0
        v_mul_u32_u24 v3, 2731, v2
        v_lshrrev_b32 v{vK0[i]}, 16, v3
        v_mul_u32_u24 v4, 24, v{vK0[i]}
        v_sub_u32 v{vCP[i]}, v2, v4
        v_and_b32 v5, 2, v{vK0[i]}
        v_or_b32 v5, s{sT1}, v5
        v_xor_b32 v5, v5, v{vCP[i]}
        v_mul_u32_u24 v6, 12288, v{vK0[i]}
        v_lshl_add_u32 v6, v5, 4, v6
        v_add_u32 v{vW[i]}, s{sT0}, v6
        """)
    a(f"""
    s_mul_i32 s{sT2}, s{sB}, 96
    s_mul_i32 s{sT3}, s{sLW}, 24
    s_add_u32 s{sT2}, s{sT2}, s{sT3}
    s_mul_i32 s{sT2}, s{sT2}, 1280
    v_lshrrev_b32 v2, 3, v0
    v_mul_u32_u24 v2, 1280, v2
    v_and_b32 v3, 7, v0
    v_lshrrev_b32 v4, 4, v0
    v_xor_b32 v3, v3, v4
    v_xor_b32 v3, s{sT1}, v3
    v_lshl_add_u32 v{vXL[0]}, v3, 4, v2
    v_add_u32 v{vXL[0]}, s{sT2}, v{vXL[0]}
    v_xor_b32 v3, 4, v3
    v_lshl_add_u32 v{vXL[1]}, v3, 4, v2
    s_add_u32 s{sT3}, s{sT2}, {8*1280}
    v_add_u32 v{vXL[1]}, s{sT3}, v{vXL[1]}
    v_add_u32 v{vXL[2]}, {16*1280}, v{vXL[0]}
    s_mul_i32 s{sM0B}, s{sLW}, 3072
    s_mul_i32 s{sT2}, s{sB}, {cfg.rot[0]}
    s_mul_i32 s{sT3}, s{sJ}, {cfg.rot[1]}
    s_add_u32 s{sT2}, s{sT2}, s{sT3}
    s_add_u32 s{sT2}, s{sT2}, 2
    s_lshr_b32 s{sT2}, s{sT2}, 2
    s_cmp_ge_u32 s{sT2}, 20
    s_cselect_b32 s{sT3}, 20, 0
    s_sub_u32 s{sT2}, s{sT2}, s{sT3}
    s_cmp_ge_u32 s{sT2}, 10
    s_cselect_b32 s{sT3}, 10, 0
    s_sub_u32 s{sT2}, s{sT2}, s{sT3}
    s_mul_i32 s{sKW}, s{sT2}, {64*12288}
    s_lshl_b32 s{sKX}, s{sT2}, 7
    """)
    assert (7 * cfg.rot[0] + 3 * cfg.rot[1] + 2) // 4 < 30
    wait_kernarg(a, cfg)
    srd(a, rWQ, sWQ, W_BYTES)
    srd(a, rX, sX, X_BYTES)
    stamp(a, cfg, 29)

    def ldW(s):
        for i in range(3): dma(a, vW[i], rWQ, f"s{sKW}", L_W + (s % 4) * 12288 + i * 1024, ("W", s), sM0B, cfg.polW)
        a(f"""
        s_add_u32 s{sKW}, s{sKW}, {32*12288}
        s_cmp_eq_u32 s{sKW}, {640*12288}
        s_cselect_b32 s{sKW}, 0, s{sKW}
        """)
    def ldX(m):
        for i in range(3): dma(a, vXL[i], rX, f"s{sKX}", L_X + (m % 3) * 12288 + i * 1024, ("X", m), sM0B, cfg.polX)
        a(f"""
        s_add_u32 s{sKX}, s{sKX}, 128
        s_cmp_eq_u32 s{sKX}, 1280
        s_cselect_b32 s{sKX}, 0, s{sKX}
        """)
    def ldK(i):
        i1, i0 = divmod(i, 3)
        dma(a, (vKB if i1 & 1 else vKA)[i0], rK, i1 * 3072, L_K + i * 1024, "K", sKVB, cfg.polKV)
    def ldV(i):
        i1, i0 = divmod(i, 3)
        dma(a, vV[i0], rV, i1 * 3072, L_V + i * 1024, "V", sKVB, cfg.polKV)

    ldW(0); ldX(0)
    srd(a, rWS, sWS, WS_BYTES)
    srd(a, rDBG, sDBG, 256)
    a.c("wave 7: clear this workgroup's inbox")
    a(f"""
    s_cmp_lg_u32 s{sWAVE}, 7
    s_cbranch_scc1 L_noclr
    v_lshlrev_b32 v2, 4, v0
    v_mov_b32 v4, 0
    v_mov_b32 v5, 0
    v_mov_b32 v6, 0
    v_mov_b32 v7, 0
    buffer_store_dwordx4 v[4:7], v2, s[{rWS}:{rWS+3}], s{sINB} offen sc0 sc1
    s_mov_b64 exec, 0xff
    buffer_store_dwordx4 v[4:7], v2, s[{rWS}:{rWS+3}], s{sINB} offen offset:1024 sc0 sc1
    s_mov_b64 exec, -1
    """)
    a.label("L_noclr")
    ldW(1)
    srd(a, rK, sK, KV_BYTES)
    srd(a, rV, sV, KV_BYTES)
    srd(a, rWO, sWO, W_BYTES)
    srd(a, rOUT, sOUT, OUT_BYTES)
    a(f"""
    s_mul_i32 s{sKVB}, s{sLW}, 9216
    s_mul_i32 s{sT2}, s{sBH}, 36864
    s_add_u32 s{sT2}, s{sT2}, s{sKVB}
    """)
    for i in range(3):
        a(f"""
        v_mul_u32_u24 v6, 384, v{vK0[i]}
        v_add_u32 v6, s{sT2}, v6
        v_lshrrev_b32 v3, 1, v{vK0[i]}
        v_xor_b32 v4, v3, v{vCP[i]}
        v_xor_b32 v4, s{sT1}, v4
        v_lshl_add_u32 v{vKA[i]}, v4, 4, v6
        v_xor_b32 v4, 4, v4
        v_lshl_add_u32 v{vKB[i]}, v4, 4, v6
        v_and_b32 v3, 1, v3
        v_lshlrev_b32 v3, 2, v3
        v_xor_b32 v4, v3, v{vCP[i]}
        v_lshl_add_u32 v{vV[i]}, v4, 4, v6
        """)
    ldW(2); ldX(1); ldW(3); ldX(2)
    a.c("phase C / D loader addresses")
    a(f"""
    s_and_b32 s{sT1}, s{sLW}, 1
    s_lshr_b32 s{sT2}, s{sLW}, 1
    s_mul_i32 s{sWE}, s{sT2}, 40960
    s_mul_i32 s{sWM}, s{sLW}, 5120
    s_mul_i32 s{sT1}, s{sT1}, 320
    s_mul_i32 s{sT2}, s{sG}, {768*1280}
    s_mul_i32 s{sT3}, s{sJ}, 320
    s_add_u32 s{sT2}, s{sT2}, s{sT3}
    """)
    for i in range(5):
        a(f"""
        v_add_u32 v2, s{sT1}, v0
        v_add_u32 v2, {64*i}, v2
        v_mul_u32_u24 v3, 3277, v2
        v_lshrrev_b32 v3, 16, v3            ; row = t/20
        v_mul_u32_u24 v4, 20, v3
        v_sub_u32 v4, v2, v4                ; cp
        v_lshrrev_b32 v5, 1, v3
        v_and_b32 v5, 2, v5
        v_xor_b32 v4, v4, v5
        v_mul_u32_u24 v3, 1280, v3
        v_lshl_add_u32 v3, v4, 4, v3
        v_add_u32 v{vWO[i]}, s{sT2}, v3
        """)
    a(f"""
    s_mul_i32 s{sWK}, s{sJ}, {3*81920}
    s_mul_i32 s{sJ4}, s{sJ}, 3
    s_add_u32 s{sJ4}, s{sJ4}, 4
    s_mov_b32 s{sWC}, s{sB}
    s_mov_b32 s{sOC}, s{sB}
    v_lshlrev_b32 v7, 4, v0
    s_add_u32 s{sT1}, s{sWM}, {L_WO}
    v_add_u32 v{vSW[0]}, s{sT1}, v7
    v_add_u32 v{vSW[1]}, 40960, v{vSW[0]}
    s_add_u32 s{sT1}, s{sJ}, 1
    s_and_b32 s{sT1}, s{sT1}, 3
    s_mul_i32 s{sOK}, s{sT1}, {3*12288}
    s_mul_i32 s{sOM0}, s{sLW}, 3072
    s_lshl_b32 s{sT1}, s{sB}, 3
    s_add_u32 s{sT1}, s{sT1}, s{sG}
    s_mul_i32 s{sT1}, s{sT1}, 147456
    s_add_u32 s{sT1}, s{sT1}, s{sOM0}
    s_add_u32 s{sT1}, s{sT1}, {cfg.ws_o}
    v_add_u32 v{vOR}, s{sT1}, v7
    v_min_u32 v2, 11, v0
    v_lshlrev_b32 v2, 2, v2
    s_add_u32 s{sT1}, s{sINB}, 1024
    v_add_u32 v{vP1}, s{sT1}, v2
    v_min_u32 v2, 7, v0
    v_max_u32 v2, 1, v2
    v_add_u32 v2, s{sG}, v2
    v_and_b32 v2, 7, v2
    v_lshlrev_b32 v3, 7, v2
    v_add_u32 v{vP2}, s{sINB}, v3
    s_lshr_b32 s{sT1}, s2, 3
    s_lshl_b32 s{sT1}, s{sT1}, 2
    s_add_u32 s{sT1}, s{sT1}, s{sLW}
    s_mul_i32 s{sT1}, s{sT1}, 7680
    s_mul_i32 s{sT2}, s{sG}, 983040
    s_add_u32 s{sT1}, s{sT1}, s{sT2}
    v_min_u32 v2, 59, v0
    v_lshlrev_b32 v2, 7, v2
    v_add_u32 v{vPF}, s{sT1}, v2
    s_and_b32 s{sT0}, s{sG}, 1
    s_lshl_b32 s{sT0}, s{sT0}, 2
    s_add_u32 s{sU}, s{sT0}, s{sLW}
    s_lshl_b32 s{sT2}, s{sB}, 2
    s_add_u32 s{sT2}, s{sT2}, s{sJ}
    s_lshl_b32 s{sT2}, s{sT2}, 5
    s_lshr_b32 s{sT1}, s{sG}, 1
    s_add_u32 s{sT2}, s{sT2}, s{sT1}
    s_lshl_b32 s{sT2}, s{sT2}, 3
    s_add_u32 s{sT2}, s{sT2}, s{sU}
    s_lshl_b32 s{sT2}, s{sT2}, 10
    s_add_u32 s{sT2}, s{sT2}, {cfg.ws_p}
    v_add_u32 v{vDL}, s{sT2}, v7            ; + src*32768
    s_bfe_u32 s{sT0}, s{sG}, 0x10001        ; i
    s_lshr_b32 s{sT1}, s{sG}, 2             ; jq
    s_mul_i32 s{sT1}, s{sT1}, 48
    s_mul_i32 s{sT2}, s{sB}, 96
    s_add_u32 s{sT1}, s{sT1}, s{sT2}
    s_lshr_b32 s{sT2}, s{sU}, 1             ; t (u<6)
    s_cmp_eq_u32 s{sU}, 6
    s_cselect_b32 s{sT2}, 0, s{sT2}
    s_cmp_eq_u32 s{sU}, 7
    s_cselect_b32 s{sT2}, 2, s{sT2}
    s_lshl_b32 s{sT2}, s{sT2}, 4
    s_add_u32 s{sT1}, s{sT1}, s{sT2}
    s_mul_i32 s{sT1}, s{sT1}, 1280
    s_and_b32 s{sT2}, s{sU}, 1
    s_lshl_b32 s{sT2}, s{sT2}, 6
    s_mul_i32 s{sT3}, s{sT0}, 192           ; (80+16) columns * 2B * i
    s_add_u32 s{sT2}, s{sT2}, s{sT3}
    s_lshl_b32 s{sT3}, s{sT0}, 5
    s_add_u32 s{sT3}, s{sT3}, 128           ; (64 + 16 i) * 2B
    s_cmp_ge_u32 s{sU}, 6
    s_cselect_b32 s{sT2}, s{sT3}, s{sT2}
    s_add_u32 s{sT1}, s{sT1}, s{sT2}
    s_mul_i32 s{sT2}, s{sJ}, 320
    s_add_u32 s{sT1}, s{sT1}, s{sT2}
    v_and_b32 v2, 15, v0
    v_mul_u32_u24 v2, 1280, v2
    v_lshrrev_b32 v3, 4, v0
    v_lshl_add_u32 v2, v3, 3, v2
    v_add_u32 v{vDO}, s{sT1}, v2
    s_mov_b32 s{sDN}, 32
    s_cmp_eq_u32 s{sU}, 6
    s_cselect_b32 s{sDN}, {16*1280}, s{sDN}
    s_cmp_eq_u32 s{sU}, 7
    s_cselect_b32 s{sDN}, 16, s{sDN}
    """)
    stamp(a, cfg, 1)
    a.wait_vm(("W", 0), ("X", 0))
    a("s_barrier   ; P")
    stamp(a, cfg, 2)
    a.wait_vm(("W", 1), ("X", 0))
    a.c("wave 7: inbox cleared (its stores are older than W1) -> arrive on the group word in d_debug")
    a(f"""
    s_cmp_lg_u32 s{sWAVE}, 7
    s_cbranch_scc1 L_noarr
    s_getreg_b32 s{sT1}, hwreg(HW_REG_XCC_ID, 0, 4)
    s_lshl_b32 s{sT2}, s{sJ}, 2
    s_add_u32 s{sT2}, s{sT2}, 4
    s_lshl_b32 s{sT1}, s{sT1}, s{sT2}
    s_add_u32 s{sT1}, s{sT1}, 1
    s_lshl_b32 s{sT2}, s{sB}, 3
    s_add_u32 s{sT2}, s{sT2}, s{sG}
    s_lshl_b32 s{sT2}, s{sT2}, 2
    v_mov_b32 v2, s{sT1}
    v_mov_b32 v3, s{sT2}
    s_mov_b64 exec, 1
    buffer_atomic_add v2, v3, s[{rDBG}:{rDBG+3}], 0 offen sc1
    s_mov_b64 exec, -1
    """)
    a.label("L_noarr")
    variants = cfg.kv_variants or [(cfg.k_sched, cfg.v_sched)]
    nv = len(variants)
    if nv > 1:
        a(f"s_lshr_b32 s{sT1}, s2, {cfg.kv_sel_shift}")
        a(f"s_and_b32 s{sT1}, s{sT1}, {nv-1}")
        for v in range(1, nv):
            a(f"s_cmp_eq_u32 s{sT1}, {v}")
            a(f"s_cbranch_scc1 L_kvvar{v}")
    vm0 = list(a.vm)
    for v, var in enumerate(variants):
        ksch, vsch = var[0], var[1]
        pfs = var[2] if len(var) > 2 else cfg.pf_at
        if v: a.label(f"L_kvvar{v}")
        a.vm = list(vm0)
        for s in range(19):
            a.wait_vm(("W", s + 1), ("X", (s + 1) >> 1))
            a(f"s_barrier   ; B{s}")
            if s + 4 < 20: ldW(s + 4)
            if s & 1 and (s >> 1) + 3 < 10: ldX((s >> 1) + 3)
            if cfg.wo_prefetch and pfs == s:
                a.vmem(f"buffer_load_dword v253, v{vPF}, s[{rWO}:{rWO+3}], 0 offen {cfg.polPF}", "pf")
            for i, ss in enumerate(ksch):
                if ss == s: ldK(i)
            for i, ss in enumerate(vsch):
                if ss == s: ldV(i)
            if s in (4, 9, 14): stamp(a, cfg, 3 + (s - 4) // 5)
        a.wait_vm("K")
        if v < nv - 1: a("s_branch L_kvjoin")
    if nv > 1: a.label("L_kvjoin")
    stamp(a, cfg, 6)
    a("s_barrier   ; Q")
    a.vm = ["V"]
    def pf():
        if cfg.wo_prefetch:
            a.vmem(f"buffer_load_dword v253, v{vPF}, s[{rWO}:{rWO+3}], 0 offen {cfg.polPF}", "pf")
    a.c("have the 32 workgroups of this batch cleared their inboxes?  (read now, looked at before the V barrier)")
    a(f"""
    v_and_b32 v2, 7, v0
    v_lshlrev_b32 v2, 2, v2
    s_lshl_b32 s{sSPIN}, s{sB}, 5
    v_add_u32 v2, s{sSPIN}, v2
    """)
    a.vmem(f"buffer_load_dword v3, v2, s[{rDBG}:{rDBG+3}], 0 offen sc1", "hs")
    if cfg.pf_at == "Q": pf()
    nxt = 0
    def issue_upto(n):
        nonlocal nxt
        while nxt < n:
            ld_wo_pair(a, cfg, nxt); nxt += 1
    for p in range(2, cfg.early): assert p in cfg.staged
    issue_upto(cfg.early)
    a.wait_vm("hs")
    def chk():
        a(f"""
        v_and_b32 v4, 7, v3
        v_cmp_eq_u32 vcc, 4, v4
        s_cmp_eq_u64 vcc, -1
        """)
    chk()
    a("s_cbranch_scc1 L_hsok")
    save = list(a.vm)
    poll(a, cfg, 2, rDBG, "0", 3, chk)
    a.vm = save
    a.label("L_hsok")
    a(f"""
    s_cmp_lg_u32 s{sWAVE}, 7
    s_cbranch_scc1 L_nohs
    v_readlane_b32 s{sT1}, v3, s{sG}
    s_bfe_u32 s{sT1}, s{sT1}, 0x100004
    s_and_b32 s{sT2}, s{sT1}, 15
    s_mul_i32 s{sT2}, s{sT2}, 0x1111
    s_cmp_eq_u32 s{sT1}, s{sT2}
    s_cselect_b32 s{sT1}, {0 if cfg.force_slow else 1}, 0
    v_mov_b32 v2, {L_FLAG}
    v_mov_b32 v3, s{sT1}
    ds_write_b32 v2, v3
    buffer_load_dword v253, v{vP1}, s[{rWS}:{rWS+3}], 0 offen sc1
    s_waitcnt lgkmcnt(0)
    """)
    a.label("L_nohs")
    stamp(a, cfg, 8)
    a("s_barrier   ; V")
    if cfg.pf_at == "V": pf()
    for p in (2, 3):
        if p in cfg.staged and p < nxt: put_wo_pair(a, cfg, p)
    issue_upto(cfg.mid)
    for p in (2, 3):
        if p in cfg.staged and not any(t == ("WOL", p) for t in a.lg) and p >= cfg.early: put_wo_pair(a, cfg, p)
    if cfg.pf_at == "V2": pf()
    stamp(a, cfg, 10)
    a.wait_vm(("WO", 0))
    stamp(a, cfg, 12)
    a("s_barrier   ; O1")
    stamp(a, cfg, 13)
    for p in range(max(nxt, 4), cfg.late): assert p in cfg.staged
    issue_upto(max(4, cfg.late))
    def chk1():
        a(f"v_cmp_eq_u32 vcc, 1, v3")
        a("s_cmp_eq_u64 vcc, -1")
    for p in range(11):
        if p in (1, 2): stamp(a, cfg, 21 + p)
        if p == 2:
            a.c("wait for the siblings' O tiles")
            poll(a, cfg, vP1, rWS, "0", 3, chk1)
            if cfg.stamps: a(f"v_writelane_b32 v255, s{sSPIN}, 30")
            stamp(a, cfg, 14)
            for pp in (3, 4, 5): ld_o_pair(a, cfg, pp)
        a.wait_vm(("WO", p + 1), ("O", p + 1))
        a.wait_lg(("WOL", p + 1))
        if p in (2, 3): stamp(a, cfg, 22 + p)
        a(f"s_barrier   ; C{p}")
        if p + 4 < 12:
            issue_upto(p + 5)
            if p + 4 in cfg.staged: put_wo_pair(a, cfg, p + 4)
        if p >= 3 and p + 3 < 12: ld_o_pair(a, cfg, p + 3)
        if p in (2, 5, 8): stamp(a, cfg, 15 + (p - 2) // 3)
    stamp(a, cfg, 18)
    a.c("phase D")
    A = 48
    a("s_barrier   ; PD")
    stamp(a, cfg, 26)
    a(f"s_lshl_b32 s{sT0}, s{sLW}, 10")
    a(f"v_lshlrev_b32 v2, 4, v0")
    a(f"v_add_u32 v2, s{sT0}, v2")
    a.ds(f"ds_read_b128 v[16:19], v2 offset:{L_OWN}", "own")
    a(f"s_cmp_lg_u32 s{sWAVE}, 4")
    a("s_cbranch_scc1 L_nopoll2")
    if cfg.h2_delay: a(f"s_sleep {cfg.h2_delay}")
    def chk2():
        a(f"v_cmp_eq_u32 vcc, 1, v3")
        a("s_cmp_eq_u64 vcc, -1")
    poll(a, cfg, vP2, rWS, "0", 3, chk2)
    a.label("L_nopoll2")
    a("s_barrier   ; PE")
    if cfg.stamps: a(f"v_writelane_b32 v255, s{sSPIN}, 31")
    stamp(a, cfg, 19)
    a(f"""
    s_cmp_eq_u32 s{sU}, 7
    s_cselect_b32 exec_hi, 0, -1
    """)
    a.vm = []
    for k in range(1, 8):
        a(f"""
        s_add_u32 s{sT0}, s{sG}, {k}
        s_and_b32 s{sT0}, s{sT0}, 7
        s_lshl_b32 s{sT0}, s{sT0}, 15
        """)
        a.vmem(f"buffer_load_dwordx4 {vr(16+4*k)}, v{vDL}, s[{rWS}:{rWS+3}], s{sT0} offen sc1", ("p", k))
    a(f"s_mov_b32 s{sT1}, 0xffff0000")
    for k in range(8):
        if k == 0: a.wait_lg_all()
        a.wait_vm(("p", k))
        for i in range(4):
            s = 16 + 4 * k + i
            if k == 0:
                a(f"v_lshlrev_b32 v{A+2*i}, 16, v{s}")
                a(f"v_and_b32 v{A+2*i+1}, s{sT1}, v{s}")
            else:
                a(f"v_lshlrev_b32 v{60+2*i}, 16, v{s}")
                a(f"v_and_b32 v{61+2*i}, s{sT1}, v{s}")
                a(f"v_add_f32 v{A+2*i}, v{A+2*i}, v{60+2*i}")
                a(f"v_add_f32 v{A+2*i+1}, v{A+2*i+1}, v{61+2*i}")
    stamp(a, cfg, 20)
    for i in range(4):
        a(f"v_cvt_pk_bf16_f32 v{16+i}, v{A+2*i}, v{A+2*i+1}")
    a(f"buffer_store_dwordx2 v[16:17], v{vDO}, s[{rOUT}:{rOUT+3}], 0 offen {cfg.polOut}")
    a(f"buffer_store_dwordx2 v[18:19], v{vDO}, s[{rOUT}:{rOUT+3}], s{sDN} offen {cfg.polOut}")
    a("s_mov_b64 exec, -1")
    a("s_branch L_fin")


def computeA(a, cfg):
    a.label("L_computeA")
    a.reset()
    a(f"s_mov_b32 s{sROLE}, 0")
    if cfg.prefetch_code:
        a.c("wave w warms L2 with 8 KB of this kernel's code (one dword per 128-byte line)")
        a(f"s_getpc_b64 s[{sT2}:{sT2+1}]")
        a.label("L_pc")
        a(f"""
        s_sub_u32 s{sT2}, s{sT2}, L_pc-{KN}
        s_subb_u32 s{sT2+1}, s{sT2+1}, 0
        s_lshl_b32 s{sT0}, s{sWAVE}, 13
        v_lshlrev_b32 v2, 7, v0
        v_add_u32 v2, s{sT0}, v2
        v_min_u32 v2, L_end-{KN}, v2
        global_load_dword v253, v2, s[{sT2}:{sT2+1}]
        """)
    ACC = 16
    def acc(T, t): return ACC + (T * 6 + t) * 4
    SETA = [88, 124]; SETB = [100, 136]
    a.c("phase A addresses: v2=kq v3=r v4=c v5=n")
    a(f"""
    v_lshrrev_b32 v2, 4, v0
    v_bfe_u32 v3, v0, 2, 2
    v_and_b32 v4, 3, v0
    v_and_b32 v5, 15, v0
    v_lshlrev_b32 v6, 3, v2
    v_add_u32 v6, v6, v3                     ; k = 8kq + r
    v_mul_u32_u24 v6, 384, v6
    v_lshl_add_u32 v6, v4, 3, v6             ; k*384 + 8c
    v_lshrrev_b32 v7, 1, v3
    v_and_b32 v8, 1, v2
    v_lshl_or_b32 v7, v8, 1, v7              ; h(k)
    s_mul_i32 s{sT0}, s{sWAVE}, 3
    """)
    for T in range(3):
        a(f"""
        s_add_u32 s{sT1}, s{sT0}, {T}
        v_xor_b32 v8, s{sT1}, v7
        v_lshl_add_u32 v{vA[T]}, v8, 5, v6
        """)
    a(f"""
    v_lshrrev_b32 v6, 1, v5                  ; (n>>1)&7
    v_xor_b32 v6, v6, v2
    v_lshlrev_b32 v6, 4, v6
    v_lshl_add_u32 v6, v5, 7, v6
    v_add_u32 v{vXe}, {L_X}, v6
    v_xor_b32 v{vXo}, 64, v{vXe}
    v_lshrrev_b32 v6, 1, v2
    v_lshlrev_b32 v6, 9, v6
    v_lshl_add_u32 v6, v5, 4, v6
    v_and_b32 v7, 1, v2
    v_lshl_add_u32 v6, v7, 3, v6
    s_mul_i32 s{sT0}, s{sWAVE}, 3072
    v_add_u32 v{vQW}, s{sT0}, v6
    v_lshlrev_b32 v{vL16}, 4, v0
    v_mov_b32 v{vONE}, 1
    v_and_b32 v6, 31, v0
    v_lshrrev_b32 v7, 5, v0
    v_bfe_u32 v8, v0, 1, 3                   ; (m>>1)&7
    v_xor_b32 v8, v8, v7
    v_mul_u32_u24 v9, 384, v6
    v_lshl_add_u32 v9, v8, 4, v9
    v_add_u32 v{vK0c}, {L_K}, v9
    v_lshl_add_u32 v8, v7, 2, v3
    v_mul_u32_u24 v8, 384, v8
    v_lshl_add_u32 v8, v4, 3, v8             ; + 8c
    v_and_b32 v9, 2, v3                      ; hh
    v_and_b32 v6, 1, v2                      ; dh
    v_or_b32 v9, v9, v6
    v_lshl_add_u32 v8, v9, 5, v8
    v_add_u32 v{vV0}, {L_V}, v8
    v_lshlrev_b32 v8, 10, v6                 ; (n>>4)*1024
    v_lshl_add_u32 v8, v7, 8, v8             ; + hi*256
    v_lshl_add_u32 v8, v5, 4, v8             ; + (n&15)*16
    s_lshl_b32 s{sT0}, s{sWAVE}, 11
    v_add_u32 v{vOL}, s{sT0}, v8
    s_lshl_b32 s{sT2}, s{sB}, 3
    s_add_u32 s{sT2}, s{sT2}, s{sG}
    s_lshl_b32 s{sT2}, s{sT2}, 2
    s_add_u32 s{sT2}, s{sT2}, s{sJ}
    s_mul_i32 s{sOB}, s{sT2}, 36864
    s_add_u32 s{sOB}, s{sOB}, {cfg.ws_o}
    s_lshl_b32 s{sT2}, s{sJ}, 11
    s_sub_u32 s{sT2}, s{sINB}, s{sT2}
    s_add_u32 s{sT2}, s{sT2}, 1024
    s_mul_i32 s{sT3}, s{sJ}, 12
    s_add_u32 s{sT2}, s{sT2}, s{sT3}
    s_lshl_b32 s{sT3}, s{sWAVE}, 2
    s_add_u32 s{sT2}, s{sT2}, s{sT3}
    v_lshlrev_b32 v8, 11, v4
    v_add_u32 v{vF1}, s{sT2}, v8
    s_and_b32 s{sI}, s{sWAVE}, 1
    s_lshr_b32 s{sJQ}, s{sWAVE}, 1
    v_lshrrev_b32 v6, 1, v2
    v_lshlrev_b32 v6, 4, v6
    v_and_b32 v7, 1, v2
    v_lshl_add_u32 v6, v7, 2, v6
    v_add_u32 v6, v6, v3
    v_mul_u32_u24 v6, 320, v6
    v_lshl_add_u32 v6, v4, 3, v6
    v_add_u32 v6, {L_WO}, v6
    s_mul_i32 s{sT0}, s{sI}, 5
    """)
    for T in range(5):
        a(f"""
        s_add_u32 s{sT1}, s{sT0}, {T}
        v_xor_b32 v8, s{sT1}, v7
        v_lshl_add_u32 v{vCA0[T]}, v8, 5, v6
        """)
    a(f"""
    s_lshl_b32 s{sT0}, s{sB}, 2
    s_add_u32 s{sT0}, s{sT0}, s{sJ}
    s_lshl_b32 s{sT0}, s{sT0}, 3
    s_add_u32 s{sT0}, s{sT0}, s{sG}
    s_lshl_b32 s{sT0}, s{sT0}, 2
    s_add_u32 s{sT0}, s{sT0}, s{sWAVE}
    s_lshl_b32 s{sT0}, s{sT0}, 13
    s_add_u32 s{sPS}, s{sT0}, {cfg.ws_p}
    s_lshl_b32 s{sT0}, s{sB}, 5
    s_lshl_b32 s{sT1}, s{sWAVE}, 3
    s_add_u32 s{sT0}, s{sT0}, s{sT1}
    s_add_u32 s{sT0}, s{sT0}, s{sJ}
    s_lshl_b32 s{sT0}, s{sT0}, 11
    s_lshl_b32 s{sT1}, s{sG}, 7
    s_add_u32 s{sT0}, s{sT0}, s{sT1}
    s_add_u32 s{sT0}, s{sT0}, {cfg.ws_in}
    v_and_b32 v3, 1, v0
    v_lshlrev_b32 v3, 13, v3
    v_add_u32 v{vF2}, s{sT0}, v3
    """)
    wait_kernarg(a, cfg)
    srd(a, rWS, sWS, WS_BYTES)
    if cfg.pretouch:
        a.c("wave 1 touches the pages used later so that their translations are resident")
        a(f"""
        s_cmp_lg_u32 s{sWAVE}, 1
        s_cbranch_scc1 L_notouch
        """)
        srd(a, rK, sK, KV_BYTES); srd(a, rV, sV, KV_BYTES); srd(a, rWO, sWO, W_BYTES); srd(a, rOUT, sOUT, OUT_BYTES)
        a(f"""
        s_mov_b64 exec, 3
        v_mul_u32_u24 v2, 36860, v0
        s_mul_i32 s{sT0}, s{sBH}, 36864
        buffer_load_dword v253, v2, s[{rK}:{rK+3}], s{sT0} offen nt
        buffer_load_dword v253, v2, s[{rV}:{rV+3}], s{sT0} offen nt
        v_mul_u32_u24 v2, 983036, v0
        s_mul_i32 s{sT0}, s{sG}, 983040
        buffer_load_dword v253, v2, s[{rWO}:{rWO+3}], s{sT0} offen
        buffer_load_dword v253, v2, s[{rOUT}:{rOUT+3}], 0 offen nt
        buffer_load_dword v253, v{vL16}, s[{rWS}:{rWS+3}], s{sOB} offen nt
        buffer_load_dword v253, v{vL16}, s[{rWS}:{rWS+3}], s{sPS} offen nt
        s_mov_b64 exec, -1
        """)
        a.label("L_notouch")
    stamp(a, cfg, 1)

    def reads(s):
        st = s & 1
        wo = L_W + (s % 4) * 12288
        xo = ((s >> 1) % 3) * 12288
        vx = vXo if s & 1 else vXe
        R = []
        def ra(T):
            R.append((f"ds_read_b64_tr_b16 {vr(SETA[st]+4*T, 2)}, v{vA[T]} offset:{wo}", ("A", s, T)))
            R.append((f"ds_read_b64_tr_b16 {vr(SETA[st]+4*T+2, 2)}, v{vA[T]} offset:{wo+1536}", ("A", s, T)))
        ra(0)
        for t in range(6):
            R.append((f"ds_read_b128 {vr(SETB[st]+4*t)}, v{vx} offset:{xo + t*2048}", ("B", s, t)))
        ra(1); ra(2)
        return R

    a("s_barrier   ; P")
    stamp(a, cfg, 2)
    for ins, tag in reads(0): a.ds(ins, tag)
    def qwrite(T, t):
        d = acc(T, t)
        tmp = 88 + ((T * 6 + t) % 8) * 2
        return [f"v_cvt_pk_bf16_f32 v{tmp}, v{d}, v{d+1}", f"v_cvt_pk_bf16_f32 v{tmp+1}, v{d+2}, v{d+3}",
                ("ds", f"ds_write_b64 v{vQW}, {vr(tmp, 2)} offset:{L_Q + 1024*T + 12288*(t >> 1) + 256*(t & 1)}")]
    for s in range(20):
        a.wait_lg_all()
        if s < 19:
            a(f"s_barrier   ; B{s}")
        R = reads(s + 1) if s < 19 else []
        st = s & 1
        m = 0
        qq = []
        for T in range(3):
            for t in range(6):
                a(mfma(acc(T, t), SETA[st] + 4 * T, SETB[st] + 4 * t, first=(s == 0)))
                if m < len(R): a.ds(*R[m])
                if s == 19:
                    if m >= 6:
                        T2, t2 = divmod(m - 6, 6)
                        qq += qwrite(T2, t2)
                    for _ in range(2):
                        if qq:
                            x = qq.pop(0)
                            a.ds(x[1], "qw") if isinstance(x, tuple) else a(x)
                m += 1
        if s in (4, 9, 14): stamp(a, cfg, 3 + (s - 4) // 5)
    stamp(a, cfg, 6)
    a.c("Q -> bf16 -> LDS (fragment-major)")
    for m in range(12, 18): qq += qwrite(*divmod(m, 6))
    for x in qq:
        a.ds(x[1], "qw") if isinstance(x, tuple) else a(x)
    a.wait_lg_all()
    a("s_barrier   ; Q")
    a(f"""
    s_cmp_lt_u32 s{sWAVE}, 3
    s_cbranch_scc1 L_phaseB
    s_barrier   ; V
    s_barrier   ; O1
    s_branch L_computeC
    """)


def phaseB(a, cfg):
    a.label("L_phaseB")
    a.reset()
    S = 16; QF = 72; KF = 120; P = 64; VF = 88; O = 136; OB = 184
    vQR = 10; vKa = [vK0c, 11, 12, 13]; vVa = [vV0, 14]
    M, T1 = 2, 3
    N = [4, 5, 6]; LA = [7, 9, 10]; LB = [8, 15, 11]
    sC2 = sSTAMP + 8
    stamp(a, cfg, 7)
    a(f"s_mul_i32 s{sT0}, s{sWAVE}, 12288")
    a(f"v_add_u32 v{vQR}, s{sT0}, v{vL16}")
    def qread(ks): a.ds(f"ds_read_b128 {vr(QF+4*ks)}, v{vQR} offset:{L_Q + ks*1024}", ("Q", ks))
    def kread(i):
        kt, ks = divmod(i, 12)
        a.ds(f"ds_read_b128 {vr(KF + 4*(i % 4))}, v{vKa[ks & 3]} offset:{kt*12288 + (ks >> 2)*128}", ("K", i))
    qread(0); kread(0)
    for x in range(1, 4): a(f"v_xor_b32 v{vKa[x]}, {32*x}, v{vK0c}")
    qread(1); kread(1); qread(2); kread(2); kread(3)
    a(f"v_xor_b32 v{vVa[1]}, 64, v{vV0}")
    a(f"s_mov_b32 s{sC2}, {f32hex(SCALE)}")
    a(f"s_mov_b32 s{sC2+1}, {f32hex(SCALE)}")
    def maxops(kt):
        b = S + 16 * kt
        r = []
        if kt == 0:
            r.append(f"v_max3_f32 v{M}, v{b}, v{b+1}, v{b+2}"); r.append(f"v_max3_f32 v{T1}, v{b+3}, v{b+4}, v{b+5}")
            rest = list(range(6, 16))
        else:
            r.append(f"v_max3_f32 v{T1}, v{b}, v{b+1}, v{b+2}")
            rest = list(range(3, 16))
        tog = 0
        while len(rest) >= 2:
            d = (M, T1)[tog]; tog ^= 1
            r.append(f"v_max3_f32 v{d}, v{d}, v{b+rest[0]}, v{b+rest[1]}"); rest = rest[2:]
        if rest: r.append(f"v_max3_f32 v{M}, v{M}, v{T1}, v{b+rest[0]}")
        else: r.append(f"v_max_f32 v{M}, v{M}, v{T1}")
        r += [f"v_mov_b32 v{T1}, v{M}", "s_nop 1", f"v_permlane32_swap_b32 v{M}, v{T1}", f"v_max_f32 v{M}, v{M}, v{T1}",
              f"v_mul_f32 v{N[kt]}, {f32hex(-SCALE)}, v{M}"]
        return r
    def expops(kt):
        b = S + 16 * kt
        r = []
        for i in range(16 + 3):
            if i < 16: r.append(f"v_fmamk_f32 v{b+i}, v{b+i}, {f32hex(SCALE)}, v{N[kt]}")
            if 1 <= i <= 16: r.append(f"v_exp_f32 v{b+i-1}, v{b+i-1}")
            j = i - 3
            if j == 1: r.append(f"v_add_f32 v{LA[kt]}, v{b}, v{b+1}")
            elif j == 3: r.append(f"v_add_f32 v{LB[kt]}, v{b+2}, v{b+3}")
            elif j >= 4: r.append(f"v_add_f32 v{(LA if j % 2 == 0 else LB)[kt]}, v{(LA if j % 2 == 0 else LB)[kt]}, v{b+j}")
        return r
    fill = []
    for i in range(36):
        kt, ks = divmod(i, 12)
        if i % 2 == 0: a.wait_lg(("Q", ks), ("K", i), ("Q", ks + 1), ("K", i + 1))
        a(mfma32(S + 16 * kt, KF + 4 * (i % 4), QF + 4 * ks, first=(ks == 0)))
        if i + 4 < 36: kread(i + 4)
        if i + 3 < 12: qread(i + 3)
        if i == 14: fill += maxops(0) + expops(0)
        if i == 26: fill += maxops(1) + expops(1)
        for _ in range(cfg.fill_s):
            if fill: a(fill.pop(0))
    stamp(a, cfg, 8)
    a("s_barrier   ; V")
    stamp(a, cfg, 9)
    def vread(i):
        Td, s = divmod(i, 6)
        for e in range(2):
            a.ds(f"ds_read_b64_tr_b16 {vr(VF + 4*(i % 12) + 2*e, 2)}, v{vVa[Td & 1]} offset:{(Td >> 1)*128 + s*6144 + e*3072}", ("V", i))
    NV = 6
    for i in range(NV): vread(i)
    a(f"v_mov_b32 v1, {L_FLAG}")
    a.ds("ds_read_b32 v1, v1", "fast")
    for x in fill + maxops(2): a(x)
    b = S + 32
    a(f"v_sub_f32 v{N[0]}, v{N[2]}, v{N[0]}")
    a(f"v_sub_f32 v{N[1]}, v{N[2]}, v{N[1]}")
    for i in range(0, 16, 2):
        a(f"v_pk_fma_f32 v[{b+i}:{b+i+1}], v[{b+i}:{b+i+1}], s[{sC2}:{sC2+1}], v[{N[2]}:{N[2]+1}] op_sel_hi:[1,1,0]")
    a(f"v_exp_f32 v{N[0]}, v{N[0]}")
    a(f"v_exp_f32 v{N[1]}, v{N[1]}")
    a(f"v_add_f32 v{LA[0]}, v{LA[0]}, v{LB[0]}")
    a(f"v_add_f32 v{LA[1]}, v{LA[1]}, v{LB[1]}")
    for i in range(16):
        a(f"v_exp_f32 v{b+i}, v{b+i}")
    a(f"v_mul_f32 v{LA[0]}, v{LA[0]}, v{N[0]}")
    a(f"v_fmac_f32 v{LA[0]}, v{LA[1]}, v{N[1]}")
    a(f"v_pk_add_f32 v[{LA[2]}:{LA[2]+1}], v[{b}:{b+1}], v[{b+2}:{b+3}]")
    a(f"v_pk_add_f32 v[{M}:{M+1}], v[{b+4}:{b+5}], v[{b+6}:{b+7}]")
    for i in range(8, 16, 4):
        a(f"v_pk_add_f32 v[{LA[2]}:{LA[2]+1}], v[{LA[2]}:{LA[2]+1}], v[{b+i}:{b+i+1}]")
        a(f"v_pk_add_f32 v[{M}:{M+1}], v[{M}:{M+1}], v[{b+i+2}:{b+i+3}]")
    a(f"v_pk_add_f32 v[{M}:{M+1}], v[{M}:{M+1}], v[{LA[2]}:{LA[2]+1}]")
    a(f"v_add_f32 v{M}, v{M}, v{T1}")
    a(f"v_add_f32 v{M}, v{M}, v{LA[0]}")
    a(f"v_mov_b32 v{T1}, v{M}")
    a(f"v_permlane32_swap_b32 v{M}, v{T1}")
    a(f"v_add_f32 v{M}, v{M}, v{T1}")
    a(f"v_rcp_f32 v{N[2]}, v{M}")
    a.wait_lg("fast")
    a(f"v_readfirstlane_b32 s{sFAST}, v1")
    a(f"v_mul_f32 v{N[0]}, v{N[0]}, v{N[2]}")
    a(f"v_mul_f32 v{N[1]}, v{N[1]}, v{N[2]}")
    a(f"s_cmp_lg_u32 s{sFAST}, 0")
    a("s_cselect_b64 vcc, -1, 0")
    for s in range(6):
        kt = s >> 1
        g = N[kt]
        pair, sel = (g & ~1, g & 1)
        b = S + 8 * s
        for i in range(0, 8, 2):
            a(f"v_pk_mul_f32 v[{b+i}:{b+i+1}], v[{b+i}:{b+i+1}], v[{pair}:{pair+1}] op_sel:[0,{sel}] op_sel_hi:[1,{sel}]")
        for i in range(4):
            a(f"v_cvt_pk_bf16_f32 v{P+4*s+i}, v{b+2*i}, v{b+2*i+1}")
    stamp(a, cfg, 10)
    nst = [0]
    def epi(Td):
        d = O + 16 * (Td % 3)
        r = []
        for e in range(2):
            o = OB + (2 * (Td % 2) + e) * 4
            for i in range(4): r.append(f"v_cvt_pk_bf16_f32 v{o+i}, v{d+8*e+2*i}, v{d+8*e+2*i+1}")
            r.append(("ds", f"ds_write_b128 v{vOL}, {vr(o)} offset:{L_OWN + Td*6144 + e*512}"))
            if not cfg.skip_ostore:
                nst[0] += 1
                n = nst[0]
                st = f"buffer_store_dwordx4 {vr(o)}, v{vOL}, s[{rWS}:{rWS+3}], s{sT0} offen"
                if cfg.o_fast_pol in ("sc1", "sc0 sc1"):
                    r.append(("blk", f"s_add_u32 s{sT0}, s{sOB}, {Td*6144 + e*512}\n{st} sc0 sc1"))
                else:
                    r.append(("blk", f"s_add_u32 s{sT0}, s{sOB}, {Td*6144 + e*512}\ns_cbranch_vccnz L_os{n}\n{st} sc0 sc1\ns_branch L_od{n}\nL_os{n}:\n{st} {cfg.o_fast_pol}\nL_od{n}:"))
        return r
    def emit(x):
        if isinstance(x, tuple):
            if x[0] == "ds": a.ds(x[1], "ow")
            else: a(x[1])
        else: a(x)
    fill = []
    for i in range(36):
        Td, s = divmod(i, 6)
        if i % 2 == 0: a.wait_lg(("V", i), ("V", i + 1))
        a(mfma32(O + 16 * (Td % 3), VF + 4 * (i % 12), P + 4 * s, first=(s == 0)))
        if i + NV < 36: vread(i + NV)
        if Td >= 1 and s == 3: fill += epi(Td - 1)
        for _ in range(cfg.fill_pv):
            if fill: emit(fill.pop(0))
    stamp(a, cfg, 11)
    for x in fill + epi(5): emit(x)
    stamp(a, cfg, 27)
    a.wait_lg_all()
    stamp(a, cfg, 12)
    a("s_barrier   ; O1")
    a.c("falls through into phase C")


def computeC(a, cfg):
    a.label("L_computeC")
    a.reset()
    if cfg.prio_c: a(f"s_setprio {cfg.prio_c}")
    ACC = 16
    def acc(T, t): return ACC + (T * 3 + t) * 4
    SETA = [76, 96]; SETB = [116, 128]
    vCA = [vCA0, vCA1]
    a(f"s_mul_i32 s{sT0}, s{sJQ}, 3072")
    a(f"v_add_u32 v{vCB[0]}, s{sT0}, v{vL16}")
    def reads(u):
        st = u & 1
        p = u >> 1
        hi, sl = divmod(p % 4, 2)
        so = sl * 20480 + (u & 1) * 10240
        if u < 6:
            vb, bo = vCB[0], L_OWN + u * 6144
        else:
            vb, bo = vCB[1], ((p - 3) % 3) * 12288 + (u & 1) * 6144
        R = []
        def ra(T):
            R.append((f"ds_read_b64_tr_b16 {vr(SETA[st]+4*T, 2)}, v{vCA[hi][T]} offset:{so}", ("A", u, T)))
            R.append((f"ds_read_b64_tr_b16 {vr(SETA[st]+4*T+2, 2)}, v{vCA[hi][T]} offset:{so+2560}", ("A", u, T)))
        ra(0)
        for t in range(3):
            R.append((f"ds_read_b128 {vr(SETB[st]+4*t)}, v{vb} offset:{bo + t*1024}", ("B", u, t)))
        for T in range(1, 5): ra(T)
        return R
    stamp(a, cfg, 13)
    for ins, tag in reads(0): a.ds(ins, tag)
    a(f"v_add_u32 v{vCB[1]}, {L_OR}, v{vCB[0]}")
    for T in range(5): a(f"v_add_u32 v{vCA1[T]}, 40960, v{vCA0[T]}")
    for u in range(24):
        if u & 1 and u < 23:
            a.wait_lg_all()
            a(f"s_barrier   ; C{u >> 1}")
        R = reads(u + 1) if u < 23 else []
        st = u & 1
        m = 0
        for T in range(5):
            for t in range(3):
                a.wait_lg(("A", u, T), ("B", u, t))
                a(mfma(acc(T, t), SETA[st] + 4 * T, SETB[st] + 4 * t, first=(u == 0)))
                if m < len(R): a.ds(*R[m])
                m += 1
        if u == cfg.h1_flag_step:
            a.c("waves 0-2 publish their O tile once its stores have drained")
            stamp(a, cfg, 22)
            a(f"""
            s_cmp_eq_u32 s{sWAVE}, 3
            s_cbranch_scc1 L_f1done
            s_waitcnt vmcnt(0)
            s_mov_b64 exec, 15
            s_cmp_lg_u32 s{sFAST}, 0
            s_cbranch_scc1 L_f1fast
            buffer_store_dword v{vONE}, v{vF1}, s[{rWS}:{rWS+3}], 0 offen sc0 sc1
            s_branch L_f1ex
            """)
            a.label("L_f1fast")
            a(f"buffer_store_dword v{vONE}, v{vF1}, s[{rWS}:{rWS+3}], 0 offen")
            a.label("L_f1ex")
            a("s_mov_b64 exec, -1")
            a.label("L_f1done")
            stamp(a, cfg, 23)
        if u in (2, 3): stamp(a, cfg, 22 + u)
        if u in (5, 11, 17): stamp(a, cfg, 15 + (u - 5) // 6)
    stamp(a, cfg, 18)
    a.c("partials, 8 units per wave: 6 tile pairs, the odd tile of q tiles 0|1, the odd tile of q tile 2 (32 lanes)")
    a(f"""
    s_cmp_lg_u32 s{sI}, 0
    s_cbranch_scc1 L_st1
    """)
    def cv(dst, d):
        a(f"v_cvt_pk_bf16_f32 v{dst}, v{d}, v{d+1}")
        a(f"v_cvt_pk_bf16_f32 v{dst+1}, v{d+2}, v{d+3}")
    U = 76
    for i in range(2):
        if i == 1:
            a("s_branch L_cvdone")
            a.label("L_st1")
        pairs = [(0, 1), (2, 3)] if i == 0 else [(1, 2), (3, 4)]
        odd = 4 if i == 0 else 0
        for t in range(3):
            for pi, (Ta, Tb) in enumerate(pairs):
                o = U + (2 * t + pi) * 4
                cv(o, acc(Ta, t)); cv(o + 2, acc(Tb, t))
        cv(U + 24, acc(odd, 0)); cv(U + 26, acc(odd, 1))
        cv(U + 28, acc(odd, 2))
    a.label("L_cvdone")
    a(f"v_permlane32_swap_b32 v{U+28}, v{U+30}")
    a(f"v_permlane32_swap_b32 v{U+29}, v{U+31}")
    a(f"s_lshr_b32 s{sT1}, s{sG}, 1")
    a(f"s_and_b32 s{sT2}, s{sG}, 1")
    for half in range(2):
        a(f"""
        s_cmp_lg_u32 s{sT1}, s{sWAVE}
        s_cbranch_scc1 L_rem{half}
        s_cmp_lg_u32 s{sT2}, {half}
        s_cbranch_scc1 L_rem{half}
        """)
        for k in range(4):
            a(f"ds_write_b128 v{vL16}, {vr(U + (4*half + k)*4)} offset:{L_OWN + k*1024}")
        a(f"s_branch L_remdone{half}")
        a.label(f"L_rem{half}")
        for k in range(4):
            u = 4 * half + k
            if u == 7: a("s_mov_b32 exec_hi, 0")
            a(f"s_add_u32 s{sT0}, s{sPS}, {u*1024}")
            a(f"buffer_store_dwordx4 {vr(U + u*4)}, v{vL16}, s[{rWS}:{rWS+3}], s{sT0} offen sc0 sc1")
            if u == 7: a("s_mov_b32 exec_hi, -1")
        a.label(f"L_remdone{half}")
    stamp(a, cfg, 19)
    a("s_waitcnt lgkmcnt(0)")
    a("s_barrier   ; PD")
    a("s_waitcnt vmcnt(0)")
    stamp(a, cfg, 20)
    a(f"""
    s_mov_b64 exec, 3
    buffer_store_dword v{vONE}, v{vF2}, s[{rWS}:{rWS+3}], 0 offen sc0 sc1
    s_mov_b64 exec, -1
    """)


def build(cfg, header=""):
    _lbl[0] = 0
    a = Asm()
    if header: a.raw(header.rstrip("\n"))
    a.raw(f"; @launch grid=(256,1,1) block=(512,1,1) lds={LDS_BYTES}")
    a.raw('.amdgcn_target "amdgcn-amd-amdhsa--gfx950"\n.text')
    prologue(a, cfg)
    loader(a, cfg)
    computeA(a, cfg)
    phaseB(a, cfg)
    computeC(a, cfg)
    a.label("L_fin")
    stamp(a, cfg, 21)
    if cfg.amp:
        w, ia, ib, A = cfg.amp
        a(f"""
        s_cmp_lg_u32 s{sWAVE}, {w}
        s_cbranch_scc1 L_noamp
        v_readlane_b32 s{sT0}, v255, {ia}
        v_readlane_b32 s{sT1}, v255, {ib}
        s_sub_u32 s{sT0}, s{sT1}, s{sT0}
        s_mul_i32 s{sT0}, s{sT0}, {A}
        s_memtime s[{sSTAMP}:{sSTAMP+1}]
        s_waitcnt lgkmcnt(0)
        s_add_u32 s{sT0}, s{sT0}, s{sSTAMP}
        """)
        a.label("L_amp")
        a(f"""
        s_memtime s[{sSTAMP}:{sSTAMP+1}]
        s_waitcnt lgkmcnt(0)
        s_sub_u32 s{sT1}, s{sSTAMP}, s{sT0}
        s_cmp_lt_i32 s{sT1}, 0
        s_cbranch_scc1 L_amp
        """)
        a.label("L_noamp")
    elif cfg.stamps:
        stamp_flush(a, cfg)
    a.label("L_end")
    a("s_endpgm")
    a.raw(kernel_desc(KN))
    return a.text()


def make(**kw):
    cfg = Cfg()
    for k, v in kw.items():
        assert hasattr(cfg, k), k
        setattr(cfg, k, v)
    header = open("cdna_kernels/" + NAME + ".s.ref").read().split("; Override launch")[0]
    return build(cfg, header)


if __name__ == "__main__":
    kw = {}
    for kv in sys.argv[2:]:
        k, v = kv.split("=", 1)
        kw[k] = eval(v)
    open(sys.argv[1], "w").write(make(**kw))
```

```python
import sys, math, struct
from asmgen import *

NAME = "standalone__gqa_block_cached__near_ridge"
KN = NAME + "_kernel"

X_BYTES = 768 * 640 * 2
KV_BYTES = 8 * 32 * 96 * 192 * 2
W_BYTES = 640 * 6144 * 2
OUT_BYTES = 768 * 640 * 2
WS_BYTES = 268435456
SCALE = 192 ** -0.5 * math.log2(math.e)

def f32hex(x):
    return "0x%08x" % struct.unpack("<I", struct.pack("<f", x))[0]

sX, sK, sV, sWQ, sWO, sOUT, sDBG, sWS = 4, 6, 8, 10, 12, 14, 16, 18
sWAVE, sG, sB, sJ, sH, sBH = 20, 21, 22, 23, 24, 25
sFAST, sSPIN = 26, 27
rX, rWQ, rK, rV, rWS, rWO, rOUT, rDBG = 28, 32, 36, 40, 44, 48, 52, 68
sT0, sT1, sT2, sT3 = 56, 57, 58, 59
sLW, sM0B, sKVB = 60, 61, 63
sI, sJQ, sROLE = 64, 65, 66
sOB, sPS = 62, 67
sWK, sOM0, sOK, sINB, sWE, sWM = 73, 74, 75, 76, 77, 78
sSTAMP = 80
sKW, sKX, sWC, sOC, sU, sDN, sJ4 = 92, 93, 94, 95, 96, 97, 98

L_W, L_X, L_K, L_V, L_Q = 0, 49152, 86016, 122880, 0
L_FLAG = 159744
L_OWN, L_WO, L_OR = 0, 36864, 122880
LDS_BYTES = 163840


class Cfg:
    stamps = False
    stamp_only = None
    amp = None
    prefetch_code = True
    pretouch = True
    ws_o = 0xE000000
    ws_p = 0xF000000
    ws_in = 0xFC00000
    ws_stamp = 0x4000000
    polW = ""; polX = ""; polKV = "nt"; polWO = ""; polPF = ""; polO = "sc1"
    o_fast_pol = "sc1"
    force_slow = False
    rot = (10, 10)
    k_sched = [12] * 9
    v_sched = [16] * 9
    kv_variants = [([7] * 9, [16] * 9), ([11] * 9, [16] * 9)]
    kv_sel_shift = 3
    wo_prefetch = True
    pf_at = 'Q'
    staged = ()
    early = 1
    mid = 4
    late = 4
    wrot = False
    h1_flag_step = 0
    h2_delay = 0
    pd_late = True
    q_lag = 6
    pf_code_early = True
    q_rate = 2
    poll_sleep = None
    spin_max = 400000
    fill_s = 5
    fill_pv = 2
    fill_last = 5
    pk_tail = True
    skip_o = False; skip_wo = False; skip_ostore = False
    prio_c = 0
    polOut = ''


def stamp(a, cfg, idx):
    if not cfg.stamps: return
    if cfg.stamp_only is not None and idx not in cfg.stamp_only: return
    a(f"""
    s_memtime s[{sSTAMP}:{sSTAMP+1}]
    s_waitcnt lgkmcnt(0)
    v_writelane_b32 v255, s{sSTAMP}, {idx}
    """)
    a.lg = []

def stamp_flush(a, cfg):
    a(f"""
    s_memrealtime s[{sSTAMP}:{sSTAMP+1}]
    s_waitcnt lgkmcnt(0)
    v_writelane_b32 v255, s{sSTAMP}, 33
    s_lshl_b32 s{sT0}, s2, 3
    s_add_u32 s{sT0}, s{sT0}, s{sWAVE}
    s_lshl_b32 s{sT0}, s{sT0}, 8
    s_add_u32 s{sT0}, s{sT0}, {cfg.ws_stamp}
    v_mbcnt_lo_u32_b32 v254, -1, 0
    v_mbcnt_hi_u32_b32 v254, -1, v254
    v_lshlrev_b32 v254, 2, v254
    buffer_store_dword v255, v254, s[{rWS}:{rWS+3}], s{sT0} offen
    """)

def wait_kernarg(a, cfg):
    a("s_waitcnt lgkmcnt(0)")
    if cfg.stamps:
        a(f"v_writelane_b32 v255, s{sSTAMP}, 0")
        a(f"v_writelane_b32 v255, s{sSTAMP+2}, 32")

def mfma(d, A, B, first=False):
    c = "0" if first else vr(d)
    return f"v_mfma_f32_16x16x32_bf16 {vr(d)}, {vr(A)}, {vr(B)}, {c}"

def mfma32(d, A, B, first=False):
    c = "0" if first else vr(d, 16)
    return f"v_mfma_f32_32x32x16_bf16 {vr(d, 16)}, {vr(A)}, {vr(B)}, {c}"

_lbl = [0]
def poll(a, cfg, vaddr, rs, soff, vtmp, check):
    _lbl[0] += 1
    n = _lbl[0]
    a(f"s_mov_b32 s{sSPIN}, 0")
    a.label(f"poll{n}")
    a(f"buffer_load_dword v{vtmp}, v{vaddr}, s[{rs}:{rs+3}], {soff} offen sc1")
    a.wait_vm_all()
    check()
    a(f"""
    s_cbranch_scc1 poll{n}_ok
    s_add_u32 s{sSPIN}, s{sSPIN}, 1
    s_cmp_ge_u32 s{sSPIN}, {cfg.spin_max}
    s_cbranch_scc1 poll{n}_ok
    """)
    if cfg.poll_sleep is not None: a(f"s_sleep {cfg.poll_sleep}")
    a(f"s_branch poll{n}")
    a.label(f"poll{n}_ok")

def dma(a, vaddr, rs, soff, ldsoff, tag, base, pol=""):
    a(f"s_add_u32 m0, s{base}, {ldsoff}")
    if isinstance(soff, str):
        so = soff
        a("s_nop 0")
    else:
        a(f"s_mov_b32 s{sT0}, {soff}")
        so = f"s{sT0}"
    a.vmem(f"buffer_load_dwordx4 v{vaddr}, s[{rs}:{rs+3}], {so} offen {pol} lds", tag)


vA = [10, 11, 12]; vXe, vXo, vQW = 13, 14, 15
vK0c, vV0, vOL = 232, 233, 234
vCA0 = [235, 236, 237, 238, 239]; vL16, vF1, vF2 = 240, 241, 242
vCA1 = [140, 141, 142, 143, 144]; vCB = [145, 146]
vONE = 252
vW = [220, 221, 222]; vXL = [223, 224, 225]; vKA = [226, 227, 228]; vKB = [229, 230, 231]; vV = [232, 233, 234]
vK0 = [235, 236, 237]; vCP = [238, 239, 240]
vWO = [241, 242, 243, 244, 245]; vOR, vDL, vDO, vP1, vP2, vPF = 246, 247, 248, 249, 250, 251
vSW = [218, 219]
STG = 16


def prologue(a, cfg):
    a.raw(kernel_header(KN))
    if cfg.stamps:
        a(f"s_memtime s[{sSTAMP}:{sSTAMP+1}]")
        a(f"s_memrealtime s[{sSTAMP+2}:{sSTAMP+3}]")
    a(f"""
    s_cmp_ge_u32 s2, 256
    s_cbranch_scc1 L_end
    s_load_dwordx16 s[4:19], s[0:1], 0
    v_lshrrev_b32 v1, 6, v0
    v_lshlrev_b32 v2, 7, v0
    v_readfirstlane_b32 s{sWAVE}, v1
    """)
    if cfg.prefetch_code and cfg.pf_code_early:
        a.c("waves 0-3 warm L2 with this kernel's own code (one dword per 128-byte line)")
        a(f"""
        s_cmp_ge_u32 s{sWAVE}, 4
        s_cbranch_scc1 L_nopf
        s_getpc_b64 s[{sT2}:{sT2+1}]
        """)
        a.label("L_pc")
        a(f"""
        s_sub_u32 s{sT2}, s{sT2}, L_pc-{KN}
        s_subb_u32 s{sT2+1}, s{sT2+1}, 0
        v_min_u32 v2, L_end-{KN}, v2
        global_load_dword v253, v2, s[{sT2}:{sT2+1}]
        """)
        a.label("L_nopf")
    a(f"""
    v_and_b32 v0, 63, v0
    s_and_b32 s{sG}, s2, 7
    s_lshr_b32 s{sT0}, s2, 3
    s_lshr_b32 s{sB}, s{sT0}, 2
    s_and_b32 s{sJ}, s{sT0}, 3
    s_lshl_b32 s{sH}, s{sG}, 2
    s_add_u32 s{sH}, s{sH}, s{sJ}
    s_lshl_b32 s{sBH}, s{sB}, 5
    s_add_u32 s{sBH}, s{sBH}, s{sH}
    s_lshl_b32 s{sINB}, s{sBH}, 11
    s_add_u32 s{sINB}, s{sINB}, {cfg.ws_in}
    s_cmp_lt_u32 s{sWAVE}, 4
    s_cbranch_scc1 L_computeA
    """)


def next_pair(a, cfg, p, sDst, sCnt, stride):
    if p + 1 >= 12: return
    if p + 1 < 4 or not cfg.wrot:
        a(f"""
        s_add_u32 s{sDst}, s{sDst}, {stride}
        s_cmp_eq_u32 s{sDst}, {12*stride}
        s_cselect_b32 s{sDst}, 0, s{sDst}
        """)
    else:
        a(f"""
        s_add_u32 s{sDst}, s{sJ4}, s{sCnt}
        s_cmp_ge_u32 s{sDst}, 12
        s_cselect_b32 s{sT0}, 12, 0
        s_sub_u32 s{sDst}, s{sDst}, s{sT0}
        s_mul_i32 s{sDst}, s{sDst}, {stride}
        s_add_u32 s{sCnt}, s{sCnt}, 1
        s_and_b32 s{sCnt}, s{sCnt}, 7
        """)

def ld_wo_pair(a, cfg, p):
    slot = L_WO + (p % 4) * 20480
    a(f"s_add_u32 s{sT3}, s{sWK}, s{sWE}")
    for i in range(0 if cfg.skip_wo else 5):
        if p in cfg.staged:
            d = STG + (cfg.staged.index(p) * 5 + i) * 4
            a.vmem(f"buffer_load_dwordx4 {vr(d)}, v{vWO[i]}, s[{rWO}:{rWO+3}], s{sT3} offen {cfg.polWO}", ("WO", p))
        else:
            dma(a, vWO[i], rWO, f"s{sT3}", slot + i * 1024, ("WO", p), sWM, cfg.polWO)
    next_pair(a, cfg, p, sWK, sWC, 81920)

def put_wo_pair(a, cfg, p):
    a.wait_vm(("WO", p))
    hi, sl = divmod(p % 4, 2)
    for i in range(0 if cfg.skip_wo else 5):
        d = STG + (cfg.staged.index(p) * 5 + i) * 4
        a.ds(f"ds_write_b128 v{vSW[hi]}, {vr(d)} offset:{sl*20480 + i*1024}", ("WOL", p))

def ld_o_pair(a, cfg, p):
    slot = L_OR + ((p - 3) % 3) * 12288
    a(f"s_add_u32 m0, s{sOM0}, {slot}")
    a("s_nop 0")
    for i in range(0 if cfg.skip_o else 3):
        a.vmem(f"buffer_load_dwordx4 v{vOR}, s[{rWS}:{rWS+3}], s{sOK} offen offset:{i*1024} {cfg.polO} lds", ("O", p))
    next_pair(a, cfg, p, sOK, sOC, 12288)


def loader(a, cfg):
    a.reset()
    a(f"s_mov_b32 s{sROLE}, 1")
    a(f"s_sub_u32 s{sLW}, s{sWAVE}, 4")
    a(f"s_mul_i32 s{sT0}, s{sLW}, {8*12288}")
    a(f"s_mul_i32 s{sT1}, s{sH}, 384")
    a(f"s_add_u32 s{sT0}, s{sT0}, s{sT1}")
    a(f"s_and_b32 s{sT1}, s{sLW}, 1")
    a(f"s_lshl_b32 s{sT1}, s{sT1}, 2")
    for i in range(3):
        a(f"""
        v_add_u32 v2, {64*i}, v0
        v_mul_u32_u24 v3, 2731, v2
        v_lshrrev_b32 v{vK0[i]}, 16, v3
        v_mul_u32_u24 v4, 24, v{vK0[i]}
        v_sub_u32 v{vCP[i]}, v2, v4
        v_and_b32 v5, 2, v{vK0[i]}
        v_or_b32 v5, s{sT1}, v5
        v_xor_b32 v5, v5, v{vCP[i]}
        v_mul_u32_u24 v6, 12288, v{vK0[i]}
        v_lshl_add_u32 v6, v5, 4, v6
        v_add_u32 v{vW[i]}, s{sT0}, v6
        """)
    a(f"""
    s_mul_i32 s{sT2}, s{sB}, 96
    s_mul_i32 s{sT3}, s{sLW}, 24
    s_add_u32 s{sT2}, s{sT2}, s{sT3}
    s_mul_i32 s{sT2}, s{sT2}, 1280
    v_lshrrev_b32 v2, 3, v0
    v_mul_u32_u24 v2, 1280, v2
    v_and_b32 v3, 7, v0
    v_lshrrev_b32 v4, 4, v0
    v_xor_b32 v3, v3, v4
    v_xor_b32 v3, s{sT1}, v3
    v_lshl_add_u32 v{vXL[0]}, v3, 4, v2
    v_add_u32 v{vXL[0]}, s{sT2}, v{vXL[0]}
    v_xor_b32 v3, 4, v3
    v_lshl_add_u32 v{vXL[1]}, v3, 4, v2
    s_add_u32 s{sT3}, s{sT2}, {8*1280}
    v_add_u32 v{vXL[1]}, s{sT3}, v{vXL[1]}
    v_add_u32 v{vXL[2]}, {16*1280}, v{vXL[0]}
    s_mul_i32 s{sM0B}, s{sLW}, 3072
    s_mul_i32 s{sT2}, s{sB}, {cfg.rot[0]}
    s_mul_i32 s{sT3}, s{sJ}, {cfg.rot[1]}
    s_add_u32 s{sT2}, s{sT2}, s{sT3}
    s_add_u32 s{sT2}, s{sT2}, 2
    s_lshr_b32 s{sT2}, s{sT2}, 2
    s_cmp_ge_u32 s{sT2}, 20
    s_cselect_b32 s{sT3}, 20, 0
    s_sub_u32 s{sT2}, s{sT2}, s{sT3}
    s_cmp_ge_u32 s{sT2}, 10
    s_cselect_b32 s{sT3}, 10, 0
    s_sub_u32 s{sT2}, s{sT2}, s{sT3}
    s_mul_i32 s{sKW}, s{sT2}, {64*12288}
    s_lshl_b32 s{sKX}, s{sT2}, 7
    """)
    assert (7 * cfg.rot[0] + 3 * cfg.rot[1] + 2) // 4 < 30
    wait_kernarg(a, cfg)
    srd(a, rWQ, sWQ, W_BYTES)
    srd(a, rX, sX, X_BYTES)
    stamp(a, cfg, 29)

    def ldW(s):
        for i in range(3): dma(a, vW[i], rWQ, f"s{sKW}", L_W + (s % 4) * 12288 + i * 1024, ("W", s), sM0B, cfg.polW)
        a(f"""
        s_add_u32 s{sKW}, s{sKW}, {32*12288}
        s_cmp_eq_u32 s{sKW}, {640*12288}
        s_cselect_b32 s{sKW}, 0, s{sKW}
        """)
    def ldX(m):
        for i in range(3): dma(a, vXL[i], rX, f"s{sKX}", L_X + (m % 3) * 12288 + i * 1024, ("X", m), sM0B, cfg.polX)
        a(f"""
        s_add_u32 s{sKX}, s{sKX}, 128
        s_cmp_eq_u32 s{sKX}, 1280
        s_cselect_b32 s{sKX}, 0, s{sKX}
        """)
    def ldK(i):
        i1, i0 = divmod(i, 3)
        dma(a, (vKB if i1 & 1 else vKA)[i0], rK, i1 * 3072, L_K + i * 1024, "K", sKVB, cfg.polKV)
    def ldV(i):
        i1, i0 = divmod(i, 3)
        dma(a, vV[i0], rV, i1 * 3072, L_V + i * 1024, "V", sKVB, cfg.polKV)

    ldW(0); ldX(0)
    srd(a, rWS, sWS, WS_BYTES)
    srd(a, rDBG, sDBG, 256)
    a.c("wave 7: clear this workgroup's inbox")
    a(f"""
    s_cmp_lg_u32 s{sWAVE}, 7
    s_cbranch_scc1 L_noclr
    v_lshlrev_b32 v2, 4, v0
    v_mov_b32 v4, 0
    v_mov_b32 v5, 0
    v_mov_b32 v6, 0
    v_mov_b32 v7, 0
    buffer_store_dwordx4 v[4:7], v2, s[{rWS}:{rWS+3}], s{sINB} offen sc0 sc1
    s_mov_b64 exec, 0xff
    buffer_store_dwordx4 v[4:7], v2, s[{rWS}:{rWS+3}], s{sINB} offen offset:1024 sc0 sc1
    s_mov_b64 exec, -1
    """)
    a.label("L_noclr")
    ldW(1)
    srd(a, rK, sK, KV_BYTES)
    srd(a, rV, sV, KV_BYTES)
    srd(a, rWO, sWO, W_BYTES)
    srd(a, rOUT, sOUT, OUT_BYTES)
    a(f"""
    s_mul_i32 s{sKVB}, s{sLW}, 9216
    s_mul_i32 s{sT2}, s{sBH}, 36864
    s_add_u32 s{sT2}, s{sT2}, s{sKVB}
    """)
    for i in range(3):
        a(f"""
        v_mul_u32_u24 v6, 384, v{vK0[i]}
        v_add_u32 v6, s{sT2}, v6
        v_lshrrev_b32 v3, 1, v{vK0[i]}
        v_xor_b32 v4, v3, v{vCP[i]}
        v_xor_b32 v4, s{sT1}, v4
        v_lshl_add_u32 v{vKA[i]}, v4, 4, v6
        v_xor_b32 v4, 4, v4
        v_lshl_add_u32 v{vKB[i]}, v4, 4, v6
        v_and_b32 v3, 1, v3
        v_lshlrev_b32 v3, 2, v3
        v_xor_b32 v4, v3, v{vCP[i]}
        v_lshl_add_u32 v{vV[i]}, v4, 4, v6
        """)
    ldW(2); ldX(1); ldW(3); ldX(2)
    a.c("phase C / D loader addresses")
    a(f"""
    s_and_b32 s{sT1}, s{sLW}, 1
    s_lshr_b32 s{sT2}, s{sLW}, 1
    s_mul_i32 s{sWE}, s{sT2}, 40960
    s_mul_i32 s{sWM}, s{sLW}, 5120
    s_mul_i32 s{sT1}, s{sT1}, 320
    s_mul_i32 s{sT2}, s{sG}, {768*1280}
    s_mul_i32 s{sT3}, s{sJ}, 320
    s_add_u32 s{sT2}, s{sT2}, s{sT3}
    """)
    for i in range(5):
        a(f"""
        v_add_u32 v2, s{sT1}, v0
        v_add_u32 v2, {64*i}, v2
        v_mul_u32_u24 v3, 3277, v2
        v_lshrrev_b32 v3, 16, v3            ; row = t/20
        v_mul_u32_u24 v4, 20, v3
        v_sub_u32 v4, v2, v4                ; cp
        v_lshrrev_b32 v5, 1, v3
        v_and_b32 v5, 2, v5
        v_xor_b32 v4, v4, v5
        v_mul_u32_u24 v3, 1280, v3
        v_lshl_add_u32 v3, v4, 4, v3
        v_add_u32 v{vWO[i]}, s{sT2}, v3
        """)
    a(f"""
    s_mul_i32 s{sWK}, s{sJ}, {3*81920}
    s_mul_i32 s{sJ4}, s{sJ}, 3
    s_add_u32 s{sJ4}, s{sJ4}, 4
    s_mov_b32 s{sWC}, s{sB}
    s_mov_b32 s{sOC}, s{sB}
    v_lshlrev_b32 v7, 4, v0
    s_add_u32 s{sT1}, s{sWM}, {L_WO}
    v_add_u32 v{vSW[0]}, s{sT1}, v7
    v_add_u32 v{vSW[1]}, 40960, v{vSW[0]}
    s_add_u32 s{sT1}, s{sJ}, 1
    s_and_b32 s{sT1}, s{sT1}, 3
    s_mul_i32 s{sOK}, s{sT1}, {3*12288}
    s_mul_i32 s{sOM0}, s{sLW}, 3072
    s_lshl_b32 s{sT1}, s{sB}, 3
    s_add_u32 s{sT1}, s{sT1}, s{sG}
    s_mul_i32 s{sT1}, s{sT1}, 147456
    s_add_u32 s{sT1}, s{sT1}, s{sOM0}
    s_add_u32 s{sT1}, s{sT1}, {cfg.ws_o}
    v_add_u32 v{vOR}, s{sT1}, v7
    v_min_u32 v2, 11, v0
    v_lshlrev_b32 v2, 2, v2
    s_add_u32 s{sT1}, s{sINB}, 1024
    v_add_u32 v{vP1}, s{sT1}, v2
    v_min_u32 v2, 7, v0
    v_max_u32 v2, 1, v2
    v_add_u32 v2, s{sG}, v2
    v_and_b32 v2, 7, v2
    v_lshlrev_b32 v3, 7, v2
    v_add_u32 v{vP2}, s{sINB}, v3
    s_lshr_b32 s{sT1}, s2, 3
    s_lshl_b32 s{sT1}, s{sT1}, 2
    s_add_u32 s{sT1}, s{sT1}, s{sLW}
    s_mul_i32 s{sT1}, s{sT1}, 7680
    s_mul_i32 s{sT2}, s{sG}, 983040
    s_add_u32 s{sT1}, s{sT1}, s{sT2}
    v_min_u32 v2, 59, v0
    v_lshlrev_b32 v2, 7, v2
    v_add_u32 v{vPF}, s{sT1}, v2
    s_and_b32 s{sT0}, s{sG}, 1
    s_lshl_b32 s{sT0}, s{sT0}, 2
    s_add_u32 s{sU}, s{sT0}, s{sLW}
    s_lshl_b32 s{sT2}, s{sB}, 2
    s_add_u32 s{sT2}, s{sT2}, s{sJ}
    s_lshl_b32 s{sT2}, s{sT2}, 5
    s_lshr_b32 s{sT1}, s{sG}, 1
    s_add_u32 s{sT2}, s{sT2}, s{sT1}
    s_lshl_b32 s{sT2}, s{sT2}, 3
    s_add_u32 s{sT2}, s{sT2}, s{sU}
    s_lshl_b32 s{sT2}, s{sT2}, 10
    s_add_u32 s{sT2}, s{sT2}, {cfg.ws_p}
    v_add_u32 v{vDL}, s{sT2}, v7            ; + src*32768
    s_bfe_u32 s{sT0}, s{sG}, 0x10001        ; i
    s_lshr_b32 s{sT1}, s{sG}, 2             ; jq
    s_mul_i32 s{sT1}, s{sT1}, 48
    s_mul_i32 s{sT2}, s{sB}, 96
    s_add_u32 s{sT1}, s{sT1}, s{sT2}
    s_lshr_b32 s{sT2}, s{sU}, 1             ; t (u<6)
    s_cmp_eq_u32 s{sU}, 6
    s_cselect_b32 s{sT2}, 0, s{sT2}
    s_cmp_eq_u32 s{sU}, 7
    s_cselect_b32 s{sT2}, 2, s{sT2}
    s_lshl_b32 s{sT2}, s{sT2}, 4
    s_add_u32 s{sT1}, s{sT1}, s{sT2}
    s_mul_i32 s{sT1}, s{sT1}, 1280
    s_and_b32 s{sT2}, s{sU}, 1
    s_lshl_b32 s{sT2}, s{sT2}, 6
    s_mul_i32 s{sT3}, s{sT0}, 192           ; (80+16) columns * 2B * i
    s_add_u32 s{sT2}, s{sT2}, s{sT3}
    s_lshl_b32 s{sT3}, s{sT0}, 5
    s_add_u32 s{sT3}, s{sT3}, 128           ; (64 + 16 i) * 2B
    s_cmp_ge_u32 s{sU}, 6
    s_cselect_b32 s{sT2}, s{sT3}, s{sT2}
    s_add_u32 s{sT1}, s{sT1}, s{sT2}
    s_mul_i32 s{sT2}, s{sJ}, 320
    s_add_u32 s{sT1}, s{sT1}, s{sT2}
    v_and_b32 v2, 15, v0
    v_mul_u32_u24 v2, 1280, v2
    v_lshrrev_b32 v3, 4, v0
    v_lshl_add_u32 v2, v3, 3, v2
    v_add_u32 v{vDO}, s{sT1}, v2
    s_mov_b32 s{sDN}, 32
    s_cmp_eq_u32 s{sU}, 6
    s_cselect_b32 s{sDN}, {16*1280}, s{sDN}
    s_cmp_eq_u32 s{sU}, 7
    s_cselect_b32 s{sDN}, 16, s{sDN}
    """)
    stamp(a, cfg, 1)
    a.wait_vm(("W", 0), ("X", 0))
    a("s_barrier   ; P")
    stamp(a, cfg, 2)
    a.wait_vm(("W", 1), ("X", 0))
    a.c("wave 7: inbox cleared (its stores are older than W1) -> arrive on the group word in d_debug")
    a(f"""
    s_cmp_lg_u32 s{sWAVE}, 7
    s_cbranch_scc1 L_noarr
    s_getreg_b32 s{sT1}, hwreg(HW_REG_XCC_ID, 0, 4)
    s_lshl_b32 s{sT2}, s{sJ}, 2
    s_add_u32 s{sT2}, s{sT2}, 4
    s_lshl_b32 s{sT1}, s{sT1}, s{sT2}
    s_add_u32 s{sT1}, s{sT1}, 1
    s_lshl_b32 s{sT2}, s{sB}, 3
    s_add_u32 s{sT2}, s{sT2}, s{sG}
    s_lshl_b32 s{sT2}, s{sT2}, 2
    v_mov_b32 v2, s{sT1}
    v_mov_b32 v3, s{sT2}
    s_mov_b64 exec, 1
    buffer_atomic_add v2, v3, s[{rDBG}:{rDBG+3}], 0 offen sc1
    s_mov_b64 exec, -1
    """)
    a.label("L_noarr")
    variants = cfg.kv_variants or [(cfg.k_sched, cfg.v_sched)]
    nv = len(variants)
    if nv > 1:
        a(f"s_lshr_b32 s{sT1}, s2, {cfg.kv_sel_shift}")
        a(f"s_and_b32 s{sT1}, s{sT1}, {nv-1}")
        for v in range(1, nv):
            a(f"s_cmp_eq_u32 s{sT1}, {v}")
            a(f"s_cbranch_scc1 L_kvvar{v}")
    vm0 = list(a.vm)
    for v, var in enumerate(variants):
        ksch, vsch = var[0], var[1]
        pfs = var[2] if len(var) > 2 else cfg.pf_at
        if v: a.label(f"L_kvvar{v}")
        a.vm = list(vm0)
        for s in range(19):
            a.wait_vm(("W", s + 1), ("X", (s + 1) >> 1))
            a(f"s_barrier   ; B{s}")
            if s + 4 < 20: ldW(s + 4)
            if s & 1 and (s >> 1) + 3 < 10: ldX((s >> 1) + 3)
            if cfg.wo_prefetch and pfs == s:
                a.vmem(f"buffer_load_dword v253, v{vPF}, s[{rWO}:{rWO+3}], 0 offen {cfg.polPF}", "pf")
            for i, ss in enumerate(ksch):
                if ss == s: ldK(i)
            for i, ss in enumerate(vsch):
                if ss == s: ldV(i)
            if s in (4, 9, 14): stamp(a, cfg, 3 + (s - 4) // 5)
        a.wait_vm("K")
        if v < nv - 1: a("s_branch L_kvjoin")
    if nv > 1: a.label("L_kvjoin")
    stamp(a, cfg, 6)
    a("s_barrier   ; Q")
    a.vm = ["V"]
    def pf():
        if cfg.wo_prefetch:
            a.vmem(f"buffer_load_dword v253, v{vPF}, s[{rWO}:{rWO+3}], 0 offen {cfg.polPF}", "pf")
    a.c("have the 32 workgroups of this batch cleared their inboxes?  (read now, looked at before the V barrier)")
    a(f"""
    v_and_b32 v2, 7, v0
    v_lshlrev_b32 v2, 2, v2
    s_lshl_b32 s{sSPIN}, s{sB}, 5
    v_add_u32 v2, s{sSPIN}, v2
    """)
    a.vmem(f"buffer_load_dword v3, v2, s[{rDBG}:{rDBG+3}], 0 offen sc1", "hs")
    if cfg.pf_at == "Q": pf()
    nxt = 0
    def issue_upto(n):
        nonlocal nxt
        while nxt < n:
            ld_wo_pair(a, cfg, nxt); nxt += 1
    for p in range(2, cfg.early): assert p in cfg.staged
    issue_upto(cfg.early)
    a.wait_vm("hs")
    def chk():
        a(f"""
        v_and_b32 v4, 7, v3
        v_cmp_eq_u32 vcc, 4, v4
        s_cmp_eq_u64 vcc, -1
        """)
    chk()
    a("s_cbranch_scc1 L_hsok")
    save = list(a.vm)
    poll(a, cfg, 2, rDBG, "0", 3, chk)
    a.vm = save
    a.label("L_hsok")
    a(f"""
    s_cmp_lg_u32 s{sWAVE}, 7
    s_cbranch_scc1 L_nohs
    v_readlane_b32 s{sT1}, v3, s{sG}
    s_bfe_u32 s{sT1}, s{sT1}, 0x100004
    s_and_b32 s{sT2}, s{sT1}, 15
    s_mul_i32 s{sT2}, s{sT2}, 0x1111
    s_cmp_eq_u32 s{sT1}, s{sT2}
    s_cselect_b32 s{sT1}, {0 if cfg.force_slow else 1}, 0
    v_mov_b32 v2, {L_FLAG}
    v_mov_b32 v3, s{sT1}
    ds_write_b32 v2, v3
    buffer_load_dword v253, v{vP1}, s[{rWS}:{rWS+3}], 0 offen sc1
    s_waitcnt lgkmcnt(0)
    """)
    a.label("L_nohs")
    stamp(a, cfg, 8)
    a("s_barrier   ; V")
    if cfg.pf_at == "V": pf()
    for p in (2, 3):
        if p in cfg.staged and p < nxt: put_wo_pair(a, cfg, p)
    issue_upto(cfg.mid)
    for p in (2, 3):
        if p in cfg.staged and not any(t == ("WOL", p) for t in a.lg) and p >= cfg.early: put_wo_pair(a, cfg, p)
    if cfg.pf_at == "V2": pf()
    stamp(a, cfg, 10)
    a.wait_vm(("WO", 0))
    stamp(a, cfg, 12)
    a("s_barrier   ; O1")
    stamp(a, cfg, 13)
    for p in range(max(nxt, 4), cfg.late): assert p in cfg.staged
    issue_upto(max(4, cfg.late))
    def chk1():
        a(f"v_cmp_eq_u32 vcc, 1, v3")
        a("s_cmp_eq_u64 vcc, -1")
    for p in range(11):
        if p in (1, 2): stamp(a, cfg, 21 + p)
        if p == 2:
            a.c("wait for the siblings' O tiles")
            poll(a, cfg, vP1, rWS, "0", 3, chk1)
            if cfg.stamps: a(f"v_writelane_b32 v255, s{sSPIN}, 30")
            stamp(a, cfg, 14)
            for pp in (3, 4, 5): ld_o_pair(a, cfg, pp)
        a.wait_vm(("WO", p + 1), ("O", p + 1))
        a.wait_lg(("WOL", p + 1))
        if p in (2, 3): stamp(a, cfg, 22 + p)
        a(f"s_barrier   ; C{p}")
        if p + 4 < 12:
            issue_upto(p + 5)
            if p + 4 in cfg.staged: put_wo_pair(a, cfg, p + 4)
        if p >= 3 and p + 3 < 12: ld_o_pair(a, cfg, p + 3)
        if p in (2, 5, 8): stamp(a, cfg, 15 + (p - 2) // 3)
    stamp(a, cfg, 18)
    a.c("phase D")
    A = 48
    a("s_barrier   ; PD")
    stamp(a, cfg, 26)
    a(f"s_lshl_b32 s{sT0}, s{sLW}, 10")
    a(f"v_lshlrev_b32 v2, 4, v0")
    a(f"v_add_u32 v2, s{sT0}, v2")
    a.ds(f"ds_read_b128 v[16:19], v2 offset:{L_OWN}", "own")
    a(f"s_cmp_lg_u32 s{sWAVE}, 4")
    a("s_cbranch_scc1 L_nopoll2")
    if cfg.h2_delay: a(f"s_sleep {cfg.h2_delay}")
    def chk2():
        a(f"v_cmp_eq_u32 vcc, 1, v3")
        a("s_cmp_eq_u64 vcc, -1")
    poll(a, cfg, vP2, rWS, "0", 3, chk2)
    a.label("L_nopoll2")
    a("s_barrier   ; PE")
    if cfg.stamps: a(f"v_writelane_b32 v255, s{sSPIN}, 31")
    stamp(a, cfg, 19)
    a(f"""
    s_cmp_eq_u32 s{sU}, 7
    s_cselect_b32 exec_hi, 0, -1
    """)
    a.vm = []
    for k in range(1, 8):
        a(f"""
        s_add_u32 s{sT0}, s{sG}, {k}
        s_and_b32 s{sT0}, s{sT0}, 7
        s_lshl_b32 s{sT0}, s{sT0}, 15
        """)
        a.vmem(f"buffer_load_dwordx4 {vr(16+4*k)}, v{vDL}, s[{rWS}:{rWS+3}], s{sT0} offen sc1", ("p", k))
    a(f"s_mov_b32 s{sT1}, 0xffff0000")
    for k in range(8):
        if k == 0: a.wait_lg_all()
        a.wait_vm(("p", k))
        for i in range(4):
            s = 16 + 4 * k + i
            if k == 0:
                a(f"v_lshlrev_b32 v{A+2*i}, 16, v{s}")
                a(f"v_and_b32 v{A+2*i+1}, s{sT1}, v{s}")
            else:
                a(f"v_lshlrev_b32 v{60+2*i}, 16, v{s}")
                a(f"v_and_b32 v{61+2*i}, s{sT1}, v{s}")
                a(f"v_add_f32 v{A+2*i}, v{A+2*i}, v{60+2*i}")
                a(f"v_add_f32 v{A+2*i+1}, v{A+2*i+1}, v{61+2*i}")
    stamp(a, cfg, 20)
    for i in range(4):
        a(f"v_cvt_pk_bf16_f32 v{16+i}, v{A+2*i}, v{A+2*i+1}")
    a(f"buffer_store_dwordx2 v[16:17], v{vDO}, s[{rOUT}:{rOUT+3}], 0 offen {cfg.polOut}")
    a(f"buffer_store_dwordx2 v[18:19], v{vDO}, s[{rOUT}:{rOUT+3}], s{sDN} offen {cfg.polOut}")
    a("s_mov_b64 exec, -1")
    a("s_branch L_fin")


def computeA(a, cfg):
    a.label("L_computeA")
    a.reset()
    a(f"s_mov_b32 s{sROLE}, 0")
    if cfg.prefetch_code and not cfg.pf_code_early:
        a.c("wave w warms L2 with 8 KB of this kernel's code (one dword per 128-byte line)")
        a(f"s_getpc_b64 s[{sT2}:{sT2+1}]")
        a.label("L_pc")
        a(f"""
        s_sub_u32 s{sT2}, s{sT2}, L_pc-{KN}
        s_subb_u32 s{sT2+1}, s{sT2+1}, 0
        s_lshl_b32 s{sT0}, s{sWAVE}, 13
        v_lshlrev_b32 v2, 7, v0
        v_add_u32 v2, s{sT0}, v2
        v_min_u32 v2, L_end-{KN}, v2
        global_load_dword v253, v2, s[{sT2}:{sT2+1}]
        """)
    ACC = 16
    def acc(T, t): return ACC + (T * 6 + t) * 4
    SETA = [88, 124]; SETB = [100, 136]
    a.c("phase A addresses: v2=kq v3=r v4=c v5=n")
    a(f"""
    v_lshrrev_b32 v2, 4, v0
    v_bfe_u32 v3, v0, 2, 2
    v_and_b32 v4, 3, v0
    v_and_b32 v5, 15, v0
    v_lshlrev_b32 v6, 3, v2
    v_add_u32 v6, v6, v3                     ; k = 8kq + r
    v_mul_u32_u24 v6, 384, v6
    v_lshl_add_u32 v6, v4, 3, v6             ; k*384 + 8c
    v_lshrrev_b32 v7, 1, v3
    v_and_b32 v8, 1, v2
    v_lshl_or_b32 v7, v8, 1, v7              ; h(k)
    s_mul_i32 s{sT0}, s{sWAVE}, 3
    """)
    for T in range(3):
        a(f"""
        s_add_u32 s{sT1}, s{sT0}, {T}
        v_xor_b32 v8, s{sT1}, v7
        v_lshl_add_u32 v{vA[T]}, v8, 5, v6
        """)
    a(f"""
    v_lshrrev_b32 v6, 1, v5                  ; (n>>1)&7
    v_xor_b32 v6, v6, v2
    v_lshlrev_b32 v6, 4, v6
    v_lshl_add_u32 v6, v5, 7, v6
    v_add_u32 v{vXe}, {L_X}, v6
    v_xor_b32 v{vXo}, 64, v{vXe}
    v_lshrrev_b32 v6, 1, v2
    v_lshlrev_b32 v6, 9, v6
    v_lshl_add_u32 v6, v5, 4, v6
    v_and_b32 v7, 1, v2
    v_lshl_add_u32 v6, v7, 3, v6
    s_mul_i32 s{sT0}, s{sWAVE}, 3072
    v_add_u32 v{vQW}, s{sT0}, v6
    v_lshlrev_b32 v{vL16}, 4, v0
    v_mov_b32 v{vONE}, 1
    v_and_b32 v6, 31, v0
    v_lshrrev_b32 v7, 5, v0
    v_bfe_u32 v8, v0, 1, 3                   ; (m>>1)&7
    v_xor_b32 v8, v8, v7
    v_mul_u32_u24 v9, 384, v6
    v_lshl_add_u32 v9, v8, 4, v9
    v_add_u32 v{vK0c}, {L_K}, v9
    v_lshl_add_u32 v8, v7, 2, v3
    v_mul_u32_u24 v8, 384, v8
    v_lshl_add_u32 v8, v4, 3, v8             ; + 8c
    v_and_b32 v9, 2, v3                      ; hh
    v_and_b32 v6, 1, v2                      ; dh
    v_or_b32 v9, v9, v6
    v_lshl_add_u32 v8, v9, 5, v8
    v_add_u32 v{vV0}, {L_V}, v8
    v_lshlrev_b32 v8, 10, v6                 ; (n>>4)*1024
    v_lshl_add_u32 v8, v7, 8, v8             ; + hi*256
    v_lshl_add_u32 v8, v5, 4, v8             ; + (n&15)*16
    s_lshl_b32 s{sT0}, s{sWAVE}, 11
    v_add_u32 v{vOL}, s{sT0}, v8
    s_lshl_b32 s{sT2}, s{sB}, 3
    s_add_u32 s{sT2}, s{sT2}, s{sG}
    s_lshl_b32 s{sT2}, s{sT2}, 2
    s_add_u32 s{sT2}, s{sT2}, s{sJ}
    s_mul_i32 s{sOB}, s{sT2}, 36864
    s_add_u32 s{sOB}, s{sOB}, {cfg.ws_o}
    s_lshl_b32 s{sT2}, s{sJ}, 11
    s_sub_u32 s{sT2}, s{sINB}, s{sT2}
    s_add_u32 s{sT2}, s{sT2}, 1024
    s_mul_i32 s{sT3}, s{sJ}, 12
    s_add_u32 s{sT2}, s{sT2}, s{sT3}
    s_lshl_b32 s{sT3}, s{sWAVE}, 2
    s_add_u32 s{sT2}, s{sT2}, s{sT3}
    v_lshlrev_b32 v8, 11, v4
    v_add_u32 v{vF1}, s{sT2}, v8
    s_and_b32 s{sI}, s{sWAVE}, 1
    s_lshr_b32 s{sJQ}, s{sWAVE}, 1
    v_lshrrev_b32 v6, 1, v2
    v_lshlrev_b32 v6, 4, v6
    v_and_b32 v7, 1, v2
    v_lshl_add_u32 v6, v7, 2, v6
    v_add_u32 v6, v6, v3
    v_mul_u32_u24 v6, 320, v6
    v_lshl_add_u32 v6, v4, 3, v6
    v_add_u32 v6, {L_WO}, v6
    s_mul_i32 s{sT0}, s{sI}, 5
    """)
    for T in range(5):
        a(f"""
        s_add_u32 s{sT1}, s{sT0}, {T}
        v_xor_b32 v8, s{sT1}, v7
        v_lshl_add_u32 v{vCA0[T]}, v8, 5, v6
        """)
    a(f"""
    s_lshl_b32 s{sT0}, s{sB}, 2
    s_add_u32 s{sT0}, s{sT0}, s{sJ}
    s_lshl_b32 s{sT0}, s{sT0}, 3
    s_add_u32 s{sT0}, s{sT0}, s{sG}
    s_lshl_b32 s{sT0}, s{sT0}, 2
    s_add_u32 s{sT0}, s{sT0}, s{sWAVE}
    s_lshl_b32 s{sT0}, s{sT0}, 13
    s_add_u32 s{sPS}, s{sT0}, {cfg.ws_p}
    s_lshl_b32 s{sT0}, s{sB}, 5
    s_lshl_b32 s{sT1}, s{sWAVE}, 3
    s_add_u32 s{sT0}, s{sT0}, s{sT1}
    s_add_u32 s{sT0}, s{sT0}, s{sJ}
    s_lshl_b32 s{sT0}, s{sT0}, 11
    s_lshl_b32 s{sT1}, s{sG}, 7
    s_add_u32 s{sT0}, s{sT0}, s{sT1}
    s_add_u32 s{sT0}, s{sT0}, {cfg.ws_in}
    v_and_b32 v3, 1, v0
    v_lshlrev_b32 v3, 13, v3
    v_add_u32 v{vF2}, s{sT0}, v3
    """)
    wait_kernarg(a, cfg)
    srd(a, rWS, sWS, WS_BYTES)
    if cfg.pretouch:
        a.c("wave 1 touches the pages used later so that their translations are resident")
        a(f"""
        s_cmp_lg_u32 s{sWAVE}, 1
        s_cbranch_scc1 L_notouch
        """)
        srd(a, rK, sK, KV_BYTES); srd(a, rV, sV, KV_BYTES); srd(a, rWO, sWO, W_BYTES); srd(a, rOUT, sOUT, OUT_BYTES)
        a(f"""
        s_mov_b64 exec, 3
        v_mul_u32_u24 v2, 36860, v0
        s_mul_i32 s{sT0}, s{sBH}, 36864
        buffer_load_dword v253, v2, s[{rK}:{rK+3}], s{sT0} offen nt
        buffer_load_dword v253, v2, s[{rV}:{rV+3}], s{sT0} offen nt
        v_mul_u32_u24 v2, 983036, v0
        s_mul_i32 s{sT0}, s{sG}, 983040
        buffer_load_dword v253, v2, s[{rWO}:{rWO+3}], s{sT0} offen
        buffer_load_dword v253, v2, s[{rOUT}:{rOUT+3}], 0 offen nt
        buffer_load_dword v253, v{vL16}, s[{rWS}:{rWS+3}], s{sOB} offen nt
        buffer_load_dword v253, v{vL16}, s[{rWS}:{rWS+3}], s{sPS} offen nt
        s_mov_b64 exec, -1
        """)
        a.label("L_notouch")
    stamp(a, cfg, 1)

    def reads(s):
        st = s & 1
        wo = L_W + (s % 4) * 12288
        xo = ((s >> 1) % 3) * 12288
        vx = vXo if s & 1 else vXe
        R = []
        def ra(T):
            R.append((f"ds_read_b64_tr_b16 {vr(SETA[st]+4*T, 2)}, v{vA[T]} offset:{wo}", ("A", s, T)))
            R.append((f"ds_read_b64_tr_b16 {vr(SETA[st]+4*T+2, 2)}, v{vA[T]} offset:{wo+1536}", ("A", s, T)))
        ra(0)
        for t in range(6):
            R.append((f"ds_read_b128 {vr(SETB[st]+4*t)}, v{vx} offset:{xo + t*2048}", ("B", s, t)))
        ra(1); ra(2)
        return R

    a("s_barrier   ; P")
    stamp(a, cfg, 2)
    for ins, tag in reads(0): a.ds(ins, tag)
    def qwrite(T, t):
        d = acc(T, t)
        tmp = 88 + ((T * 6 + t) % 8) * 2
        return [f"v_cvt_pk_bf16_f32 v{tmp}, v{d}, v{d+1}", f"v_cvt_pk_bf16_f32 v{tmp+1}, v{d+2}, v{d+3}",
                ("ds", f"ds_write_b64 v{vQW}, {vr(tmp, 2)} offset:{L_Q + 1024*T + 12288*(t >> 1) + 256*(t & 1)}")]
    for s in range(20):
        a.wait_lg_all()
        if s < 19:
            a(f"s_barrier   ; B{s}")
        R = reads(s + 1) if s < 19 else []
        st = s & 1
        m = 0
        qq = []
        for T in range(3):
            for t in range(6):
                a(mfma(acc(T, t), SETA[st] + 4 * T, SETB[st] + 4 * t, first=(s == 0)))
                if m < len(R): a.ds(*R[m])
                if s == 19:
                    if m >= cfg.q_lag:
                        T2, t2 = divmod(m - cfg.q_lag, 6)
                        qq += qwrite(T2, t2)
                    for _ in range(cfg.q_rate):
                        if qq:
                            x = qq.pop(0)
                            a.ds(x[1], "qw") if isinstance(x, tuple) else a(x)
                m += 1
        if s in (4, 9, 14): stamp(a, cfg, 3 + (s - 4) // 5)
    stamp(a, cfg, 6)
    a.c("Q -> bf16 -> LDS (fragment-major)")
    for m in range(18 - cfg.q_lag, 18): qq += qwrite(*divmod(m, 6))
    for x in qq:
        a.ds(x[1], "qw") if isinstance(x, tuple) else a(x)
    a.wait_lg_all()
    a("s_barrier   ; Q")
    a(f"""
    s_cmp_lt_u32 s{sWAVE}, 3
    s_cbranch_scc1 L_phaseB
    s_barrier   ; V
    s_barrier   ; O1
    s_branch L_computeC
    """)


def phaseB(a, cfg):
    a.label("L_phaseB")
    a.reset()
    S = 16; QF = 72; KF = 120; P = 64; VF = 88; O = 136; OB = 184
    vQR = 10; vKa = [vK0c, 11, 12, 13]; vVa = [vV0, 14]
    M, T1 = 2, 3
    N = [4, 5, 6]; LA = [7, 9, 10]; LB = [8, 15, 11]
    sC2 = sSTAMP + 8
    stamp(a, cfg, 7)
    a(f"s_mul_i32 s{sT0}, s{sWAVE}, 12288")
    a(f"v_add_u32 v{vQR}, s{sT0}, v{vL16}")
    def qread(ks): a.ds(f"ds_read_b128 {vr(QF+4*ks)}, v{vQR} offset:{L_Q + ks*1024}", ("Q", ks))
    def kread(i):
        kt, ks = divmod(i, 12)
        a.ds(f"ds_read_b128 {vr(KF + 4*(i % 4))}, v{vKa[ks & 3]} offset:{kt*12288 + (ks >> 2)*128}", ("K", i))
    qread(0); kread(0)
    for x in range(1, 4): a(f"v_xor_b32 v{vKa[x]}, {32*x}, v{vK0c}")
    qread(1); kread(1); qread(2); kread(2); kread(3)
    a(f"v_xor_b32 v{vVa[1]}, 64, v{vV0}")
    a(f"s_mov_b32 s{sC2}, {f32hex(SCALE)}")
    a(f"s_mov_b32 s{sC2+1}, {f32hex(SCALE)}")
    def maxops(kt):
        b = S + 16 * kt
        r = []
        if kt == 0:
            r.append(f"v_max3_f32 v{M}, v{b}, v{b+1}, v{b+2}"); r.append(f"v_max3_f32 v{T1}, v{b+3}, v{b+4}, v{b+5}")
            rest = list(range(6, 16))
        else:
            r.append(f"v_max3_f32 v{T1}, v{b}, v{b+1}, v{b+2}")
            rest = list(range(3, 16))
        tog = 0
        while len(rest) >= 2:
            d = (M, T1)[tog]; tog ^= 1
            r.append(f"v_max3_f32 v{d}, v{d}, v{b+rest[0]}, v{b+rest[1]}"); rest = rest[2:]
        if rest: r.append(f"v_max3_f32 v{M}, v{M}, v{T1}, v{b+rest[0]}")
        else: r.append(f"v_max_f32 v{M}, v{M}, v{T1}")
        r += [f"v_mov_b32 v{T1}, v{M}", "s_nop 1", f"v_permlane32_swap_b32 v{M}, v{T1}", f"v_max_f32 v{M}, v{M}, v{T1}",
              f"v_mul_f32 v{N[kt]}, {f32hex(-SCALE)}, v{M}"]
        return r
    def expops(kt):
        b = S + 16 * kt
        r = []
        for i in range(16 + 3):
            if i < 16: r.append(f"v_fmamk_f32 v{b+i}, v{b+i}, {f32hex(SCALE)}, v{N[kt]}")
            if 1 <= i <= 16: r.append(f"v_exp_f32 v{b+i-1}, v{b+i-1}")
            j = i - 3
            if j == 1: r.append(f"v_add_f32 v{LA[kt]}, v{b}, v{b+1}")
            elif j == 3: r.append(f"v_add_f32 v{LB[kt]}, v{b+2}, v{b+3}")
            elif j >= 4: r.append(f"v_add_f32 v{(LA if j % 2 == 0 else LB)[kt]}, v{(LA if j % 2 == 0 else LB)[kt]}, v{b+j}")
        return r
    fill = []
    for i in range(36):
        kt, ks = divmod(i, 12)
        if i % 2 == 0: a.wait_lg(("Q", ks), ("K", i), ("Q", ks + 1), ("K", i + 1))
        a(mfma32(S + 16 * kt, KF + 4 * (i % 4), QF + 4 * ks, first=(ks == 0)))
        if i + 4 < 36: kread(i + 4)
        if i + 3 < 12: qread(i + 3)
        if i == 14: fill += maxops(0) + expops(0)
        if i == 26: fill += maxops(1) + expops(1)
        for _ in range(cfg.fill_s):
            if fill: a(fill.pop(0))
    stamp(a, cfg, 8)
    a("s_barrier   ; V")
    stamp(a, cfg, 9)
    def vread(i):
        Td, s = divmod(i, 6)
        for e in range(2):
            a.ds(f"ds_read_b64_tr_b16 {vr(VF + 4*(i % 12) + 2*e, 2)}, v{vVa[Td & 1]} offset:{(Td >> 1)*128 + s*6144 + e*3072}", ("V", i))
    NV = 6
    for i in range(NV): vread(i)
    a(f"v_mov_b32 v1, {L_FLAG}")
    a.ds("ds_read_b32 v1, v1", "fast")
    for x in fill + maxops(2): a(x)
    b = S + 32
    a(f"v_sub_f32 v{N[0]}, v{N[2]}, v{N[0]}")
    a(f"v_sub_f32 v{N[1]}, v{N[2]}, v{N[1]}")
    for i in range(0, 16, 2):
        a(f"v_pk_fma_f32 v[{b+i}:{b+i+1}], v[{b+i}:{b+i+1}], s[{sC2}:{sC2+1}], v[{N[2]}:{N[2]+1}] op_sel_hi:[1,1,0]")
    a(f"v_exp_f32 v{N[0]}, v{N[0]}")
    a(f"v_exp_f32 v{N[1]}, v{N[1]}")
    a(f"v_add_f32 v{LA[0]}, v{LA[0]}, v{LB[0]}")
    a(f"v_add_f32 v{LA[1]}, v{LA[1]}, v{LB[1]}")
    for i in range(16):
        a(f"v_exp_f32 v{b+i}, v{b+i}")
    a(f"v_mul_f32 v{LA[0]}, v{LA[0]}, v{N[0]}")
    a(f"v_fmac_f32 v{LA[0]}, v{LA[1]}, v{N[1]}")
    a(f"v_pk_add_f32 v[{LA[2]}:{LA[2]+1}], v[{b}:{b+1}], v[{b+2}:{b+3}]")
    a(f"v_pk_add_f32 v[{M}:{M+1}], v[{b+4}:{b+5}], v[{b+6}:{b+7}]")
    for i in range(8, 16, 4):
        a(f"v_pk_add_f32 v[{LA[2]}:{LA[2]+1}], v[{LA[2]}:{LA[2]+1}], v[{b+i}:{b+i+1}]")
        a(f"v_pk_add_f32 v[{M}:{M+1}], v[{M}:{M+1}], v[{b+i+2}:{b+i+3}]")
    a(f"v_pk_add_f32 v[{M}:{M+1}], v[{M}:{M+1}], v[{LA[2]}:{LA[2]+1}]")
    a(f"v_add_f32 v{M}, v{M}, v{T1}")
    a(f"v_add_f32 v{M}, v{M}, v{LA[0]}")
    a(f"v_mov_b32 v{T1}, v{M}")
    a(f"v_permlane32_swap_b32 v{M}, v{T1}")
    a(f"v_add_f32 v{M}, v{M}, v{T1}")
    a(f"v_rcp_f32 v{N[2]}, v{M}")
    a.wait_lg("fast")
    a(f"v_readfirstlane_b32 s{sFAST}, v1")
    a(f"v_mul_f32 v{N[0]}, v{N[0]}, v{N[2]}")
    a(f"v_mul_f32 v{N[1]}, v{N[1]}, v{N[2]}")
    a(f"s_cmp_lg_u32 s{sFAST}, 0")
    a("s_cselect_b64 vcc, -1, 0")
    for s in range(6):
        kt = s >> 1
        g = N[kt]
        pair, sel = (g & ~1, g & 1)
        b = S + 8 * s
        for i in range(0, 8, 2):
            a(f"v_pk_mul_f32 v[{b+i}:{b+i+1}], v[{b+i}:{b+i+1}], v[{pair}:{pair+1}] op_sel:[0,{sel}] op_sel_hi:[1,{sel}]")
        for i in range(4):
            a(f"v_cvt_pk_bf16_f32 v{P+4*s+i}, v{b+2*i}, v{b+2*i+1}")
    stamp(a, cfg, 10)
    nst = [0]
    def epi(Td):
        d = O + 16 * (Td % 3)
        r = []
        for e in range(2):
            o = OB + (2 * (Td % 2) + e) * 4
            for i in range(4): r.append(f"v_cvt_pk_bf16_f32 v{o+i}, v{d+8*e+2*i}, v{d+8*e+2*i+1}")
            r.append(("ds", f"ds_write_b128 v{vOL}, {vr(o)} offset:{L_OWN + Td*6144 + e*512}"))
            if not cfg.skip_ostore:
                nst[0] += 1
                n = nst[0]
                st = f"buffer_store_dwordx4 {vr(o)}, v{vOL}, s[{rWS}:{rWS+3}], s{sT0} offen"
                if cfg.o_fast_pol in ("sc1", "sc0 sc1"):
                    r.append(("blk", f"s_add_u32 s{sT0}, s{sOB}, {Td*6144 + e*512}\n{st} sc0 sc1"))
                else:
                    r.append(("blk", f"s_add_u32 s{sT0}, s{sOB}, {Td*6144 + e*512}\ns_cbranch_vccnz L_os{n}\n{st} sc0 sc1\ns_branch L_od{n}\nL_os{n}:\n{st} {cfg.o_fast_pol}\nL_od{n}:"))
        return r
    def emit(x):
        if isinstance(x, tuple):
            if x[0] == "ds": a.ds(x[1], "ow")
            else: a(x[1])
        else: a(x)
    fill = []
    for i in range(36):
        Td, s = divmod(i, 6)
        if i % 2 == 0: a.wait_lg(("V", i), ("V", i + 1))
        a(mfma32(O + 16 * (Td % 3), VF + 4 * (i % 12), P + 4 * s, first=(s == 0)))
        if i + NV < 36: vread(i + NV)
        if Td >= 1 and s == 3: fill += epi(Td - 1)
        for _ in range(cfg.fill_pv):
            if fill: emit(fill.pop(0))
    stamp(a, cfg, 11)
    for x in fill + epi(5): emit(x)
    stamp(a, cfg, 27)
    a.wait_lg_all()
    stamp(a, cfg, 12)
    a("s_barrier   ; O1")
    a.c("falls through into phase C")


def computeC(a, cfg):
    a.label("L_computeC")
    a.reset()
    if cfg.prio_c: a(f"s_setprio {cfg.prio_c}")
    ACC = 16
    def acc(T, t): return ACC + (T * 3 + t) * 4
    SETA = [76, 96]; SETB = [116, 128]
    vCA = [vCA0, vCA1]
    a(f"s_mul_i32 s{sT0}, s{sJQ}, 3072")
    a(f"v_add_u32 v{vCB[0]}, s{sT0}, v{vL16}")
    def reads(u):
        st = u & 1
        p = u >> 1
        hi, sl = divmod(p % 4, 2)
        so = sl * 20480 + (u & 1) * 10240
        if u < 6:
            vb, bo = vCB[0], L_OWN + u * 6144
        else:
            vb, bo = vCB[1], ((p - 3) % 3) * 12288 + (u & 1) * 6144
        R = []
        def ra(T):
            R.append((f"ds_read_b64_tr_b16 {vr(SETA[st]+4*T, 2)}, v{vCA[hi][T]} offset:{so}", ("A", u, T)))
            R.append((f"ds_read_b64_tr_b16 {vr(SETA[st]+4*T+2, 2)}, v{vCA[hi][T]} offset:{so+2560}", ("A", u, T)))
        ra(0)
        for t in range(3):
            R.append((f"ds_read_b128 {vr(SETB[st]+4*t)}, v{vb} offset:{bo + t*1024}", ("B", u, t)))
        for T in range(1, 5): ra(T)
        return R
    stamp(a, cfg, 13)
    for ins, tag in reads(0): a.ds(ins, tag)
    a(f"v_add_u32 v{vCB[1]}, {L_OR}, v{vCB[0]}")
    for T in range(5): a(f"v_add_u32 v{vCA1[T]}, 40960, v{vCA0[T]}")
    for u in range(24):
        if u & 1 and u < 23:
            a.wait_lg_all()
            a(f"s_barrier   ; C{u >> 1}")
        R = reads(u + 1) if u < 23 else []
        st = u & 1
        m = 0
        for T in range(5):
            for t in range(3):
                a.wait_lg(("A", u, T), ("B", u, t))
                a(mfma(acc(T, t), SETA[st] + 4 * T, SETB[st] + 4 * t, first=(u == 0)))
                if m < len(R): a.ds(*R[m])
                m += 1
        if u == cfg.h1_flag_step:
            a.c("waves 0-2 publish their O tile once its stores have drained")
            stamp(a, cfg, 22)
            a(f"""
            s_cmp_eq_u32 s{sWAVE}, 3
            s_cbranch_scc1 L_f1done
            s_waitcnt vmcnt(0)
            s_mov_b64 exec, 15
            s_cmp_lg_u32 s{sFAST}, 0
            s_cbranch_scc1 L_f1fast
            buffer_store_dword v{vONE}, v{vF1}, s[{rWS}:{rWS+3}], 0 offen sc0 sc1
            s_branch L_f1ex
            """)
            a.label("L_f1fast")
            a(f"buffer_store_dword v{vONE}, v{vF1}, s[{rWS}:{rWS+3}], 0 offen")
            a.label("L_f1ex")
            a("s_mov_b64 exec, -1")
            a.label("L_f1done")
            stamp(a, cfg, 23)
        if u in (2, 3): stamp(a, cfg, 22 + u)
        if u in (5, 11, 17): stamp(a, cfg, 15 + (u - 5) // 6)
    stamp(a, cfg, 18)
    a.c("partials, 8 units per wave: 6 tile pairs, the odd tile of q tiles 0|1, the odd tile of q tile 2 (32 lanes)")
    a(f"""
    s_cmp_lg_u32 s{sI}, 0
    s_cbranch_scc1 L_st1
    """)
    def cv(dst, d):
        a(f"v_cvt_pk_bf16_f32 v{dst}, v{d}, v{d+1}")
        a(f"v_cvt_pk_bf16_f32 v{dst+1}, v{d+2}, v{d+3}")
    U = 76
    for i in range(2):
        if i == 1:
            a("s_branch L_cvdone")
            a.label("L_st1")
        pairs = [(0, 1), (2, 3)] if i == 0 else [(1, 2), (3, 4)]
        odd = 4 if i == 0 else 0
        for t in range(3):
            for pi, (Ta, Tb) in enumerate(pairs):
                o = U + (2 * t + pi) * 4
                cv(o, acc(Ta, t)); cv(o + 2, acc(Tb, t))
        cv(U + 24, acc(odd, 0)); cv(U + 26, acc(odd, 1))
        cv(U + 28, acc(odd, 2))
    a.label("L_cvdone")
    a(f"v_permlane32_swap_b32 v{U+28}, v{U+30}")
    a(f"v_permlane32_swap_b32 v{U+29}, v{U+31}")
    a(f"s_lshr_b32 s{sT1}, s{sG}, 1")
    a(f"s_and_b32 s{sT2}, s{sG}, 1")
    for half in range(2):
        a(f"""
        s_cmp_lg_u32 s{sT1}, s{sWAVE}
        s_cbranch_scc1 L_rem{half}
        s_cmp_lg_u32 s{sT2}, {half}
        s_cbranch_scc1 L_rem{half}
        """)
        for k in range(4):
            a(f"ds_write_b128 v{vL16}, {vr(U + (4*half + k)*4)} offset:{L_OWN + k*1024}")
        a(f"s_branch L_remdone{half}")
        a.label(f"L_rem{half}")
        for k in range(4):
            u = 4 * half + k
            if u == 7: a("s_mov_b32 exec_hi, 0")
            a(f"s_add_u32 s{sT0}, s{sPS}, {u*1024}")
            a(f"buffer_store_dwordx4 {vr(U + u*4)}, v{vL16}, s[{rWS}:{rWS+3}], s{sT0} offen sc0 sc1")
            if u == 7: a("s_mov_b32 exec_hi, -1")
        a.label(f"L_remdone{half}")
    stamp(a, cfg, 19)
    a("s_waitcnt lgkmcnt(0)")
    if not cfg.pd_late: a("s_barrier   ; PD")
    a("s_waitcnt vmcnt(0)")
    stamp(a, cfg, 20)
    a(f"""
    s_mov_b64 exec, 3
    buffer_store_dword v{vONE}, v{vF2}, s[{rWS}:{rWS+3}], 0 offen sc0 sc1
    s_mov_b64 exec, -1
    """)
    if cfg.pd_late: a("s_barrier   ; PD")


def build(cfg, header=""):
    _lbl[0] = 0
    a = Asm()
    if header: a.raw(header.rstrip("\n"))
    a.raw(f"; @launch grid=(256,1,1) block=(512,1,1) lds={LDS_BYTES}")
    a.raw('.amdgcn_target "amdgcn-amd-amdhsa--gfx950"\n.text')
    prologue(a, cfg)
    loader(a, cfg)
    computeA(a, cfg)
    phaseB(a, cfg)
    computeC(a, cfg)
    a.label("L_fin")
    stamp(a, cfg, 21)
    if cfg.amp:
        w, ia, ib, A = cfg.amp
        a(f"""
        s_cmp_lg_u32 s{sWAVE}, {w}
        s_cbranch_scc1 L_noamp
        v_readlane_b32 s{sT0}, v255, {ia}
        v_readlane_b32 s{sT1}, v255, {ib}
        s_sub_u32 s{sT0}, s{sT1}, s{sT0}
        s_mul_i32 s{sT0}, s{sT0}, {A}
        s_memtime s[{sSTAMP}:{sSTAMP+1}]
        s_waitcnt lgkmcnt(0)
        s_add_u32 s{sT0}, s{sT0}, s{sSTAMP}
        """)
        a.label("L_amp")
        a(f"""
        s_memtime s[{sSTAMP}:{sSTAMP+1}]
        s_waitcnt lgkmcnt(0)
        s_sub_u32 s{sT1}, s{sSTAMP}, s{sT0}
        s_cmp_lt_i32 s{sT1}, 0
        s_cbranch_scc1 L_amp
        """)
        a.label("L_noamp")
    elif cfg.stamps:
        stamp_flush(a, cfg)
    a.label("L_end")
    a("s_endpgm")
    a.raw(kernel_desc(KN))
    return a.text()


def make(**kw):
    cfg = Cfg()
    for k, v in kw.items():
        assert hasattr(cfg, k), k
        setattr(cfg, k, v)
    header = open("cdna_kernels/" + NAME + ".s.ref").read().split("; Override launch")[0]
    return build(cfg, header)


if __name__ == "__main__":
    kw = {}
    for kv in sys.argv[2:]:
        k, v = kv.split("=", 1)
        kw[k] = eval(v)
    open(sys.argv[1], "w").write(make(**kw))
```

```python
import sys, math, struct
from asmgen import *

NAME = "standalone__gqa_block_cached__near_ridge"
KN = NAME + "_kernel"

X_BYTES = 768 * 640 * 2
KV_BYTES = 8 * 32 * 96 * 192 * 2
W_BYTES = 640 * 6144 * 2
OUT_BYTES = 768 * 640 * 2
WS_BYTES = 268435456
SCALE = 192 ** -0.5 * math.log2(math.e)

def f32hex(x):
    return "0x%08x" % struct.unpack("<I", struct.pack("<f", x))[0]

sX, sK, sV, sWQ, sWO, sOUT, sDBG, sWS = 4, 6, 8, 10, 12, 14, 16, 18
sWAVE, sG, sB, sJ, sH, sBH = 20, 21, 22, 23, 24, 25
sFAST, sSPIN = 26, 27
rX, rWQ, rK, rV, rWS, rWO, rOUT, rDBG = 28, 32, 36, 40, 44, 48, 52, 68
sT0, sT1, sT2, sT3 = 56, 57, 58, 59
sLW, sM0B, sKVB = 60, 61, 63
sI, sJQ, sROLE = 64, 65, 66
sOB, sPS = 62, 67
sWK, sOM0, sOK, sINB, sWE, sWM = 73, 74, 75, 76, 77, 78
sSTAMP = 80
sKW, sKX, sWC, sOC, sU, sDN, sJ4 = 92, 93, 94, 95, 96, 97, 98

L_W, L_X, L_K, L_V, L_Q = 0, 49152, 86016, 122880, 0
L_FLAG = 159744
L_OWN, L_WO, L_OR = 0, 36864, 122880
LDS_BYTES = 163840


class Cfg:
    stamps = False
    stamp_only = None
    amp = None
    prefetch_code = True
    pretouch = True
    ws_o = 0xE000000
    ws_p = 0xF000000
    ws_in = 0xFC00000
    ws_stamp = 0x4000000
    polW = ""; polX = ""; polKV = "nt"; polWO = ""; polPF = ""; polO = "sc1"
    o_fast_pol = "sc1"
    force_slow = False
    rot = (10, 10)
    k_sched = [12] * 9
    v_sched = [16] * 9
    kv_variants = [([7] * 9, [16] * 9), ([11] * 9, [16] * 9)]
    kv_sel_shift = 3
    wo_prefetch = True
    pf_at = 'Q'
    staged = ()
    early = 1
    mid = 4
    late = 4
    wrot = False
    h1_flag_step = 0
    h2_delay = 0
    pd_late = True
    q_lag = 6
    fine = False
    nv_pv = 6
    skip_out = False
    out_x4 = False
    pf_code_early = True
    q_rate = 2
    poll_sleep = None
    spin_max = 400000
    fill_s = 5
    fill_pv = 2
    fill_last = 5
    pk_tail = True
    skip_o = False; skip_wo = False; skip_ostore = False
    prio_c = 0
    polOut = ''


def stamp(a, cfg, idx):
    if not cfg.stamps: return
    if cfg.stamp_only is not None and idx not in cfg.stamp_only: return
    a(f"""
    s_memtime s[{sSTAMP}:{sSTAMP+1}]
    s_waitcnt lgkmcnt(0)
    v_writelane_b32 v255, s{sSTAMP}, {idx}
    """)
    a.lg = []

def stamp_flush(a, cfg):
    a(f"""
    s_memrealtime s[{sSTAMP}:{sSTAMP+1}]
    s_waitcnt lgkmcnt(0)
    v_writelane_b32 v255, s{sSTAMP}, 33
    s_lshl_b32 s{sT0}, s2, 3
    s_add_u32 s{sT0}, s{sT0}, s{sWAVE}
    s_lshl_b32 s{sT0}, s{sT0}, 8
    s_add_u32 s{sT0}, s{sT0}, {cfg.ws_stamp}
    v_mbcnt_lo_u32_b32 v254, -1, 0
    v_mbcnt_hi_u32_b32 v254, -1, v254
    v_lshlrev_b32 v254, 2, v254
    buffer_store_dword v255, v254, s[{rWS}:{rWS+3}], s{sT0} offen
    """)

def wait_kernarg(a, cfg):
    a("s_waitcnt lgkmcnt(0)")
    if cfg.stamps:
        a(f"v_writelane_b32 v255, s{sSTAMP}, 0")
        a(f"v_writelane_b32 v255, s{sSTAMP+2}, 32")

def mfma(d, A, B, first=False):
    c = "0" if first else vr(d)
    return f"v_mfma_f32_16x16x32_bf16 {vr(d)}, {vr(A)}, {vr(B)}, {c}"

def mfma32(d, A, B, first=False):
    c = "0" if first else vr(d, 16)
    return f"v_mfma_f32_32x32x16_bf16 {vr(d, 16)}, {vr(A)}, {vr(B)}, {c}"

_lbl = [0]
def poll(a, cfg, vaddr, rs, soff, vtmp, check):
    _lbl[0] += 1
    n = _lbl[0]
    a(f"s_mov_b32 s{sSPIN}, 0")
    a.label(f"poll{n}")
    a(f"buffer_load_dword v{vtmp}, v{vaddr}, s[{rs}:{rs+3}], {soff} offen sc1")
    a.wait_vm_all()
    check()
    a(f"""
    s_cbranch_scc1 poll{n}_ok
    s_add_u32 s{sSPIN}, s{sSPIN}, 1
    s_cmp_ge_u32 s{sSPIN}, {cfg.spin_max}
    s_cbranch_scc1 poll{n}_ok
    """)
    if cfg.poll_sleep is not None: a(f"s_sleep {cfg.poll_sleep}")
    a(f"s_branch poll{n}")
    a.label(f"poll{n}_ok")

def dma(a, vaddr, rs, soff, ldsoff, tag, base, pol=""):
    a(f"s_add_u32 m0, s{base}, {ldsoff}")
    if isinstance(soff, str):
        so = soff
        a("s_nop 0")
    else:
        a(f"s_mov_b32 s{sT0}, {soff}")
        so = f"s{sT0}"
    a.vmem(f"buffer_load_dwordx4 v{vaddr}, s[{rs}:{rs+3}], {so} offen {pol} lds", tag)


vA = [10, 11, 12]; vXe, vXo, vQW = 13, 14, 15
vK0c, vV0, vOL = 232, 233, 234
vCA0 = [235, 236, 237, 238, 239]; vL16, vF1, vF2 = 240, 241, 242
vCA1 = [140, 141, 142, 143, 144]; vCB = [145, 146]
vONE = 252
vW = [220, 221, 222]; vXL = [223, 224, 225]; vKA = [226, 227, 228]; vKB = [229, 230, 231]; vV = [232, 233, 234]
vK0 = [235, 236, 237]; vCP = [238, 239, 240]
vWO = [241, 242, 243, 244, 245]; vOR, vDL, vDO, vP1, vP2, vPF = 246, 247, 248, 249, 250, 251
vSW = [218, 219]
STG = 16


def prologue(a, cfg):
    a.raw(kernel_header(KN))
    if cfg.stamps:
        a(f"s_memtime s[{sSTAMP}:{sSTAMP+1}]")
        a(f"s_memrealtime s[{sSTAMP+2}:{sSTAMP+3}]")
    a(f"""
    s_cmp_ge_u32 s2, 256
    s_cbranch_scc1 L_end
    s_load_dwordx16 s[4:19], s[0:1], 0
    v_lshrrev_b32 v1, 6, v0
    v_lshlrev_b32 v2, 7, v0
    v_readfirstlane_b32 s{sWAVE}, v1
    """)
    if cfg.prefetch_code and cfg.pf_code_early:
        a.c("waves 0-3 warm L2 with this kernel's own code (one dword per 128-byte line)")
        a(f"""
        s_cmp_ge_u32 s{sWAVE}, 4
        s_cbranch_scc1 L_nopf
        s_getpc_b64 s[{sT2}:{sT2+1}]
        """)
        a.label("L_pc")
        a(f"""
        s_sub_u32 s{sT2}, s{sT2}, L_pc-{KN}
        s_subb_u32 s{sT2+1}, s{sT2+1}, 0
        v_min_u32 v2, L_end-{KN}, v2
        global_load_dword v253, v2, s[{sT2}:{sT2+1}]
        """)
        a.label("L_nopf")
    a(f"""
    v_and_b32 v0, 63, v0
    s_and_b32 s{sG}, s2, 7
    s_lshr_b32 s{sT0}, s2, 3
    s_lshr_b32 s{sB}, s{sT0}, 2
    s_and_b32 s{sJ}, s{sT0}, 3
    s_lshl_b32 s{sH}, s{sG}, 2
    s_add_u32 s{sH}, s{sH}, s{sJ}
    s_lshl_b32 s{sBH}, s{sB}, 5
    s_add_u32 s{sBH}, s{sBH}, s{sH}
    s_lshl_b32 s{sINB}, s{sBH}, 11
    s_add_u32 s{sINB}, s{sINB}, {cfg.ws_in}
    s_cmp_lt_u32 s{sWAVE}, 4
    s_cbranch_scc1 L_computeA
    """)


def next_pair(a, cfg, p, sDst, sCnt, stride):
    if p + 1 >= 12: return
    if p + 1 < 4 or not cfg.wrot:
        a(f"""
        s_add_u32 s{sDst}, s{sDst}, {stride}
        s_cmp_eq_u32 s{sDst}, {12*stride}
        s_cselect_b32 s{sDst}, 0, s{sDst}
        """)
    else:
        a(f"""
        s_add_u32 s{sDst}, s{sJ4}, s{sCnt}
        s_cmp_ge_u32 s{sDst}, 12
        s_cselect_b32 s{sT0}, 12, 0
        s_sub_u32 s{sDst}, s{sDst}, s{sT0}
        s_mul_i32 s{sDst}, s{sDst}, {stride}
        s_add_u32 s{sCnt}, s{sCnt}, 1
        s_and_b32 s{sCnt}, s{sCnt}, 7
        """)

def ld_wo_pair(a, cfg, p):
    slot = L_WO + (p % 4) * 20480
    a(f"s_add_u32 s{sT3}, s{sWK}, s{sWE}")
    for i in range(0 if cfg.skip_wo else 5):
        if p in cfg.staged:
            d = STG + (cfg.staged.index(p) * 5 + i) * 4
            a.vmem(f"buffer_load_dwordx4 {vr(d)}, v{vWO[i]}, s[{rWO}:{rWO+3}], s{sT3} offen {cfg.polWO}", ("WO", p))
        else:
            dma(a, vWO[i], rWO, f"s{sT3}", slot + i * 1024, ("WO", p), sWM, cfg.polWO)
    next_pair(a, cfg, p, sWK, sWC, 81920)

def put_wo_pair(a, cfg, p):
    a.wait_vm(("WO", p))
    hi, sl = divmod(p % 4, 2)
    for i in range(0 if cfg.skip_wo else 5):
        d = STG + (cfg.staged.index(p) * 5 + i) * 4
        a.ds(f"ds_write_b128 v{vSW[hi]}, {vr(d)} offset:{sl*20480 + i*1024}", ("WOL", p))

def ld_o_pair(a, cfg, p):
    slot = L_OR + ((p - 3) % 3) * 12288
    a(f"s_add_u32 m0, s{sOM0}, {slot}")
    a("s_nop 0")
    for i in range(0 if cfg.skip_o else 3):
        a.vmem(f"buffer_load_dwordx4 v{vOR}, s[{rWS}:{rWS+3}], s{sOK} offen offset:{i*1024} {cfg.polO} lds", ("O", p))
    next_pair(a, cfg, p, sOK, sOC, 12288)


def loader(a, cfg):
    a.reset()
    a(f"s_mov_b32 s{sROLE}, 1")
    a(f"s_sub_u32 s{sLW}, s{sWAVE}, 4")
    a(f"s_mul_i32 s{sT0}, s{sLW}, {8*12288}")
    a(f"s_mul_i32 s{sT1}, s{sH}, 384")
    a(f"s_add_u32 s{sT0}, s{sT0}, s{sT1}")
    a(f"s_and_b32 s{sT1}, s{sLW}, 1")
    a(f"s_lshl_b32 s{sT1}, s{sT1}, 2")
    for i in range(3):
        a(f"""
        v_add_u32 v2, {64*i}, v0
        v_mul_u32_u24 v3, 2731, v2
        v_lshrrev_b32 v{vK0[i]}, 16, v3
        v_mul_u32_u24 v4, 24, v{vK0[i]}
        v_sub_u32 v{vCP[i]}, v2, v4
        v_and_b32 v5, 2, v{vK0[i]}
        v_or_b32 v5, s{sT1}, v5
        v_xor_b32 v5, v5, v{vCP[i]}
        v_mul_u32_u24 v6, 12288, v{vK0[i]}
        v_lshl_add_u32 v6, v5, 4, v6
        v_add_u32 v{vW[i]}, s{sT0}, v6
        """)
    a(f"""
    s_mul_i32 s{sT2}, s{sB}, 96
    s_mul_i32 s{sT3}, s{sLW}, 24
    s_add_u32 s{sT2}, s{sT2}, s{sT3}
    s_mul_i32 s{sT2}, s{sT2}, 1280
    v_lshrrev_b32 v2, 3, v0
    v_mul_u32_u24 v2, 1280, v2
    v_and_b32 v3, 7, v0
    v_lshrrev_b32 v4, 4, v0
    v_xor_b32 v3, v3, v4
    v_xor_b32 v3, s{sT1}, v3
    v_lshl_add_u32 v{vXL[0]}, v3, 4, v2
    v_add_u32 v{vXL[0]}, s{sT2}, v{vXL[0]}
    v_xor_b32 v3, 4, v3
    v_lshl_add_u32 v{vXL[1]}, v3, 4, v2
    s_add_u32 s{sT3}, s{sT2}, {8*1280}
    v_add_u32 v{vXL[1]}, s{sT3}, v{vXL[1]}
    v_add_u32 v{vXL[2]}, {16*1280}, v{vXL[0]}
    s_mul_i32 s{sM0B}, s{sLW}, 3072
    s_mul_i32 s{sT2}, s{sB}, {cfg.rot[0]}
    s_mul_i32 s{sT3}, s{sJ}, {cfg.rot[1]}
    s_add_u32 s{sT2}, s{sT2}, s{sT3}
    s_add_u32 s{sT2}, s{sT2}, 2
    s_lshr_b32 s{sT2}, s{sT2}, 2
    s_cmp_ge_u32 s{sT2}, 20
    s_cselect_b32 s{sT3}, 20, 0
    s_sub_u32 s{sT2}, s{sT2}, s{sT3}
    s_cmp_ge_u32 s{sT2}, 10
    s_cselect_b32 s{sT3}, 10, 0
    s_sub_u32 s{sT2}, s{sT2}, s{sT3}
    s_mul_i32 s{sKW}, s{sT2}, {64*12288}
    s_lshl_b32 s{sKX}, s{sT2}, 7
    """)
    assert (7 * cfg.rot[0] + 3 * cfg.rot[1] + 2) // 4 < 30
    if cfg.stamps and (cfg.stamp_only is None or 28 in cfg.stamp_only):
        a(f"s_memtime s[{sSTAMP+4}:{sSTAMP+5}]")
        wait_kernarg(a, cfg)
        a(f"v_writelane_b32 v255, s{sSTAMP+4}, 28")
    else:
        wait_kernarg(a, cfg)
    srd(a, rWQ, sWQ, W_BYTES)
    srd(a, rX, sX, X_BYTES)
    stamp(a, cfg, 29)

    def ldW(s):
        for i in range(3): dma(a, vW[i], rWQ, f"s{sKW}", L_W + (s % 4) * 12288 + i * 1024, ("W", s), sM0B, cfg.polW)
        a(f"""
        s_add_u32 s{sKW}, s{sKW}, {32*12288}
        s_cmp_eq_u32 s{sKW}, {640*12288}
        s_cselect_b32 s{sKW}, 0, s{sKW}
        """)
    def ldX(m):
        for i in range(3): dma(a, vXL[i], rX, f"s{sKX}", L_X + (m % 3) * 12288 + i * 1024, ("X", m), sM0B, cfg.polX)
        a(f"""
        s_add_u32 s{sKX}, s{sKX}, 128
        s_cmp_eq_u32 s{sKX}, 1280
        s_cselect_b32 s{sKX}, 0, s{sKX}
        """)
    def ldK(i):
        i1, i0 = divmod(i, 3)
        dma(a, (vKB if i1 & 1 else vKA)[i0], rK, i1 * 3072, L_K + i * 1024, "K", sKVB, cfg.polKV)
    def ldV(i):
        i1, i0 = divmod(i, 3)
        dma(a, vV[i0], rV, i1 * 3072, L_V + i * 1024, "V", sKVB, cfg.polKV)

    ldW(0); ldX(0)
    stamp(a, cfg, 24)
    srd(a, rWS, sWS, WS_BYTES)
    srd(a, rDBG, sDBG, 256)
    a.c("wave 7: clear this workgroup's inbox")
    a(f"""
    s_cmp_lg_u32 s{sWAVE}, 7
    s_cbranch_scc1 L_noclr
    v_lshlrev_b32 v2, 4, v0
    v_mov_b32 v4, 0
    v_mov_b32 v5, 0
    v_mov_b32 v6, 0
    v_mov_b32 v7, 0
    buffer_store_dwordx4 v[4:7], v2, s[{rWS}:{rWS+3}], s{sINB} offen sc0 sc1
    s_mov_b64 exec, 0xff
    buffer_store_dwordx4 v[4:7], v2, s[{rWS}:{rWS+3}], s{sINB} offen offset:1024 sc0 sc1
    s_mov_b64 exec, -1
    """)
    a.label("L_noclr")
    ldW(1)
    srd(a, rK, sK, KV_BYTES)
    srd(a, rV, sV, KV_BYTES)
    srd(a, rWO, sWO, W_BYTES)
    srd(a, rOUT, sOUT, OUT_BYTES)
    a(f"""
    s_mul_i32 s{sKVB}, s{sLW}, 9216
    s_mul_i32 s{sT2}, s{sBH}, 36864
    s_add_u32 s{sT2}, s{sT2}, s{sKVB}
    """)
    for i in range(3):
        a(f"""
        v_mul_u32_u24 v6, 384, v{vK0[i]}
        v_add_u32 v6, s{sT2}, v6
        v_lshrrev_b32 v3, 1, v{vK0[i]}
        v_xor_b32 v4, v3, v{vCP[i]}
        v_xor_b32 v4, s{sT1}, v4
        v_lshl_add_u32 v{vKA[i]}, v4, 4, v6
        v_xor_b32 v4, 4, v4
        v_lshl_add_u32 v{vKB[i]}, v4, 4, v6
        v_and_b32 v3, 1, v3
        v_lshlrev_b32 v3, 2, v3
        v_xor_b32 v4, v3, v{vCP[i]}
        v_lshl_add_u32 v{vV[i]}, v4, 4, v6
        """)
    ldW(2); ldX(1); ldW(3); ldX(2)
    a.c("phase C / D loader addresses")
    a(f"""
    s_and_b32 s{sT1}, s{sLW}, 1
    s_lshr_b32 s{sT2}, s{sLW}, 1
    s_mul_i32 s{sWE}, s{sT2}, 40960
    s_mul_i32 s{sWM}, s{sLW}, 5120
    s_mul_i32 s{sT1}, s{sT1}, 320
    s_mul_i32 s{sT2}, s{sG}, {768*1280}
    s_mul_i32 s{sT3}, s{sJ}, 320
    s_add_u32 s{sT2}, s{sT2}, s{sT3}
    """)
    for i in range(5):
        a(f"""
        v_add_u32 v2, s{sT1}, v0
        v_add_u32 v2, {64*i}, v2
        v_mul_u32_u24 v3, 3277, v2
        v_lshrrev_b32 v3, 16, v3            ; row = t/20
        v_mul_u32_u24 v4, 20, v3
        v_sub_u32 v4, v2, v4                ; cp
        v_lshrrev_b32 v5, 1, v3
        v_and_b32 v5, 2, v5
        v_xor_b32 v4, v4, v5
        v_mul_u32_u24 v3, 1280, v3
        v_lshl_add_u32 v3, v4, 4, v3
        v_add_u32 v{vWO[i]}, s{sT2}, v3
        """)
    a(f"""
    s_mul_i32 s{sWK}, s{sJ}, {3*81920}
    s_mul_i32 s{sJ4}, s{sJ}, 3
    s_add_u32 s{sJ4}, s{sJ4}, 4
    s_mov_b32 s{sWC}, s{sB}
    s_mov_b32 s{sOC}, s{sB}
    v_lshlrev_b32 v7, 4, v0
    s_add_u32 s{sT1}, s{sWM}, {L_WO}
    v_add_u32 v{vSW[0]}, s{sT1}, v7
    v_add_u32 v{vSW[1]}, 40960, v{vSW[0]}
    s_add_u32 s{sT1}, s{sJ}, 1
    s_and_b32 s{sT1}, s{sT1}, 3
    s_mul_i32 s{sOK}, s{sT1}, {3*12288}
    s_mul_i32 s{sOM0}, s{sLW}, 3072
    s_lshl_b32 s{sT1}, s{sB}, 3
    s_add_u32 s{sT1}, s{sT1}, s{sG}
    s_mul_i32 s{sT1}, s{sT1}, 147456
    s_add_u32 s{sT1}, s{sT1}, s{sOM0}
    s_add_u32 s{sT1}, s{sT1}, {cfg.ws_o}
    v_add_u32 v{vOR}, s{sT1}, v7
    v_min_u32 v2, 11, v0
    v_lshlrev_b32 v2, 2, v2
    s_add_u32 s{sT1}, s{sINB}, 1024
    v_add_u32 v{vP1}, s{sT1}, v2
    v_min_u32 v2, 7, v0
    v_max_u32 v2, 1, v2
    v_add_u32 v2, s{sG}, v2
    v_and_b32 v2, 7, v2
    v_lshlrev_b32 v3, 7, v2
    v_add_u32 v{vP2}, s{sINB}, v3
    s_lshr_b32 s{sT1}, s2, 3
    s_lshl_b32 s{sT1}, s{sT1}, 2
    s_add_u32 s{sT1}, s{sT1}, s{sLW}
    s_mul_i32 s{sT1}, s{sT1}, 7680
    s_mul_i32 s{sT2}, s{sG}, 983040
    s_add_u32 s{sT1}, s{sT1}, s{sT2}
    v_min_u32 v2, 59, v0
    v_lshlrev_b32 v2, 7, v2
    v_add_u32 v{vPF}, s{sT1}, v2
    s_and_b32 s{sT0}, s{sG}, 1
    s_lshl_b32 s{sT0}, s{sT0}, 2
    s_add_u32 s{sU}, s{sT0}, s{sLW}
    s_lshl_b32 s{sT2}, s{sB}, 2
    s_add_u32 s{sT2}, s{sT2}, s{sJ}
    s_lshl_b32 s{sT2}, s{sT2}, 5
    s_lshr_b32 s{sT1}, s{sG}, 1
    s_add_u32 s{sT2}, s{sT2}, s{sT1}
    s_lshl_b32 s{sT2}, s{sT2}, 3
    s_add_u32 s{sT2}, s{sT2}, s{sU}
    s_lshl_b32 s{sT2}, s{sT2}, 10
    s_add_u32 s{sT2}, s{sT2}, {cfg.ws_p}
    v_add_u32 v{vDL}, s{sT2}, v7            ; + src*32768
    s_bfe_u32 s{sT0}, s{sG}, 0x10001        ; i
    s_lshr_b32 s{sT1}, s{sG}, 2             ; jq
    s_mul_i32 s{sT1}, s{sT1}, 48
    s_mul_i32 s{sT2}, s{sB}, 96
    s_add_u32 s{sT1}, s{sT1}, s{sT2}
    s_lshr_b32 s{sT2}, s{sU}, 1             ; t (u<6)
    s_cmp_eq_u32 s{sU}, 6
    s_cselect_b32 s{sT2}, 0, s{sT2}
    s_cmp_eq_u32 s{sU}, 7
    s_cselect_b32 s{sT2}, 2, s{sT2}
    s_lshl_b32 s{sT2}, s{sT2}, 4
    s_add_u32 s{sT1}, s{sT1}, s{sT2}
    s_mul_i32 s{sT1}, s{sT1}, 1280
    s_and_b32 s{sT2}, s{sU}, 1
    s_lshl_b32 s{sT2}, s{sT2}, 6
    s_mul_i32 s{sT3}, s{sT0}, 192           ; (80+16) columns * 2B * i
    s_add_u32 s{sT2}, s{sT2}, s{sT3}
    s_lshl_b32 s{sT3}, s{sT0}, 5
    s_add_u32 s{sT3}, s{sT3}, 128           ; (64 + 16 i) * 2B
    s_cmp_ge_u32 s{sU}, 6
    s_cselect_b32 s{sT2}, s{sT3}, s{sT2}
    s_add_u32 s{sT1}, s{sT1}, s{sT2}
    s_mul_i32 s{sT2}, s{sJ}, 320
    s_add_u32 s{sT1}, s{sT1}, s{sT2}
    v_and_b32 v2, 15, v0
    v_mul_u32_u24 v2, 1280, v2
    v_lshrrev_b32 v3, 4, v0
    v_lshl_add_u32 v2, v3, 3, v2
    v_add_u32 v{vDO}, s{sT1}, v2
    s_mov_b32 s{sDN}, 32
    s_cmp_eq_u32 s{sU}, 6
    s_cselect_b32 s{sDN}, {16*1280}, s{sDN}
    s_cmp_eq_u32 s{sU}, 7
    s_cselect_b32 s{sDN}, 16, s{sDN}
    """)
    stamp(a, cfg, 1)
    a.wait_vm(("W", 0), ("X", 0))
    a("s_barrier   ; P")
    stamp(a, cfg, 2)
    a.wait_vm(("W", 1), ("X", 0))
    a.c("wave 7: inbox cleared (its stores are older than W1) -> arrive on the group word in d_debug")
    a(f"""
    s_cmp_lg_u32 s{sWAVE}, 7
    s_cbranch_scc1 L_noarr
    s_getreg_b32 s{sT1}, hwreg(HW_REG_XCC_ID, 0, 4)
    s_lshl_b32 s{sT2}, s{sJ}, 2
    s_add_u32 s{sT2}, s{sT2}, 4
    s_lshl_b32 s{sT1}, s{sT1}, s{sT2}
    s_add_u32 s{sT1}, s{sT1}, 1
    s_lshl_b32 s{sT2}, s{sB}, 3
    s_add_u32 s{sT2}, s{sT2}, s{sG}
    s_lshl_b32 s{sT2}, s{sT2}, 2
    v_mov_b32 v2, s{sT1}
    v_mov_b32 v3, s{sT2}
    s_mov_b64 exec, 1
    buffer_atomic_add v2, v3, s[{rDBG}:{rDBG+3}], 0 offen sc1
    s_mov_b64 exec, -1
    """)
    a.label("L_noarr")
    variants = cfg.kv_variants or [(cfg.k_sched, cfg.v_sched)]
    nv = len(variants)
    if nv > 1:
        a(f"s_lshr_b32 s{sT1}, s2, {cfg.kv_sel_shift}")
        a(f"s_and_b32 s{sT1}, s{sT1}, {nv-1}")
        for v in range(1, nv):
            a(f"s_cmp_eq_u32 s{sT1}, {v}")
            a(f"s_cbranch_scc1 L_kvvar{v}")
    vm0 = list(a.vm)
    for v, var in enumerate(variants):
        ksch, vsch = var[0], var[1]
        pfs = var[2] if len(var) > 2 else cfg.pf_at
        if v: a.label(f"L_kvvar{v}")
        a.vm = list(vm0)
        for s in range(19):
            a.wait_vm(("W", s + 1), ("X", (s + 1) >> 1))
            a(f"s_barrier   ; B{s}")
            if s + 4 < 20: ldW(s + 4)
            if s & 1 and (s >> 1) + 3 < 10: ldX((s >> 1) + 3)
            if cfg.wo_prefetch and pfs == s:
                a.vmem(f"buffer_load_dword v253, v{vPF}, s[{rWO}:{rWO+3}], 0 offen {cfg.polPF}", "pf")
            for i, ss in enumerate(ksch):
                if ss == s: ldK(i)
            for i, ss in enumerate(vsch):
                if ss == s: ldV(i)
            if s in (4, 9, 14): stamp(a, cfg, 3 + (s - 4) // 5)
        a.wait_vm("K")
        if v < nv - 1: a("s_branch L_kvjoin")
    if nv > 1: a.label("L_kvjoin")
    stamp(a, cfg, 6)
    a("s_barrier   ; Q")
    a.vm = ["V"]
    def pf():
        if cfg.wo_prefetch:
            a.vmem(f"buffer_load_dword v253, v{vPF}, s[{rWO}:{rWO+3}], 0 offen {cfg.polPF}", "pf")
    a.c("have the 32 workgroups of this batch cleared their inboxes?  (read now, looked at before the V barrier)")
    a(f"""
    v_and_b32 v2, 7, v0
    v_lshlrev_b32 v2, 2, v2
    s_lshl_b32 s{sSPIN}, s{sB}, 5
    v_add_u32 v2, s{sSPIN}, v2
    """)
    a.vmem(f"buffer_load_dword v3, v2, s[{rDBG}:{rDBG+3}], 0 offen sc1", "hs")
    if cfg.pf_at == "Q": pf()
    nxt = 0
    def issue_upto(n):
        nonlocal nxt
        while nxt < n:
            ld_wo_pair(a, cfg, nxt); nxt += 1
    for p in range(2, cfg.early): assert p in cfg.staged
    issue_upto(cfg.early)
    a.wait_vm("hs")
    def chk():
        a(f"""
        v_and_b32 v4, 7, v3
        v_cmp_eq_u32 vcc, 4, v4
        s_cmp_eq_u64 vcc, -1
        """)
    chk()
    a("s_cbranch_scc1 L_hsok")
    save = list(a.vm)
    poll(a, cfg, 2, rDBG, "0", 3, chk)
    a.vm = save
    a.label("L_hsok")
    a(f"""
    s_cmp_lg_u32 s{sWAVE}, 7
    s_cbranch_scc1 L_nohs
    v_readlane_b32 s{sT1}, v3, s{sG}
    s_bfe_u32 s{sT1}, s{sT1}, 0x100004
    s_and_b32 s{sT2}, s{sT1}, 15
    s_mul_i32 s{sT2}, s{sT2}, 0x1111
    s_cmp_eq_u32 s{sT1}, s{sT2}
    s_cselect_b32 s{sT1}, {0 if cfg.force_slow else 1}, 0
    v_mov_b32 v2, {L_FLAG}
    v_mov_b32 v3, s{sT1}
    ds_write_b32 v2, v3
    buffer_load_dword v253, v{vP1}, s[{rWS}:{rWS+3}], 0 offen sc1
    s_waitcnt lgkmcnt(0)
    """)
    a.label("L_nohs")
    stamp(a, cfg, 8)
    a("s_barrier   ; V")
    if cfg.pf_at == "V": pf()
    for p in (2, 3):
        if p in cfg.staged and p < nxt: put_wo_pair(a, cfg, p)
    issue_upto(cfg.mid)
    for p in (2, 3):
        if p in cfg.staged and not any(t == ("WOL", p) for t in a.lg) and p >= cfg.early: put_wo_pair(a, cfg, p)
    if cfg.pf_at == "V2": pf()
    stamp(a, cfg, 10)
    a.wait_vm(("WO", 0))
    stamp(a, cfg, 12)
    a("s_barrier   ; O1")
    stamp(a, cfg, 13)
    for p in range(max(nxt, 4), cfg.late): assert p in cfg.staged
    issue_upto(max(4, cfg.late))
    def chk1():
        a(f"v_cmp_eq_u32 vcc, 1, v3")
        a("s_cmp_eq_u64 vcc, -1")
    for p in range(11):
        if p in (1, 2): stamp(a, cfg, 21 + p)
        if p == 2:
            a.c("wait for the siblings' O tiles")
            poll(a, cfg, vP1, rWS, "0", 3, chk1)
            if cfg.stamps: a(f"v_writelane_b32 v255, s{sSPIN}, 30")
            stamp(a, cfg, 14)
            for pp in (3, 4, 5): ld_o_pair(a, cfg, pp)
        a.wait_vm(("WO", p + 1), ("O", p + 1))
        a.wait_lg(("WOL", p + 1))
        a(f"s_barrier   ; C{p}")
        if p + 4 < 12:
            issue_upto(p + 5)
            if p + 4 in cfg.staged: put_wo_pair(a, cfg, p + 4)
        if p >= 3 and p + 3 < 12: ld_o_pair(a, cfg, p + 3)
        if p in (2, 5, 8): stamp(a, cfg, 15 + (p - 2) // 3)
    stamp(a, cfg, 18)
    a.c("phase D")
    A = 48
    a("s_barrier   ; PD")
    stamp(a, cfg, 26)
    a(f"s_lshl_b32 s{sT0}, s{sLW}, 10")
    a(f"v_lshlrev_b32 v2, 4, v0")
    a(f"v_add_u32 v2, s{sT0}, v2")
    a.ds(f"ds_read_b128 v[16:19], v2 offset:{L_OWN}", "own")
    a(f"s_cmp_lg_u32 s{sWAVE}, 4")
    a("s_cbranch_scc1 L_nopoll2")
    if cfg.h2_delay: a(f"s_sleep {cfg.h2_delay}")
    def chk2():
        a(f"v_cmp_eq_u32 vcc, 1, v3")
        a("s_cmp_eq_u64 vcc, -1")
    poll(a, cfg, vP2, rWS, "0", 3, chk2)
    a.label("L_nopoll2")
    a("s_barrier   ; PE")
    if cfg.stamps: a(f"v_writelane_b32 v255, s{sSPIN}, 31")
    stamp(a, cfg, 19)
    a(f"""
    s_cmp_eq_u32 s{sU}, 7
    s_cselect_b32 exec_hi, 0, -1
    """)
    a.vm = []
    for k in range(1, 8):
        a(f"""
        s_add_u32 s{sT0}, s{sG}, {k}
        s_and_b32 s{sT0}, s{sT0}, 7
        s_lshl_b32 s{sT0}, s{sT0}, 15
        """)
        a.vmem(f"buffer_load_dwordx4 {vr(16+4*k)}, v{vDL}, s[{rWS}:{rWS+3}], s{sT0} offen sc1", ("p", k))
    a(f"s_mov_b32 s{sT1}, 0xffff0000")
    for k in range(8):
        if k == 0: a.wait_lg_all()
        a.wait_vm(("p", k))
        for i in range(4):
            s = 16 + 4 * k + i
            if k == 0:
                a(f"v_lshlrev_b32 v{A+2*i}, 16, v{s}")
                a(f"v_and_b32 v{A+2*i+1}, s{sT1}, v{s}")
            else:
                a(f"v_lshlrev_b32 v{60+2*i}, 16, v{s}")
                a(f"v_and_b32 v{61+2*i}, s{sT1}, v{s}")
                a(f"v_add_f32 v{A+2*i}, v{A+2*i}, v{60+2*i}")
                a(f"v_add_f32 v{A+2*i+1}, v{A+2*i+1}, v{61+2*i}")
    stamp(a, cfg, 20)
    for i in range(4):
        a(f"v_cvt_pk_bf16_f32 v{16+i}, v{A+2*i}, v{A+2*i+1}")
    if cfg.out_x4:
        a.c("tile pairs: lanes kq 0|1 and 2|3 trade halves so that every lane holds 8 consecutive columns")
        a(f"""
        s_cmp_ge_u32 s{sU}, 6
        s_cbranch_scc1 L_outx2
        v_permlane16_swap_b32 v16, v18
        v_permlane16_swap_b32 v17, v19
        v_bfe_u32 v2, v0, 4, 1
        v_mul_u32_u24 v2, 24, v2
        v_add_u32 v2, v2, v{vDO}
        """)
        a(f"buffer_store_dwordx4 v[16:19], v2, s[{rOUT}:{rOUT+3}], 0 offen {cfg.polOut}")
        a("s_branch L_outdone")
        a.label("L_outx2")
    if not cfg.skip_out:
        a(f"buffer_store_dwordx2 v[16:17], v{vDO}, s[{rOUT}:{rOUT+3}], 0 offen {cfg.polOut}")
        a(f"buffer_store_dwordx2 v[18:19], v{vDO}, s[{rOUT}:{rOUT+3}], s{sDN} offen {cfg.polOut}")
    if cfg.out_x4: a.label("L_outdone")
    a("s_mov_b64 exec, -1")
    a("s_branch L_fin")


def computeA(a, cfg):
    a.label("L_computeA")
    a.reset()
    a(f"s_mov_b32 s{sROLE}, 0")
    if cfg.prefetch_code and not cfg.pf_code_early:
        a.c("wave w warms L2 with 8 KB of this kernel's code (one dword per 128-byte line)")
        a(f"s_getpc_b64 s[{sT2}:{sT2+1}]")
        a.label("L_pc")
        a(f"""
        s_sub_u32 s{sT2}, s{sT2}, L_pc-{KN}
        s_subb_u32 s{sT2+1}, s{sT2+1}, 0
        s_lshl_b32 s{sT0}, s{sWAVE}, 13
        v_lshlrev_b32 v2, 7, v0
        v_add_u32 v2, s{sT0}, v2
        v_min_u32 v2, L_end-{KN}, v2
        global_load_dword v253, v2, s[{sT2}:{sT2+1}]
        """)
    ACC = 16
    def acc(T, t): return ACC + (T * 6 + t) * 4
    SETA = [88, 124]; SETB = [100, 136]
    a.c("phase A addresses: v2=kq v3=r v4=c v5=n")
    a(f"""
    v_lshrrev_b32 v2, 4, v0
    v_bfe_u32 v3, v0, 2, 2
    v_and_b32 v4, 3, v0
    v_and_b32 v5, 15, v0
    v_lshlrev_b32 v6, 3, v2
    v_add_u32 v6, v6, v3                     ; k = 8kq + r
    v_mul_u32_u24 v6, 384, v6
    v_lshl_add_u32 v6, v4, 3, v6             ; k*384 + 8c
    v_lshrrev_b32 v7, 1, v3
    v_and_b32 v8, 1, v2
    v_lshl_or_b32 v7, v8, 1, v7              ; h(k)
    s_mul_i32 s{sT0}, s{sWAVE}, 3
    """)
    for T in range(3):
        a(f"""
        s_add_u32 s{sT1}, s{sT0}, {T}
        v_xor_b32 v8, s{sT1}, v7
        v_lshl_add_u32 v{vA[T]}, v8, 5, v6
        """)
    a(f"""
    v_lshrrev_b32 v6, 1, v5                  ; (n>>1)&7
    v_xor_b32 v6, v6, v2
    v_lshlrev_b32 v6, 4, v6
    v_lshl_add_u32 v6, v5, 7, v6
    v_add_u32 v{vXe}, {L_X}, v6
    v_xor_b32 v{vXo}, 64, v{vXe}
    v_lshrrev_b32 v6, 1, v2
    v_lshlrev_b32 v6, 9, v6
    v_lshl_add_u32 v6, v5, 4, v6
    v_and_b32 v7, 1, v2
    v_lshl_add_u32 v6, v7, 3, v6
    s_mul_i32 s{sT0}, s{sWAVE}, 3072
    v_add_u32 v{vQW}, s{sT0}, v6
    v_lshlrev_b32 v{vL16}, 4, v0
    v_mov_b32 v{vONE}, 1
    v_and_b32 v6, 31, v0
    v_lshrrev_b32 v7, 5, v0
    v_bfe_u32 v8, v0, 1, 3                   ; (m>>1)&7
    v_xor_b32 v8, v8, v7
    v_mul_u32_u24 v9, 384, v6
    v_lshl_add_u32 v9, v8, 4, v9
    v_add_u32 v{vK0c}, {L_K}, v9
    v_lshl_add_u32 v8, v7, 2, v3
    v_mul_u32_u24 v8, 384, v8
    v_lshl_add_u32 v8, v4, 3, v8             ; + 8c
    v_and_b32 v9, 2, v3                      ; hh
    v_and_b32 v6, 1, v2                      ; dh
    v_or_b32 v9, v9, v6
    v_lshl_add_u32 v8, v9, 5, v8
    v_add_u32 v{vV0}, {L_V}, v8
    v_lshlrev_b32 v8, 10, v6                 ; (n>>4)*1024
    v_lshl_add_u32 v8, v7, 8, v8             ; + hi*256
    v_lshl_add_u32 v8, v5, 4, v8             ; + (n&15)*16
    s_lshl_b32 s{sT0}, s{sWAVE}, 11
    v_add_u32 v{vOL}, s{sT0}, v8
    s_lshl_b32 s{sT2}, s{sB}, 3
    s_add_u32 s{sT2}, s{sT2}, s{sG}
    s_lshl_b32 s{sT2}, s{sT2}, 2
    s_add_u32 s{sT2}, s{sT2}, s{sJ}
    s_mul_i32 s{sOB}, s{sT2}, 36864
    s_add_u32 s{sOB}, s{sOB}, {cfg.ws_o}
    s_lshl_b32 s{sT2}, s{sJ}, 11
    s_sub_u32 s{sT2}, s{sINB}, s{sT2}
    s_add_u32 s{sT2}, s{sT2}, 1024
    s_mul_i32 s{sT3}, s{sJ}, 12
    s_add_u32 s{sT2}, s{sT2}, s{sT3}
    s_lshl_b32 s{sT3}, s{sWAVE}, 2
    s_add_u32 s{sT2}, s{sT2}, s{sT3}
    v_lshlrev_b32 v8, 11, v4
    v_add_u32 v{vF1}, s{sT2}, v8
    s_and_b32 s{sI}, s{sWAVE}, 1
    s_lshr_b32 s{sJQ}, s{sWAVE}, 1
    v_lshrrev_b32 v6, 1, v2
    v_lshlrev_b32 v6, 4, v6
    v_and_b32 v7, 1, v2
    v_lshl_add_u32 v6, v7, 2, v6
    v_add_u32 v6, v6, v3
    v_mul_u32_u24 v6, 320, v6
    v_lshl_add_u32 v6, v4, 3, v6
    v_add_u32 v6, {L_WO}, v6
    s_mul_i32 s{sT0}, s{sI}, 5
    """)
    a.c("local tile T is column tile 5i + (T+i) mod 5: tiles (0,1) and (2,3) pair up, tile 4 is the odd one")
    for T in range(5):
        a(f"s_add_u32 s{sT1}, s{sI}, {T}")
        if T == 4:
            a(f"s_cmp_eq_u32 s{sT1}, 5")
            a(f"s_cselect_b32 s{sT1}, 0, s{sT1}")
        a(f"""
        s_add_u32 s{sT1}, s{sT1}, s{sT0}
        v_xor_b32 v8, s{sT1}, v7
        v_lshl_add_u32 v{vCA0[T]}, v8, 5, v6
        """)
    a(f"""
    s_lshl_b32 s{sT0}, s{sB}, 2
    s_add_u32 s{sT0}, s{sT0}, s{sJ}
    s_lshl_b32 s{sT0}, s{sT0}, 3
    s_add_u32 s{sT0}, s{sT0}, s{sG}
    s_lshl_b32 s{sT0}, s{sT0}, 2
    s_add_u32 s{sT0}, s{sT0}, s{sWAVE}
    s_lshl_b32 s{sT0}, s{sT0}, 13
    s_add_u32 s{sPS}, s{sT0}, {cfg.ws_p}
    s_lshl_b32 s{sT0}, s{sB}, 5
    s_lshl_b32 s{sT1}, s{sWAVE}, 3
    s_add_u32 s{sT0}, s{sT0}, s{sT1}
    s_add_u32 s{sT0}, s{sT0}, s{sJ}
    s_lshl_b32 s{sT0}, s{sT0}, 11
    s_lshl_b32 s{sT1}, s{sG}, 7
    s_add_u32 s{sT0}, s{sT0}, s{sT1}
    s_add_u32 s{sT0}, s{sT0}, {cfg.ws_in}
    v_and_b32 v3, 1, v0
    v_lshlrev_b32 v3, 13, v3
    v_add_u32 v{vF2}, s{sT0}, v3
    """)
    wait_kernarg(a, cfg)
    srd(a, rWS, sWS, WS_BYTES)
    if cfg.pretouch:
        a.c("wave 1 touches the pages used later so that their translations are resident")
        a(f"""
        s_cmp_lg_u32 s{sWAVE}, 1
        s_cbranch_scc1 L_notouch
        """)
        srd(a, rK, sK, KV_BYTES); srd(a, rV, sV, KV_BYTES); srd(a, rWO, sWO, W_BYTES); srd(a, rOUT, sOUT, OUT_BYTES)
        a(f"""
        s_mov_b64 exec, 3
        v_mul_u32_u24 v2, 36860, v0
        s_mul_i32 s{sT0}, s{sBH}, 36864
        buffer_load_dword v253, v2, s[{rK}:{rK+3}], s{sT0} offen nt
        buffer_load_dword v253, v2, s[{rV}:{rV+3}], s{sT0} offen nt
        v_mul_u32_u24 v2, 983036, v0
        s_mul_i32 s{sT0}, s{sG}, 983040
        buffer_load_dword v253, v2, s[{rWO}:{rWO+3}], s{sT0} offen
        buffer_load_dword v253, v2, s[{rOUT}:{rOUT+3}], 0 offen nt
        buffer_load_dword v253, v{vL16}, s[{rWS}:{rWS+3}], s{sOB} offen nt
        buffer_load_dword v253, v{vL16}, s[{rWS}:{rWS+3}], s{sPS} offen nt
        s_mov_b64 exec, -1
        """)
        a.label("L_notouch")
    stamp(a, cfg, 1)

    def reads(s):
        st = s & 1
        wo = L_W + (s % 4) * 12288
        xo = ((s >> 1) % 3) * 12288
        vx = vXo if s & 1 else vXe
        R = []
        def ra(T):
            R.append((f"ds_read_b64_tr_b16 {vr(SETA[st]+4*T, 2)}, v{vA[T]} offset:{wo}", ("A", s, T)))
            R.append((f"ds_read_b64_tr_b16 {vr(SETA[st]+4*T+2, 2)}, v{vA[T]} offset:{wo+1536}", ("A", s, T)))
        ra(0)
        for t in range(6):
            R.append((f"ds_read_b128 {vr(SETB[st]+4*t)}, v{vx} offset:{xo + t*2048}", ("B", s, t)))
        ra(1); ra(2)
        return R

    a("s_barrier   ; P")
    stamp(a, cfg, 2)
    for ins, tag in reads(0): a.ds(ins, tag)
    def qwrite(T, t):
        d = acc(T, t)
        tmp = 88 + ((T * 6 + t) % 8) * 2
        return [f"v_cvt_pk_bf16_f32 v{tmp}, v{d}, v{d+1}", f"v_cvt_pk_bf16_f32 v{tmp+1}, v{d+2}, v{d+3}",
                ("ds", f"ds_write_b64 v{vQW}, {vr(tmp, 2)} offset:{L_Q + 1024*T + 12288*(t >> 1) + 256*(t & 1)}")]
    for s in range(20):
        a.wait_lg_all()
        if s < 19:
            a(f"s_barrier   ; B{s}")
        R = reads(s + 1) if s < 19 else []
        st = s & 1
        m = 0
        qq = []
        for T in range(3):
            for t in range(6):
                a(mfma(acc(T, t), SETA[st] + 4 * T, SETB[st] + 4 * t, first=(s == 0)))
                if m < len(R): a.ds(*R[m])
                if s == 19:
                    if m >= cfg.q_lag:
                        T2, t2 = divmod(m - cfg.q_lag, 6)
                        qq += qwrite(T2, t2)
                    for _ in range(cfg.q_rate):
                        if qq:
                            x = qq.pop(0)
                            a.ds(x[1], "qw") if isinstance(x, tuple) else a(x)
                m += 1
        if s in (4, 9, 14): stamp(a, cfg, 3 + (s - 4) // 5)
    stamp(a, cfg, 6)
    a.c("Q -> bf16 -> LDS (fragment-major)")
    for m in range(18 - cfg.q_lag, 18): qq += qwrite(*divmod(m, 6))
    for x in qq:
        a.ds(x[1], "qw") if isinstance(x, tuple) else a(x)
    a.wait_lg_all()
    a("s_barrier   ; Q")
    a(f"""
    s_cmp_lt_u32 s{sWAVE}, 3
    s_cbranch_scc1 L_phaseB
    s_barrier   ; V
    s_barrier   ; O1
    s_branch L_computeC
    """)


def phaseB(a, cfg):
    a.label("L_phaseB")
    a.reset()
    S = 16; QF = 72; KF = 120; P = 64; VF = 88; O = 136; OB = 184
    vQR = 10; vKa = [vK0c, 11, 12, 13]; vVa = [vV0, 14]
    M, T1 = 2, 3
    N = [4, 5, 6]; LA = [7, 9, 10]; LB = [8, 15, 11]
    sC2 = sSTAMP + 8
    stamp(a, cfg, 7)
    a(f"s_mul_i32 s{sT0}, s{sWAVE}, 12288")
    a(f"v_add_u32 v{vQR}, s{sT0}, v{vL16}")
    def qread(ks): a.ds(f"ds_read_b128 {vr(QF+4*ks)}, v{vQR} offset:{L_Q + ks*1024}", ("Q", ks))
    def kread(i):
        kt, ks = divmod(i, 12)
        a.ds(f"ds_read_b128 {vr(KF + 4*(i % 4))}, v{vKa[ks & 3]} offset:{kt*12288 + (ks >> 2)*128}", ("K", i))
    qread(0); kread(0)
    for x in range(1, 4): a(f"v_xor_b32 v{vKa[x]}, {32*x}, v{vK0c}")
    qread(1); kread(1); qread(2); kread(2); kread(3)
    a(f"v_xor_b32 v{vVa[1]}, 64, v{vV0}")
    a(f"s_mov_b32 s{sC2}, {f32hex(SCALE)}")
    a(f"s_mov_b32 s{sC2+1}, {f32hex(SCALE)}")
    def maxops(kt):
        b = S + 16 * kt
        r = []
        if kt == 0:
            r.append(f"v_max3_f32 v{M}, v{b}, v{b+1}, v{b+2}"); r.append(f"v_max3_f32 v{T1}, v{b+3}, v{b+4}, v{b+5}")
            rest = list(range(6, 16))
        else:
            r.append(f"v_max3_f32 v{T1}, v{b}, v{b+1}, v{b+2}")
            rest = list(range(3, 16))
        tog = 0
        while len(rest) >= 2:
            d = (M, T1)[tog]; tog ^= 1
            r.append(f"v_max3_f32 v{d}, v{d}, v{b+rest[0]}, v{b+rest[1]}"); rest = rest[2:]
        if rest: r.append(f"v_max3_f32 v{M}, v{M}, v{T1}, v{b+rest[0]}")
        else: r.append(f"v_max_f32 v{M}, v{M}, v{T1}")
        r += [f"v_mov_b32 v{T1}, v{M}", "s_nop 1", f"v_permlane32_swap_b32 v{M}, v{T1}", f"v_max_f32 v{M}, v{M}, v{T1}",
              f"v_mul_f32 v{N[kt]}, {f32hex(-SCALE)}, v{M}"]
        return r
    def expops(kt):
        b = S + 16 * kt
        r = []
        for i in range(16 + 3):
            if i < 16: r.append(f"v_fmamk_f32 v{b+i}, v{b+i}, {f32hex(SCALE)}, v{N[kt]}")
            if 1 <= i <= 16: r.append(f"v_exp_f32 v{b+i-1}, v{b+i-1}")
            j = i - 3
            if j == 1: r.append(f"v_add_f32 v{LA[kt]}, v{b}, v{b+1}")
            elif j == 3: r.append(f"v_add_f32 v{LB[kt]}, v{b+2}, v{b+3}")
            elif j >= 4: r.append(f"v_add_f32 v{(LA if j % 2 == 0 else LB)[kt]}, v{(LA if j % 2 == 0 else LB)[kt]}, v{b+j}")
        return r
    fill = []
    for i in range(36):
        kt, ks = divmod(i, 12)
        if i % 2 == 0: a.wait_lg(("Q", ks), ("K", i), ("Q", ks + 1), ("K", i + 1))
        a(mfma32(S + 16 * kt, KF + 4 * (i % 4), QF + 4 * ks, first=(ks == 0)))
        if i + 4 < 36: kread(i + 4)
        if i + 3 < 12: qread(i + 3)
        if i == 14: fill += maxops(0) + expops(0)
        if i == 26: fill += maxops(1) + expops(1)
        for _ in range(cfg.fill_s):
            if fill: a(fill.pop(0))
    stamp(a, cfg, 8)
    a("s_barrier   ; V")
    stamp(a, cfg, 9)
    def vread(i):
        Td, s = divmod(i, 6)
        for e in range(2):
            a.ds(f"ds_read_b64_tr_b16 {vr(VF + 4*(i % 12) + 2*e, 2)}, v{vVa[Td & 1]} offset:{(Td >> 1)*128 + s*6144 + e*3072}", ("V", i))
    NV = cfg.nv_pv
    for i in range(NV): vread(i)
    a(f"v_mov_b32 v1, {L_FLAG}")
    a.ds("ds_read_b32 v1, v1", "fast")
    for x in fill + maxops(2): a(x)
    b = S + 32
    a(f"v_sub_f32 v{N[0]}, v{N[2]}, v{N[0]}")
    a(f"v_sub_f32 v{N[1]}, v{N[2]}, v{N[1]}")
    for i in range(0, 16, 2):
        a(f"v_pk_fma_f32 v[{b+i}:{b+i+1}], v[{b+i}:{b+i+1}], s[{sC2}:{sC2+1}], v[{N[2]}:{N[2]+1}] op_sel_hi:[1,1,0]")
    a(f"v_exp_f32 v{N[0]}, v{N[0]}")
    a(f"v_exp_f32 v{N[1]}, v{N[1]}")
    a(f"v_add_f32 v{LA[0]}, v{LA[0]}, v{LB[0]}")
    a(f"v_add_f32 v{LA[1]}, v{LA[1]}, v{LB[1]}")
    for i in range(16):
        a(f"v_exp_f32 v{b+i}, v{b+i}")
    a(f"v_mul_f32 v{LA[0]}, v{LA[0]}, v{N[0]}")
    a(f"v_fmac_f32 v{LA[0]}, v{LA[1]}, v{N[1]}")
    a(f"v_pk_add_f32 v[{LA[2]}:{LA[2]+1}], v[{b}:{b+1}], v[{b+2}:{b+3}]")
    a(f"v_pk_add_f32 v[{M}:{M+1}], v[{b+4}:{b+5}], v[{b+6}:{b+7}]")
    for i in range(8, 16, 4):
        a(f"v_pk_add_f32 v[{LA[2]}:{LA[2]+1}], v[{LA[2]}:{LA[2]+1}], v[{b+i}:{b+i+1}]")
        a(f"v_pk_add_f32 v[{M}:{M+1}], v[{M}:{M+1}], v[{b+i+2}:{b+i+3}]")
    a(f"v_pk_add_f32 v[{M}:{M+1}], v[{M}:{M+1}], v[{LA[2]}:{LA[2]+1}]")
    a(f"v_add_f32 v{M}, v{M}, v{T1}")
    a(f"v_add_f32 v{M}, v{M}, v{LA[0]}")
    a(f"v_mov_b32 v{T1}, v{M}")
    a(f"v_permlane32_swap_b32 v{M}, v{T1}")
    a(f"v_add_f32 v{M}, v{M}, v{T1}")
    a(f"v_rcp_f32 v{N[2]}, v{M}")
    a.wait_lg("fast")
    a(f"v_readfirstlane_b32 s{sFAST}, v1")
    a(f"v_mul_f32 v{N[0]}, v{N[0]}, v{N[2]}")
    a(f"v_mul_f32 v{N[1]}, v{N[1]}, v{N[2]}")
    a(f"s_cmp_lg_u32 s{sFAST}, 0")
    a("s_cselect_b64 vcc, -1, 0")
    for s in range(6):
        kt = s >> 1
        g = N[kt]
        pair, sel = (g & ~1, g & 1)
        b = S + 8 * s
        for i in range(0, 8, 2):
            a(f"v_pk_mul_f32 v[{b+i}:{b+i+1}], v[{b+i}:{b+i+1}], v[{pair}:{pair+1}] op_sel:[0,{sel}] op_sel_hi:[1,{sel}]")
        for i in range(4):
            a(f"v_cvt_pk_bf16_f32 v{P+4*s+i}, v{b+2*i}, v{b+2*i+1}")
    stamp(a, cfg, 10)
    nst = [0]
    def epi(Td):
        d = O + 16 * (Td % 3)
        r = []
        for e in range(2):
            o = OB + (2 * (Td % 2) + e) * 4
            for i in range(4): r.append(f"v_cvt_pk_bf16_f32 v{o+i}, v{d+8*e+2*i}, v{d+8*e+2*i+1}")
            r.append(("ds", f"ds_write_b128 v{vOL}, {vr(o)} offset:{L_OWN + Td*6144 + e*512}"))
            if not cfg.skip_ostore:
                nst[0] += 1
                n = nst[0]
                st = f"buffer_store_dwordx4 {vr(o)}, v{vOL}, s[{rWS}:{rWS+3}], s{sT0} offen"
                if cfg.o_fast_pol in ("sc1", "sc0 sc1"):
                    r.append(("blk", f"s_add_u32 s{sT0}, s{sOB}, {Td*6144 + e*512}\n{st} sc0 sc1"))
                else:
                    r.append(("blk", f"s_add_u32 s{sT0}, s{sOB}, {Td*6144 + e*512}\ns_cbranch_vccnz L_os{n}\n{st} sc0 sc1\ns_branch L_od{n}\nL_os{n}:\n{st} {cfg.o_fast_pol}\nL_od{n}:"))
        return r
    def emit(x):
        if isinstance(x, tuple):
            if x[0] == "ds": a.ds(x[1], "ow")
            else: a(x[1])
        else: a(x)
    fill = []
    for i in range(36):
        Td, s = divmod(i, 6)
        if cfg.fine and s == 0: a(f"s_memtime s[{28 + 2*Td}:{29 + 2*Td}]")
        if i % 2 == 0: a.wait_lg(("V", i), ("V", i + 1))
        a(mfma32(O + 16 * (Td % 3), VF + 4 * (i % 12), P + 4 * s, first=(s == 0)))
        if i + NV < 36: vread(i + NV)
        if Td >= 1 and s == 3: fill += epi(Td - 1)
        for _ in range(cfg.fill_pv):
            if fill: emit(fill.pop(0))
    if cfg.fine:
        a("s_memtime s[40:41]")
        a("s_waitcnt lgkmcnt(0)")
        for k in range(7): a(f"v_writelane_b32 v255, s{28 + 2*k}, {40 + k}")
    stamp(a, cfg, 11)
    for x in fill + epi(5): emit(x)
    stamp(a, cfg, 27)
    a.wait_lg_all()
    stamp(a, cfg, 12)
    a("s_barrier   ; O1")
    a.c("falls through into phase C")


def computeC(a, cfg):
    a.label("L_computeC")
    a.reset()
    if cfg.prio_c: a(f"s_setprio {cfg.prio_c}")
    ACC = 16
    def acc(T, t): return ACC + (T * 3 + t) * 4
    SETA = [76, 96]; SETB = [116, 128]
    vCA = [vCA0, vCA1]
    a(f"s_mul_i32 s{sT0}, s{sJQ}, 3072")
    a(f"v_add_u32 v{vCB[0]}, s{sT0}, v{vL16}")
    def reads(u):
        st = u & 1
        p = u >> 1
        hi, sl = divmod(p % 4, 2)
        so = sl * 20480 + (u & 1) * 10240
        if u < 6:
            vb, bo = vCB[0], L_OWN + u * 6144
        else:
            vb, bo = vCB[1], ((p - 3) % 3) * 12288 + (u & 1) * 6144
        R = []
        def ra(T):
            R.append((f"ds_read_b64_tr_b16 {vr(SETA[st]+4*T, 2)}, v{vCA[hi][T]} offset:{so}", ("A", u, T)))
            R.append((f"ds_read_b64_tr_b16 {vr(SETA[st]+4*T+2, 2)}, v{vCA[hi][T]} offset:{so+2560}", ("A", u, T)))
        ra(0)
        for t in range(3):
            R.append((f"ds_read_b128 {vr(SETB[st]+4*t)}, v{vb} offset:{bo + t*1024}", ("B", u, t)))
        for T in range(1, 5): ra(T)
        return R
    U = 76
    def cv(dst, d):
        return [f"v_cvt_pk_bf16_f32 v{dst}, v{d}, v{d+1}", f"v_cvt_pk_bf16_f32 v{dst+1}, v{d+2}, v{d+3}"]
    def unit(u):
        t, pi = divmod(u, 2)
        return cv(UR[u], acc(2 * pi, t)) + cv(UR[u] + 2, acc(2 * pi + 1, t))
    UR = [76, 96, 80, 100, 84, 104, 108, 112]
    tailcv = unit(0) + unit(2) + unit(4)
    stamp(a, cfg, 13)
    for ins, tag in reads(0): a.ds(ins, tag)
    a(f"v_add_u32 v{vCB[1]}, {L_OR}, v{vCB[0]}")
    for T in range(5): a(f"v_add_u32 v{vCA1[T]}, 40960, v{vCA0[T]}")
    for u in range(24):
        if u & 1 and u < 23:
            a.wait_lg_all()
            a(f"s_barrier   ; C{u >> 1}")
        R = reads(u + 1) if u < 23 else []
        st = u & 1
        m = 0
        for T in range(5):
            for t in range(3):
                a.wait_lg(("A", u, T), ("B", u, t))
                a(mfma(acc(T, t), SETA[st] + 4 * T, SETB[st] + 4 * t, first=(u == 0)))
                if m < len(R): a.ds(*R[m])
                if u == 23 and m >= 9:
                    for _ in range(2): a(tailcv.pop(0))
                m += 1
        if u == cfg.h1_flag_step:
            a.c("waves 0-2 publish their O tile once its stores have drained")
            stamp(a, cfg, 22)
            a(f"""
            s_cmp_eq_u32 s{sWAVE}, 3
            s_cbranch_scc1 L_f1done
            s_waitcnt vmcnt(0)
            s_mov_b64 exec, 15
            s_cmp_lg_u32 s{sFAST}, 0
            s_cbranch_scc1 L_f1fast
            buffer_store_dword v{vONE}, v{vF1}, s[{rWS}:{rWS+3}], 0 offen sc0 sc1
            s_branch L_f1ex
            """)
            a.label("L_f1fast")
            a(f"buffer_store_dword v{vONE}, v{vF1}, s[{rWS}:{rWS+3}], 0 offen")
            a.label("L_f1ex")
            a("s_mov_b64 exec, -1")
            a.label("L_f1done")
            stamp(a, cfg, 23)
        if u in (2, 3): stamp(a, cfg, 22 + u)
        if u in (5, 11, 17): stamp(a, cfg, 15 + (u - 5) // 6)
    stamp(a, cfg, 18)
    a.c("partials, 8 units per wave: 6 tile pairs, the odd tile of q tiles 0|1, the odd tile of q tile 2 (32 lanes)")
    a(f"s_lshr_b32 s{sT1}, s{sG}, 1")
    a(f"s_and_b32 s{sT2}, s{sG}, 1")
    for half in range(2):
        if half == 0:
            for x in unit(1) + unit(3): a(x)
        else:
            for x in unit(5) + cv(UR[6], acc(4, 0)) + cv(UR[6] + 2, acc(4, 1)) + cv(UR[7], acc(4, 2)): a(x)
            a(f"v_permlane32_swap_b32 v{UR[7]}, v{UR[7]+2}")
            a(f"v_permlane32_swap_b32 v{UR[7]+1}, v{UR[7]+3}")
        a(f"""
        s_cmp_lg_u32 s{sT1}, s{sWAVE}
        s_cbranch_scc1 L_rem{half}
        s_cmp_lg_u32 s{sT2}, {half}
        s_cbranch_scc1 L_rem{half}
        """)
        for k in range(4):
            a(f"ds_write_b128 v{vL16}, {vr(UR[4*half + k])} offset:{L_OWN + k*1024}")
        a(f"s_branch L_remdone{half}")
        a.label(f"L_rem{half}")
        for k in range(4):
            u = 4 * half + k
            if u == 7: a("s_mov_b32 exec_hi, 0")
            a(f"s_add_u32 s{sT0}, s{sPS}, {u*1024}")
            a(f"buffer_store_dwordx4 {vr(UR[u])}, v{vL16}, s[{rWS}:{rWS+3}], s{sT0} offen sc0 sc1")
            if u == 7: a("s_mov_b32 exec_hi, -1")
        a.label(f"L_remdone{half}")
    stamp(a, cfg, 19)
    a("s_waitcnt lgkmcnt(0)")
    if not cfg.pd_late: a("s_barrier   ; PD")
    a("s_waitcnt vmcnt(0)")
    stamp(a, cfg, 20)
    a(f"""
    s_mov_b64 exec, 3
    buffer_store_dword v{vONE}, v{vF2}, s[{rWS}:{rWS+3}], 0 offen sc0 sc1
    s_mov_b64 exec, -1
    """)
    if cfg.pd_late: a("s_barrier   ; PD")


def build(cfg, header=""):
    _lbl[0] = 0
    a = Asm()
    if header: a.raw(header.rstrip("\n"))
    a.raw(f"; @launch grid=(256,1,1) block=(512,1,1) lds={LDS_BYTES}")
    a.raw('.amdgcn_target "amdgcn-amd-amdhsa--gfx950"\n.text')
    prologue(a, cfg)
    loader(a, cfg)
    computeA(a, cfg)
    phaseB(a, cfg)
    computeC(a, cfg)
    a.label("L_fin")
    stamp(a, cfg, 21)
    if cfg.amp:
        w, ia, ib, A = cfg.amp
        a(f"""
        s_cmp_lg_u32 s{sWAVE}, {w}
        s_cbranch_scc1 L_noamp
        v_readlane_b32 s{sT0}, v255, {ia}
        v_readlane_b32 s{sT1}, v255, {ib}
        s_sub_u32 s{sT0}, s{sT1}, s{sT0}
        s_mul_i32 s{sT0}, s{sT0}, {A}
        s_memtime s[{sSTAMP}:{sSTAMP+1}]
        s_waitcnt lgkmcnt(0)
        s_add_u32 s{sT0}, s{sT0}, s{sSTAMP}
        """)
        a.label("L_amp")
        a(f"""
        s_memtime s[{sSTAMP}:{sSTAMP+1}]
        s_waitcnt lgkmcnt(0)
        s_sub_u32 s{sT1}, s{sSTAMP}, s{sT0}
        s_cmp_lt_i32 s{sT1}, 0
        s_cbranch_scc1 L_amp
        """)
        a.label("L_noamp")
    elif cfg.stamps:
        stamp_flush(a, cfg)
    a.label("L_end")
    a("s_endpgm")
    a.raw(kernel_desc(KN))
    return a.text()


def make(**kw):
    cfg = Cfg()
    for k, v in kw.items():
        assert hasattr(cfg, k), k
        setattr(cfg, k, v)
    header = open("cdna_kernels/" + NAME + ".s.ref").read().split("; Override launch")[0]
    return build(cfg, header)


if __name__ == "__main__":
    kw = {}
    for kv in sys.argv[2:]:
        k, v = kv.split("=", 1)
        kw[k] = eval(v)
    open(sys.argv[1], "w").write(make(**kw))
```

```python
import sys, math, struct
from asmgen import *

NAME = "standalone__gqa_block_cached__near_ridge"
KN = NAME + "_kernel"

X_BYTES = 768 * 640 * 2
KV_BYTES = 8 * 32 * 96 * 192 * 2
W_BYTES = 640 * 6144 * 2
OUT_BYTES = 768 * 640 * 2
WS_BYTES = 268435456
SCALE = 192 ** -0.5 * math.log2(math.e)

def f32hex(x):
    return "0x%08x" % struct.unpack("<I", struct.pack("<f", x))[0]

sX, sK, sV, sWQ, sWO, sOUT, sDBG, sWS = 4, 6, 8, 10, 12, 14, 16, 18
sWAVE, sG, sB, sJ, sH, sBH = 20, 21, 22, 23, 24, 25
sFAST, sSPIN = 26, 27
rX, rWQ, rK, rV, rWS, rWO, rOUT, rDBG = 28, 32, 36, 40, 44, 48, 52, 68
sT0, sT1, sT2, sT3 = 56, 57, 58, 59
sLW, sM0B, sKVB = 60, 61, 63
sI, sJQ, sROLE = 64, 65, 66
sOB, sPS = 62, 67
sWK, sOM0, sOK, sINB, sWE, sWM = 73, 74, 75, 76, 77, 78
sSTAMP = 80
sKW, sKX, sWC, sOC, sU, sDN, sJ4 = 92, 93, 94, 95, 96, 97, 98

L_W, L_X, L_K, L_V, L_Q = 0, 49152, 86016, 122880, 0
L_FLAG = 159744
L_OWN, L_WO, L_OR = 0, 36864, 122880
LDS_BYTES = 163840


DOC = """\
; ---------------------------------------------------------------------------------------------------------
;  C  out^T partial          160 columns x 96 rows over the 4 heads of group g (own head first, then the O tiles
; ---------------------------------------------------------------------------------------------------------
"""

class Cfg:
    stamps = False
    stamp_only = None
    amp = None
    prefetch_code = True
    pretouch = True
    ws_o = 0xE000000
    ws_p = 0xF000000
    ws_in = 0xFC00000
    ws_stamp = 0x4000000
    polW = ""; polX = ""; polKV = "nt"; polWO = ""; polPF = ""; polO = "sc1"
    o_fast_pol = "sc1"
    force_slow = False
    rot = (10, 10)
    k_sched = [12] * 9
    v_sched = [16] * 9
    kv_variants = [([7] * 9, [16] * 9), ([11] * 9, [16] * 9)]
    kv_sel_shift = 3
    wo_prefetch = True
    pf_at = 'Q'
    staged = ()
    early = 1
    mid = 4
    late = 4
    wrot = False
    h1_flag_step = 0
    h2_delay = 0
    pd_late = True
    q_lag = 6
    plain_from = 6
    c_wait = None
    c_rd0 = 0
    fine = False
    nv_pv = 6
    skip_out = False
    out_x4 = False
    pf_code_early = True
    q_rate = 2
    poll_sleep = None
    spin_max = 400000
    fill_s = 5
    fill_pv = 2
    fill_last = 5
    pk_tail = True
    skip_o = False; skip_wo = False; skip_ostore = False
    prio_c = 0
    polOut = ''


def stamp(a, cfg, idx):
    if not cfg.stamps: return
    if cfg.stamp_only is not None and idx not in cfg.stamp_only: return
    a(f"""
    s_memtime s[{sSTAMP}:{sSTAMP+1}]
    s_waitcnt lgkmcnt(0)
    v_writelane_b32 v255, s{sSTAMP}, {idx}
    """)
    a.lg = []

def stamp_flush(a, cfg):
    a(f"""
    s_memrealtime s[{sSTAMP}:{sSTAMP+1}]
    s_waitcnt lgkmcnt(0)
    v_writelane_b32 v255, s{sSTAMP}, 33
    s_lshl_b32 s{sT0}, s2, 3
    s_add_u32 s{sT0}, s{sT0}, s{sWAVE}
    s_lshl_b32 s{sT0}, s{sT0}, 8
    s_add_u32 s{sT0}, s{sT0}, {cfg.ws_stamp}
    v_mbcnt_lo_u32_b32 v254, -1, 0
    v_mbcnt_hi_u32_b32 v254, -1, v254
    v_lshlrev_b32 v254, 2, v254
    buffer_store_dword v255, v254, s[{rWS}:{rWS+3}], s{sT0} offen
    """)

def wait_kernarg(a, cfg):
    a("s_waitcnt lgkmcnt(0)")
    if cfg.stamps:
        a(f"v_writelane_b32 v255, s{sSTAMP}, 0")
        a(f"v_writelane_b32 v255, s{sSTAMP+2}, 32")

def mfma(d, A, B, first=False):
    c = "0" if first else vr(d)
    return f"v_mfma_f32_16x16x32_bf16 {vr(d)}, {vr(A)}, {vr(B)}, {c}"

def mfma32(d, A, B, first=False):
    c = "0" if first else vr(d, 16)
    return f"v_mfma_f32_32x32x16_bf16 {vr(d, 16)}, {vr(A)}, {vr(B)}, {c}"

_lbl = [0]
def poll(a, cfg, vaddr, rs, soff, vtmp, check):
    _lbl[0] += 1
    n = _lbl[0]
    a(f"s_mov_b32 s{sSPIN}, 0")
    a.label(f"poll{n}")
    a(f"buffer_load_dword v{vtmp}, v{vaddr}, s[{rs}:{rs+3}], {soff} offen sc1")
    a.wait_vm_all()
    check()
    a(f"""
    s_cbranch_scc1 poll{n}_ok
    s_add_u32 s{sSPIN}, s{sSPIN}, 1
    s_cmp_ge_u32 s{sSPIN}, {cfg.spin_max}
    s_cbranch_scc1 poll{n}_ok
    """)
    if cfg.poll_sleep is not None: a(f"s_sleep {cfg.poll_sleep}")
    a(f"s_branch poll{n}")
    a.label(f"poll{n}_ok")

def dma(a, vaddr, rs, soff, ldsoff, tag, base, pol=""):
    a(f"s_add_u32 m0, s{base}, {ldsoff}")
    if isinstance(soff, str):
        so = soff
        a("s_nop 0")
    else:
        a(f"s_mov_b32 s{sT0}, {soff}")
        so = f"s{sT0}"
    a.vmem(f"buffer_load_dwordx4 v{vaddr}, s[{rs}:{rs+3}], {so} offen {pol} lds", tag)


vA = [10, 11, 12]; vXe, vXo, vQW = 13, 14, 15
vK0c, vV0, vOL = 232, 233, 234
vCA0 = [235, 236, 237, 238, 239]; vL16, vF1, vF2 = 240, 241, 242
vCA1 = [140, 141, 142, 143, 144]; vCB = [145, 146]
vONE = 252
vW = [220, 221, 222]; vXL = [223, 224, 225]; vKA = [226, 227, 228]; vKB = [229, 230, 231]; vV = [232, 233, 234]
vK0 = [235, 236, 237]; vCP = [238, 239, 240]
vWO = [241, 242, 243, 244, 245]; vOR, vDL, vDO, vP1, vP2, vPF = 246, 247, 248, 249, 250, 251
vSW = [218, 219]
STG = 16


def prologue(a, cfg):
    a.raw(kernel_header(KN))
    if cfg.stamps:
        a(f"s_memtime s[{sSTAMP}:{sSTAMP+1}]")
        a(f"s_memrealtime s[{sSTAMP+2}:{sSTAMP+3}]")
    a(f"""
    s_cmp_ge_u32 s2, 256
    s_cbranch_scc1 L_end
    s_load_dwordx16 s[4:19], s[0:1], 0
    v_lshrrev_b32 v1, 6, v0
    v_lshlrev_b32 v2, 7, v0
    v_readfirstlane_b32 s{sWAVE}, v1
    """)
    if cfg.prefetch_code and cfg.pf_code_early:
        a.c("waves 0-3 warm L2 with this kernel's own code (one dword per 128-byte line)")
        a(f"""
        s_cmp_ge_u32 s{sWAVE}, 4
        s_cbranch_scc1 L_nopf
        s_getpc_b64 s[{sT2}:{sT2+1}]
        """)
        a.label("L_pc")
        a(f"""
        s_sub_u32 s{sT2}, s{sT2}, L_pc-{KN}
        s_subb_u32 s{sT2+1}, s{sT2+1}, 0
        v_min_u32 v2, L_end-{KN}, v2
        global_load_dword v253, v2, s[{sT2}:{sT2+1}]
        """)
        a.label("L_nopf")
    a(f"""
    v_and_b32 v0, 63, v0
    s_and_b32 s{sG}, s2, 7
    s_lshr_b32 s{sT0}, s2, 3
    s_lshr_b32 s{sB}, s{sT0}, 2
    s_and_b32 s{sJ}, s{sT0}, 3
    s_lshl_b32 s{sH}, s{sG}, 2
    s_add_u32 s{sH}, s{sH}, s{sJ}
    s_lshl_b32 s{sBH}, s{sB}, 5
    s_add_u32 s{sBH}, s{sBH}, s{sH}
    s_lshl_b32 s{sINB}, s{sBH}, 11
    s_add_u32 s{sINB}, s{sINB}, {cfg.ws_in}
    s_cmp_lt_u32 s{sWAVE}, 4
    s_cbranch_scc1 L_computeA
    """)


def next_pair(a, cfg, p, sDst, sCnt, stride):
    if p + 1 >= 12: return
    if p + 1 < 4 or not cfg.wrot:
        a(f"""
        s_add_u32 s{sDst}, s{sDst}, {stride}
        s_cmp_eq_u32 s{sDst}, {12*stride}
        s_cselect_b32 s{sDst}, 0, s{sDst}
        """)
    else:
        a(f"""
        s_add_u32 s{sDst}, s{sJ4}, s{sCnt}
        s_cmp_ge_u32 s{sDst}, 12
        s_cselect_b32 s{sT0}, 12, 0
        s_sub_u32 s{sDst}, s{sDst}, s{sT0}
        s_mul_i32 s{sDst}, s{sDst}, {stride}
        s_add_u32 s{sCnt}, s{sCnt}, 1
        s_and_b32 s{sCnt}, s{sCnt}, 7
        """)

def ld_wo_pair(a, cfg, p):
    slot = L_WO + (p % 4) * 20480
    a(f"s_add_u32 s{sT3}, s{sWK}, s{sWE}")
    for i in range(0 if cfg.skip_wo else 5):
        if p in cfg.staged:
            d = STG + (cfg.staged.index(p) * 5 + i) * 4
            a.vmem(f"buffer_load_dwordx4 {vr(d)}, v{vWO[i]}, s[{rWO}:{rWO+3}], s{sT3} offen {cfg.polWO}", ("WO", p))
        else:
            dma(a, vWO[i], rWO, f"s{sT3}", slot + i * 1024, ("WO", p), sWM, cfg.polWO)
    next_pair(a, cfg, p, sWK, sWC, 81920)

def put_wo_pair(a, cfg, p):
    a.wait_vm(("WO", p))
    hi, sl = divmod(p % 4, 2)
    for i in range(0 if cfg.skip_wo else 5):
        d = STG + (cfg.staged.index(p) * 5 + i) * 4
        a.ds(f"ds_write_b128 v{vSW[hi]}, {vr(d)} offset:{sl*20480 + i*1024}", ("WOL", p))

def ld_o_pair(a, cfg, p):
    slot = L_OR + ((p - 3) % 3) * 12288
    a(f"s_add_u32 m0, s{sOM0}, {slot}")
    a("s_nop 0")
    for i in range(0 if cfg.skip_o else 3):
        a.vmem(f"buffer_load_dwordx4 v{vOR}, s[{rWS}:{rWS+3}], s{sOK} offen offset:{i*1024} {cfg.polO} lds", ("O", p))
    next_pair(a, cfg, p, sOK, sOC, 12288)


def loader(a, cfg):
    a.reset()
    a(f"s_mov_b32 s{sROLE}, 1")
    a(f"s_sub_u32 s{sLW}, s{sWAVE}, 4")
    a(f"s_mul_i32 s{sT0}, s{sLW}, {8*12288}")
    a(f"s_mul_i32 s{sT1}, s{sH}, 384")
    a(f"s_add_u32 s{sT0}, s{sT0}, s{sT1}")
    a(f"s_and_b32 s{sT1}, s{sLW}, 1")
    a(f"s_lshl_b32 s{sT1}, s{sT1}, 2")
    for i in range(3):
        a(f"""
        v_add_u32 v2, {64*i}, v0
        v_mul_u32_u24 v3, 2731, v2
        v_lshrrev_b32 v{vK0[i]}, 16, v3
        v_mul_u32_u24 v4, 24, v{vK0[i]}
        v_sub_u32 v{vCP[i]}, v2, v4
        v_and_b32 v5, 2, v{vK0[i]}
        v_or_b32 v5, s{sT1}, v5
        v_xor_b32 v5, v5, v{vCP[i]}
        v_mul_u32_u24 v6, 12288, v{vK0[i]}
        v_lshl_add_u32 v6, v5, 4, v6
        v_add_u32 v{vW[i]}, s{sT0}, v6
        """)
    a(f"""
    s_mul_i32 s{sT2}, s{sB}, 96
    s_mul_i32 s{sT3}, s{sLW}, 24
    s_add_u32 s{sT2}, s{sT2}, s{sT3}
    s_mul_i32 s{sT2}, s{sT2}, 1280
    v_lshrrev_b32 v2, 3, v0
    v_mul_u32_u24 v2, 1280, v2
    v_and_b32 v3, 7, v0
    v_lshrrev_b32 v4, 4, v0
    v_xor_b32 v3, v3, v4
    v_xor_b32 v3, s{sT1}, v3
    v_lshl_add_u32 v{vXL[0]}, v3, 4, v2
    v_add_u32 v{vXL[0]}, s{sT2}, v{vXL[0]}
    v_xor_b32 v3, 4, v3
    v_lshl_add_u32 v{vXL[1]}, v3, 4, v2
    s_add_u32 s{sT3}, s{sT2}, {8*1280}
    v_add_u32 v{vXL[1]}, s{sT3}, v{vXL[1]}
    v_add_u32 v{vXL[2]}, {16*1280}, v{vXL[0]}
    s_mul_i32 s{sM0B}, s{sLW}, 3072
    s_mul_i32 s{sT2}, s{sB}, {cfg.rot[0]}
    s_mul_i32 s{sT3}, s{sJ}, {cfg.rot[1]}
    s_add_u32 s{sT2}, s{sT2}, s{sT3}
    s_add_u32 s{sT2}, s{sT2}, 2
    s_lshr_b32 s{sT2}, s{sT2}, 2
    s_cmp_ge_u32 s{sT2}, 20
    s_cselect_b32 s{sT3}, 20, 0
    s_sub_u32 s{sT2}, s{sT2}, s{sT3}
    s_cmp_ge_u32 s{sT2}, 10
    s_cselect_b32 s{sT3}, 10, 0
    s_sub_u32 s{sT2}, s{sT2}, s{sT3}
    s_mul_i32 s{sKW}, s{sT2}, {64*12288}
    s_lshl_b32 s{sKX}, s{sT2}, 7
    """)
    assert (7 * cfg.rot[0] + 3 * cfg.rot[1] + 2) // 4 < 30
    if cfg.stamps and (cfg.stamp_only is None or 28 in cfg.stamp_only):
        a(f"s_memtime s[{sSTAMP+4}:{sSTAMP+5}]")
        wait_kernarg(a, cfg)
        a(f"v_writelane_b32 v255, s{sSTAMP+4}, 28")
    else:
        wait_kernarg(a, cfg)
    srd(a, rWQ, sWQ, W_BYTES)
    srd(a, rX, sX, X_BYTES)
    stamp(a, cfg, 29)

    def ldW(s):
        for i in range(3): dma(a, vW[i], rWQ, f"s{sKW}", L_W + (s % 4) * 12288 + i * 1024, ("W", s), sM0B, cfg.polW)
        a(f"""
        s_add_u32 s{sKW}, s{sKW}, {32*12288}
        s_cmp_eq_u32 s{sKW}, {640*12288}
        s_cselect_b32 s{sKW}, 0, s{sKW}
        """)
    def ldX(m):
        for i in range(3): dma(a, vXL[i], rX, f"s{sKX}", L_X + (m % 3) * 12288 + i * 1024, ("X", m), sM0B, cfg.polX)
        a(f"""
        s_add_u32 s{sKX}, s{sKX}, 128
        s_cmp_eq_u32 s{sKX}, 1280
        s_cselect_b32 s{sKX}, 0, s{sKX}
        """)
    def ldK(i):
        i1, i0 = divmod(i, 3)
        dma(a, (vKB if i1 & 1 else vKA)[i0], rK, i1 * 3072, L_K + i * 1024, "K", sKVB, cfg.polKV)
    def ldV(i):
        i1, i0 = divmod(i, 3)
        dma(a, vV[i0], rV, i1 * 3072, L_V + i * 1024, "V", sKVB, cfg.polKV)

    ldW(0); ldX(0)
    stamp(a, cfg, 24)
    srd(a, rWS, sWS, WS_BYTES)
    srd(a, rDBG, sDBG, 256)
    a.c("wave 7: clear this workgroup's inbox")
    a(f"""
    s_cmp_lg_u32 s{sWAVE}, 7
    s_cbranch_scc1 L_noclr
    v_lshlrev_b32 v2, 4, v0
    v_mov_b32 v4, 0
    v_mov_b32 v5, 0
    v_mov_b32 v6, 0
    v_mov_b32 v7, 0
    buffer_store_dwordx4 v[4:7], v2, s[{rWS}:{rWS+3}], s{sINB} offen sc0 sc1
    s_mov_b64 exec, 0xff
    buffer_store_dwordx4 v[4:7], v2, s[{rWS}:{rWS+3}], s{sINB} offen offset:1024 sc0 sc1
    s_mov_b64 exec, -1
    """)
    a.label("L_noclr")
    ldW(1)
    srd(a, rK, sK, KV_BYTES)
    srd(a, rV, sV, KV_BYTES)
    srd(a, rWO, sWO, W_BYTES)
    srd(a, rOUT, sOUT, OUT_BYTES)
    a(f"""
    s_mul_i32 s{sKVB}, s{sLW}, 9216
    s_mul_i32 s{sT2}, s{sBH}, 36864
    s_add_u32 s{sT2}, s{sT2}, s{sKVB}
    """)
    for i in range(3):
        a(f"""
        v_mul_u32_u24 v6, 384, v{vK0[i]}
        v_add_u32 v6, s{sT2}, v6
        v_lshrrev_b32 v3, 1, v{vK0[i]}
        v_xor_b32 v4, v3, v{vCP[i]}
        v_xor_b32 v4, s{sT1}, v4
        v_lshl_add_u32 v{vKA[i]}, v4, 4, v6
        v_xor_b32 v4, 4, v4
        v_lshl_add_u32 v{vKB[i]}, v4, 4, v6
        v_and_b32 v3, 1, v3
        v_lshlrev_b32 v3, 2, v3
        v_xor_b32 v4, v3, v{vCP[i]}
        v_lshl_add_u32 v{vV[i]}, v4, 4, v6
        """)
    ldW(2); ldX(1); ldW(3); ldX(2)
    a.c("phase C / D loader addresses")
    a(f"""
    s_and_b32 s{sT1}, s{sLW}, 1
    s_lshr_b32 s{sT2}, s{sLW}, 1
    s_mul_i32 s{sWE}, s{sT2}, 40960
    s_mul_i32 s{sWM}, s{sLW}, 5120
    s_mul_i32 s{sT1}, s{sT1}, 320
    s_mul_i32 s{sT2}, s{sG}, {768*1280}
    s_mul_i32 s{sT3}, s{sJ}, 320
    s_add_u32 s{sT2}, s{sT2}, s{sT3}
    """)
    for i in range(5):
        a(f"""
        v_add_u32 v2, s{sT1}, v0
        v_add_u32 v2, {64*i}, v2
        v_mul_u32_u24 v3, 3277, v2
        v_lshrrev_b32 v3, 16, v3            ; row = t/20
        v_mul_u32_u24 v4, 20, v3
        v_sub_u32 v4, v2, v4                ; cp
        v_lshrrev_b32 v5, 1, v3
        v_and_b32 v5, 2, v5
        v_xor_b32 v4, v4, v5
        v_mul_u32_u24 v3, 1280, v3
        v_lshl_add_u32 v3, v4, 4, v3
        v_add_u32 v{vWO[i]}, s{sT2}, v3
        """)
    a(f"""
    s_mul_i32 s{sWK}, s{sJ}, {3*81920}
    s_mul_i32 s{sJ4}, s{sJ}, 3
    s_add_u32 s{sJ4}, s{sJ4}, 4
    s_mov_b32 s{sWC}, s{sB}
    s_mov_b32 s{sOC}, s{sB}
    v_lshlrev_b32 v7, 4, v0
    s_add_u32 s{sT1}, s{sWM}, {L_WO}
    v_add_u32 v{vSW[0]}, s{sT1}, v7
    v_add_u32 v{vSW[1]}, 40960, v{vSW[0]}
    s_add_u32 s{sT1}, s{sJ}, 1
    s_and_b32 s{sT1}, s{sT1}, 3
    s_mul_i32 s{sOK}, s{sT1}, {3*12288}
    s_mul_i32 s{sOM0}, s{sLW}, 3072
    s_lshl_b32 s{sT1}, s{sB}, 3
    s_add_u32 s{sT1}, s{sT1}, s{sG}
    s_mul_i32 s{sT1}, s{sT1}, 147456
    s_add_u32 s{sT1}, s{sT1}, s{sOM0}
    s_add_u32 s{sT1}, s{sT1}, {cfg.ws_o}
    v_add_u32 v{vOR}, s{sT1}, v7
    v_min_u32 v2, 11, v0
    v_lshlrev_b32 v2, 2, v2
    s_add_u32 s{sT1}, s{sINB}, 1024
    v_add_u32 v{vP1}, s{sT1}, v2
    v_min_u32 v2, 7, v0
    v_max_u32 v2, 1, v2
    v_add_u32 v2, s{sG}, v2
    v_and_b32 v2, 7, v2
    v_lshlrev_b32 v3, 7, v2
    v_add_u32 v{vP2}, s{sINB}, v3
    s_lshr_b32 s{sT1}, s2, 3
    s_lshl_b32 s{sT1}, s{sT1}, 2
    s_add_u32 s{sT1}, s{sT1}, s{sLW}
    s_mul_i32 s{sT1}, s{sT1}, 7680
    s_mul_i32 s{sT2}, s{sG}, 983040
    s_add_u32 s{sT1}, s{sT1}, s{sT2}
    v_min_u32 v2, 59, v0
    v_lshlrev_b32 v2, 7, v2
    v_add_u32 v{vPF}, s{sT1}, v2
    s_and_b32 s{sT0}, s{sG}, 1
    s_lshl_b32 s{sT0}, s{sT0}, 2
    s_add_u32 s{sU}, s{sT0}, s{sLW}
    s_lshl_b32 s{sT2}, s{sB}, 2
    s_add_u32 s{sT2}, s{sT2}, s{sJ}
    s_lshl_b32 s{sT2}, s{sT2}, 5
    s_lshr_b32 s{sT1}, s{sG}, 1
    s_add_u32 s{sT2}, s{sT2}, s{sT1}
    s_lshl_b32 s{sT2}, s{sT2}, 3
    s_add_u32 s{sT2}, s{sT2}, s{sU}
    s_lshl_b32 s{sT2}, s{sT2}, 10
    s_add_u32 s{sT2}, s{sT2}, {cfg.ws_p}
    v_add_u32 v{vDL}, s{sT2}, v7            ; + src*32768
    s_bfe_u32 s{sT0}, s{sG}, 0x10001        ; i
    s_lshr_b32 s{sT1}, s{sG}, 2             ; jq
    s_mul_i32 s{sT1}, s{sT1}, 48
    s_mul_i32 s{sT2}, s{sB}, 96
    s_add_u32 s{sT1}, s{sT1}, s{sT2}
    s_lshr_b32 s{sT2}, s{sU}, 1             ; t (u<6)
    s_cmp_eq_u32 s{sU}, 6
    s_cselect_b32 s{sT2}, 0, s{sT2}
    s_cmp_eq_u32 s{sU}, 7
    s_cselect_b32 s{sT2}, 2, s{sT2}
    s_lshl_b32 s{sT2}, s{sT2}, 4
    s_add_u32 s{sT1}, s{sT1}, s{sT2}
    s_mul_i32 s{sT1}, s{sT1}, 1280
    s_and_b32 s{sT2}, s{sU}, 1
    s_lshl_b32 s{sT2}, s{sT2}, 6
    s_mul_i32 s{sT3}, s{sT0}, 192           ; (80+16) columns * 2B * i
    s_add_u32 s{sT2}, s{sT2}, s{sT3}
    s_lshl_b32 s{sT3}, s{sT0}, 5
    s_add_u32 s{sT3}, s{sT3}, 128           ; (64 + 16 i) * 2B
    s_cmp_ge_u32 s{sU}, 6
    s_cselect_b32 s{sT2}, s{sT3}, s{sT2}
    s_add_u32 s{sT1}, s{sT1}, s{sT2}
    s_mul_i32 s{sT2}, s{sJ}, 320
    s_add_u32 s{sT1}, s{sT1}, s{sT2}
    v_and_b32 v2, 15, v0
    v_mul_u32_u24 v2, 1280, v2
    v_lshrrev_b32 v3, 4, v0
    v_lshl_add_u32 v2, v3, 3, v2
    v_add_u32 v{vDO}, s{sT1}, v2
    s_mov_b32 s{sDN}, 32
    s_cmp_eq_u32 s{sU}, 6
    s_cselect_b32 s{sDN}, {16*1280}, s{sDN}
    s_cmp_eq_u32 s{sU}, 7
    s_cselect_b32 s{sDN}, 16, s{sDN}
    """)
    stamp(a, cfg, 1)
    a.wait_vm(("W", 0), ("X", 0))
    a("s_barrier   ; P")
    stamp(a, cfg, 2)
    a.wait_vm(("W", 1), ("X", 0))
    a.c("wave 7: inbox cleared (its stores are older than W1) -> arrive on the group word in d_debug")
    a(f"""
    s_cmp_lg_u32 s{sWAVE}, 7
    s_cbranch_scc1 L_noarr
    s_getreg_b32 s{sT1}, hwreg(HW_REG_XCC_ID, 0, 4)
    s_lshl_b32 s{sT2}, s{sJ}, 2
    s_add_u32 s{sT2}, s{sT2}, 4
    s_lshl_b32 s{sT1}, s{sT1}, s{sT2}
    s_add_u32 s{sT1}, s{sT1}, 1
    s_lshl_b32 s{sT2}, s{sB}, 3
    s_add_u32 s{sT2}, s{sT2}, s{sG}
    s_lshl_b32 s{sT2}, s{sT2}, 2
    v_mov_b32 v2, s{sT1}
    v_mov_b32 v3, s{sT2}
    s_mov_b64 exec, 1
    buffer_atomic_add v2, v3, s[{rDBG}:{rDBG+3}], 0 offen sc1
    s_mov_b64 exec, -1
    """)
    a.label("L_noarr")
    variants = cfg.kv_variants or [(cfg.k_sched, cfg.v_sched)]
    nv = len(variants)
    if nv > 1:
        a(f"s_lshr_b32 s{sT1}, s2, {cfg.kv_sel_shift}")
        a(f"s_and_b32 s{sT1}, s{sT1}, {nv-1}")
        for v in range(1, nv):
            a(f"s_cmp_eq_u32 s{sT1}, {v}")
            a(f"s_cbranch_scc1 L_kvvar{v}")
    vm0 = list(a.vm)
    for v, var in enumerate(variants):
        ksch, vsch = var[0], var[1]
        pfs = var[2] if len(var) > 2 else cfg.pf_at
        if v: a.label(f"L_kvvar{v}")
        a.vm = list(vm0)
        for s in range(19):
            a.wait_vm(("W", s + 1), ("X", (s + 1) >> 1))
            a(f"s_barrier   ; B{s}")
            if s + 4 < 20: ldW(s + 4)
            if s & 1 and (s >> 1) + 3 < 10: ldX((s >> 1) + 3)
            if cfg.wo_prefetch and pfs == s:
                a.vmem(f"buffer_load_dword v253, v{vPF}, s[{rWO}:{rWO+3}], 0 offen {cfg.polPF}", "pf")
            for i, ss in enumerate(ksch):
                if ss == s: ldK(i)
            for i, ss in enumerate(vsch):
                if ss == s: ldV(i)
            if s in (4, 9, 14): stamp(a, cfg, 3 + (s - 4) // 5)
        a.wait_vm("K")
        if v < nv - 1: a("s_branch L_kvjoin")
    if nv > 1: a.label("L_kvjoin")
    stamp(a, cfg, 6)
    a("s_barrier   ; Q")
    a.vm = ["V"]
    def pf():
        if cfg.wo_prefetch:
            a.vmem(f"buffer_load_dword v253, v{vPF}, s[{rWO}:{rWO+3}], 0 offen {cfg.polPF}", "pf")
    a.c("have the 32 workgroups of this batch cleared their inboxes?  (read now, looked at before the V barrier)")
    a(f"""
    v_and_b32 v2, 7, v0
    v_lshlrev_b32 v2, 2, v2
    s_lshl_b32 s{sSPIN}, s{sB}, 5
    v_add_u32 v2, s{sSPIN}, v2
    """)
    a.vmem(f"buffer_load_dword v3, v2, s[{rDBG}:{rDBG+3}], 0 offen sc1", "hs")
    if cfg.pf_at == "Q": pf()
    nxt = 0
    def issue_upto(n):
        nonlocal nxt
        while nxt < n:
            ld_wo_pair(a, cfg, nxt); nxt += 1
    for p in range(2, cfg.early): assert p in cfg.staged
    issue_upto(cfg.early)
    a.wait_vm("hs")
    def chk():
        a(f"""
        v_and_b32 v4, 7, v3
        v_cmp_eq_u32 vcc, 4, v4
        s_cmp_eq_u64 vcc, -1
        """)
    chk()
    a("s_cbranch_scc1 L_hsok")
    save = list(a.vm)
    poll(a, cfg, 2, rDBG, "0", 3, chk)
    a.vm = save
    a.label("L_hsok")
    a(f"""
    s_cmp_lg_u32 s{sWAVE}, 7
    s_cbranch_scc1 L_nohs
    v_readlane_b32 s{sT1}, v3, s{sG}
    s_bfe_u32 s{sT1}, s{sT1}, 0x100004
    s_and_b32 s{sT2}, s{sT1}, 15
    s_mul_i32 s{sT2}, s{sT2}, 0x1111
    s_cmp_eq_u32 s{sT1}, s{sT2}
    s_cselect_b32 s{sT1}, {0 if cfg.force_slow else 1}, 0
    v_mov_b32 v2, {L_FLAG}
    v_mov_b32 v3, s{sT1}
    ds_write_b32 v2, v3
    buffer_load_dword v253, v{vP1}, s[{rWS}:{rWS+3}], 0 offen sc1
    s_waitcnt lgkmcnt(0)
    """)
    a.label("L_nohs")
    stamp(a, cfg, 8)
    a("s_barrier   ; V")
    if cfg.pf_at == "V": pf()
    for p in (2, 3):
        if p in cfg.staged and p < nxt: put_wo_pair(a, cfg, p)
    issue_upto(cfg.mid)
    for p in (2, 3):
        if p in cfg.staged and not any(t == ("WOL", p) for t in a.lg) and p >= cfg.early: put_wo_pair(a, cfg, p)
    if cfg.pf_at == "V2": pf()
    stamp(a, cfg, 10)
    a.wait_vm(("WO", 0))
    stamp(a, cfg, 12)
    a("s_barrier   ; O1")
    stamp(a, cfg, 13)
    for p in range(max(nxt, 4), cfg.late): assert p in cfg.staged
    issue_upto(max(4, cfg.late))
    def chk1():
        a(f"v_cmp_eq_u32 vcc, 1, v3")
        a("s_cmp_eq_u64 vcc, -1")
    for p in range(11):
        if p in (1, 2): stamp(a, cfg, 21 + p)
        if p == 2:
            a.c("wait for the siblings' O tiles")
            poll(a, cfg, vP1, rWS, "0", 3, chk1)
            if cfg.stamps: a(f"v_writelane_b32 v255, s{sSPIN}, 30")
            stamp(a, cfg, 14)
            for pp in (3, 4, 5): ld_o_pair(a, cfg, pp)
        a.wait_vm(("WO", p + 1), ("O", p + 1))
        a.wait_lg(("WOL", p + 1))
        a(f"s_barrier   ; C{p}")
        if p + 4 < 12:
            issue_upto(p + 5)
            if p + 4 in cfg.staged: put_wo_pair(a, cfg, p + 4)
        if p >= 3 and p + 3 < 12: ld_o_pair(a, cfg, p + 3)
        if p in (2, 5, 8): stamp(a, cfg, 15 + (p - 2) // 3)
    stamp(a, cfg, 18)
    a.c("phase D")
    A = 48
    a("s_barrier   ; PD")
    stamp(a, cfg, 26)
    a(f"s_lshl_b32 s{sT0}, s{sLW}, 10")
    a(f"v_lshlrev_b32 v2, 4, v0")
    a(f"v_add_u32 v2, s{sT0}, v2")
    a.ds(f"ds_read_b128 v[16:19], v2 offset:{L_OWN}", "own")
    a(f"s_cmp_lg_u32 s{sWAVE}, 4")
    a("s_cbranch_scc1 L_nopoll2")
    if cfg.h2_delay: a(f"s_sleep {cfg.h2_delay}")
    def chk2():
        a(f"v_cmp_eq_u32 vcc, 1, v3")
        a("s_cmp_eq_u64 vcc, -1")
    poll(a, cfg, vP2, rWS, "0", 3, chk2)
    a.label("L_nopoll2")
    a("s_barrier   ; PE")
    if cfg.stamps: a(f"v_writelane_b32 v255, s{sSPIN}, 31")
    stamp(a, cfg, 19)
    a(f"""
    s_cmp_eq_u32 s{sU}, 7
    s_cselect_b32 exec_hi, 0, -1
    """)
    a.vm = []
    for k in range(1, 8):
        a(f"""
        s_add_u32 s{sT0}, s{sG}, {k}
        s_and_b32 s{sT0}, s{sT0}, 7
        s_lshl_b32 s{sT0}, s{sT0}, 15
        """)
        a.vmem(f"buffer_load_dwordx4 {vr(16+4*k)}, v{vDL}, s[{rWS}:{rWS+3}], s{sT0} offen sc1", ("p", k))
    a(f"s_mov_b32 s{sT1}, 0xffff0000")
    for k in range(8):
        if k == 0: a.wait_lg_all()
        a.wait_vm(("p", k))
        for i in range(4):
            s = 16 + 4 * k + i
            if k == 0:
                a(f"v_lshlrev_b32 v{A+2*i}, 16, v{s}")
                a(f"v_and_b32 v{A+2*i+1}, s{sT1}, v{s}")
            else:
                a(f"v_lshlrev_b32 v{60+2*i}, 16, v{s}")
                a(f"v_and_b32 v{61+2*i}, s{sT1}, v{s}")
                a(f"v_add_f32 v{A+2*i}, v{A+2*i}, v{60+2*i}")
                a(f"v_add_f32 v{A+2*i+1}, v{A+2*i+1}, v{61+2*i}")
    stamp(a, cfg, 20)
    for i in range(4):
        a(f"v_cvt_pk_bf16_f32 v{16+i}, v{A+2*i}, v{A+2*i+1}")
    if cfg.out_x4:
        a.c("tile pairs: lanes kq 0|1 and 2|3 trade halves so that every lane holds 8 consecutive columns")
        a(f"""
        s_cmp_ge_u32 s{sU}, 6
        s_cbranch_scc1 L_outx2
        v_permlane16_swap_b32 v16, v18
        v_permlane16_swap_b32 v17, v19
        v_bfe_u32 v2, v0, 4, 1
        v_mul_u32_u24 v2, 24, v2
        v_add_u32 v2, v2, v{vDO}
        """)
        a(f"buffer_store_dwordx4 v[16:19], v2, s[{rOUT}:{rOUT+3}], 0 offen {cfg.polOut}")
        a("s_branch L_outdone")
        a.label("L_outx2")
    if not cfg.skip_out:
        a(f"buffer_store_dwordx2 v[16:17], v{vDO}, s[{rOUT}:{rOUT+3}], 0 offen {cfg.polOut}")
        a(f"buffer_store_dwordx2 v[18:19], v{vDO}, s[{rOUT}:{rOUT+3}], s{sDN} offen {cfg.polOut}")
    if cfg.out_x4: a.label("L_outdone")
    a("s_mov_b64 exec, -1")
    a("s_branch L_fin")


def computeA(a, cfg):
    a.label("L_computeA")
    a.reset()
    a(f"s_mov_b32 s{sROLE}, 0")
    if cfg.prefetch_code and not cfg.pf_code_early:
        a.c("wave w warms L2 with 8 KB of this kernel's code (one dword per 128-byte line)")
        a(f"s_getpc_b64 s[{sT2}:{sT2+1}]")
        a.label("L_pc")
        a(f"""
        s_sub_u32 s{sT2}, s{sT2}, L_pc-{KN}
        s_subb_u32 s{sT2+1}, s{sT2+1}, 0
        s_lshl_b32 s{sT0}, s{sWAVE}, 13
        v_lshlrev_b32 v2, 7, v0
        v_add_u32 v2, s{sT0}, v2
        v_min_u32 v2, L_end-{KN}, v2
        global_load_dword v253, v2, s[{sT2}:{sT2+1}]
        """)
    ACC = 16
    def acc(T, t): return ACC + (T * 6 + t) * 4
    SETA = [88, 124]; SETB = [100, 136]
    a.c("phase A addresses: v2=kq v3=r v4=c v5=n")
    a(f"""
    v_lshrrev_b32 v2, 4, v0
    v_bfe_u32 v3, v0, 2, 2
    v_and_b32 v4, 3, v0
    v_and_b32 v5, 15, v0
    v_lshlrev_b32 v6, 3, v2
    v_add_u32 v6, v6, v3                     ; k = 8kq + r
    v_mul_u32_u24 v6, 384, v6
    v_lshl_add_u32 v6, v4, 3, v6             ; k*384 + 8c
    v_lshrrev_b32 v7, 1, v3
    v_and_b32 v8, 1, v2
    v_lshl_or_b32 v7, v8, 1, v7              ; h(k)
    s_mul_i32 s{sT0}, s{sWAVE}, 3
    """)
    for T in range(3):
        a(f"""
        s_add_u32 s{sT1}, s{sT0}, {T}
        v_xor_b32 v8, s{sT1}, v7
        v_lshl_add_u32 v{vA[T]}, v8, 5, v6
        """)
    a(f"""
    v_lshrrev_b32 v6, 1, v5                  ; (n>>1)&7
    v_xor_b32 v6, v6, v2
    v_lshlrev_b32 v6, 4, v6
    v_lshl_add_u32 v6, v5, 7, v6
    v_add_u32 v{vXe}, {L_X}, v6
    v_xor_b32 v{vXo}, 64, v{vXe}
    v_lshrrev_b32 v6, 1, v2
    v_lshlrev_b32 v6, 9, v6
    v_lshl_add_u32 v6, v5, 4, v6
    v_and_b32 v7, 1, v2
    v_lshl_add_u32 v6, v7, 3, v6
    s_mul_i32 s{sT0}, s{sWAVE}, 3072
    v_add_u32 v{vQW}, s{sT0}, v6
    v_lshlrev_b32 v{vL16}, 4, v0
    v_mov_b32 v{vONE}, 1
    v_and_b32 v6, 31, v0
    v_lshrrev_b32 v7, 5, v0
    v_bfe_u32 v8, v0, 1, 3                   ; (m>>1)&7
    v_xor_b32 v8, v8, v7
    v_mul_u32_u24 v9, 384, v6
    v_lshl_add_u32 v9, v8, 4, v9
    v_add_u32 v{vK0c}, {L_K}, v9
    v_lshl_add_u32 v8, v7, 2, v3
    v_mul_u32_u24 v8, 384, v8
    v_lshl_add_u32 v8, v4, 3, v8             ; + 8c
    v_and_b32 v9, 2, v3                      ; hh
    v_and_b32 v6, 1, v2                      ; dh
    v_or_b32 v9, v9, v6
    v_lshl_add_u32 v8, v9, 5, v8
    v_add_u32 v{vV0}, {L_V}, v8
    v_lshlrev_b32 v8, 10, v6                 ; (n>>4)*1024
    v_lshl_add_u32 v8, v7, 8, v8             ; + hi*256
    v_lshl_add_u32 v8, v5, 4, v8             ; + (n&15)*16
    s_lshl_b32 s{sT0}, s{sWAVE}, 11
    v_add_u32 v{vOL}, s{sT0}, v8
    s_lshl_b32 s{sT2}, s{sB}, 3
    s_add_u32 s{sT2}, s{sT2}, s{sG}
    s_lshl_b32 s{sT2}, s{sT2}, 2
    s_add_u32 s{sT2}, s{sT2}, s{sJ}
    s_mul_i32 s{sOB}, s{sT2}, 36864
    s_add_u32 s{sOB}, s{sOB}, {cfg.ws_o}
    s_lshl_b32 s{sT2}, s{sJ}, 11
    s_sub_u32 s{sT2}, s{sINB}, s{sT2}
    s_add_u32 s{sT2}, s{sT2}, 1024
    s_mul_i32 s{sT3}, s{sJ}, 12
    s_add_u32 s{sT2}, s{sT2}, s{sT3}
    s_lshl_b32 s{sT3}, s{sWAVE}, 2
    s_add_u32 s{sT2}, s{sT2}, s{sT3}
    v_lshlrev_b32 v8, 11, v4
    v_add_u32 v{vF1}, s{sT2}, v8
    s_and_b32 s{sI}, s{sWAVE}, 1
    s_lshr_b32 s{sJQ}, s{sWAVE}, 1
    v_lshrrev_b32 v6, 1, v2
    v_lshlrev_b32 v6, 4, v6
    v_and_b32 v7, 1, v2
    v_lshl_add_u32 v6, v7, 2, v6
    v_add_u32 v6, v6, v3
    v_mul_u32_u24 v6, 320, v6
    v_lshl_add_u32 v6, v4, 3, v6
    v_add_u32 v6, {L_WO}, v6
    s_mul_i32 s{sT0}, s{sI}, 5
    """)
    a.c("local tile T is column tile 5i + (T+i) mod 5: tiles (0,1) and (2,3) pair up, tile 4 is the odd one")
    for T in range(5):
        a(f"s_add_u32 s{sT1}, s{sI}, {T}")
        if T == 4:
            a(f"s_cmp_eq_u32 s{sT1}, 5")
            a(f"s_cselect_b32 s{sT1}, 0, s{sT1}")
        a(f"""
        s_add_u32 s{sT1}, s{sT1}, s{sT0}
        v_xor_b32 v8, s{sT1}, v7
        v_lshl_add_u32 v{vCA0[T]}, v8, 5, v6
        """)
    a(f"""
    s_lshl_b32 s{sT0}, s{sB}, 2
    s_add_u32 s{sT0}, s{sT0}, s{sJ}
    s_lshl_b32 s{sT0}, s{sT0}, 3
    s_add_u32 s{sT0}, s{sT0}, s{sG}
    s_lshl_b32 s{sT0}, s{sT0}, 2
    s_add_u32 s{sT0}, s{sT0}, s{sWAVE}
    s_lshl_b32 s{sT0}, s{sT0}, 13
    s_add_u32 s{sPS}, s{sT0}, {cfg.ws_p}
    s_lshl_b32 s{sT0}, s{sB}, 5
    s_lshl_b32 s{sT1}, s{sWAVE}, 3
    s_add_u32 s{sT0}, s{sT0}, s{sT1}
    s_add_u32 s{sT0}, s{sT0}, s{sJ}
    s_lshl_b32 s{sT0}, s{sT0}, 11
    s_lshl_b32 s{sT1}, s{sG}, 7
    s_add_u32 s{sT0}, s{sT0}, s{sT1}
    s_add_u32 s{sT0}, s{sT0}, {cfg.ws_in}
    v_and_b32 v3, 1, v0
    v_lshlrev_b32 v3, 13, v3
    v_add_u32 v{vF2}, s{sT0}, v3
    """)
    wait_kernarg(a, cfg)
    srd(a, rWS, sWS, WS_BYTES)
    if cfg.pretouch:
        a.c("wave 1 touches the pages used later so that their translations are resident")
        a(f"""
        s_cmp_lg_u32 s{sWAVE}, 1
        s_cbranch_scc1 L_notouch
        """)
        srd(a, rK, sK, KV_BYTES); srd(a, rV, sV, KV_BYTES); srd(a, rWO, sWO, W_BYTES); srd(a, rOUT, sOUT, OUT_BYTES)
        a(f"""
        s_mov_b64 exec, 3
        v_mul_u32_u24 v2, 36860, v0
        s_mul_i32 s{sT0}, s{sBH}, 36864
        buffer_load_dword v253, v2, s[{rK}:{rK+3}], s{sT0} offen nt
        buffer_load_dword v253, v2, s[{rV}:{rV+3}], s{sT0} offen nt
        v_mul_u32_u24 v2, 983036, v0
        s_mul_i32 s{sT0}, s{sG}, 983040
        buffer_load_dword v253, v2, s[{rWO}:{rWO+3}], s{sT0} offen
        buffer_load_dword v253, v2, s[{rOUT}:{rOUT+3}], 0 offen nt
        buffer_load_dword v253, v{vL16}, s[{rWS}:{rWS+3}], s{sOB} offen nt
        buffer_load_dword v253, v{vL16}, s[{rWS}:{rWS+3}], s{sPS} offen nt
        s_mov_b64 exec, -1
        """)
        a.label("L_notouch")
    stamp(a, cfg, 1)

    def reads(s):
        st = s & 1
        wo = L_W + (s % 4) * 12288
        xo = ((s >> 1) % 3) * 12288
        vx = vXo if s & 1 else vXe
        R = []
        def ra(T):
            R.append((f"ds_read_b64_tr_b16 {vr(SETA[st]+4*T, 2)}, v{vA[T]} offset:{wo}", ("A", s, T)))
            R.append((f"ds_read_b64_tr_b16 {vr(SETA[st]+4*T+2, 2)}, v{vA[T]} offset:{wo+1536}", ("A", s, T)))
        ra(0)
        for t in range(6):
            R.append((f"ds_read_b128 {vr(SETB[st]+4*t)}, v{vx} offset:{xo + t*2048}", ("B", s, t)))
        ra(1); ra(2)
        return R

    a("s_barrier   ; P")
    stamp(a, cfg, 2)
    for ins, tag in reads(0): a.ds(ins, tag)
    def qwrite(T, t):
        d = acc(T, t)
        tmp = 88 + ((T * 6 + t) % 8) * 2
        return [f"v_cvt_pk_bf16_f32 v{tmp}, v{d}, v{d+1}", f"v_cvt_pk_bf16_f32 v{tmp+1}, v{d+2}, v{d+3}",
                ("ds", f"ds_write_b64 v{vQW}, {vr(tmp, 2)} offset:{L_Q + 1024*T + 12288*(t >> 1) + 256*(t & 1)}")]
    for s in range(20):
        a.wait_lg_all()
        if s < 19:
            a(f"s_barrier   ; B{s}")
        R = reads(s + 1) if s < 19 else []
        st = s & 1
        m = 0
        qq = []
        for T in range(3):
            for t in range(6):
                a(mfma(acc(T, t), SETA[st] + 4 * T, SETB[st] + 4 * t, first=(s == 0)))
                if m < len(R): a.ds(*R[m])
                if s == 19:
                    if m >= cfg.q_lag:
                        T2, t2 = divmod(m - cfg.q_lag, 6)
                        qq += qwrite(T2, t2)
                    for _ in range(cfg.q_rate):
                        if qq:
                            x = qq.pop(0)
                            a.ds(x[1], "qw") if isinstance(x, tuple) else a(x)
                m += 1
        if s in (4, 9, 14): stamp(a, cfg, 3 + (s - 4) // 5)
    stamp(a, cfg, 6)
    a.c("Q -> bf16 -> LDS (fragment-major)")
    for m in range(18 - cfg.q_lag, 18): qq += qwrite(*divmod(m, 6))
    for x in qq:
        a.ds(x[1], "qw") if isinstance(x, tuple) else a(x)
    a.wait_lg_all()
    a("s_barrier   ; Q")
    a(f"""
    s_cmp_lt_u32 s{sWAVE}, 3
    s_cbranch_scc1 L_phaseB
    s_barrier   ; V
    s_barrier   ; O1
    s_branch L_computeC
    """)


def phaseB(a, cfg):
    a.label("L_phaseB")
    a.reset()
    S = 16; QF = 72; KF = 120; P = 64; VF = 88; O = 136; OB = 184
    vQR = 10; vKa = [vK0c, 11, 12, 13]; vVa = [vV0, 14]
    M, T1 = 2, 3
    N = [4, 5, 6]; LA = [7, 9, 10]; LB = [8, 15, 11]
    sC2 = sSTAMP + 8
    stamp(a, cfg, 7)
    a(f"s_mul_i32 s{sT0}, s{sWAVE}, 12288")
    a(f"v_add_u32 v{vQR}, s{sT0}, v{vL16}")
    def qread(ks): a.ds(f"ds_read_b128 {vr(QF+4*ks)}, v{vQR} offset:{L_Q + ks*1024}", ("Q", ks))
    def kread(i):
        kt, ks = divmod(i, 12)
        a.ds(f"ds_read_b128 {vr(KF + 4*(i % 4))}, v{vKa[ks & 3]} offset:{kt*12288 + (ks >> 2)*128}", ("K", i))
    qread(0); kread(0)
    for x in range(1, 4): a(f"v_xor_b32 v{vKa[x]}, {32*x}, v{vK0c}")
    qread(1); kread(1); qread(2); kread(2); kread(3)
    a(f"v_xor_b32 v{vVa[1]}, 64, v{vV0}")
    a(f"s_mov_b32 s{sC2}, {f32hex(SCALE)}")
    a(f"s_mov_b32 s{sC2+1}, {f32hex(SCALE)}")
    def maxops(kt):
        b = S + 16 * kt
        r = []
        if kt == 0:
            r.append(f"v_max3_f32 v{M}, v{b}, v{b+1}, v{b+2}"); r.append(f"v_max3_f32 v{T1}, v{b+3}, v{b+4}, v{b+5}")
            rest = list(range(6, 16))
        else:
            r.append(f"v_max3_f32 v{T1}, v{b}, v{b+1}, v{b+2}")
            rest = list(range(3, 16))
        tog = 0
        while len(rest) >= 2:
            d = (M, T1)[tog]; tog ^= 1
            r.append(f"v_max3_f32 v{d}, v{d}, v{b+rest[0]}, v{b+rest[1]}"); rest = rest[2:]
        if rest: r.append(f"v_max3_f32 v{M}, v{M}, v{T1}, v{b+rest[0]}")
        else: r.append(f"v_max_f32 v{M}, v{M}, v{T1}")
        r += [f"v_mov_b32 v{T1}, v{M}", "s_nop 1", f"v_permlane32_swap_b32 v{M}, v{T1}", f"v_max_f32 v{M}, v{M}, v{T1}",
              f"v_mul_f32 v{N[kt]}, {f32hex(-SCALE)}, v{M}"]
        return r
    def expops(kt):
        b = S + 16 * kt
        r = []
        for i in range(16 + 3):
            if i < 16: r.append(f"v_fmamk_f32 v{b+i}, v{b+i}, {f32hex(SCALE)}, v{N[kt]}")
            if 1 <= i <= 16: r.append(f"v_exp_f32 v{b+i-1}, v{b+i-1}")
            j = i - 3
            if j == 1: r.append(f"v_add_f32 v{LA[kt]}, v{b}, v{b+1}")
            elif j == 3: r.append(f"v_add_f32 v{LB[kt]}, v{b+2}, v{b+3}")
            elif j >= 4: r.append(f"v_add_f32 v{(LA if j % 2 == 0 else LB)[kt]}, v{(LA if j % 2 == 0 else LB)[kt]}, v{b+j}")
        return r
    fill = []
    for i in range(36):
        kt, ks = divmod(i, 12)
        if i % 2 == 0: a.wait_lg(("Q", ks), ("K", i), ("Q", ks + 1), ("K", i + 1))
        a(mfma32(S + 16 * kt, KF + 4 * (i % 4), QF + 4 * ks, first=(ks == 0)))
        if i + 4 < 36: kread(i + 4)
        if i + 3 < 12: qread(i + 3)
        if i == 14: fill += maxops(0) + expops(0)
        if i == 26: fill += maxops(1) + expops(1)
        for _ in range(cfg.fill_s):
            if fill: a(fill.pop(0))
    stamp(a, cfg, 8)
    a("s_barrier   ; V")
    stamp(a, cfg, 9)
    def vread(i):
        Td, s = divmod(i, 6)
        for e in range(2):
            a.ds(f"ds_read_b64_tr_b16 {vr(VF + 4*(i % 12) + 2*e, 2)}, v{vVa[Td & 1]} offset:{(Td >> 1)*128 + s*6144 + e*3072}", ("V", i))
    NV = cfg.nv_pv
    for i in range(NV): vread(i)
    a(f"v_mov_b32 v1, {L_FLAG}")
    a.ds("ds_read_b32 v1, v1", "fast")
    for x in fill + maxops(2): a(x)
    b = S + 32
    a(f"v_sub_f32 v{N[0]}, v{N[2]}, v{N[0]}")
    a(f"v_sub_f32 v{N[1]}, v{N[2]}, v{N[1]}")
    for i in range(0, 16, 2):
        a(f"v_pk_fma_f32 v[{b+i}:{b+i+1}], v[{b+i}:{b+i+1}], s[{sC2}:{sC2+1}], v[{N[2]}:{N[2]+1}] op_sel_hi:[1,1,0]")
    a(f"v_exp_f32 v{N[0]}, v{N[0]}")
    a(f"v_exp_f32 v{N[1]}, v{N[1]}")
    a(f"v_add_f32 v{LA[0]}, v{LA[0]}, v{LB[0]}")
    a(f"v_add_f32 v{LA[1]}, v{LA[1]}, v{LB[1]}")
    for i in range(16):
        a(f"v_exp_f32 v{b+i}, v{b+i}")
    a(f"v_mul_f32 v{LA[0]}, v{LA[0]}, v{N[0]}")
    a(f"v_fmac_f32 v{LA[0]}, v{LA[1]}, v{N[1]}")
    a(f"v_pk_add_f32 v[{LA[2]}:{LA[2]+1}], v[{b}:{b+1}], v[{b+2}:{b+3}]")
    a(f"v_pk_add_f32 v[{M}:{M+1}], v[{b+4}:{b+5}], v[{b+6}:{b+7}]")
    for i in range(8, 16, 4):
        a(f"v_pk_add_f32 v[{LA[2]}:{LA[2]+1}], v[{LA[2]}:{LA[2]+1}], v[{b+i}:{b+i+1}]")
        a(f"v_pk_add_f32 v[{M}:{M+1}], v[{M}:{M+1}], v[{b+i+2}:{b+i+3}]")
    a(f"v_pk_add_f32 v[{M}:{M+1}], v[{M}:{M+1}], v[{LA[2]}:{LA[2]+1}]")
    a(f"v_add_f32 v{M}, v{M}, v{T1}")
    a(f"v_add_f32 v{M}, v{M}, v{LA[0]}")
    a(f"v_mov_b32 v{T1}, v{M}")
    a(f"v_permlane32_swap_b32 v{M}, v{T1}")
    a(f"v_add_f32 v{M}, v{M}, v{T1}")
    a(f"v_rcp_f32 v{N[2]}, v{M}")
    a.wait_lg("fast")
    a(f"v_readfirstlane_b32 s{sFAST}, v1")
    a(f"v_mul_f32 v{N[0]}, v{N[0]}, v{N[2]}")
    a(f"v_mul_f32 v{N[1]}, v{N[1]}, v{N[2]}")
    a(f"s_cmp_lg_u32 s{sFAST}, 0")
    a("s_cselect_b64 vcc, -1, 0")
    for s in range(6):
        kt = s >> 1
        g = N[kt]
        pair, sel = (g & ~1, g & 1)
        b = S + 8 * s
        for i in range(0, 8, 2):
            a(f"v_pk_mul_f32 v[{b+i}:{b+i+1}], v[{b+i}:{b+i+1}], v[{pair}:{pair+1}] op_sel:[0,{sel}] op_sel_hi:[1,{sel}]")
        for i in range(4):
            a(f"v_cvt_pk_bf16_f32 v{P+4*s+i}, v{b+2*i}, v{b+2*i+1}")
    stamp(a, cfg, 10)
    nst = [0]
    def epi(Td):
        d = O + 16 * (Td % 3)
        r = []
        for e in range(2):
            o = OB + (2 * (Td % 2) + e) * 4
            for i in range(4): r.append(f"v_cvt_pk_bf16_f32 v{o+i}, v{d+8*e+2*i}, v{d+8*e+2*i+1}")
            r.append(("ds", f"ds_write_b128 v{vOL}, {vr(o)} offset:{L_OWN + Td*6144 + e*512}"))
            if not cfg.skip_ostore:
                nst[0] += 1
                n = nst[0]
                st = f"buffer_store_dwordx4 {vr(o)}, v{vOL}, s[{rWS}:{rWS+3}], s{sT0} offen"
                fpol = cfg.o_fast_pol if Td < cfg.plain_from else ""
                if fpol in ("sc1", "sc0 sc1"):
                    r.append(("blk", f"s_add_u32 s{sT0}, s{sOB}, {Td*6144 + e*512}\n{st} sc0 sc1"))
                else:
                    r.append(("blk", f"s_add_u32 s{sT0}, s{sOB}, {Td*6144 + e*512}\ns_cbranch_vccnz L_os{n}\n{st} sc0 sc1\ns_branch L_od{n}\nL_os{n}:\n{st} {fpol}\nL_od{n}:"))
        return r
    def emit(x):
        if isinstance(x, tuple):
            if x[0] == "ds": a.ds(x[1], "ow")
            else: a(x[1])
        else: a(x)
    fill = []
    for i in range(36):
        Td, s = divmod(i, 6)
        if cfg.fine and s == 0: a(f"s_memtime s[{28 + 2*Td}:{29 + 2*Td}]")
        if i % 2 == 0: a.wait_lg(("V", i), ("V", i + 1))
        a(mfma32(O + 16 * (Td % 3), VF + 4 * (i % 12), P + 4 * s, first=(s == 0)))
        if i + NV < 36: vread(i + NV)
        if Td >= 1 and s == 3: fill += epi(Td - 1)
        for _ in range(cfg.fill_pv):
            if fill: emit(fill.pop(0))
    if cfg.fine:
        a("s_memtime s[40:41]")
        a("s_waitcnt lgkmcnt(0)")
        for k in range(7): a(f"v_writelane_b32 v255, s{28 + 2*k}, {40 + k}")
    stamp(a, cfg, 11)
    for x in fill + epi(5): emit(x)
    stamp(a, cfg, 27)
    a.wait_lg_all()
    stamp(a, cfg, 12)
    a("s_barrier   ; O1")
    a.c("falls through into phase C")


def computeC(a, cfg):
    a.label("L_computeC")
    a.reset()
    if cfg.prio_c: a(f"s_setprio {cfg.prio_c}")
    ACC = 16
    def acc(T, t): return ACC + (T * 3 + t) * 4
    SETA = [76, 96]; SETB = [116, 128]
    vCA = [vCA0, vCA1]
    a(f"s_mul_i32 s{sT0}, s{sJQ}, 3072")
    a(f"v_add_u32 v{vCB[0]}, s{sT0}, v{vL16}")
    def reads(u):
        st = u & 1
        p = u >> 1
        hi, sl = divmod(p % 4, 2)
        so = sl * 20480 + (u & 1) * 10240
        if u < 6:
            vb, bo = vCB[0], L_OWN + u * 6144
        else:
            vb, bo = vCB[1], ((p - 3) % 3) * 12288 + (u & 1) * 6144
        R = []
        def ra(T):
            R.append((f"ds_read_b64_tr_b16 {vr(SETA[st]+4*T, 2)}, v{vCA[hi][T]} offset:{so}", ("A", u, T)))
            R.append((f"ds_read_b64_tr_b16 {vr(SETA[st]+4*T+2, 2)}, v{vCA[hi][T]} offset:{so+2560}", ("A", u, T)))
        ra(0)
        for t in range(3):
            R.append((f"ds_read_b128 {vr(SETB[st]+4*t)}, v{vb} offset:{bo + t*1024}", ("B", u, t)))
        for T in range(1, 5): ra(T)
        return R
    U = 76
    def cv(dst, d):
        return [f"v_cvt_pk_bf16_f32 v{dst}, v{d}, v{d+1}", f"v_cvt_pk_bf16_f32 v{dst+1}, v{d+2}, v{d+3}"]
    def unit(u):
        t, pi = divmod(u, 2)
        return cv(UR[u], acc(2 * pi, t)) + cv(UR[u] + 2, acc(2 * pi + 1, t))
    UR = [76, 96, 80, 100, 84, 104, 108, 112]
    tailcv = unit(0) + unit(2) + unit(4)
    stamp(a, cfg, 13)
    for ins, tag in reads(0): a.ds(ins, tag)
    a(f"v_add_u32 v{vCB[1]}, {L_OR}, v{vCB[0]}")
    for T in range(5): a(f"v_add_u32 v{vCA1[T]}, 40960, v{vCA0[T]}")
    for u in range(24):
        if u & 1 and u < 23:
            a.wait_lg_all()
            a(f"s_barrier   ; C{u >> 1}")
        R = reads(u + 1) if u < 23 else []
        st = u & 1
        m = 0
        for T in range(5):
            for t in range(3):
                if cfg.c_wait is None: a.wait_lg(("A", u, T), ("B", u, t))
                elif t == 0 and T in cfg.c_wait:
                    nxt = min([x for x in cfg.c_wait if x > T] + [5])
                    a.wait_lg(*[("A", u, x) for x in range(T, nxt)], *[("B", u, x) for x in range(3)])
                a(mfma(acc(T, t), SETA[st] + 4 * T, SETB[st] + 4 * t, first=(u == 0)))
                if m < len(R): a.ds(*R[m])
                if u == 23 and m >= 9:
                    for _ in range(2): a(tailcv.pop(0))
                m += 1
        if u == cfg.h1_flag_step:
            a.c("waves 0-2 publish their O tile once its stores have drained")
            stamp(a, cfg, 22)
            a(f"""
            s_cmp_eq_u32 s{sWAVE}, 3
            s_cbranch_scc1 L_f1done
            s_waitcnt vmcnt(0)
            s_mov_b64 exec, 15
            s_cmp_lg_u32 s{sFAST}, 0
            s_cbranch_scc1 L_f1fast
            buffer_store_dword v{vONE}, v{vF1}, s[{rWS}:{rWS+3}], 0 offen sc0 sc1
            s_branch L_f1ex
            """)
            a.label("L_f1fast")
            a(f"buffer_store_dword v{vONE}, v{vF1}, s[{rWS}:{rWS+3}], 0 offen")
            a.label("L_f1ex")
            a("s_mov_b64 exec, -1")
            a.label("L_f1done")
            stamp(a, cfg, 23)
        if u in (2, 3): stamp(a, cfg, 22 + u)
        if u in (5, 11, 17): stamp(a, cfg, 15 + (u - 5) // 6)
    stamp(a, cfg, 18)
    a.c("partials, 8 units per wave: 6 tile pairs, the odd tile of q tiles 0|1, the odd tile of q tile 2 (32 lanes)")
    a(f"s_lshr_b32 s{sT1}, s{sG}, 1")
    a(f"s_and_b32 s{sT2}, s{sG}, 1")
    for half in range(2):
        if half == 0:
            for x in unit(1) + unit(3): a(x)
        else:
            for x in unit(5) + cv(UR[6], acc(4, 0)) + cv(UR[6] + 2, acc(4, 1)) + cv(UR[7], acc(4, 2)): a(x)
            a(f"v_permlane32_swap_b32 v{UR[7]}, v{UR[7]+2}")
            a(f"v_permlane32_swap_b32 v{UR[7]+1}, v{UR[7]+3}")
        a(f"""
        s_cmp_lg_u32 s{sT1}, s{sWAVE}
        s_cbranch_scc1 L_rem{half}
        s_cmp_lg_u32 s{sT2}, {half}
        s_cbranch_scc1 L_rem{half}
        """)
        for k in range(4):
            a(f"ds_write_b128 v{vL16}, {vr(UR[4*half + k])} offset:{L_OWN + k*1024}")
        a(f"s_branch L_remdone{half}")
        a.label(f"L_rem{half}")
        for k in range(4):
            u = 4 * half + k
            if u == 7: a("s_mov_b32 exec_hi, 0")
            a(f"s_add_u32 s{sT0}, s{sPS}, {u*1024}")
            a(f"buffer_store_dwordx4 {vr(UR[u])}, v{vL16}, s[{rWS}:{rWS+3}], s{sT0} offen sc0 sc1")
            if u == 7: a("s_mov_b32 exec_hi, -1")
        a.label(f"L_remdone{half}")
    stamp(a, cfg, 19)
    a("s_waitcnt lgkmcnt(0)")
    if not cfg.pd_late: a("s_barrier   ; PD")
    a("s_waitcnt vmcnt(0)")
    stamp(a, cfg, 20)
    a(f"""
    s_mov_b64 exec, 3
    buffer_store_dword v{vONE}, v{vF2}, s[{rWS}:{rWS+3}], 0 offen sc0 sc1
    s_mov_b64 exec, -1
    """)
    if cfg.pd_late: a("s_barrier   ; PD")


def build(cfg, header=""):
    _lbl[0] = 0
    a = Asm()
    if header: a.raw(header.rstrip("\n"))
    a.raw(f"; @launch grid=(256,1,1) block=(512,1,1) lds={LDS_BYTES}")
    a.raw(DOC.rstrip("\n"))
    a.raw('.amdgcn_target "amdgcn-amd-amdhsa--gfx950"\n.text')
    prologue(a, cfg)
    loader(a, cfg)
    computeA(a, cfg)
    phaseB(a, cfg)
    computeC(a, cfg)
    a.label("L_fin")
    stamp(a, cfg, 21)
    if cfg.amp:
        w, ia, ib, A = cfg.amp
        a(f"""
        s_cmp_lg_u32 s{sWAVE}, {w}
        s_cbranch_scc1 L_noamp
        v_readlane_b32 s{sT0}, v255, {ia}
        v_readlane_b32 s{sT1}, v255, {ib}
        s_sub_u32 s{sT0}, s{sT1}, s{sT0}
        s_mul_i32 s{sT0}, s{sT0}, {A}
        s_memtime s[{sSTAMP}:{sSTAMP+1}]
        s_waitcnt lgkmcnt(0)
        s_add_u32 s{sT0}, s{sT0}, s{sSTAMP}
        """)
        a.label("L_amp")
        a(f"""
        s_memtime s[{sSTAMP}:{sSTAMP+1}]
        s_waitcnt lgkmcnt(0)
        s_sub_u32 s{sT1}, s{sSTAMP}, s{sT0}
        s_cmp_lt_i32 s{sT1}, 0
        s_cbranch_scc1 L_amp
        """)
        a.label("L_noamp")
    elif cfg.stamps:
        stamp_flush(a, cfg)
    a.label("L_end")
    a("s_endpgm")
    a.raw(kernel_desc(KN))
    return a.text()


def make(**kw):
    cfg = Cfg()
    for k, v in kw.items():
        assert hasattr(cfg, k), k
        setattr(cfg, k, v)
    header = open("cdna_kernels/" + NAME + ".s.ref").read().split("; Override launch")[0]
    return build(cfg, header)


if __name__ == "__main__":
    kw = {}
    for kv in sys.argv[2:]:
        k, v = kv.split("=", 1)
        kw[k] = eval(v)
    open(sys.argv[1], "w").write(make(**kw))
```

```python
import sys, math, struct
from asmgen import *

NAME = "standalone__gqa_block_cached__near_ridge"
KN = NAME + "_kernel"

X_BYTES = 768 * 640 * 2
KV_BYTES = 8 * 32 * 96 * 192 * 2
W_BYTES = 640 * 6144 * 2
OUT_BYTES = 768 * 640 * 2
WS_BYTES = 268435456
SCALE = 192 ** -0.5 * math.log2(math.e)

def f32hex(x):
    return "0x%08x" % struct.unpack("<I", struct.pack("<f", x))[0]

sX, sK, sV, sWQ, sWO, sOUT, sDBG, sWS = 4, 6, 8, 10, 12, 14, 16, 18
sWAVE, sG, sB, sJ, sH, sBH = 20, 21, 22, 23, 24, 25
sFAST, sSPIN = 26, 27
rX, rWQ, rK, rV, rWS, rWO, rOUT, rDBG = 28, 32, 36, 40, 44, 48, 52, 68
sT0, sT1, sT2, sT3 = 56, 57, 58, 59
sLW, sM0B, sKVB = 60, 61, 63
sI, sJQ, sROLE = 64, 65, 66
sOB, sPS = 62, 67
sWK, sOM0, sOK, sINB, sWE, sWM = 73, 74, 75, 76, 77, 78
sSTAMP = 80
sKW, sKX, sWC, sOC, sU, sDN, sJ4 = 92, 93, 94, 95, 96, 97, 98

L_W, L_X, L_K, L_V, L_Q = 0, 49152, 86016, 122880, 0
L_FLAG = 159744
L_OWN, L_WO, L_OR = 0, 36864, 122880
LDS_BYTES = 163840


DOC = """\
; ---------------------------------------------------------------------------------------------------------
;  C  out^T partial          160 columns x 96 rows over the 4 heads of group g (own head first, then the O tiles
; ---------------------------------------------------------------------------------------------------------
"""

class Cfg:
    stamps = False
    stamp_only = None
    amp = None
    prefetch_code = True
    pretouch = True
    ws_o = 0xE000000
    ws_p = 0xF000000
    ws_in = 0xFC00000
    ws_stamp = 0x4000000
    polW = ""; polX = ""; polKV = "nt"; polWO = ""; polPF = ""; polO = "sc1"
    o_fast_pol = "sc1"
    force_slow = False
    rot = (10, 10)
    k_sched = [12] * 9
    v_sched = [16] * 9
    kv_variants = [([7] * 9, [16] * 9), ([11] * 9, [16] * 9)]
    kv_sel_shift = 3
    wo_prefetch = True
    pf_at = 'Q'
    staged = ()
    early = 1
    mid = 4
    late = 4
    wrot = False
    h1_flag_step = 0
    h2_delay = 0
    pd_late = True
    q_lag = 6
    arr_byte = False
    spoll2 = False
    flag_line = True
    arr_w3 = True
    hs_at = 14
    hs_w7 = True
    skip_arrive = False
    arr_step = 0
    prio_ld = 0
    prio_b = 0
    pf_k = 0
    pf_first = False
    pf_split = 0
    plain_from = 6
    c_wait = None
    c_rd0 = 0
    fine = False
    nv_pv = 6
    skip_out = False
    out_x4 = False
    pf_code_early = True
    q_rate = 2
    poll_sleep = None
    spin_max = 400000
    fill_s = 5
    fill_pv = 2
    fill_last = 5
    pk_tail = True
    skip_o = False; skip_wo = False; skip_ostore = False
    prio_c = 0
    polOut = ''


def stamp(a, cfg, idx):
    if not cfg.stamps: return
    if cfg.stamp_only is not None and idx not in cfg.stamp_only: return
    a(f"""
    s_memtime s[{sSTAMP}:{sSTAMP+1}]
    s_waitcnt lgkmcnt(0)
    v_writelane_b32 v255, s{sSTAMP}, {idx}
    """)
    a.lg = []

def stamp_flush(a, cfg):
    a(f"""
    s_memrealtime s[{sSTAMP}:{sSTAMP+1}]
    s_waitcnt lgkmcnt(0)
    v_writelane_b32 v255, s{sSTAMP}, 33
    s_lshl_b32 s{sT0}, s2, 3
    s_add_u32 s{sT0}, s{sT0}, s{sWAVE}
    s_lshl_b32 s{sT0}, s{sT0}, 8
    s_add_u32 s{sT0}, s{sT0}, {cfg.ws_stamp}
    v_mbcnt_lo_u32_b32 v254, -1, 0
    v_mbcnt_hi_u32_b32 v254, -1, v254
    v_lshlrev_b32 v254, 2, v254
    buffer_store_dword v255, v254, s[{rWS}:{rWS+3}], s{sT0} offen
    """)

def wait_kernarg(a, cfg):
    a("s_waitcnt lgkmcnt(0)")
    if cfg.stamps:
        a(f"v_writelane_b32 v255, s{sSTAMP}, 0")
        a(f"v_writelane_b32 v255, s{sSTAMP+2}, 32")

def mfma(d, A, B, first=False):
    c = "0" if first else vr(d)
    return f"v_mfma_f32_16x16x32_bf16 {vr(d)}, {vr(A)}, {vr(B)}, {c}"

def mfma32(d, A, B, first=False):
    c = "0" if first else vr(d, 16)
    return f"v_mfma_f32_32x32x16_bf16 {vr(d, 16)}, {vr(A)}, {vr(B)}, {c}"

_lbl = [0]
def poll(a, cfg, vaddr, rs, soff, vtmp, check):
    _lbl[0] += 1
    n = _lbl[0]
    a(f"s_mov_b32 s{sSPIN}, 0")
    a.label(f"poll{n}")
    a(f"buffer_load_dword v{vtmp}, v{vaddr}, s[{rs}:{rs+3}], {soff} offen sc1")
    a.wait_vm_all()
    check()
    a(f"""
    s_cbranch_scc1 poll{n}_ok
    s_add_u32 s{sSPIN}, s{sSPIN}, 1
    s_cmp_ge_u32 s{sSPIN}, {cfg.spin_max}
    s_cbranch_scc1 poll{n}_ok
    """)
    if cfg.poll_sleep is not None: a(f"s_sleep {cfg.poll_sleep}")
    a(f"s_branch poll{n}")
    a.label(f"poll{n}_ok")

def dma(a, vaddr, rs, soff, ldsoff, tag, base, pol=""):
    a(f"s_add_u32 m0, s{base}, {ldsoff}")
    if isinstance(soff, str):
        so = soff
        a("s_nop 0")
    else:
        a(f"s_mov_b32 s{sT0}, {soff}")
        so = f"s{sT0}"
    a.vmem(f"buffer_load_dwordx4 v{vaddr}, s[{rs}:{rs+3}], {so} offen {pol} lds", tag)


vA = [10, 11, 12]; vXe, vXo, vQW = 13, 14, 15
vK0c, vV0, vOL = 232, 233, 234
vCA0 = [235, 236, 237, 238, 239]; vL16, vF1, vF2 = 240, 241, 242
vCA1 = [140, 141, 142, 143, 144]; vCB = [145, 146]
vONE = 252
vW = [220, 221, 222]; vXL = [223, 224, 225]; vKA = [226, 227, 228]; vKB = [229, 230, 231]; vV = [232, 233, 234]
vK0 = [235, 236, 237]; vCP = [238, 239, 240]
vWO = [241, 242, 243, 244, 245]; vOR, vDL, vDO, vP1, vP2, vPF = 246, 247, 248, 249, 250, 251
vSW = [218, 219]
STG = 16


def prologue(a, cfg):
    a.raw(kernel_header(KN))
    if cfg.stamps:
        a(f"s_memtime s[{sSTAMP}:{sSTAMP+1}]")
        a(f"s_memrealtime s[{sSTAMP+2}:{sSTAMP+3}]")
    a(f"""
    s_cmp_ge_u32 s2, 256
    s_cbranch_scc1 L_end
    s_load_dwordx16 s[4:19], s[0:1], 0
    v_lshrrev_b32 v1, 6, v0
    v_lshlrev_b32 v2, 7, v0
    v_readfirstlane_b32 s{sWAVE}, v1
    """)
    if cfg.prefetch_code and cfg.pf_code_early:
        a.c("waves 0-3 warm L2 with this kernel's own code (one dword per 128-byte line)")
        a(f"""
        s_cmp_ge_u32 s{sWAVE}, 4
        s_cbranch_scc1 L_nopf
        s_getpc_b64 s[{sT2}:{sT2+1}]
        """)
        a.label("L_pc")
        a(f"""
        s_sub_u32 s{sT2}, s{sT2}, L_pc-{KN}
        s_subb_u32 s{sT2+1}, s{sT2+1}, 0
        v_min_u32 v2, L_end-{KN}, v2
        global_load_dword v253, v2, s[{sT2}:{sT2+1}]
        """)
        a.label("L_nopf")
    a(f"""
    v_and_b32 v0, 63, v0
    s_and_b32 s{sG}, s2, 7
    s_lshr_b32 s{sT0}, s2, 3
    s_lshr_b32 s{sB}, s{sT0}, 2
    s_and_b32 s{sJ}, s{sT0}, 3
    s_lshl_b32 s{sH}, s{sG}, 2
    s_add_u32 s{sH}, s{sH}, s{sJ}
    s_lshl_b32 s{sBH}, s{sB}, 5
    s_add_u32 s{sBH}, s{sBH}, s{sH}
    s_lshl_b32 s{sINB}, s{sBH}, 11
    s_add_u32 s{sINB}, s{sINB}, {cfg.ws_in}
    s_cmp_lt_u32 s{sWAVE}, 4
    s_cbranch_scc1 L_computeA
    """)


def next_pair(a, cfg, p, sDst, sCnt, stride):
    if p + 1 >= 12: return
    if p + 1 < 4 or not cfg.wrot:
        a(f"""
        s_add_u32 s{sDst}, s{sDst}, {stride}
        s_cmp_eq_u32 s{sDst}, {12*stride}
        s_cselect_b32 s{sDst}, 0, s{sDst}
        """)
    else:
        a(f"""
        s_add_u32 s{sDst}, s{sJ4}, s{sCnt}
        s_cmp_ge_u32 s{sDst}, 12
        s_cselect_b32 s{sT0}, 12, 0
        s_sub_u32 s{sDst}, s{sDst}, s{sT0}
        s_mul_i32 s{sDst}, s{sDst}, {stride}
        s_add_u32 s{sCnt}, s{sCnt}, 1
        s_and_b32 s{sCnt}, s{sCnt}, 7
        """)

def ld_wo_pair(a, cfg, p):
    slot = L_WO + (p % 4) * 20480
    a(f"s_add_u32 s{sT3}, s{sWK}, s{sWE}")
    for i in range(0 if cfg.skip_wo else 5):
        if p in cfg.staged:
            d = STG + (cfg.staged.index(p) * 5 + i) * 4
            a.vmem(f"buffer_load_dwordx4 {vr(d)}, v{vWO[i]}, s[{rWO}:{rWO+3}], s{sT3} offen {cfg.polWO}", ("WO", p))
        else:
            dma(a, vWO[i], rWO, f"s{sT3}", slot + i * 1024, ("WO", p), sWM, cfg.polWO)
    next_pair(a, cfg, p, sWK, sWC, 81920)

def put_wo_pair(a, cfg, p):
    a.wait_vm(("WO", p))
    hi, sl = divmod(p % 4, 2)
    for i in range(0 if cfg.skip_wo else 5):
        d = STG + (cfg.staged.index(p) * 5 + i) * 4
        a.ds(f"ds_write_b128 v{vSW[hi]}, {vr(d)} offset:{sl*20480 + i*1024}", ("WOL", p))

def ld_o_pair(a, cfg, p):
    slot = L_OR + ((p - 3) % 3) * 12288
    a(f"s_add_u32 m0, s{sOM0}, {slot}")
    a("s_nop 0")
    for i in range(0 if cfg.skip_o else 3):
        a.vmem(f"buffer_load_dwordx4 v{vOR}, s[{rWS}:{rWS+3}], s{sOK} offen offset:{i*1024} {cfg.polO} lds", ("O", p))
    next_pair(a, cfg, p, sOK, sOC, 12288)


def clear_inbox(a, cfg):
    a(f"""
    v_lshlrev_b32 v2, 4, v0
    v_mov_b32 v4, 0
    v_mov_b32 v5, 0
    v_mov_b32 v6, 0
    v_mov_b32 v7, 0
    buffer_store_dwordx4 v[4:7], v2, s[{rWS}:{rWS+3}], s{sINB} offen sc0 sc1
    s_mov_b64 exec, 0xff
    buffer_store_dwordx4 v[4:7], v2, s[{rWS}:{rWS+3}], s{sINB} offen offset:1024 sc0 sc1
    s_mov_b64 exec, -1
    """)

def arrive_op(a, cfg):
    a(f"s_getreg_b32 s{sT1}, hwreg(HW_REG_XCC_ID, 0, 4)")
    if cfg.arr_byte:
        a(f"""
        s_or_b32 s{sT1}, s{sT1}, 0x80
        v_mov_b32 v2, s{sT1}
        v_mov_b32 v3, s{sBH}
        s_mov_b64 exec, 1
        buffer_store_byte v2, v3, s[{rDBG}:{rDBG+3}], 0 offen sc0 sc1
        s_mov_b64 exec, -1
        """)
    else:
        a(f"""
        s_lshl_b32 s{sT2}, s{sJ}, 2
        s_add_u32 s{sT2}, s{sT2}, 4
        s_lshl_b32 s{sT1}, s{sT1}, s{sT2}
        s_add_u32 s{sT1}, s{sT1}, 1
        s_lshl_b32 s{sT2}, s{sB}, 3
        s_add_u32 s{sT2}, s{sT2}, s{sG}
        s_lshl_b32 s{sT2}, s{sT2}, 2
        v_mov_b32 v2, s{sT1}
        v_mov_b32 v3, s{sT2}
        s_mov_b64 exec, 1
        buffer_atomic_add v2, v3, s[{rDBG}:{rDBG+3}], 0 offen sc1
        s_mov_b64 exec, -1
        """)


def loader(a, cfg):
    a.reset()
    if cfg.prio_ld: a(f"s_setprio {cfg.prio_ld}")
    a(f"s_mov_b32 s{sROLE}, 1")
    a(f"s_sub_u32 s{sLW}, s{sWAVE}, 4")
    a(f"s_mul_i32 s{sT0}, s{sLW}, {8*12288}")
    a(f"s_mul_i32 s{sT1}, s{sH}, 384")
    a(f"s_add_u32 s{sT0}, s{sT0}, s{sT1}")
    a(f"s_and_b32 s{sT1}, s{sLW}, 1")
    a(f"s_lshl_b32 s{sT1}, s{sT1}, 2")
    for i in range(3):
        a(f"""
        v_add_u32 v2, {64*i}, v0
        v_mul_u32_u24 v3, 2731, v2
        v_lshrrev_b32 v{vK0[i]}, 16, v3
        v_mul_u32_u24 v4, 24, v{vK0[i]}
        v_sub_u32 v{vCP[i]}, v2, v4
        v_and_b32 v5, 2, v{vK0[i]}
        v_or_b32 v5, s{sT1}, v5
        v_xor_b32 v5, v5, v{vCP[i]}
        v_mul_u32_u24 v6, 12288, v{vK0[i]}
        v_lshl_add_u32 v6, v5, 4, v6
        v_add_u32 v{vW[i]}, s{sT0}, v6
        """)
    a(f"""
    s_mul_i32 s{sT2}, s{sB}, 96
    s_mul_i32 s{sT3}, s{sLW}, 24
    s_add_u32 s{sT2}, s{sT2}, s{sT3}
    s_mul_i32 s{sT2}, s{sT2}, 1280
    v_lshrrev_b32 v2, 3, v0
    v_mul_u32_u24 v2, 1280, v2
    v_and_b32 v3, 7, v0
    v_lshrrev_b32 v4, 4, v0
    v_xor_b32 v3, v3, v4
    v_xor_b32 v3, s{sT1}, v3
    v_lshl_add_u32 v{vXL[0]}, v3, 4, v2
    v_add_u32 v{vXL[0]}, s{sT2}, v{vXL[0]}
    v_xor_b32 v3, 4, v3
    v_lshl_add_u32 v{vXL[1]}, v3, 4, v2
    s_add_u32 s{sT3}, s{sT2}, {8*1280}
    v_add_u32 v{vXL[1]}, s{sT3}, v{vXL[1]}
    v_add_u32 v{vXL[2]}, {16*1280}, v{vXL[0]}
    s_mul_i32 s{sM0B}, s{sLW}, 3072
    s_mul_i32 s{sT2}, s{sB}, {cfg.rot[0]}
    s_mul_i32 s{sT3}, s{sJ}, {cfg.rot[1]}
    s_add_u32 s{sT2}, s{sT2}, s{sT3}
    s_add_u32 s{sT2}, s{sT2}, 2
    s_lshr_b32 s{sT2}, s{sT2}, 2
    s_cmp_ge_u32 s{sT2}, 20
    s_cselect_b32 s{sT3}, 20, 0
    s_sub_u32 s{sT2}, s{sT2}, s{sT3}
    s_cmp_ge_u32 s{sT2}, 10
    s_cselect_b32 s{sT3}, 10, 0
    s_sub_u32 s{sT2}, s{sT2}, s{sT3}
    s_mul_i32 s{sKW}, s{sT2}, {64*12288}
    s_lshl_b32 s{sKX}, s{sT2}, 7
    """)
    assert (7 * cfg.rot[0] + 3 * cfg.rot[1] + 2) // 4 < 30
    if cfg.stamps and (cfg.stamp_only is None or 28 in cfg.stamp_only):
        a(f"s_memtime s[{sSTAMP+4}:{sSTAMP+5}]")
        wait_kernarg(a, cfg)
        a(f"v_writelane_b32 v255, s{sSTAMP+4}, 28")
    else:
        wait_kernarg(a, cfg)
    srd(a, rWQ, sWQ, W_BYTES)
    srd(a, rX, sX, X_BYTES)
    stamp(a, cfg, 29)

    def ldW(s):
        for i in range(3): dma(a, vW[i], rWQ, f"s{sKW}", L_W + (s % 4) * 12288 + i * 1024, ("W", s), sM0B, cfg.polW)
        a(f"""
        s_add_u32 s{sKW}, s{sKW}, {32*12288}
        s_cmp_eq_u32 s{sKW}, {640*12288}
        s_cselect_b32 s{sKW}, 0, s{sKW}
        """)
    def ldX(m):
        for i in range(3): dma(a, vXL[i], rX, f"s{sKX}", L_X + (m % 3) * 12288 + i * 1024, ("X", m), sM0B, cfg.polX)
        a(f"""
        s_add_u32 s{sKX}, s{sKX}, 128
        s_cmp_eq_u32 s{sKX}, 1280
        s_cselect_b32 s{sKX}, 0, s{sKX}
        """)
    def ldK(i):
        i1, i0 = divmod(i, 3)
        dma(a, (vKB if i1 & 1 else vKA)[i0], rK, i1 * 3072, L_K + i * 1024, "K", sKVB, cfg.polKV)
    def ldV(i):
        i1, i0 = divmod(i, 3)
        dma(a, vV[i0], rV, i1 * 3072, L_V + i * 1024, "V", sKVB, cfg.polKV)

    ldW(0); ldX(0)
    stamp(a, cfg, 24)
    srd(a, rWS, sWS, WS_BYTES)
    srd(a, rDBG, sDBG, 256)
    if not cfg.arr_w3:
        a.c("wave 7: clear this workgroup's inbox")
        a(f"s_cmp_lg_u32 s{sWAVE}, 7")
        a("s_cbranch_scc1 L_noclr")
        clear_inbox(a, cfg)
        a.label("L_noclr")
    ldW(1)
    srd(a, rK, sK, KV_BYTES)
    srd(a, rV, sV, KV_BYTES)
    srd(a, rWO, sWO, W_BYTES)
    srd(a, rOUT, sOUT, OUT_BYTES)
    a(f"""
    s_mul_i32 s{sKVB}, s{sLW}, 9216
    s_mul_i32 s{sT2}, s{sBH}, 36864
    s_add_u32 s{sT2}, s{sT2}, s{sKVB}
    """)
    for i in range(3):
        a(f"""
        v_mul_u32_u24 v6, 384, v{vK0[i]}
        v_add_u32 v6, s{sT2}, v6
        v_lshrrev_b32 v3, 1, v{vK0[i]}
        v_xor_b32 v4, v3, v{vCP[i]}
        v_xor_b32 v4, s{sT1}, v4
        v_lshl_add_u32 v{vKA[i]}, v4, 4, v6
        v_xor_b32 v4, 4, v4
        v_lshl_add_u32 v{vKB[i]}, v4, 4, v6
        v_and_b32 v3, 1, v3
        v_lshlrev_b32 v3, 2, v3
        v_xor_b32 v4, v3, v{vCP[i]}
        v_lshl_add_u32 v{vV[i]}, v4, 4, v6
        """)
    ldW(2); ldX(1); ldW(3); ldX(2)
    a.c("phase C / D loader addresses")
    a(f"""
    s_and_b32 s{sT1}, s{sLW}, 1
    s_lshr_b32 s{sT2}, s{sLW}, 1
    s_mul_i32 s{sWE}, s{sT2}, 40960
    s_mul_i32 s{sWM}, s{sLW}, 5120
    s_mul_i32 s{sT1}, s{sT1}, 320
    s_mul_i32 s{sT2}, s{sG}, {768*1280}
    s_mul_i32 s{sT3}, s{sJ}, 320
    s_add_u32 s{sT2}, s{sT2}, s{sT3}
    """)
    for i in range(5):
        a(f"""
        v_add_u32 v2, s{sT1}, v0
        v_add_u32 v2, {64*i}, v2
        v_mul_u32_u24 v3, 3277, v2
        v_lshrrev_b32 v3, 16, v3            ; row = t/20
        v_mul_u32_u24 v4, 20, v3
        v_sub_u32 v4, v2, v4                ; cp
        v_lshrrev_b32 v5, 1, v3
        v_and_b32 v5, 2, v5
        v_xor_b32 v4, v4, v5
        v_mul_u32_u24 v3, 1280, v3
        v_lshl_add_u32 v3, v4, 4, v3
        v_add_u32 v{vWO[i]}, s{sT2}, v3
        """)
    a(f"""
    s_mul_i32 s{sWK}, s{sJ}, {3*81920}
    s_mul_i32 s{sJ4}, s{sJ}, 3
    s_add_u32 s{sJ4}, s{sJ4}, 4
    s_mov_b32 s{sWC}, s{sB}
    s_mov_b32 s{sOC}, s{sB}
    v_lshlrev_b32 v7, 4, v0
    s_add_u32 s{sT1}, s{sWM}, {L_WO}
    v_add_u32 v{vSW[0]}, s{sT1}, v7
    v_add_u32 v{vSW[1]}, 40960, v{vSW[0]}
    s_add_u32 s{sT1}, s{sJ}, 1
    s_and_b32 s{sT1}, s{sT1}, 3
    s_mul_i32 s{sOK}, s{sT1}, {3*12288}
    s_mul_i32 s{sOM0}, s{sLW}, 3072
    s_lshl_b32 s{sT1}, s{sB}, 3
    s_add_u32 s{sT1}, s{sT1}, s{sG}
    s_mul_i32 s{sT1}, s{sT1}, 147456
    s_add_u32 s{sT1}, s{sT1}, s{sOM0}
    s_add_u32 s{sT1}, s{sT1}, {cfg.ws_o}
    v_add_u32 v{vOR}, s{sT1}, v7
    v_min_u32 v2, 11, v0
    v_lshlrev_b32 v2, 2, v2
    s_add_u32 s{sT1}, s{sINB}, 1024
    v_add_u32 v{vP1}, s{sT1}, v2
    v_min_u32 v2, 7, v0
    v_max_u32 v2, 1, v2
    v_add_u32 v2, s{sG}, v2
    v_and_b32 v2, 7, v2
    v_lshlrev_b32 v3, 7, v2
    v_add_u32 v{vP2}, s{sINB}, v3
    s_lshr_b32 s{sT1}, s2, 3
    s_lshl_b32 s{sT1}, s{sT1}, 2
    s_add_u32 s{sT1}, s{sT1}, s{sLW}
    s_mul_i32 s{sT1}, s{sT1}, 7680
    s_mul_i32 s{sT2}, s{sG}, 983040
    s_add_u32 s{sT1}, s{sT1}, s{sT2}
    v_min_u32 v2, 59, v0
    v_lshlrev_b32 v2, 7, v2
    v_add_u32 v{vPF}, s{sT1}, v2
    s_and_b32 s{sT0}, s{sG}, 1
    s_lshl_b32 s{sT0}, s{sT0}, 2
    s_add_u32 s{sU}, s{sT0}, s{sLW}
    s_lshl_b32 s{sT2}, s{sB}, 2
    s_add_u32 s{sT2}, s{sT2}, s{sJ}
    s_lshl_b32 s{sT2}, s{sT2}, 5
    s_lshr_b32 s{sT1}, s{sG}, 1
    s_add_u32 s{sT2}, s{sT2}, s{sT1}
    s_lshl_b32 s{sT2}, s{sT2}, 3
    s_add_u32 s{sT2}, s{sT2}, s{sU}
    s_lshl_b32 s{sT2}, s{sT2}, 10
    s_add_u32 s{sT2}, s{sT2}, {cfg.ws_p}
    v_add_u32 v{vDL}, s{sT2}, v7            ; + src*32768
    s_bfe_u32 s{sT0}, s{sG}, 0x10001        ; i
    s_lshr_b32 s{sT1}, s{sG}, 2             ; jq
    s_mul_i32 s{sT1}, s{sT1}, 48
    s_mul_i32 s{sT2}, s{sB}, 96
    s_add_u32 s{sT1}, s{sT1}, s{sT2}
    s_lshr_b32 s{sT2}, s{sU}, 1             ; t (u<6)
    s_cmp_eq_u32 s{sU}, 6
    s_cselect_b32 s{sT2}, 0, s{sT2}
    s_cmp_eq_u32 s{sU}, 7
    s_cselect_b32 s{sT2}, 2, s{sT2}
    s_lshl_b32 s{sT2}, s{sT2}, 4
    s_add_u32 s{sT1}, s{sT1}, s{sT2}
    s_mul_i32 s{sT1}, s{sT1}, 1280
    s_and_b32 s{sT2}, s{sU}, 1
    s_lshl_b32 s{sT2}, s{sT2}, 6
    s_mul_i32 s{sT3}, s{sT0}, 192           ; (80+16) columns * 2B * i
    s_add_u32 s{sT2}, s{sT2}, s{sT3}
    s_lshl_b32 s{sT3}, s{sT0}, 5
    s_add_u32 s{sT3}, s{sT3}, 128           ; (64 + 16 i) * 2B
    s_cmp_ge_u32 s{sU}, 6
    s_cselect_b32 s{sT2}, s{sT3}, s{sT2}
    s_add_u32 s{sT1}, s{sT1}, s{sT2}
    s_mul_i32 s{sT2}, s{sJ}, 320
    s_add_u32 s{sT1}, s{sT1}, s{sT2}
    v_and_b32 v2, 15, v0
    v_mul_u32_u24 v2, 1280, v2
    v_lshrrev_b32 v3, 4, v0
    v_lshl_add_u32 v2, v3, 3, v2
    v_add_u32 v{vDO}, s{sT1}, v2
    s_mov_b32 s{sDN}, 32
    s_cmp_eq_u32 s{sU}, 6
    s_cselect_b32 s{sDN}, {16*1280}, s{sDN}
    s_cmp_eq_u32 s{sU}, 7
    s_cselect_b32 s{sDN}, 16, s{sDN}
    """)
    stamp(a, cfg, 1)
    a.wait_vm(("W", 0), ("X", 0))
    a("s_barrier   ; P")
    stamp(a, cfg, 2)
    def arrive(n):
        if cfg.skip_arrive or cfg.arr_w3: return
        a.c("wave 7: inbox cleared (its stores are older than W1) -> arrive in d_debug")
        a(f"s_cmp_lg_u32 s{sWAVE}, 7")
        a(f"s_cbranch_scc1 L_noarr{n}")
        arrive_op(a, cfg)
        a.label(f"L_noarr{n}")
    def hs_read():
        a.c("have the 32 workgroups of this batch cleared their inboxes?  (read now, looked at before the V barrier)")
        a(f"""
        v_and_b32 v8, 7, v0
        v_lshlrev_b32 v8, 2, v8
        s_lshl_b32 s{sSPIN}, s{sB}, 5
        v_add_u32 v8, s{sSPIN}, v8
        """)
        if cfg.hs_w7:
            _lbl[0] += 1
            a(f"s_cmp_lg_u32 s{sWAVE}, 7")
            a(f"s_cbranch_scc1 L_nohsrd{_lbl[0]}")
            a(f"buffer_load_dword v9, v8, s[{rDBG}:{rDBG+3}], 0 offen sc1")
            a.label(f"L_nohsrd{_lbl[0]}")
            a.hs_pos = len(a.vm)
        else:
            a.vmem(f"buffer_load_dword v9, v8, s[{rDBG}:{rDBG+3}], 0 offen sc1", "hs")
    variants = cfg.kv_variants or [(cfg.k_sched, cfg.v_sched)]
    nv = len(variants)
    if nv > 1:
        a(f"s_lshr_b32 s{sT1}, s2, {cfg.kv_sel_shift}")
        a(f"s_and_b32 s{sT1}, s{sT1}, {nv-1}")
        for v in range(1, nv):
            a(f"s_cmp_eq_u32 s{sT1}, {v}")
            a(f"s_cbranch_scc1 L_kvvar{v}")
    vm0 = list(a.vm)
    for v, var in enumerate(variants):
        ksch, vsch = var[0], var[1]
        pfs = var[2] if len(var) > 2 else cfg.pf_at
        if v: a.label(f"L_kvvar{v}")
        a.vm = list(vm0)
        for s in range(19):
            a.wait_vm(("W", s + 1), ("X", (s + 1) >> 1))
            if s == cfg.arr_step: arrive(v)
            a(f"s_barrier   ; B{s}")
            if s + 4 < 20: ldW(s + 4)
            if s & 1 and (s >> 1) + 3 < 10: ldX((s >> 1) + 3)
            if cfg.wo_prefetch and pfs == s:
                a.vmem(f"buffer_load_dword v253, v{vPF}, s[{rWO}:{rWO+3}], 0 offen {cfg.polPF}", "pf")
            def pfk():
                if cfg.pf_k and ksch[-1] == s:
                    m = (1 << cfg.pf_k) - 1
                    a(f"s_mov_b32 exec_lo, {m & 0xffffffff:#x}")
                    a(f"s_mov_b32 exec_hi, {m >> 32:#x}")
                    a.vmem(f"buffer_load_dword v253, v{vPF}, s[{rWO}:{rWO+3}], 0 offen {cfg.polPF}", "pf")
                    a("s_mov_b64 exec, -1")
            if cfg.pf_first: pfk()
            for i, ss in enumerate(ksch):
                if ss == s: ldK(i)
            if not cfg.pf_first: pfk()
            if (cfg.hs_at == 'K' and ksch[-1] == s) or cfg.hs_at == s: hs_read()
            for i, ss in enumerate(vsch):
                if ss == s: ldV(i)
            if s in (4, 9, 14): stamp(a, cfg, 3 + (s - 4) // 5)
        a.wait_vm("K")
        if v < nv - 1: a("s_branch L_kvjoin")
    if nv > 1: a.label("L_kvjoin")
    stamp(a, cfg, 6)
    a("s_barrier   ; Q")
    a.vm = ["V"]
    def pf():
        if cfg.wo_prefetch:
            a.vmem(f"buffer_load_dword v253, v{vPF}, s[{rWO}:{rWO+3}], 0 offen {cfg.polPF}", "pf")
    if cfg.hs_at == 'Q': hs_read()
    def pf_part(lo, hi):
        m = ((1 << hi) - 1) ^ ((1 << lo) - 1)
        a(f"s_mov_b32 exec_lo, {m & 0xffffffff:#x}")
        a(f"s_mov_b32 exec_hi, {m >> 32:#x}")
        pf()
        a("s_mov_b64 exec, -1")
    if cfg.pf_at == "Q":
        if cfg.pf_split: pf_part(0, cfg.pf_split)
        elif cfg.pf_k:
            if cfg.pf_k < 60: pf_part(cfg.pf_k, 60)
        else: pf()
    nxt = 0
    def issue_upto(n):
        nonlocal nxt
        while nxt < n:
            ld_wo_pair(a, cfg, nxt); nxt += 1
    for p in range(2, cfg.early): assert p in cfg.staged
    issue_upto(cfg.early)
    if cfg.hs_w7:
        a(f"s_cmp_lg_u32 s{sWAVE}, 7")
        a("s_cbranch_scc1 L_nohs")
    save = list(a.vm)
    if cfg.hs_at == 'Q':
        if cfg.hs_w7:
            n = len(a.vm) - a.hs_pos
            a(f"s_waitcnt vmcnt({n})")
        else:
            a.wait_vm("hs")
            save = list(a.vm)
    def chk():
        if cfg.arr_byte:
            a(f"""
            v_and_b32 v4, 0x80808080, v9
            v_cmp_eq_u32 vcc, 0x80808080, v4
            s_cmp_eq_u64 vcc, -1
            """)
        else:
            a(f"""
            v_and_b32 v4, 7, v9
            v_cmp_eq_u32 vcc, 4, v4
            s_cmp_eq_u64 vcc, -1
            """)
    chk()
    if cfg.skip_arrive: a("s_cmp_eq_u32 0, 0")
    a("s_cbranch_scc1 L_hsok")
    poll(a, cfg, 8, rDBG, "0", 9, chk)
    a.label("L_hsok")
    a.vm = save
    a(f"""
    s_cmp_lg_u32 s{sWAVE}, 7
    s_cbranch_scc1 L_nohs
    v_readlane_b32 s{sT1}, v9, s{sG}
    """)
    if cfg.arr_byte:
        a(f"""
        s_and_b32 s{sT2}, s{sT1}, 0xff
        s_mul_i32 s{sT2}, s{sT2}, 0x01010101
        """)
    else:
        a(f"""
        s_bfe_u32 s{sT1}, s{sT1}, 0x100004
        s_and_b32 s{sT2}, s{sT1}, 15
        s_mul_i32 s{sT2}, s{sT2}, 0x1111
        """)
    a(f"""
    s_cmp_eq_u32 s{sT1}, s{sT2}
    s_cselect_b32 s{sT1}, {0 if cfg.force_slow else 1}, 0
    v_mov_b32 v2, {L_FLAG}
    v_mov_b32 v3, s{sT1}
    ds_write_b32 v2, v3
    buffer_load_dword v253, v{vP1}, s[{rWS}:{rWS+3}], 0 offen sc1
    s_waitcnt lgkmcnt(0)
    """)
    a.label("L_nohs")
    a.wait_vm("V")
    stamp(a, cfg, 8)
    a("s_barrier   ; V")
    if cfg.pf_at == "V": pf()
    if cfg.pf_at == "Q" and cfg.pf_split: pf_part(cfg.pf_split, 60)
    for p in (2, 3):
        if p in cfg.staged and p < nxt: put_wo_pair(a, cfg, p)
    issue_upto(cfg.mid)
    for p in (2, 3):
        if p in cfg.staged and not any(t == ("WOL", p) for t in a.lg) and p >= cfg.early: put_wo_pair(a, cfg, p)
    if cfg.pf_at == "V2": pf()
    stamp(a, cfg, 10)
    a.wait_vm(("WO", 0))
    stamp(a, cfg, 12)
    a("s_barrier   ; O1")
    stamp(a, cfg, 13)
    for p in range(max(nxt, 4), cfg.late): assert p in cfg.staged
    issue_upto(max(4, cfg.late))
    def chk1():
        a(f"v_cmp_eq_u32 vcc, 1, v3")
        a("s_cmp_eq_u64 vcc, -1")
    for p in range(11):
        if p in (1, 2): stamp(a, cfg, 21 + p)
        if p == 2:
            a.c("wait for the siblings' O tiles")
            poll(a, cfg, vP1, rWS, "0", 3, chk1)
            if cfg.stamps: a(f"v_writelane_b32 v255, s{sSPIN}, 30")
            stamp(a, cfg, 14)
            for pp in (3, 4, 5): ld_o_pair(a, cfg, pp)
        a.wait_vm(("WO", p + 1), ("O", p + 1))
        a.wait_lg(("WOL", p + 1))
        a(f"s_barrier   ; C{p}")
        if p + 4 < 12:
            issue_upto(p + 5)
            if p + 4 in cfg.staged: put_wo_pair(a, cfg, p + 4)
        if p >= 3 and p + 3 < 12: ld_o_pair(a, cfg, p + 3)
        if p in (2, 5, 8): stamp(a, cfg, 15 + (p - 2) // 3)
    stamp(a, cfg, 18)
    a.c("phase D")
    A = 48
    a("s_barrier   ; PD")
    stamp(a, cfg, 26)
    a(f"s_lshl_b32 s{sT0}, s{sLW}, 10")
    a(f"v_lshlrev_b32 v2, 4, v0")
    a(f"v_add_u32 v2, s{sT0}, v2")
    a.ds(f"ds_read_b128 v[16:19], v2 offset:{L_OWN}", "own")
    a(f"s_cmp_lg_u32 s{sWAVE}, 4")
    a("s_cbranch_scc1 L_nopoll2")
    if cfg.h2_delay: a(f"s_sleep {cfg.h2_delay}")
    def chk2():
        a(f"v_cmp_eq_u32 vcc, 1, v3")
        a("s_cmp_eq_u64 vcc, -1")
    if cfg.spoll2:
        a(f"""
        s_add_u32 s28, s{sWS}, s{sINB}
        s_addc_u32 s29, s{sWS+1}, 0
        s_mov_b32 s{sSPIN}, 0
        """)
        a.label("L_sp2")
        for k in range(8): a(f"s_load_dword s{32+k}, s[28:29], {k*128} glc")
        a("s_waitcnt lgkmcnt(0)")
        a(f"s_and_b32 s32, s32, s33")
        for k in range(2, 8): a(f"s_and_b32 s32, s32, s{32+k}")
        a(f"""
        s_cmp_eq_u32 s32, 1
        s_cbranch_scc1 L_nopoll2
        s_add_u32 s{sSPIN}, s{sSPIN}, 1
        s_cmp_lt_u32 s{sSPIN}, {cfg.spin_max}
        s_cbranch_scc1 L_sp2
        """)
        a.lg = []
    else:
        poll(a, cfg, vP2, rWS, "0", 3, chk2)
    a.label("L_nopoll2")
    a("s_barrier   ; PE")
    if cfg.stamps: a(f"v_writelane_b32 v255, s{sSPIN}, 31")
    stamp(a, cfg, 19)
    a(f"""
    s_cmp_eq_u32 s{sU}, 7
    s_cselect_b32 exec_hi, 0, -1
    """)
    a.vm = []
    for k in range(1, 8):
        a(f"""
        s_add_u32 s{sT0}, s{sG}, {k}
        s_and_b32 s{sT0}, s{sT0}, 7
        s_lshl_b32 s{sT0}, s{sT0}, 15
        """)
        a.vmem(f"buffer_load_dwordx4 {vr(16+4*k)}, v{vDL}, s[{rWS}:{rWS+3}], s{sT0} offen sc1", ("p", k))
    a(f"s_mov_b32 s{sT1}, 0xffff0000")
    for k in range(8):
        if k == 0: a.wait_lg_all()
        a.wait_vm(("p", k))
        for i in range(4):
            s = 16 + 4 * k + i
            if k == 0:
                a(f"v_lshlrev_b32 v{A+2*i}, 16, v{s}")
                a(f"v_and_b32 v{A+2*i+1}, s{sT1}, v{s}")
            else:
                a(f"v_lshlrev_b32 v{60+2*i}, 16, v{s}")
                a(f"v_and_b32 v{61+2*i}, s{sT1}, v{s}")
                a(f"v_add_f32 v{A+2*i}, v{A+2*i}, v{60+2*i}")
                a(f"v_add_f32 v{A+2*i+1}, v{A+2*i+1}, v{61+2*i}")
    stamp(a, cfg, 20)
    for i in range(4):
        a(f"v_cvt_pk_bf16_f32 v{16+i}, v{A+2*i}, v{A+2*i+1}")
    if cfg.out_x4:
        a.c("tile pairs: lanes kq 0|1 and 2|3 trade halves so that every lane holds 8 consecutive columns")
        a(f"""
        s_cmp_ge_u32 s{sU}, 6
        s_cbranch_scc1 L_outx2
        v_permlane16_swap_b32 v16, v18
        v_permlane16_swap_b32 v17, v19
        v_bfe_u32 v2, v0, 4, 1
        v_mul_u32_u24 v2, 24, v2
        v_add_u32 v2, v2, v{vDO}
        """)
        a(f"buffer_store_dwordx4 v[16:19], v2, s[{rOUT}:{rOUT+3}], 0 offen {cfg.polOut}")
        a("s_branch L_outdone")
        a.label("L_outx2")
    if not cfg.skip_out:
        a(f"buffer_store_dwordx2 v[16:17], v{vDO}, s[{rOUT}:{rOUT+3}], 0 offen {cfg.polOut}")
        a(f"buffer_store_dwordx2 v[18:19], v{vDO}, s[{rOUT}:{rOUT+3}], s{sDN} offen {cfg.polOut}")
    if cfg.out_x4: a.label("L_outdone")
    a("s_mov_b64 exec, -1")
    a("s_branch L_fin")


def computeA(a, cfg):
    a.label("L_computeA")
    a.reset()
    a(f"s_mov_b32 s{sROLE}, 0")
    if cfg.prefetch_code and not cfg.pf_code_early:
        a.c("wave w warms L2 with 8 KB of this kernel's code (one dword per 128-byte line)")
        a(f"s_getpc_b64 s[{sT2}:{sT2+1}]")
        a.label("L_pc")
        a(f"""
        s_sub_u32 s{sT2}, s{sT2}, L_pc-{KN}
        s_subb_u32 s{sT2+1}, s{sT2+1}, 0
        s_lshl_b32 s{sT0}, s{sWAVE}, 13
        v_lshlrev_b32 v2, 7, v0
        v_add_u32 v2, s{sT0}, v2
        v_min_u32 v2, L_end-{KN}, v2
        global_load_dword v253, v2, s[{sT2}:{sT2+1}]
        """)
    ACC = 16
    def acc(T, t): return ACC + (T * 6 + t) * 4
    SETA = [88, 124]; SETB = [100, 136]
    a.c("phase A addresses: v2=kq v3=r v4=c v5=n")
    a(f"""
    v_lshrrev_b32 v2, 4, v0
    v_bfe_u32 v3, v0, 2, 2
    v_and_b32 v4, 3, v0
    v_and_b32 v5, 15, v0
    v_lshlrev_b32 v6, 3, v2
    v_add_u32 v6, v6, v3                     ; k = 8kq + r
    v_mul_u32_u24 v6, 384, v6
    v_lshl_add_u32 v6, v4, 3, v6             ; k*384 + 8c
    v_lshrrev_b32 v7, 1, v3
    v_and_b32 v8, 1, v2
    v_lshl_or_b32 v7, v8, 1, v7              ; h(k)
    s_mul_i32 s{sT0}, s{sWAVE}, 3
    """)
    for T in range(3):
        a(f"""
        s_add_u32 s{sT1}, s{sT0}, {T}
        v_xor_b32 v8, s{sT1}, v7
        v_lshl_add_u32 v{vA[T]}, v8, 5, v6
        """)
    a(f"""
    v_lshrrev_b32 v6, 1, v5                  ; (n>>1)&7
    v_xor_b32 v6, v6, v2
    v_lshlrev_b32 v6, 4, v6
    v_lshl_add_u32 v6, v5, 7, v6
    v_add_u32 v{vXe}, {L_X}, v6
    v_xor_b32 v{vXo}, 64, v{vXe}
    v_lshrrev_b32 v6, 1, v2
    v_lshlrev_b32 v6, 9, v6
    v_lshl_add_u32 v6, v5, 4, v6
    v_and_b32 v7, 1, v2
    v_lshl_add_u32 v6, v7, 3, v6
    s_mul_i32 s{sT0}, s{sWAVE}, 3072
    v_add_u32 v{vQW}, s{sT0}, v6
    v_lshlrev_b32 v{vL16}, 4, v0
    v_mov_b32 v{vONE}, 1
    v_and_b32 v6, 31, v0
    v_lshrrev_b32 v7, 5, v0
    v_bfe_u32 v8, v0, 1, 3                   ; (m>>1)&7
    v_xor_b32 v8, v8, v7
    v_mul_u32_u24 v9, 384, v6
    v_lshl_add_u32 v9, v8, 4, v9
    v_add_u32 v{vK0c}, {L_K}, v9
    v_lshl_add_u32 v8, v7, 2, v3
    v_mul_u32_u24 v8, 384, v8
    v_lshl_add_u32 v8, v4, 3, v8             ; + 8c
    v_and_b32 v9, 2, v3                      ; hh
    v_and_b32 v6, 1, v2                      ; dh
    v_or_b32 v9, v9, v6
    v_lshl_add_u32 v8, v9, 5, v8
    v_add_u32 v{vV0}, {L_V}, v8
    v_lshlrev_b32 v8, 10, v6                 ; (n>>4)*1024
    v_lshl_add_u32 v8, v7, 8, v8             ; + hi*256
    v_lshl_add_u32 v8, v5, 4, v8             ; + (n&15)*16
    s_lshl_b32 s{sT0}, s{sWAVE}, 11
    v_add_u32 v{vOL}, s{sT0}, v8
    s_lshl_b32 s{sT2}, s{sB}, 3
    s_add_u32 s{sT2}, s{sT2}, s{sG}
    s_lshl_b32 s{sT2}, s{sT2}, 2
    s_add_u32 s{sT2}, s{sT2}, s{sJ}
    s_mul_i32 s{sOB}, s{sT2}, 36864
    s_add_u32 s{sOB}, s{sOB}, {cfg.ws_o}
    s_lshl_b32 s{sT2}, s{sJ}, 11
    s_sub_u32 s{sT2}, s{sINB}, s{sT2}
    s_add_u32 s{sT2}, s{sT2}, 1024
    s_mul_i32 s{sT3}, s{sJ}, 12
    s_add_u32 s{sT2}, s{sT2}, s{sT3}
    s_lshl_b32 s{sT3}, s{sWAVE}, 2
    s_add_u32 s{sT2}, s{sT2}, s{sT3}
    v_lshlrev_b32 v8, 11, v4
    v_add_u32 v{vF1}, s{sT2}, v8
    s_and_b32 s{sI}, s{sWAVE}, 1
    s_lshr_b32 s{sJQ}, s{sWAVE}, 1
    v_lshrrev_b32 v6, 1, v2
    v_lshlrev_b32 v6, 4, v6
    v_and_b32 v7, 1, v2
    v_lshl_add_u32 v6, v7, 2, v6
    v_add_u32 v6, v6, v3
    v_mul_u32_u24 v6, 320, v6
    v_lshl_add_u32 v6, v4, 3, v6
    v_add_u32 v6, {L_WO}, v6
    s_mul_i32 s{sT0}, s{sI}, 5
    """)
    a.c("local tile T is column tile 5i + (T+i) mod 5: tiles (0,1) and (2,3) pair up, tile 4 is the odd one")
    for T in range(5):
        a(f"s_add_u32 s{sT1}, s{sI}, {T}")
        if T == 4:
            a(f"s_cmp_eq_u32 s{sT1}, 5")
            a(f"s_cselect_b32 s{sT1}, 0, s{sT1}")
        a(f"""
        s_add_u32 s{sT1}, s{sT1}, s{sT0}
        v_xor_b32 v8, s{sT1}, v7
        v_lshl_add_u32 v{vCA0[T]}, v8, 5, v6
        """)
    a(f"""
    s_lshl_b32 s{sT0}, s{sB}, 2
    s_add_u32 s{sT0}, s{sT0}, s{sJ}
    s_lshl_b32 s{sT0}, s{sT0}, 3
    s_add_u32 s{sT0}, s{sT0}, s{sG}
    s_lshl_b32 s{sT0}, s{sT0}, 2
    s_add_u32 s{sT0}, s{sT0}, s{sWAVE}
    s_lshl_b32 s{sT0}, s{sT0}, 13
    s_add_u32 s{sPS}, s{sT0}, {cfg.ws_p}
    s_lshl_b32 s{sT0}, s{sB}, 5
    s_lshl_b32 s{sT1}, s{sWAVE}, 3
    s_add_u32 s{sT0}, s{sT0}, s{sT1}
    s_add_u32 s{sT0}, s{sT0}, s{sJ}
    s_lshl_b32 s{sT0}, s{sT0}, 11
    s_lshl_b32 s{sT1}, s{sG}, 7
    s_add_u32 s{sT0}, s{sT0}, s{sT1}
    s_add_u32 s{sT0}, s{sT0}, {cfg.ws_in}
    """)
    if cfg.flag_line:
        a(f"""
        v_bfe_u32 v3, v0, 3, 1
        v_lshlrev_b32 v3, 13, v3
        v_and_b32 v6, 7, v0
        v_lshl_add_u32 v3, v6, 4, v3
        v_add_u32 v{vF2}, s{sT0}, v3
        """)
    else:
        a(f"""
        v_and_b32 v3, 1, v0
        v_lshlrev_b32 v3, 13, v3
        v_add_u32 v{vF2}, s{sT0}, v3
        """)
    wait_kernarg(a, cfg)
    srd(a, rWS, sWS, WS_BYTES)
    if cfg.arr_w3:
        a.c("wave 3: clear this workgroup's inbox, then arrive in d_debug")
        a(f"s_cmp_lg_u32 s{sWAVE}, 3")
        a("s_cbranch_scc1 L_noclr")
        srd(a, rDBG, sDBG, 256)
        clear_inbox(a, cfg)
        a("s_waitcnt vmcnt(0)")
        if not cfg.skip_arrive: arrive_op(a, cfg)
        a.label("L_noclr")
    if cfg.pretouch:
        a.c("wave 1 touches the pages used later so that their translations are resident")
        a(f"""
        s_cmp_lg_u32 s{sWAVE}, 1
        s_cbranch_scc1 L_notouch
        """)
        srd(a, rK, sK, KV_BYTES); srd(a, rV, sV, KV_BYTES); srd(a, rWO, sWO, W_BYTES); srd(a, rOUT, sOUT, OUT_BYTES)
        a(f"""
        s_mov_b64 exec, 3
        v_mul_u32_u24 v2, 36860, v0
        s_mul_i32 s{sT0}, s{sBH}, 36864
        buffer_load_dword v253, v2, s[{rK}:{rK+3}], s{sT0} offen nt
        buffer_load_dword v253, v2, s[{rV}:{rV+3}], s{sT0} offen nt
        v_mul_u32_u24 v2, 983036, v0
        s_mul_i32 s{sT0}, s{sG}, 983040
        buffer_load_dword v253, v2, s[{rWO}:{rWO+3}], s{sT0} offen
        buffer_load_dword v253, v2, s[{rOUT}:{rOUT+3}], 0 offen nt
        buffer_load_dword v253, v{vL16}, s[{rWS}:{rWS+3}], s{sOB} offen nt
        buffer_load_dword v253, v{vL16}, s[{rWS}:{rWS+3}], s{sPS} offen nt
        s_mov_b64 exec, -1
        """)
        a.label("L_notouch")
    stamp(a, cfg, 1)

    def reads(s):
        st = s & 1
        wo = L_W + (s % 4) * 12288
        xo = ((s >> 1) % 3) * 12288
        vx = vXo if s & 1 else vXe
        R = []
        def ra(T):
            R.append((f"ds_read_b64_tr_b16 {vr(SETA[st]+4*T, 2)}, v{vA[T]} offset:{wo}", ("A", s, T)))
            R.append((f"ds_read_b64_tr_b16 {vr(SETA[st]+4*T+2, 2)}, v{vA[T]} offset:{wo+1536}", ("A", s, T)))
        ra(0)
        for t in range(6):
            R.append((f"ds_read_b128 {vr(SETB[st]+4*t)}, v{vx} offset:{xo + t*2048}", ("B", s, t)))
        ra(1); ra(2)
        return R

    a("s_barrier   ; P")
    stamp(a, cfg, 2)
    for ins, tag in reads(0): a.ds(ins, tag)
    def qwrite(T, t):
        d = acc(T, t)
        tmp = 88 + ((T * 6 + t) % 8) * 2
        return [f"v_cvt_pk_bf16_f32 v{tmp}, v{d}, v{d+1}", f"v_cvt_pk_bf16_f32 v{tmp+1}, v{d+2}, v{d+3}",
                ("ds", f"ds_write_b64 v{vQW}, {vr(tmp, 2)} offset:{L_Q + 1024*T + 12288*(t >> 1) + 256*(t & 1)}")]
    for s in range(20):
        a.wait_lg_all()
        if s < 19:
            a(f"s_barrier   ; B{s}")
        R = reads(s + 1) if s < 19 else []
        st = s & 1
        m = 0
        qq = []
        for T in range(3):
            for t in range(6):
                a(mfma(acc(T, t), SETA[st] + 4 * T, SETB[st] + 4 * t, first=(s == 0)))
                if m < len(R): a.ds(*R[m])
                if s == 19:
                    if m >= cfg.q_lag:
                        T2, t2 = divmod(m - cfg.q_lag, 6)
                        qq += qwrite(T2, t2)
                    for _ in range(cfg.q_rate):
                        if qq:
                            x = qq.pop(0)
                            a.ds(x[1], "qw") if isinstance(x, tuple) else a(x)
                m += 1
        if s in (4, 9, 14): stamp(a, cfg, 3 + (s - 4) // 5)
    stamp(a, cfg, 6)
    a.c("Q -> bf16 -> LDS (fragment-major)")
    for m in range(18 - cfg.q_lag, 18): qq += qwrite(*divmod(m, 6))
    for x in qq:
        a.ds(x[1], "qw") if isinstance(x, tuple) else a(x)
    a.wait_lg_all()
    a("s_barrier   ; Q")
    a(f"""
    s_cmp_lt_u32 s{sWAVE}, 3
    s_cbranch_scc1 L_phaseB
    s_barrier   ; V
    s_barrier   ; O1
    s_branch L_computeC
    """)


def phaseB(a, cfg):
    a.label("L_phaseB")
    a.reset()
    if cfg.prio_b: a(f"s_setprio {cfg.prio_b}")
    S = 16; QF = 72; KF = 120; P = 64; VF = 88; O = 136; OB = 184
    vQR = 10; vKa = [vK0c, 11, 12, 13]; vVa = [vV0, 14]
    M, T1 = 2, 3
    N = [4, 5, 6]; LA = [7, 9, 10]; LB = [8, 15, 11]
    sC2 = sSTAMP + 8
    stamp(a, cfg, 7)
    a(f"s_mul_i32 s{sT0}, s{sWAVE}, 12288")
    a(f"v_add_u32 v{vQR}, s{sT0}, v{vL16}")
    def qread(ks): a.ds(f"ds_read_b128 {vr(QF+4*ks)}, v{vQR} offset:{L_Q + ks*1024}", ("Q", ks))
    def kread(i):
        kt, ks = divmod(i, 12)
        a.ds(f"ds_read_b128 {vr(KF + 4*(i % 4))}, v{vKa[ks & 3]} offset:{kt*12288 + (ks >> 2)*128}", ("K", i))
    qread(0); kread(0)
    for x in range(1, 4): a(f"v_xor_b32 v{vKa[x]}, {32*x}, v{vK0c}")
    qread(1); kread(1); qread(2); kread(2); kread(3)
    a(f"v_xor_b32 v{vVa[1]}, 64, v{vV0}")
    a(f"s_mov_b32 s{sC2}, {f32hex(SCALE)}")
    a(f"s_mov_b32 s{sC2+1}, {f32hex(SCALE)}")
    def maxops(kt):
        b = S + 16 * kt
        r = []
        if kt == 0:
            r.append(f"v_max3_f32 v{M}, v{b}, v{b+1}, v{b+2}"); r.append(f"v_max3_f32 v{T1}, v{b+3}, v{b+4}, v{b+5}")
            rest = list(range(6, 16))
        else:
            r.append(f"v_max3_f32 v{T1}, v{b}, v{b+1}, v{b+2}")
            rest = list(range(3, 16))
        tog = 0
        while len(rest) >= 2:
            d = (M, T1)[tog]; tog ^= 1
            r.append(f"v_max3_f32 v{d}, v{d}, v{b+rest[0]}, v{b+rest[1]}"); rest = rest[2:]
        if rest: r.append(f"v_max3_f32 v{M}, v{M}, v{T1}, v{b+rest[0]}")
        else: r.append(f"v_max_f32 v{M}, v{M}, v{T1}")
        r += [f"v_mov_b32 v{T1}, v{M}", "s_nop 1", f"v_permlane32_swap_b32 v{M}, v{T1}", f"v_max_f32 v{M}, v{M}, v{T1}",
              f"v_mul_f32 v{N[kt]}, {f32hex(-SCALE)}, v{M}"]
        return r
    def expops(kt):
        b = S + 16 * kt
        r = []
        for i in range(16 + 3):
            if i < 16: r.append(f"v_fmamk_f32 v{b+i}, v{b+i}, {f32hex(SCALE)}, v{N[kt]}")
            if 1 <= i <= 16: r.append(f"v_exp_f32 v{b+i-1}, v{b+i-1}")
            j = i - 3
            if j == 1: r.append(f"v_add_f32 v{LA[kt]}, v{b}, v{b+1}")
            elif j == 3: r.append(f"v_add_f32 v{LB[kt]}, v{b+2}, v{b+3}")
            elif j >= 4: r.append(f"v_add_f32 v{(LA if j % 2 == 0 else LB)[kt]}, v{(LA if j % 2 == 0 else LB)[kt]}, v{b+j}")
        return r
    fill = []
    for i in range(36):
        kt, ks = divmod(i, 12)
        if i % 2 == 0: a.wait_lg(("Q", ks), ("K", i), ("Q", ks + 1), ("K", i + 1))
        a(mfma32(S + 16 * kt, KF + 4 * (i % 4), QF + 4 * ks, first=(ks == 0)))
        if i + 4 < 36: kread(i + 4)
        if i + 3 < 12: qread(i + 3)
        if i == 14: fill += maxops(0) + expops(0)
        if i == 26: fill += maxops(1) + expops(1)
        for _ in range(cfg.fill_s):
            if fill: a(fill.pop(0))
    stamp(a, cfg, 8)
    a("s_barrier   ; V")
    stamp(a, cfg, 9)
    def vread(i):
        Td, s = divmod(i, 6)
        for e in range(2):
            a.ds(f"ds_read_b64_tr_b16 {vr(VF + 4*(i % 12) + 2*e, 2)}, v{vVa[Td & 1]} offset:{(Td >> 1)*128 + s*6144 + e*3072}", ("V", i))
    NV = cfg.nv_pv
    for i in range(NV): vread(i)
    a(f"v_mov_b32 v1, {L_FLAG}")
    a.ds("ds_read_b32 v1, v1", "fast")
    for x in fill + maxops(2): a(x)
    b = S + 32
    a(f"v_sub_f32 v{N[0]}, v{N[2]}, v{N[0]}")
    a(f"v_sub_f32 v{N[1]}, v{N[2]}, v{N[1]}")
    for i in range(0, 16, 2):
        a(f"v_pk_fma_f32 v[{b+i}:{b+i+1}], v[{b+i}:{b+i+1}], s[{sC2}:{sC2+1}], v[{N[2]}:{N[2]+1}] op_sel_hi:[1,1,0]")
    a(f"v_exp_f32 v{N[0]}, v{N[0]}")
    a(f"v_exp_f32 v{N[1]}, v{N[1]}")
    a(f"v_add_f32 v{LA[0]}, v{LA[0]}, v{LB[0]}")
    a(f"v_add_f32 v{LA[1]}, v{LA[1]}, v{LB[1]}")
    for i in range(16):
        a(f"v_exp_f32 v{b+i}, v{b+i}")
    a(f"v_mul_f32 v{LA[0]}, v{LA[0]}, v{N[0]}")
    a(f"v_fmac_f32 v{LA[0]}, v{LA[1]}, v{N[1]}")
    a(f"v_pk_add_f32 v[{LA[2]}:{LA[2]+1}], v[{b}:{b+1}], v[{b+2}:{b+3}]")
    a(f"v_pk_add_f32 v[{M}:{M+1}], v[{b+4}:{b+5}], v[{b+6}:{b+7}]")
    for i in range(8, 16, 4):
        a(f"v_pk_add_f32 v[{LA[2]}:{LA[2]+1}], v[{LA[2]}:{LA[2]+1}], v[{b+i}:{b+i+1}]")
        a(f"v_pk_add_f32 v[{M}:{M+1}], v[{M}:{M+1}], v[{b+i+2}:{b+i+3}]")
    a(f"v_pk_add_f32 v[{M}:{M+1}], v[{M}:{M+1}], v[{LA[2]}:{LA[2]+1}]")
    a(f"v_add_f32 v{M}, v{M}, v{T1}")
    a(f"v_add_f32 v{M}, v{M}, v{LA[0]}")
    a(f"v_mov_b32 v{T1}, v{M}")
    a(f"v_permlane32_swap_b32 v{M}, v{T1}")
    a(f"v_add_f32 v{M}, v{M}, v{T1}")
    a(f"v_rcp_f32 v{N[2]}, v{M}")
    a.wait_lg("fast")
    a(f"v_readfirstlane_b32 s{sFAST}, v1")
    a(f"v_mul_f32 v{N[0]}, v{N[0]}, v{N[2]}")
    a(f"v_mul_f32 v{N[1]}, v{N[1]}, v{N[2]}")
    a(f"s_cmp_lg_u32 s{sFAST}, 0")
    a("s_cselect_b64 vcc, -1, 0")
    for s in range(6):
        kt = s >> 1
        g = N[kt]
        pair, sel = (g & ~1, g & 1)
        b = S + 8 * s
        for i in range(0, 8, 2):
            a(f"v_pk_mul_f32 v[{b+i}:{b+i+1}], v[{b+i}:{b+i+1}], v[{pair}:{pair+1}] op_sel:[0,{sel}] op_sel_hi:[1,{sel}]")
        for i in range(4):
            a(f"v_cvt_pk_bf16_f32 v{P+4*s+i}, v{b+2*i}, v{b+2*i+1}")
    stamp(a, cfg, 10)
    nst = [0]
    def epi(Td):
        d = O + 16 * (Td % 3)
        r = []
        for e in range(2):
            o = OB + (2 * (Td % 2) + e) * 4
            for i in range(4): r.append(f"v_cvt_pk_bf16_f32 v{o+i}, v{d+8*e+2*i}, v{d+8*e+2*i+1}")
            r.append(("ds", f"ds_write_b128 v{vOL}, {vr(o)} offset:{L_OWN + Td*6144 + e*512}"))
            if not cfg.skip_ostore:
                nst[0] += 1
                n = nst[0]
                st = f"buffer_store_dwordx4 {vr(o)}, v{vOL}, s[{rWS}:{rWS+3}], s{sT0} offen"
                fpol = cfg.o_fast_pol if Td < cfg.plain_from else ""
                if fpol in ("sc1", "sc0 sc1"):
                    r.append(("blk", f"s_add_u32 s{sT0}, s{sOB}, {Td*6144 + e*512}\n{st} sc0 sc1"))
                else:
                    r.append(("blk", f"s_add_u32 s{sT0}, s{sOB}, {Td*6144 + e*512}\ns_cbranch_vccnz L_os{n}\n{st} sc0 sc1\ns_branch L_od{n}\nL_os{n}:\n{st} {fpol}\nL_od{n}:"))
        return r
    def emit(x):
        if isinstance(x, tuple):
            if x[0] == "ds": a.ds(x[1], "ow")
            else: a(x[1])
        else: a(x)
    fill = []
    for i in range(36):
        Td, s = divmod(i, 6)
        if cfg.fine and s == 0: a(f"s_memtime s[{28 + 2*Td}:{29 + 2*Td}]")
        if i % 2 == 0: a.wait_lg(("V", i), ("V", i + 1))
        a(mfma32(O + 16 * (Td % 3), VF + 4 * (i % 12), P + 4 * s, first=(s == 0)))
        if i + NV < 36: vread(i + NV)
        if Td >= 1 and s == 3: fill += epi(Td - 1)
        for _ in range(cfg.fill_pv):
            if fill: emit(fill.pop(0))
    if cfg.fine:
        a("s_memtime s[40:41]")
        a("s_waitcnt lgkmcnt(0)")
        for k in range(7): a(f"v_writelane_b32 v255, s{28 + 2*k}, {40 + k}")
    stamp(a, cfg, 11)
    for x in fill + epi(5): emit(x)
    stamp(a, cfg, 27)
    a.wait_lg_all()
    stamp(a, cfg, 12)
    a("s_barrier   ; O1")
    a.c("falls through into phase C")


def computeC(a, cfg):
    a.label("L_computeC")
    a.reset()
    if cfg.prio_c: a(f"s_setprio {cfg.prio_c}")
    ACC = 16
    def acc(T, t): return ACC + (T * 3 + t) * 4
    SETA = [76, 96]; SETB = [116, 128]
    vCA = [vCA0, vCA1]
    a(f"s_mul_i32 s{sT0}, s{sJQ}, 3072")
    a(f"v_add_u32 v{vCB[0]}, s{sT0}, v{vL16}")
    def reads(u):
        st = u & 1
        p = u >> 1
        hi, sl = divmod(p % 4, 2)
        so = sl * 20480 + (u & 1) * 10240
        if u < 6:
            vb, bo = vCB[0], L_OWN + u * 6144
        else:
            vb, bo = vCB[1], ((p - 3) % 3) * 12288 + (u & 1) * 6144
        R = []
        def ra(T):
            R.append((f"ds_read_b64_tr_b16 {vr(SETA[st]+4*T, 2)}, v{vCA[hi][T]} offset:{so}", ("A", u, T)))
            R.append((f"ds_read_b64_tr_b16 {vr(SETA[st]+4*T+2, 2)}, v{vCA[hi][T]} offset:{so+2560}", ("A", u, T)))
        ra(0)
        for t in range(3):
            R.append((f"ds_read_b128 {vr(SETB[st]+4*t)}, v{vb} offset:{bo + t*1024}", ("B", u, t)))
        for T in range(1, 5): ra(T)
        return R
    U = 76
    def cv(dst, d):
        return [f"v_cvt_pk_bf16_f32 v{dst}, v{d}, v{d+1}", f"v_cvt_pk_bf16_f32 v{dst+1}, v{d+2}, v{d+3}"]
    def unit(u):
        t, pi = divmod(u, 2)
        return cv(UR[u], acc(2 * pi, t)) + cv(UR[u] + 2, acc(2 * pi + 1, t))
    UR = [76, 96, 80, 100, 84, 104, 108, 112]
    tailcv = unit(0) + unit(2) + unit(4)
    stamp(a, cfg, 13)
    for ins, tag in reads(0): a.ds(ins, tag)
    a(f"v_add_u32 v{vCB[1]}, {L_OR}, v{vCB[0]}")
    for T in range(5): a(f"v_add_u32 v{vCA1[T]}, 40960, v{vCA0[T]}")
    for u in range(24):
        if u & 1 and u < 23:
            a.wait_lg_all()
            a(f"s_barrier   ; C{u >> 1}")
        R = reads(u + 1) if u < 23 else []
        st = u & 1
        m = 0
        for T in range(5):
            for t in range(3):
                if cfg.c_wait is None: a.wait_lg(("A", u, T), ("B", u, t))
                elif t == 0 and T in cfg.c_wait:
                    nxt = min([x for x in cfg.c_wait if x > T] + [5])
                    a.wait_lg(*[("A", u, x) for x in range(T, nxt)], *[("B", u, x) for x in range(3)])
                a(mfma(acc(T, t), SETA[st] + 4 * T, SETB[st] + 4 * t, first=(u == 0)))
                if m < len(R): a.ds(*R[m])
                if u == 23 and m >= 9:
                    for _ in range(2): a(tailcv.pop(0))
                m += 1
        if u == cfg.h1_flag_step:
            a.c("waves 0-2 publish their O tile once its stores have drained")
            stamp(a, cfg, 22)
            a(f"""
            s_cmp_eq_u32 s{sWAVE}, 3
            s_cbranch_scc1 L_f1done
            s_waitcnt vmcnt(0)
            s_mov_b64 exec, 15
            s_cmp_lg_u32 s{sFAST}, 0
            s_cbranch_scc1 L_f1fast
            buffer_store_dword v{vONE}, v{vF1}, s[{rWS}:{rWS+3}], 0 offen sc0 sc1
            s_branch L_f1ex
            """)
            a.label("L_f1fast")
            a(f"buffer_store_dword v{vONE}, v{vF1}, s[{rWS}:{rWS+3}], 0 offen")
            a.label("L_f1ex")
            a("s_mov_b64 exec, -1")
            a.label("L_f1done")
            stamp(a, cfg, 23)
        if u in (2, 3): stamp(a, cfg, 22 + u)
        if u in (5, 11, 17): stamp(a, cfg, 15 + (u - 5) // 6)
    stamp(a, cfg, 18)
    a.c("partials, 8 units per wave: 6 tile pairs, the odd tile of q tiles 0|1, the odd tile of q tile 2 (32 lanes)")
    a(f"s_lshr_b32 s{sT1}, s{sG}, 1")
    a(f"s_and_b32 s{sT2}, s{sG}, 1")
    for half in range(2):
        if half == 0:
            for x in unit(1) + unit(3): a(x)
        else:
            for x in unit(5) + cv(UR[6], acc(4, 0)) + cv(UR[6] + 2, acc(4, 1)) + cv(UR[7], acc(4, 2)): a(x)
            a(f"v_permlane32_swap_b32 v{UR[7]}, v{UR[7]+2}")
            a(f"v_permlane32_swap_b32 v{UR[7]+1}, v{UR[7]+3}")
        a(f"""
        s_cmp_lg_u32 s{sT1}, s{sWAVE}
        s_cbranch_scc1 L_rem{half}
        s_cmp_lg_u32 s{sT2}, {half}
        s_cbranch_scc1 L_rem{half}
        """)
        for k in range(4):
            a(f"ds_write_b128 v{vL16}, {vr(UR[4*half + k])} offset:{L_OWN + k*1024}")
        a(f"s_branch L_remdone{half}")
        a.label(f"L_rem{half}")
        for k in range(4):
            u = 4 * half + k
            if u == 7: a("s_mov_b32 exec_hi, 0")
            a(f"s_add_u32 s{sT0}, s{sPS}, {u*1024}")
            a(f"buffer_store_dwordx4 {vr(UR[u])}, v{vL16}, s[{rWS}:{rWS+3}], s{sT0} offen sc0 sc1")
            if u == 7: a("s_mov_b32 exec_hi, -1")
        a.label(f"L_remdone{half}")
    stamp(a, cfg, 19)
    a("s_waitcnt lgkmcnt(0)")
    if not cfg.pd_late: a("s_barrier   ; PD")
    if cfg.flag_line:
        for i in range(4): a(f"v_mov_b32 v{140+i}, 1")
    a("s_waitcnt vmcnt(0)")
    stamp(a, cfg, 20)
    if cfg.flag_line:
        a(f"""
        s_mov_b64 exec, 0xffff
        buffer_store_dwordx4 v[140:143], v{vF2}, s[{rWS}:{rWS+3}], 0 offen sc0 sc1
        s_mov_b64 exec, -1
        """)
    else:
        a(f"""
        s_mov_b64 exec, 3
        buffer_store_dword v{vONE}, v{vF2}, s[{rWS}:{rWS+3}], 0 offen sc0 sc1
        s_mov_b64 exec, -1
        """)
    if cfg.pd_late: a("s_barrier   ; PD")


def build(cfg, header=""):
    _lbl[0] = 0
    a = Asm()
    if header: a.raw(header.rstrip("\n"))
    a.raw(f"; @launch grid=(256,1,1) block=(512,1,1) lds={LDS_BYTES}")
    a.raw(DOC.rstrip("\n"))
    a.raw('.amdgcn_target "amdgcn-amd-amdhsa--gfx950"\n.text')
    prologue(a, cfg)
    loader(a, cfg)
    computeA(a, cfg)
    phaseB(a, cfg)
    computeC(a, cfg)
    a.label("L_fin")
    stamp(a, cfg, 21)
    if cfg.amp:
        w, ia, ib, A = cfg.amp
        a(f"""
        s_cmp_lg_u32 s{sWAVE}, {w}
        s_cbranch_scc1 L_noamp
        v_readlane_b32 s{sT0}, v255, {ia}
        v_readlane_b32 s{sT1}, v255, {ib}
        s_sub_u32 s{sT0}, s{sT1}, s{sT0}
        s_mul_i32 s{sT0}, s{sT0}, {A}
        s_memtime s[{sSTAMP}:{sSTAMP+1}]
        s_waitcnt lgkmcnt(0)
        s_add_u32 s{sT0}, s{sT0}, s{sSTAMP}
        """)
        a.label("L_amp")
        a(f"""
        s_memtime s[{sSTAMP}:{sSTAMP+1}]
        s_waitcnt lgkmcnt(0)
        s_sub_u32 s{sT1}, s{sSTAMP}, s{sT0}
        s_cmp_lt_i32 s{sT1}, 0
        s_cbranch_scc1 L_amp
        """)
        a.label("L_noamp")
    elif cfg.stamps:
        stamp_flush(a, cfg)
    a.label("L_end")
    a("s_endpgm")
    a.raw(kernel_desc(KN))
    return a.text()


def make(**kw):
    cfg = Cfg()
    for k, v in kw.items():
        assert hasattr(cfg, k), k
        setattr(cfg, k, v)
    header = open("cdna_kernels/" + NAME + ".s.ref").read().split("; Override launch")[0]
    return build(cfg, header)


if __name__ == "__main__":
    kw = {}
    for kv in sys.argv[2:]:
        k, v = kv.split("=", 1)
        kw[k] = eval(v)
    open(sys.argv[1], "w").write(make(**kw))
```

```python
import sys, math, struct
from asmgen import *

NAME = "standalone__gqa_block_cached__near_ridge"
KN = NAME + "_kernel"

X_BYTES = 768 * 640 * 2
KV_BYTES = 8 * 32 * 96 * 192 * 2
W_BYTES = 640 * 6144 * 2
OUT_BYTES = 768 * 640 * 2
WS_BYTES = 268435456
SCALE = 192 ** -0.5 * math.log2(math.e)

def f32hex(x):
    return "0x%08x" % struct.unpack("<I", struct.pack("<f", x))[0]

sX, sK, sV, sWQ, sWO, sOUT, sDBG, sWS = 4, 6, 8, 10, 12, 14, 16, 18
sWAVE, sG, sB, sJ, sH, sBH = 20, 21, 22, 23, 24, 25
sFAST, sSPIN = 26, 27
rX, rWQ, rK, rV, rWS, rWO, rOUT, rDBG = 28, 32, 36, 40, 44, 48, 52, 68
sT0, sT1, sT2, sT3 = 56, 57, 58, 59
sLW, sM0B, sKVB = 60, 61, 63
sI, sJQ, sROLE = 64, 65, 66
sOB, sPS = 62, 67
sWK, sOM0, sOK, sINB, sWE, sWM = 73, 74, 75, 76, 77, 78
sSTAMP = 80
sKW, sKX, sWC, sOC, sU, sDN, sJ4 = 92, 93, 94, 95, 96, 97, 98

L_W, L_X, L_K, L_V, L_Q = 0, 49152, 86016, 122880, 0
L_FLAG = 159744
L_OWN, L_WO, L_OR = 0, 36864, 122880
LDS_BYTES = 163840


DOC = """\
; ---------------------------------------------------------------------------------------------------------
;  C  out^T partial          160 columns x 96 rows over the 4 heads of group g (own head first, then the O tiles
; ---------------------------------------------------------------------------------------------------------
"""

class Cfg:
    stamps = False
    stamp_only = None
    amp = None
    prefetch_code = True
    pretouch = False
    pf_code_div = 1
    ws_o = 0xE000000
    ws_p = 0xF000000
    ws_in = 0xFC00000
    ws_stamp = 0x4000000
    polW = ""; polX = ""; polKV = "nt"; polWO = ""; polPF = ""; polO = "sc1"
    o_fast_pol = "sc1"
    force_slow = False
    rot = (10, 10)
    k_sched = [12] * 9
    v_sched = [16] * 9
    kv_variants = [([7] * 9, [16] * 9), ([11] * 9, [16] * 9)]
    kv_sel_shift = 3
    wo_prefetch = True
    pf_at = 'Q'
    staged = ()
    early = 1
    mid = 4
    late = 4
    wrot = False
    h1_flag_step = 0
    h2_delay = 0
    pd_late = True
    q_lag = 6
    arr_byte = False
    spoll2 = False
    flag_line = True
    arr_w3 = True
    hs_at = 14
    hs_w7 = True
    skip_arrive = False
    arr_step = 0
    prio_ld = 0
    prio_b = 0
    pf_k = 0
    pf_first = False
    pf_split = 0
    plain_from = 6
    c_wait = None
    c_rd0 = 0
    fine = False
    nv_pv = 6
    skip_out = False
    out_x4 = False
    pf_code_early = True
    q_rate = 2
    poll_sleep = None
    spin_max = 400000
    fill_s = 5
    fill_pv = 2
    fill_last = 5
    pk_tail = True
    skip_o = False; skip_wo = False; skip_ostore = False
    prio_c = 0
    polOut = ''


def stamp(a, cfg, idx):
    if not cfg.stamps: return
    if cfg.stamp_only is not None and idx not in cfg.stamp_only: return
    a(f"""
    s_memtime s[{sSTAMP}:{sSTAMP+1}]
    s_waitcnt lgkmcnt(0)
    v_writelane_b32 v255, s{sSTAMP}, {idx}
    """)
    a.lg = []

def stamp_flush(a, cfg):
    a(f"""
    s_memrealtime s[{sSTAMP}:{sSTAMP+1}]
    s_waitcnt lgkmcnt(0)
    v_writelane_b32 v255, s{sSTAMP}, 33
    s_lshl_b32 s{sT0}, s2, 3
    s_add_u32 s{sT0}, s{sT0}, s{sWAVE}
    s_lshl_b32 s{sT0}, s{sT0}, 8
    s_add_u32 s{sT0}, s{sT0}, {cfg.ws_stamp}
    v_mbcnt_lo_u32_b32 v254, -1, 0
    v_mbcnt_hi_u32_b32 v254, -1, v254
    v_lshlrev_b32 v254, 2, v254
    buffer_store_dword v255, v254, s[{rWS}:{rWS+3}], s{sT0} offen
    """)

def wait_kernarg(a, cfg):
    a("s_waitcnt lgkmcnt(0)")
    if cfg.stamps:
        a(f"v_writelane_b32 v255, s{sSTAMP}, 0")
        a(f"v_writelane_b32 v255, s{sSTAMP+2}, 32")

def mfma(d, A, B, first=False):
    c = "0" if first else vr(d)
    return f"v_mfma_f32_16x16x32_bf16 {vr(d)}, {vr(A)}, {vr(B)}, {c}"

def mfma32(d, A, B, first=False):
    c = "0" if first else vr(d, 16)
    return f"v_mfma_f32_32x32x16_bf16 {vr(d, 16)}, {vr(A)}, {vr(B)}, {c}"

_lbl = [0]
def poll(a, cfg, vaddr, rs, soff, vtmp, check):
    _lbl[0] += 1
    n = _lbl[0]
    a(f"s_mov_b32 s{sSPIN}, 0")
    a.label(f"poll{n}")
    a(f"buffer_load_dword v{vtmp}, v{vaddr}, s[{rs}:{rs+3}], {soff} offen sc1")
    a.wait_vm_all()
    check()
    a(f"""
    s_cbranch_scc1 poll{n}_ok
    s_add_u32 s{sSPIN}, s{sSPIN}, 1
    s_cmp_ge_u32 s{sSPIN}, {cfg.spin_max}
    s_cbranch_scc1 poll{n}_ok
    """)
    if cfg.poll_sleep is not None: a(f"s_sleep {cfg.poll_sleep}")
    a(f"s_branch poll{n}")
    a.label(f"poll{n}_ok")

def dma(a, vaddr, rs, soff, ldsoff, tag, base, pol=""):
    a(f"s_add_u32 m0, s{base}, {ldsoff}")
    if isinstance(soff, str):
        so = soff
        a("s_nop 0")
    else:
        a(f"s_mov_b32 s{sT0}, {soff}")
        so = f"s{sT0}"
    a.vmem(f"buffer_load_dwordx4 v{vaddr}, s[{rs}:{rs+3}], {so} offen {pol} lds", tag)


vA = [10, 11, 12]; vXe, vXo, vQW = 13, 14, 15
vK0c, vV0, vOL = 232, 233, 234
vCA0 = [235, 236, 237, 238, 239]; vL16, vF1, vF2 = 240, 241, 242
vCA1 = [140, 141, 142, 143, 144]; vCB = [145, 146]
vONE = 252
vW = [220, 221, 222]; vXL = [223, 224, 225]; vKA = [226, 227, 228]; vKB = [229, 230, 231]; vV = [232, 233, 234]
vK0 = [235, 236, 237]; vCP = [238, 239, 240]
vWO = [241, 242, 243, 244, 245]; vOR, vDL, vDO, vP1, vP2, vPF = 246, 247, 248, 249, 250, 251
vSW = [218, 219]
STG = 16


def prologue(a, cfg):
    a.raw(kernel_header(KN))
    if cfg.stamps:
        a(f"s_memtime s[{sSTAMP}:{sSTAMP+1}]")
        a(f"s_memrealtime s[{sSTAMP+2}:{sSTAMP+3}]")
    a(f"""
    s_cmp_ge_u32 s2, 256
    s_cbranch_scc1 L_end
    s_load_dwordx16 s[4:19], s[0:1], 0
    v_lshrrev_b32 v1, 6, v0
    v_lshlrev_b32 v2, 7, v0
    v_readfirstlane_b32 s{sWAVE}, v1
    """)
    if cfg.prefetch_code and cfg.pf_code_early:
        a.c("warm L2 with this kernel's own code (one dword per 128-byte line)")
        d = cfg.pf_code_div
        a(f"""
        s_cmp_ge_u32 s{sWAVE}, {4 if d == 1 else 1}
        s_cbranch_scc1 L_nopf
        s_getpc_b64 s[{sT2}:{sT2+1}]
        """)
        a.label("L_pc")
        a(f"""
        s_sub_u32 s{sT2}, s{sT2}, L_pc-{KN}
        s_subb_u32 s{sT2+1}, s{sT2+1}, 0
        """)
        if d > 1:
            n = 256 // d
            a(f"""
            s_bfe_u32 s{sT0}, s2, {hex((int(math.log2(d)) << 16) | 3)}
            s_mul_i32 s{sT0}, s{sT0}, {n*128}
            v_min_u32 v2, {(n-1)*128}, v2
            v_add_u32 v2, s{sT0}, v2
            """)
        a(f"""
        v_min_u32 v2, L_end-{KN}, v2
        global_load_dword v253, v2, s[{sT2}:{sT2+1}]
        """)
        a.label("L_nopf")
    a(f"""
    v_and_b32 v0, 63, v0
    s_and_b32 s{sG}, s2, 7
    s_lshr_b32 s{sT0}, s2, 3
    s_lshr_b32 s{sB}, s{sT0}, 2
    s_and_b32 s{sJ}, s{sT0}, 3
    s_lshl_b32 s{sH}, s{sG}, 2
    s_add_u32 s{sH}, s{sH}, s{sJ}
    s_lshl_b32 s{sBH}, s{sB}, 5
    s_add_u32 s{sBH}, s{sBH}, s{sH}
    s_lshl_b32 s{sINB}, s{sBH}, 11
    s_add_u32 s{sINB}, s{sINB}, {cfg.ws_in}
    s_cmp_lt_u32 s{sWAVE}, 4
    s_cbranch_scc1 L_computeA
    """)


def next_pair(a, cfg, p, sDst, sCnt, stride):
    if p + 1 >= 12: return
    if p + 1 < 4 or not cfg.wrot:
        a(f"""
        s_add_u32 s{sDst}, s{sDst}, {stride}
        s_cmp_eq_u32 s{sDst}, {12*stride}
        s_cselect_b32 s{sDst}, 0, s{sDst}
        """)
    else:
        a(f"""
        s_add_u32 s{sDst}, s{sJ4}, s{sCnt}
        s_cmp_ge_u32 s{sDst}, 12
        s_cselect_b32 s{sT0}, 12, 0
        s_sub_u32 s{sDst}, s{sDst}, s{sT0}
        s_mul_i32 s{sDst}, s{sDst}, {stride}
        s_add_u32 s{sCnt}, s{sCnt}, 1
        s_and_b32 s{sCnt}, s{sCnt}, 7
        """)

def ld_wo_pair(a, cfg, p):
    slot = L_WO + (p % 4) * 20480
    a(f"s_add_u32 s{sT3}, s{sWK}, s{sWE}")
    for i in range(0 if cfg.skip_wo else 5):
        if p in cfg.staged:
            d = STG + (cfg.staged.index(p) * 5 + i) * 4
            a.vmem(f"buffer_load_dwordx4 {vr(d)}, v{vWO[i]}, s[{rWO}:{rWO+3}], s{sT3} offen {cfg.polWO}", ("WO", p))
        else:
            dma(a, vWO[i], rWO, f"s{sT3}", slot + i * 1024, ("WO", p), sWM, cfg.polWO)
    next_pair(a, cfg, p, sWK, sWC, 81920)

def put_wo_pair(a, cfg, p):
    a.wait_vm(("WO", p))
    hi, sl = divmod(p % 4, 2)
    for i in range(0 if cfg.skip_wo else 5):
        d = STG + (cfg.staged.index(p) * 5 + i) * 4
        a.ds(f"ds_write_b128 v{vSW[hi]}, {vr(d)} offset:{sl*20480 + i*1024}", ("WOL", p))

def ld_o_pair(a, cfg, p):
    slot = L_OR + ((p - 3) % 3) * 12288
    a(f"s_add_u32 m0, s{sOM0}, {slot}")
    a("s_nop 0")
    for i in range(0 if cfg.skip_o else 3):
        a.vmem(f"buffer_load_dwordx4 v{vOR}, s[{rWS}:{rWS+3}], s{sOK} offen offset:{i*1024} {cfg.polO} lds", ("O", p))
    next_pair(a, cfg, p, sOK, sOC, 12288)


def clear_inbox(a, cfg):
    a(f"""
    v_lshlrev_b32 v2, 4, v0
    v_mov_b32 v4, 0
    v_mov_b32 v5, 0
    v_mov_b32 v6, 0
    v_mov_b32 v7, 0
    buffer_store_dwordx4 v[4:7], v2, s[{rWS}:{rWS+3}], s{sINB} offen sc0 sc1
    s_mov_b64 exec, 0xff
    buffer_store_dwordx4 v[4:7], v2, s[{rWS}:{rWS+3}], s{sINB} offen offset:1024 sc0 sc1
    s_mov_b64 exec, -1
    """)

def arrive_op(a, cfg):
    a(f"s_getreg_b32 s{sT1}, hwreg(HW_REG_XCC_ID, 0, 4)")
    if cfg.arr_byte:
        a(f"""
        s_or_b32 s{sT1}, s{sT1}, 0x80
        v_mov_b32 v2, s{sT1}
        v_mov_b32 v3, s{sBH}
        s_mov_b64 exec, 1
        buffer_store_byte v2, v3, s[{rDBG}:{rDBG+3}], 0 offen sc0 sc1
        s_mov_b64 exec, -1
        """)
    else:
        a(f"""
        s_lshl_b32 s{sT2}, s{sJ}, 2
        s_add_u32 s{sT2}, s{sT2}, 4
        s_lshl_b32 s{sT1}, s{sT1}, s{sT2}
        s_add_u32 s{sT1}, s{sT1}, 1
        s_lshl_b32 s{sT2}, s{sB}, 3
        s_add_u32 s{sT2}, s{sT2}, s{sG}
        s_lshl_b32 s{sT2}, s{sT2}, 2
        v_mov_b32 v2, s{sT1}
        v_mov_b32 v3, s{sT2}
        s_mov_b64 exec, 1
        buffer_atomic_add v2, v3, s[{rDBG}:{rDBG+3}], 0 offen sc1
        s_mov_b64 exec, -1
        """)


def loader(a, cfg):
    a.reset()
    if cfg.prio_ld: a(f"s_setprio {cfg.prio_ld}")
    a(f"s_mov_b32 s{sROLE}, 1")
    a(f"s_sub_u32 s{sLW}, s{sWAVE}, 4")
    a(f"s_mul_i32 s{sT0}, s{sLW}, {8*12288}")
    a(f"s_mul_i32 s{sT1}, s{sH}, 384")
    a(f"s_add_u32 s{sT0}, s{sT0}, s{sT1}")
    a(f"s_and_b32 s{sT1}, s{sLW}, 1")
    a(f"s_lshl_b32 s{sT1}, s{sT1}, 2")
    for i in range(3):
        a(f"""
        v_add_u32 v2, {64*i}, v0
        v_mul_u32_u24 v3, 2731, v2
        v_lshrrev_b32 v{vK0[i]}, 16, v3
        v_mul_u32_u24 v4, 24, v{vK0[i]}
        v_sub_u32 v{vCP[i]}, v2, v4
        v_and_b32 v5, 2, v{vK0[i]}
        v_or_b32 v5, s{sT1}, v5
        v_xor_b32 v5, v5, v{vCP[i]}
        v_mul_u32_u24 v6, 12288, v{vK0[i]}
        v_lshl_add_u32 v6, v5, 4, v6
        v_add_u32 v{vW[i]}, s{sT0}, v6
        """)
    a(f"""
    s_mul_i32 s{sT2}, s{sB}, 96
    s_mul_i32 s{sT3}, s{sLW}, 24
    s_add_u32 s{sT2}, s{sT2}, s{sT3}
    s_mul_i32 s{sT2}, s{sT2}, 1280
    v_lshrrev_b32 v2, 3, v0
    v_mul_u32_u24 v2, 1280, v2
    v_and_b32 v3, 7, v0
    v_lshrrev_b32 v4, 4, v0
    v_xor_b32 v3, v3, v4
    v_xor_b32 v3, s{sT1}, v3
    v_lshl_add_u32 v{vXL[0]}, v3, 4, v2
    v_add_u32 v{vXL[0]}, s{sT2}, v{vXL[0]}
    v_xor_b32 v3, 4, v3
    v_lshl_add_u32 v{vXL[1]}, v3, 4, v2
    s_add_u32 s{sT3}, s{sT2}, {8*1280}
    v_add_u32 v{vXL[1]}, s{sT3}, v{vXL[1]}
    v_add_u32 v{vXL[2]}, {16*1280}, v{vXL[0]}
    s_mul_i32 s{sM0B}, s{sLW}, 3072
    s_mul_i32 s{sT2}, s{sB}, {cfg.rot[0]}
    s_mul_i32 s{sT3}, s{sJ}, {cfg.rot[1]}
    s_add_u32 s{sT2}, s{sT2}, s{sT3}
    s_add_u32 s{sT2}, s{sT2}, 2
    s_lshr_b32 s{sT2}, s{sT2}, 2
    s_cmp_ge_u32 s{sT2}, 20
    s_cselect_b32 s{sT3}, 20, 0
    s_sub_u32 s{sT2}, s{sT2}, s{sT3}
    s_cmp_ge_u32 s{sT2}, 10
    s_cselect_b32 s{sT3}, 10, 0
    s_sub_u32 s{sT2}, s{sT2}, s{sT3}
    s_mul_i32 s{sKW}, s{sT2}, {64*12288}
    s_lshl_b32 s{sKX}, s{sT2}, 7
    """)
    assert (7 * cfg.rot[0] + 3 * cfg.rot[1] + 2) // 4 < 30
    if cfg.stamps and (cfg.stamp_only is None or 28 in cfg.stamp_only):
        a(f"s_memtime s[{sSTAMP+4}:{sSTAMP+5}]")
        wait_kernarg(a, cfg)
        a(f"v_writelane_b32 v255, s{sSTAMP+4}, 28")
    else:
        wait_kernarg(a, cfg)
    srd(a, rWQ, sWQ, W_BYTES)
    srd(a, rX, sX, X_BYTES)
    stamp(a, cfg, 29)

    def ldW(s):
        for i in range(3): dma(a, vW[i], rWQ, f"s{sKW}", L_W + (s % 4) * 12288 + i * 1024, ("W", s), sM0B, cfg.polW)
        a(f"""
        s_add_u32 s{sKW}, s{sKW}, {32*12288}
        s_cmp_eq_u32 s{sKW}, {640*12288}
        s_cselect_b32 s{sKW}, 0, s{sKW}
        """)
    def ldX(m):
        for i in range(3): dma(a, vXL[i], rX, f"s{sKX}", L_X + (m % 3) * 12288 + i * 1024, ("X", m), sM0B, cfg.polX)
        a(f"""
        s_add_u32 s{sKX}, s{sKX}, 128
        s_cmp_eq_u32 s{sKX}, 1280
        s_cselect_b32 s{sKX}, 0, s{sKX}
        """)
    def ldK(i):
        i1, i0 = divmod(i, 3)
        dma(a, (vKB if i1 & 1 else vKA)[i0], rK, i1 * 3072, L_K + i * 1024, "K", sKVB, cfg.polKV)
    def ldV(i):
        i1, i0 = divmod(i, 3)
        dma(a, vV[i0], rV, i1 * 3072, L_V + i * 1024, "V", sKVB, cfg.polKV)

    ldW(0); ldX(0)
    stamp(a, cfg, 24)
    srd(a, rWS, sWS, WS_BYTES)
    srd(a, rDBG, sDBG, 256)
    if not cfg.arr_w3:
        a.c("wave 7: clear this workgroup's inbox")
        a(f"s_cmp_lg_u32 s{sWAVE}, 7")
        a("s_cbranch_scc1 L_noclr")
        clear_inbox(a, cfg)
        a.label("L_noclr")
    ldW(1)
    srd(a, rK, sK, KV_BYTES)
    srd(a, rV, sV, KV_BYTES)
    srd(a, rWO, sWO, W_BYTES)
    srd(a, rOUT, sOUT, OUT_BYTES)
    a(f"""
    s_mul_i32 s{sKVB}, s{sLW}, 9216
    s_mul_i32 s{sT2}, s{sBH}, 36864
    s_add_u32 s{sT2}, s{sT2}, s{sKVB}
    """)
    for i in range(3):
        a(f"""
        v_mul_u32_u24 v6, 384, v{vK0[i]}
        v_add_u32 v6, s{sT2}, v6
        v_lshrrev_b32 v3, 1, v{vK0[i]}
        v_xor_b32 v4, v3, v{vCP[i]}
        v_xor_b32 v4, s{sT1}, v4
        v_lshl_add_u32 v{vKA[i]}, v4, 4, v6
        v_xor_b32 v4, 4, v4
        v_lshl_add_u32 v{vKB[i]}, v4, 4, v6
        v_and_b32 v3, 1, v3
        v_lshlrev_b32 v3, 2, v3
        v_xor_b32 v4, v3, v{vCP[i]}
        v_lshl_add_u32 v{vV[i]}, v4, 4, v6
        """)
    ldW(2); ldX(1); ldW(3); ldX(2)
    a.c("phase C / D loader addresses")
    a(f"""
    s_and_b32 s{sT1}, s{sLW}, 1
    s_lshr_b32 s{sT2}, s{sLW}, 1
    s_mul_i32 s{sWE}, s{sT2}, 40960
    s_mul_i32 s{sWM}, s{sLW}, 5120
    s_mul_i32 s{sT1}, s{sT1}, 320
    s_mul_i32 s{sT2}, s{sG}, {768*1280}
    s_mul_i32 s{sT3}, s{sJ}, 320
    s_add_u32 s{sT2}, s{sT2}, s{sT3}
    """)
    for i in range(5):
        a(f"""
        v_add_u32 v2, s{sT1}, v0
        v_add_u32 v2, {64*i}, v2
        v_mul_u32_u24 v3, 3277, v2
        v_lshrrev_b32 v3, 16, v3            ; row = t/20
        v_mul_u32_u24 v4, 20, v3
        v_sub_u32 v4, v2, v4                ; cp
        v_lshrrev_b32 v5, 1, v3
        v_and_b32 v5, 2, v5
        v_xor_b32 v4, v4, v5
        v_mul_u32_u24 v3, 1280, v3
        v_lshl_add_u32 v3, v4, 4, v3
        v_add_u32 v{vWO[i]}, s{sT2}, v3
        """)
    a(f"""
    s_mul_i32 s{sWK}, s{sJ}, {3*81920}
    s_mul_i32 s{sJ4}, s{sJ}, 3
    s_add_u32 s{sJ4}, s{sJ4}, 4
    s_mov_b32 s{sWC}, s{sB}
    s_mov_b32 s{sOC}, s{sB}
    v_lshlrev_b32 v7, 4, v0
    s_add_u32 s{sT1}, s{sWM}, {L_WO}
    v_add_u32 v{vSW[0]}, s{sT1}, v7
    v_add_u32 v{vSW[1]}, 40960, v{vSW[0]}
    s_add_u32 s{sT1}, s{sJ}, 1
    s_and_b32 s{sT1}, s{sT1}, 3
    s_mul_i32 s{sOK}, s{sT1}, {3*12288}
    s_mul_i32 s{sOM0}, s{sLW}, 3072
    s_lshl_b32 s{sT1}, s{sB}, 3
    s_add_u32 s{sT1}, s{sT1}, s{sG}
    s_mul_i32 s{sT1}, s{sT1}, 147456
    s_add_u32 s{sT1}, s{sT1}, s{sOM0}
    s_add_u32 s{sT1}, s{sT1}, {cfg.ws_o}
    v_add_u32 v{vOR}, s{sT1}, v7
    v_min_u32 v2, 11, v0
    v_lshlrev_b32 v2, 2, v2
    s_add_u32 s{sT1}, s{sINB}, 1024
    v_add_u32 v{vP1}, s{sT1}, v2
    v_min_u32 v2, 7, v0
    v_max_u32 v2, 1, v2
    v_add_u32 v2, s{sG}, v2
    v_and_b32 v2, 7, v2
    v_lshlrev_b32 v3, 7, v2
    v_add_u32 v{vP2}, s{sINB}, v3
    s_lshr_b32 s{sT1}, s2, 3
    s_lshl_b32 s{sT1}, s{sT1}, 2
    s_add_u32 s{sT1}, s{sT1}, s{sLW}
    s_mul_i32 s{sT1}, s{sT1}, 7680
    s_mul_i32 s{sT2}, s{sG}, 983040
    s_add_u32 s{sT1}, s{sT1}, s{sT2}
    v_min_u32 v2, 59, v0
    v_lshlrev_b32 v2, 7, v2
    v_add_u32 v{vPF}, s{sT1}, v2
    s_and_b32 s{sT0}, s{sG}, 1
    s_lshl_b32 s{sT0}, s{sT0}, 2
    s_add_u32 s{sU}, s{sT0}, s{sLW}
    s_lshl_b32 s{sT2}, s{sB}, 2
    s_add_u32 s{sT2}, s{sT2}, s{sJ}
    s_lshl_b32 s{sT2}, s{sT2}, 5
    s_lshr_b32 s{sT1}, s{sG}, 1
    s_add_u32 s{sT2}, s{sT2}, s{sT1}
    s_lshl_b32 s{sT2}, s{sT2}, 3
    s_add_u32 s{sT2}, s{sT2}, s{sU}
    s_lshl_b32 s{sT2}, s{sT2}, 10
    s_add_u32 s{sT2}, s{sT2}, {cfg.ws_p}
    v_add_u32 v{vDL}, s{sT2}, v7            ; + src*32768
    s_bfe_u32 s{sT0}, s{sG}, 0x10001        ; i
    s_lshr_b32 s{sT1}, s{sG}, 2             ; jq
    s_mul_i32 s{sT1}, s{sT1}, 48
    s_mul_i32 s{sT2}, s{sB}, 96
    s_add_u32 s{sT1}, s{sT1}, s{sT2}
    s_lshr_b32 s{sT2}, s{sU}, 1             ; t (u<6)
    s_cmp_eq_u32 s{sU}, 6
    s_cselect_b32 s{sT2}, 0, s{sT2}
    s_cmp_eq_u32 s{sU}, 7
    s_cselect_b32 s{sT2}, 2, s{sT2}
    s_lshl_b32 s{sT2}, s{sT2}, 4
    s_add_u32 s{sT1}, s{sT1}, s{sT2}
    s_mul_i32 s{sT1}, s{sT1}, 1280
    s_and_b32 s{sT2}, s{sU}, 1
    s_lshl_b32 s{sT2}, s{sT2}, 6
    s_mul_i32 s{sT3}, s{sT0}, 192           ; (80+16) columns * 2B * i
    s_add_u32 s{sT2}, s{sT2}, s{sT3}
    s_lshl_b32 s{sT3}, s{sT0}, 5
    s_add_u32 s{sT3}, s{sT3}, 128           ; (64 + 16 i) * 2B
    s_cmp_ge_u32 s{sU}, 6
    s_cselect_b32 s{sT2}, s{sT3}, s{sT2}
    s_add_u32 s{sT1}, s{sT1}, s{sT2}
    s_mul_i32 s{sT2}, s{sJ}, 320
    s_add_u32 s{sT1}, s{sT1}, s{sT2}
    v_and_b32 v2, 15, v0
    v_mul_u32_u24 v2, 1280, v2
    v_lshrrev_b32 v3, 4, v0
    v_lshl_add_u32 v2, v3, 3, v2
    v_add_u32 v{vDO}, s{sT1}, v2
    s_mov_b32 s{sDN}, 32
    s_cmp_eq_u32 s{sU}, 6
    s_cselect_b32 s{sDN}, {16*1280}, s{sDN}
    s_cmp_eq_u32 s{sU}, 7
    s_cselect_b32 s{sDN}, 16, s{sDN}
    """)
    stamp(a, cfg, 1)
    a.wait_vm(("W", 0), ("X", 0))
    a("s_barrier   ; P")
    stamp(a, cfg, 2)
    def arrive(n):
        if cfg.skip_arrive or cfg.arr_w3: return
        a.c("wave 7: inbox cleared (its stores are older than W1) -> arrive in d_debug")
        a(f"s_cmp_lg_u32 s{sWAVE}, 7")
        a(f"s_cbranch_scc1 L_noarr{n}")
        arrive_op(a, cfg)
        a.label(f"L_noarr{n}")
    def hs_read():
        a.c("have the 32 workgroups of this batch cleared their inboxes?  (read now, looked at before the V barrier)")
        a(f"""
        v_and_b32 v8, 7, v0
        v_lshlrev_b32 v8, 2, v8
        s_lshl_b32 s{sSPIN}, s{sB}, 5
        v_add_u32 v8, s{sSPIN}, v8
        """)
        if cfg.hs_w7:
            _lbl[0] += 1
            a(f"s_cmp_lg_u32 s{sWAVE}, 7")
            a(f"s_cbranch_scc1 L_nohsrd{_lbl[0]}")
            a(f"buffer_load_dword v9, v8, s[{rDBG}:{rDBG+3}], 0 offen sc1")
            a.label(f"L_nohsrd{_lbl[0]}")
            a.hs_pos = len(a.vm)
        else:
            a.vmem(f"buffer_load_dword v9, v8, s[{rDBG}:{rDBG+3}], 0 offen sc1", "hs")
    variants = cfg.kv_variants or [(cfg.k_sched, cfg.v_sched)]
    nv = len(variants)
    if nv > 1:
        a(f"s_lshr_b32 s{sT1}, s2, {cfg.kv_sel_shift}")
        a(f"s_and_b32 s{sT1}, s{sT1}, {nv-1}")
        for v in range(1, nv):
            a(f"s_cmp_eq_u32 s{sT1}, {v}")
            a(f"s_cbranch_scc1 L_kvvar{v}")
    vm0 = list(a.vm)
    for v, var in enumerate(variants):
        ksch, vsch = var[0], var[1]
        pfs = var[2] if len(var) > 2 else cfg.pf_at
        if v: a.label(f"L_kvvar{v}")
        a.vm = list(vm0)
        for s in range(19):
            a.wait_vm(("W", s + 1), ("X", (s + 1) >> 1))
            if s == cfg.arr_step: arrive(v)
            a(f"s_barrier   ; B{s}")
            if s + 4 < 20: ldW(s + 4)
            if s & 1 and (s >> 1) + 3 < 10: ldX((s >> 1) + 3)
            if cfg.wo_prefetch and pfs == s:
                a.vmem(f"buffer_load_dword v253, v{vPF}, s[{rWO}:{rWO+3}], 0 offen {cfg.polPF}", "pf")
            def pfk():
                if cfg.pf_k and ksch[-1] == s:
                    m = (1 << cfg.pf_k) - 1
                    a(f"s_mov_b32 exec_lo, {m & 0xffffffff:#x}")
                    a(f"s_mov_b32 exec_hi, {m >> 32:#x}")
                    a.vmem(f"buffer_load_dword v253, v{vPF}, s[{rWO}:{rWO+3}], 0 offen {cfg.polPF}", "pf")
                    a("s_mov_b64 exec, -1")
            if cfg.pf_first: pfk()
            for i, ss in enumerate(ksch):
                if ss == s: ldK(i)
            if not cfg.pf_first: pfk()
            if (cfg.hs_at == 'K' and ksch[-1] == s) or cfg.hs_at == s: hs_read()
            for i, ss in enumerate(vsch):
                if ss == s: ldV(i)
            if s in (4, 9, 14): stamp(a, cfg, 3 + (s - 4) // 5)
        a.wait_vm("K")
        if v < nv - 1: a("s_branch L_kvjoin")
    if nv > 1: a.label("L_kvjoin")
    stamp(a, cfg, 6)
    a("s_barrier   ; Q")
    a.vm = ["V"]
    def pf():
        if cfg.wo_prefetch:
            a.vmem(f"buffer_load_dword v253, v{vPF}, s[{rWO}:{rWO+3}], 0 offen {cfg.polPF}", "pf")
    if cfg.hs_at == 'Q': hs_read()
    def pf_part(lo, hi):
        m = ((1 << hi) - 1) ^ ((1 << lo) - 1)
        a(f"s_mov_b32 exec_lo, {m & 0xffffffff:#x}")
        a(f"s_mov_b32 exec_hi, {m >> 32:#x}")
        pf()
        a("s_mov_b64 exec, -1")
    if cfg.pf_at == "Q":
        if cfg.pf_split: pf_part(0, cfg.pf_split)
        elif cfg.pf_k:
            if cfg.pf_k < 60: pf_part(cfg.pf_k, 60)
        else: pf()
    nxt = 0
    def issue_upto(n):
        nonlocal nxt
        while nxt < n:
            ld_wo_pair(a, cfg, nxt); nxt += 1
    for p in range(2, cfg.early): assert p in cfg.staged
    issue_upto(cfg.early)
    if cfg.hs_w7:
        a(f"s_cmp_lg_u32 s{sWAVE}, 7")
        a("s_cbranch_scc1 L_nohs")
    save = list(a.vm)
    if cfg.hs_at == 'Q':
        if cfg.hs_w7:
            n = len(a.vm) - a.hs_pos
            a(f"s_waitcnt vmcnt({n})")
        else:
            a.wait_vm("hs")
            save = list(a.vm)
    def chk():
        if cfg.arr_byte:
            a(f"""
            v_and_b32 v4, 0x80808080, v9
            v_cmp_eq_u32 vcc, 0x80808080, v4
            s_cmp_eq_u64 vcc, -1
            """)
        else:
            a(f"""
            v_and_b32 v4, 7, v9
            v_cmp_eq_u32 vcc, 4, v4
            s_cmp_eq_u64 vcc, -1
            """)
    chk()
    if cfg.skip_arrive: a("s_cmp_eq_u32 0, 0")
    a("s_cbranch_scc1 L_hsok")
    poll(a, cfg, 8, rDBG, "0", 9, chk)
    a.label("L_hsok")
    a.vm = save
    a(f"""
    s_cmp_lg_u32 s{sWAVE}, 7
    s_cbranch_scc1 L_nohs
    v_readlane_b32 s{sT1}, v9, s{sG}
    """)
    if cfg.arr_byte:
        a(f"""
        s_and_b32 s{sT2}, s{sT1}, 0xff
        s_mul_i32 s{sT2}, s{sT2}, 0x01010101
        """)
    else:
        a(f"""
        s_bfe_u32 s{sT1}, s{sT1}, 0x100004
        s_and_b32 s{sT2}, s{sT1}, 15
        s_mul_i32 s{sT2}, s{sT2}, 0x1111
        """)
    a(f"""
    s_cmp_eq_u32 s{sT1}, s{sT2}
    s_cselect_b32 s{sT1}, {0 if cfg.force_slow else 1}, 0
    v_mov_b32 v2, {L_FLAG}
    v_mov_b32 v3, s{sT1}
    ds_write_b32 v2, v3
    buffer_load_dword v253, v{vP1}, s[{rWS}:{rWS+3}], 0 offen sc1
    s_waitcnt lgkmcnt(0)
    """)
    a.label("L_nohs")
    a.wait_vm("V")
    stamp(a, cfg, 8)
    a("s_barrier   ; V")
    if cfg.pf_at == "V": pf()
    if cfg.pf_at == "Q" and cfg.pf_split: pf_part(cfg.pf_split, 60)
    for p in (2, 3):
        if p in cfg.staged and p < nxt: put_wo_pair(a, cfg, p)
    issue_upto(cfg.mid)
    for p in (2, 3):
        if p in cfg.staged and not any(t == ("WOL", p) for t in a.lg) and p >= cfg.early: put_wo_pair(a, cfg, p)
    if cfg.pf_at == "V2": pf()
    stamp(a, cfg, 10)
    a.wait_vm(("WO", 0))
    stamp(a, cfg, 12)
    a("s_barrier   ; O1")
    stamp(a, cfg, 13)
    for p in range(max(nxt, 4), cfg.late): assert p in cfg.staged
    issue_upto(max(4, cfg.late))
    def chk1():
        a(f"v_cmp_eq_u32 vcc, 1, v3")
        a("s_cmp_eq_u64 vcc, -1")
    for p in range(11):
        if p in (1, 2): stamp(a, cfg, 21 + p)
        if p == 2:
            a.c("wait for the siblings' O tiles")
            poll(a, cfg, vP1, rWS, "0", 3, chk1)
            if cfg.stamps: a(f"v_writelane_b32 v255, s{sSPIN}, 30")
            stamp(a, cfg, 14)
            for pp in (3, 4, 5): ld_o_pair(a, cfg, pp)
        a.wait_vm(("WO", p + 1), ("O", p + 1))
        a.wait_lg(("WOL", p + 1))
        a(f"s_barrier   ; C{p}")
        if p + 4 < 12:
            issue_upto(p + 5)
            if p + 4 in cfg.staged: put_wo_pair(a, cfg, p + 4)
        if p >= 3 and p + 3 < 12: ld_o_pair(a, cfg, p + 3)
        if p in (2, 5, 8): stamp(a, cfg, 15 + (p - 2) // 3)
    stamp(a, cfg, 18)
    a.c("phase D")
    A = 48
    a("s_barrier   ; PD")
    stamp(a, cfg, 26)
    a(f"s_lshl_b32 s{sT0}, s{sLW}, 10")
    a(f"v_lshlrev_b32 v2, 4, v0")
    a(f"v_add_u32 v2, s{sT0}, v2")
    a.ds(f"ds_read_b128 v[16:19], v2 offset:{L_OWN}", "own")
    a(f"s_cmp_lg_u32 s{sWAVE}, 4")
    a("s_cbranch_scc1 L_nopoll2")
    if cfg.h2_delay: a(f"s_sleep {cfg.h2_delay}")
    def chk2():
        a(f"v_cmp_eq_u32 vcc, 1, v3")
        a("s_cmp_eq_u64 vcc, -1")
    if cfg.spoll2:
        a(f"""
        s_add_u32 s28, s{sWS}, s{sINB}
        s_addc_u32 s29, s{sWS+1}, 0
        s_mov_b32 s{sSPIN}, 0
        """)
        a.label("L_sp2")
        for k in range(8): a(f"s_load_dword s{32+k}, s[28:29], {k*128} glc")
        a("s_waitcnt lgkmcnt(0)")
        a(f"s_and_b32 s32, s32, s33")
        for k in range(2, 8): a(f"s_and_b32 s32, s32, s{32+k}")
        a(f"""
        s_cmp_eq_u32 s32, 1
        s_cbranch_scc1 L_nopoll2
        s_add_u32 s{sSPIN}, s{sSPIN}, 1
        s_cmp_lt_u32 s{sSPIN}, {cfg.spin_max}
        s_cbranch_scc1 L_sp2
        """)
        a.lg = []
    else:
        poll(a, cfg, vP2, rWS, "0", 3, chk2)
    a.label("L_nopoll2")
    a("s_barrier   ; PE")
    if cfg.stamps: a(f"v_writelane_b32 v255, s{sSPIN}, 31")
    stamp(a, cfg, 19)
    a(f"""
    s_cmp_eq_u32 s{sU}, 7
    s_cselect_b32 exec_hi, 0, -1
    """)
    a.vm = []
    for k in range(1, 8):
        a(f"""
        s_add_u32 s{sT0}, s{sG}, {k}
        s_and_b32 s{sT0}, s{sT0}, 7
        s_lshl_b32 s{sT0}, s{sT0}, 15
        """)
        a.vmem(f"buffer_load_dwordx4 {vr(16+4*k)}, v{vDL}, s[{rWS}:{rWS+3}], s{sT0} offen sc1", ("p", k))
    a(f"s_mov_b32 s{sT1}, 0xffff0000")
    for k in range(8):
        if k == 0: a.wait_lg_all()
        a.wait_vm(("p", k))
        for i in range(4):
            s = 16 + 4 * k + i
            if k == 0:
                a(f"v_lshlrev_b32 v{A+2*i}, 16, v{s}")
                a(f"v_and_b32 v{A+2*i+1}, s{sT1}, v{s}")
            else:
                a(f"v_lshlrev_b32 v{60+2*i}, 16, v{s}")
                a(f"v_and_b32 v{61+2*i}, s{sT1}, v{s}")
                a(f"v_add_f32 v{A+2*i}, v{A+2*i}, v{60+2*i}")
                a(f"v_add_f32 v{A+2*i+1}, v{A+2*i+1}, v{61+2*i}")
    stamp(a, cfg, 20)
    for i in range(4):
        a(f"v_cvt_pk_bf16_f32 v{16+i}, v{A+2*i}, v{A+2*i+1}")
    if cfg.out_x4:
        a.c("tile pairs: lanes kq 0|1 and 2|3 trade halves so that every lane holds 8 consecutive columns")
        a(f"""
        s_cmp_ge_u32 s{sU}, 6
        s_cbranch_scc1 L_outx2
        v_permlane16_swap_b32 v16, v18
        v_permlane16_swap_b32 v17, v19
        v_bfe_u32 v2, v0, 4, 1
        v_mul_u32_u24 v2, 24, v2
        v_add_u32 v2, v2, v{vDO}
        """)
        a(f"buffer_store_dwordx4 v[16:19], v2, s[{rOUT}:{rOUT+3}], 0 offen {cfg.polOut}")
        a("s_branch L_outdone")
        a.label("L_outx2")
    if not cfg.skip_out:
        a(f"buffer_store_dwordx2 v[16:17], v{vDO}, s[{rOUT}:{rOUT+3}], 0 offen {cfg.polOut}")
        a(f"buffer_store_dwordx2 v[18:19], v{vDO}, s[{rOUT}:{rOUT+3}], s{sDN} offen {cfg.polOut}")
    if cfg.out_x4: a.label("L_outdone")
    a("s_mov_b64 exec, -1")
    a("s_branch L_fin")


def computeA(a, cfg):
    a.label("L_computeA")
    a.reset()
    a(f"s_mov_b32 s{sROLE}, 0")
    if cfg.prefetch_code and not cfg.pf_code_early:
        a.c("wave w warms L2 with 8 KB of this kernel's code (one dword per 128-byte line)")
        a(f"s_getpc_b64 s[{sT2}:{sT2+1}]")
        a.label("L_pc")
        a(f"""
        s_sub_u32 s{sT2}, s{sT2}, L_pc-{KN}
        s_subb_u32 s{sT2+1}, s{sT2+1}, 0
        s_lshl_b32 s{sT0}, s{sWAVE}, 13
        v_lshlrev_b32 v2, 7, v0
        v_add_u32 v2, s{sT0}, v2
        v_min_u32 v2, L_end-{KN}, v2
        global_load_dword v253, v2, s[{sT2}:{sT2+1}]
        """)
    ACC = 16
    def acc(T, t): return ACC + (T * 6 + t) * 4
    SETA = [88, 124]; SETB = [100, 136]
    a.c("phase A addresses: v2=kq v3=r v4=c v5=n")
    a(f"""
    v_lshrrev_b32 v2, 4, v0
    v_bfe_u32 v3, v0, 2, 2
    v_and_b32 v4, 3, v0
    v_and_b32 v5, 15, v0
    v_lshlrev_b32 v6, 3, v2
    v_add_u32 v6, v6, v3                     ; k = 8kq + r
    v_mul_u32_u24 v6, 384, v6
    v_lshl_add_u32 v6, v4, 3, v6             ; k*384 + 8c
    v_lshrrev_b32 v7, 1, v3
    v_and_b32 v8, 1, v2
    v_lshl_or_b32 v7, v8, 1, v7              ; h(k)
    s_mul_i32 s{sT0}, s{sWAVE}, 3
    """)
    for T in range(3):
        a(f"""
        s_add_u32 s{sT1}, s{sT0}, {T}
        v_xor_b32 v8, s{sT1}, v7
        v_lshl_add_u32 v{vA[T]}, v8, 5, v6
        """)
    a(f"""
    v_lshrrev_b32 v6, 1, v5                  ; (n>>1)&7
    v_xor_b32 v6, v6, v2
    v_lshlrev_b32 v6, 4, v6
    v_lshl_add_u32 v6, v5, 7, v6
    v_add_u32 v{vXe}, {L_X}, v6
    v_xor_b32 v{vXo}, 64, v{vXe}
    v_lshrrev_b32 v6, 1, v2
    v_lshlrev_b32 v6, 9, v6
    v_lshl_add_u32 v6, v5, 4, v6
    v_and_b32 v7, 1, v2
    v_lshl_add_u32 v6, v7, 3, v6
    s_mul_i32 s{sT0}, s{sWAVE}, 3072
    v_add_u32 v{vQW}, s{sT0}, v6
    v_lshlrev_b32 v{vL16}, 4, v0
    v_mov_b32 v{vONE}, 1
    v_and_b32 v6, 31, v0
    v_lshrrev_b32 v7, 5, v0
    v_bfe_u32 v8, v0, 1, 3                   ; (m>>1)&7
    v_xor_b32 v8, v8, v7
    v_mul_u32_u24 v9, 384, v6
    v_lshl_add_u32 v9, v8, 4, v9
    v_add_u32 v{vK0c}, {L_K}, v9
    v_lshl_add_u32 v8, v7, 2, v3
    v_mul_u32_u24 v8, 384, v8
    v_lshl_add_u32 v8, v4, 3, v8             ; + 8c
    v_and_b32 v9, 2, v3                      ; hh
    v_and_b32 v6, 1, v2                      ; dh
    v_or_b32 v9, v9, v6
    v_lshl_add_u32 v8, v9, 5, v8
    v_add_u32 v{vV0}, {L_V}, v8
    v_lshlrev_b32 v8, 10, v6                 ; (n>>4)*1024
    v_lshl_add_u32 v8, v7, 8, v8             ; + hi*256
    v_lshl_add_u32 v8, v5, 4, v8             ; + (n&15)*16
    s_lshl_b32 s{sT0}, s{sWAVE}, 11
    v_add_u32 v{vOL}, s{sT0}, v8
    s_lshl_b32 s{sT2}, s{sB}, 3
    s_add_u32 s{sT2}, s{sT2}, s{sG}
    s_lshl_b32 s{sT2}, s{sT2}, 2
    s_add_u32 s{sT2}, s{sT2}, s{sJ}
    s_mul_i32 s{sOB}, s{sT2}, 36864
    s_add_u32 s{sOB}, s{sOB}, {cfg.ws_o}
    s_lshl_b32 s{sT2}, s{sJ}, 11
    s_sub_u32 s{sT2}, s{sINB}, s{sT2}
    s_add_u32 s{sT2}, s{sT2}, 1024
    s_mul_i32 s{sT3}, s{sJ}, 12
    s_add_u32 s{sT2}, s{sT2}, s{sT3}
    s_lshl_b32 s{sT3}, s{sWAVE}, 2
    s_add_u32 s{sT2}, s{sT2}, s{sT3}
    v_lshlrev_b32 v8, 11, v4
    v_add_u32 v{vF1}, s{sT2}, v8
    s_and_b32 s{sI}, s{sWAVE}, 1
    s_lshr_b32 s{sJQ}, s{sWAVE}, 1
    v_lshrrev_b32 v6, 1, v2
    v_lshlrev_b32 v6, 4, v6
    v_and_b32 v7, 1, v2
    v_lshl_add_u32 v6, v7, 2, v6
    v_add_u32 v6, v6, v3
    v_mul_u32_u24 v6, 320, v6
    v_lshl_add_u32 v6, v4, 3, v6
    v_add_u32 v6, {L_WO}, v6
    s_mul_i32 s{sT0}, s{sI}, 5
    """)
    a.c("local tile T is column tile 5i + (T+i) mod 5: tiles (0,1) and (2,3) pair up, tile 4 is the odd one")
    for T in range(5):
        a(f"s_add_u32 s{sT1}, s{sI}, {T}")
        if T == 4:
            a(f"s_cmp_eq_u32 s{sT1}, 5")
            a(f"s_cselect_b32 s{sT1}, 0, s{sT1}")
        a(f"""
        s_add_u32 s{sT1}, s{sT1}, s{sT0}
        v_xor_b32 v8, s{sT1}, v7
        v_lshl_add_u32 v{vCA0[T]}, v8, 5, v6
        """)
    a(f"""
    s_lshl_b32 s{sT0}, s{sB}, 2
    s_add_u32 s{sT0}, s{sT0}, s{sJ}
    s_lshl_b32 s{sT0}, s{sT0}, 3
    s_add_u32 s{sT0}, s{sT0}, s{sG}
    s_lshl_b32 s{sT0}, s{sT0}, 2
    s_add_u32 s{sT0}, s{sT0}, s{sWAVE}
    s_lshl_b32 s{sT0}, s{sT0}, 13
    s_add_u32 s{sPS}, s{sT0}, {cfg.ws_p}
    s_lshl_b32 s{sT0}, s{sB}, 5
    s_lshl_b32 s{sT1}, s{sWAVE}, 3
    s_add_u32 s{sT0}, s{sT0}, s{sT1}
    s_add_u32 s{sT0}, s{sT0}, s{sJ}
    s_lshl_b32 s{sT0}, s{sT0}, 11
    s_lshl_b32 s{sT1}, s{sG}, 7
    s_add_u32 s{sT0}, s{sT0}, s{sT1}
    s_add_u32 s{sT0}, s{sT0}, {cfg.ws_in}
    """)
    if cfg.flag_line:
        a(f"""
        v_bfe_u32 v3, v0, 3, 1
        v_lshlrev_b32 v3, 13, v3
        v_and_b32 v6, 7, v0
        v_lshl_add_u32 v3, v6, 4, v3
        v_add_u32 v{vF2}, s{sT0}, v3
        """)
    else:
        a(f"""
        v_and_b32 v3, 1, v0
        v_lshlrev_b32 v3, 13, v3
        v_add_u32 v{vF2}, s{sT0}, v3
        """)
    wait_kernarg(a, cfg)
    srd(a, rWS, sWS, WS_BYTES)
    if cfg.arr_w3:
        a.c("wave 3: clear this workgroup's inbox, then arrive in d_debug")
        a(f"s_cmp_lg_u32 s{sWAVE}, 3")
        a("s_cbranch_scc1 L_noclr")
        srd(a, rDBG, sDBG, 256)
        clear_inbox(a, cfg)
        a("s_waitcnt vmcnt(0)")
        if not cfg.skip_arrive: arrive_op(a, cfg)
        a.label("L_noclr")
    if cfg.pretouch:
        a.c("wave 1 touches the pages used later so that their translations are resident")
        a(f"""
        s_cmp_lg_u32 s{sWAVE}, 1
        s_cbranch_scc1 L_notouch
        """)
        srd(a, rK, sK, KV_BYTES); srd(a, rV, sV, KV_BYTES); srd(a, rWO, sWO, W_BYTES); srd(a, rOUT, sOUT, OUT_BYTES)
        a(f"""
        s_mov_b64 exec, 3
        v_mul_u32_u24 v2, 36860, v0
        s_mul_i32 s{sT0}, s{sBH}, 36864
        buffer_load_dword v253, v2, s[{rK}:{rK+3}], s{sT0} offen nt
        buffer_load_dword v253, v2, s[{rV}:{rV+3}], s{sT0} offen nt
        v_mul_u32_u24 v2, 983036, v0
        s_mul_i32 s{sT0}, s{sG}, 983040
        buffer_load_dword v253, v2, s[{rWO}:{rWO+3}], s{sT0} offen
        buffer_load_dword v253, v2, s[{rOUT}:{rOUT+3}], 0 offen nt
        buffer_load_dword v253, v{vL16}, s[{rWS}:{rWS+3}], s{sOB} offen nt
        buffer_load_dword v253, v{vL16}, s[{rWS}:{rWS+3}], s{sPS} offen nt
        s_mov_b64 exec, -1
        """)
        a.label("L_notouch")
    stamp(a, cfg, 1)

    def reads(s):
        st = s & 1
        wo = L_W + (s % 4) * 12288
        xo = ((s >> 1) % 3) * 12288
        vx = vXo if s & 1 else vXe
        R = []
        def ra(T):
            R.append((f"ds_read_b64_tr_b16 {vr(SETA[st]+4*T, 2)}, v{vA[T]} offset:{wo}", ("A", s, T)))
            R.append((f"ds_read_b64_tr_b16 {vr(SETA[st]+4*T+2, 2)}, v{vA[T]} offset:{wo+1536}", ("A", s, T)))
        ra(0)
        for t in range(6):
            R.append((f"ds_read_b128 {vr(SETB[st]+4*t)}, v{vx} offset:{xo + t*2048}", ("B", s, t)))
        ra(1); ra(2)
        return R

    a("s_barrier   ; P")
    stamp(a, cfg, 2)
    for ins, tag in reads(0): a.ds(ins, tag)
    def qwrite(T, t):
        d = acc(T, t)
        tmp = 88 + ((T * 6 + t) % 8) * 2
        return [f"v_cvt_pk_bf16_f32 v{tmp}, v{d}, v{d+1}", f"v_cvt_pk_bf16_f32 v{tmp+1}, v{d+2}, v{d+3}",
                ("ds", f"ds_write_b64 v{vQW}, {vr(tmp, 2)} offset:{L_Q + 1024*T + 12288*(t >> 1) + 256*(t & 1)}")]
    for s in range(20):
        a.wait_lg_all()
        if s < 19:
            a(f"s_barrier   ; B{s}")
        R = reads(s + 1) if s < 19 else []
        st = s & 1
        m = 0
        qq = []
        for T in range(3):
            for t in range(6):
                a(mfma(acc(T, t), SETA[st] + 4 * T, SETB[st] + 4 * t, first=(s == 0)))
                if m < len(R): a.ds(*R[m])
                if s == 19:
                    if m >= cfg.q_lag:
                        T2, t2 = divmod(m - cfg.q_lag, 6)
                        qq += qwrite(T2, t2)
                    for _ in range(cfg.q_rate):
                        if qq:
                            x = qq.pop(0)
                            a.ds(x[1], "qw") if isinstance(x, tuple) else a(x)
                m += 1
        if s in (4, 9, 14): stamp(a, cfg, 3 + (s - 4) // 5)
    stamp(a, cfg, 6)
    a.c("Q -> bf16 -> LDS (fragment-major)")
    for m in range(18 - cfg.q_lag, 18): qq += qwrite(*divmod(m, 6))
    for x in qq:
        a.ds(x[1], "qw") if isinstance(x, tuple) else a(x)
    a.wait_lg_all()
    a("s_barrier   ; Q")
    a(f"""
    s_cmp_lt_u32 s{sWAVE}, 3
    s_cbranch_scc1 L_phaseB
    s_barrier   ; V
    s_barrier   ; O1
    s_branch L_computeC
    """)


def phaseB(a, cfg):
    a.label("L_phaseB")
    a.reset()
    if cfg.prio_b: a(f"s_setprio {cfg.prio_b}")
    S = 16; QF = 72; KF = 120; P = 64; VF = 88; O = 136; OB = 184
    vQR = 10; vKa = [vK0c, 11, 12, 13]; vVa = [vV0, 14]
    M, T1 = 2, 3
    N = [4, 5, 6]; LA = [7, 9, 10]; LB = [8, 15, 11]
    sC2 = sSTAMP + 8
    stamp(a, cfg, 7)
    a(f"s_mul_i32 s{sT0}, s{sWAVE}, 12288")
    a(f"v_add_u32 v{vQR}, s{sT0}, v{vL16}")
    def qread(ks): a.ds(f"ds_read_b128 {vr(QF+4*ks)}, v{vQR} offset:{L_Q + ks*1024}", ("Q", ks))
    def kread(i):
        kt, ks = divmod(i, 12)
        a.ds(f"ds_read_b128 {vr(KF + 4*(i % 4))}, v{vKa[ks & 3]} offset:{kt*12288 + (ks >> 2)*128}", ("K", i))
    qread(0); kread(0)
    for x in range(1, 4): a(f"v_xor_b32 v{vKa[x]}, {32*x}, v{vK0c}")
    qread(1); kread(1); qread(2); kread(2); kread(3)
    a(f"v_xor_b32 v{vVa[1]}, 64, v{vV0}")
    a(f"s_mov_b32 s{sC2}, {f32hex(SCALE)}")
    a(f"s_mov_b32 s{sC2+1}, {f32hex(SCALE)}")
    def maxops(kt):
        b = S + 16 * kt
        r = []
        if kt == 0:
            r.append(f"v_max3_f32 v{M}, v{b}, v{b+1}, v{b+2}"); r.append(f"v_max3_f32 v{T1}, v{b+3}, v{b+4}, v{b+5}")
            rest = list(range(6, 16))
        else:
            r.append(f"v_max3_f32 v{T1}, v{b}, v{b+1}, v{b+2}")
            rest = list(range(3, 16))
        tog = 0
        while len(rest) >= 2:
            d = (M, T1)[tog]; tog ^= 1
            r.append(f"v_max3_f32 v{d}, v{d}, v{b+rest[0]}, v{b+rest[1]}"); rest = rest[2:]
        if rest: r.append(f"v_max3_f32 v{M}, v{M}, v{T1}, v{b+rest[0]}")
        else: r.append(f"v_max_f32 v{M}, v{M}, v{T1}")
        r += [f"v_mov_b32 v{T1}, v{M}", "s_nop 1", f"v_permlane32_swap_b32 v{M}, v{T1}", f"v_max_f32 v{M}, v{M}, v{T1}",
              f"v_mul_f32 v{N[kt]}, {f32hex(-SCALE)}, v{M}"]
        return r
    def expops(kt):
        b = S + 16 * kt
        r = []
        for i in range(16 + 3):
            if i < 16: r.append(f"v_fmamk_f32 v{b+i}, v{b+i}, {f32hex(SCALE)}, v{N[kt]}")
            if 1 <= i <= 16: r.append(f"v_exp_f32 v{b+i-1}, v{b+i-1}")
            j = i - 3
            if j == 1: r.append(f"v_add_f32 v{LA[kt]}, v{b}, v{b+1}")
            elif j == 3: r.append(f"v_add_f32 v{LB[kt]}, v{b+2}, v{b+3}")
            elif j >= 4: r.append(f"v_add_f32 v{(LA if j % 2 == 0 else LB)[kt]}, v{(LA if j % 2 == 0 else LB)[kt]}, v{b+j}")
        return r
    fill = []
    for i in range(36):
        kt, ks = divmod(i, 12)
        if i % 2 == 0: a.wait_lg(("Q", ks), ("K", i), ("Q", ks + 1), ("K", i + 1))
        a(mfma32(S + 16 * kt, KF + 4 * (i % 4), QF + 4 * ks, first=(ks == 0)))
        if i + 4 < 36: kread(i + 4)
        if i + 3 < 12: qread(i + 3)
        if i == 14: fill += maxops(0) + expops(0)
        if i == 26: fill += maxops(1) + expops(1)
        for _ in range(cfg.fill_s):
            if fill: a(fill.pop(0))
    stamp(a, cfg, 8)
    a("s_barrier   ; V")
    stamp(a, cfg, 9)
    def vread(i):
        Td, s = divmod(i, 6)
        for e in range(2):
            a.ds(f"ds_read_b64_tr_b16 {vr(VF + 4*(i % 12) + 2*e, 2)}, v{vVa[Td & 1]} offset:{(Td >> 1)*128 + s*6144 + e*3072}", ("V", i))
    NV = cfg.nv_pv
    for i in range(NV): vread(i)
    a(f"v_mov_b32 v1, {L_FLAG}")
    a.ds("ds_read_b32 v1, v1", "fast")
    for x in fill + maxops(2): a(x)
    b = S + 32
    a(f"v_sub_f32 v{N[0]}, v{N[2]}, v{N[0]}")
    a(f"v_sub_f32 v{N[1]}, v{N[2]}, v{N[1]}")
    for i in range(0, 16, 2):
        a(f"v_pk_fma_f32 v[{b+i}:{b+i+1}], v[{b+i}:{b+i+1}], s[{sC2}:{sC2+1}], v[{N[2]}:{N[2]+1}] op_sel_hi:[1,1,0]")
    a(f"v_exp_f32 v{N[0]}, v{N[0]}")
    a(f"v_exp_f32 v{N[1]}, v{N[1]}")
    a(f"v_add_f32 v{LA[0]}, v{LA[0]}, v{LB[0]}")
    a(f"v_add_f32 v{LA[1]}, v{LA[1]}, v{LB[1]}")
    for i in range(16):
        a(f"v_exp_f32 v{b+i}, v{b+i}")
    a(f"v_mul_f32 v{LA[0]}, v{LA[0]}, v{N[0]}")
    a(f"v_fmac_f32 v{LA[0]}, v{LA[1]}, v{N[1]}")
    a(f"v_pk_add_f32 v[{LA[2]}:{LA[2]+1}], v[{b}:{b+1}], v[{b+2}:{b+3}]")
    a(f"v_pk_add_f32 v[{M}:{M+1}], v[{b+4}:{b+5}], v[{b+6}:{b+7}]")
    for i in range(8, 16, 4):
        a(f"v_pk_add_f32 v[{LA[2]}:{LA[2]+1}], v[{LA[2]}:{LA[2]+1}], v[{b+i}:{b+i+1}]")
        a(f"v_pk_add_f32 v[{M}:{M+1}], v[{M}:{M+1}], v[{b+i+2}:{b+i+3}]")
    a(f"v_pk_add_f32 v[{M}:{M+1}], v[{M}:{M+1}], v[{LA[2]}:{LA[2]+1}]")
    a(f"v_add_f32 v{M}, v{M}, v{T1}")
    a(f"v_add_f32 v{M}, v{M}, v{LA[0]}")
    a(f"v_mov_b32 v{T1}, v{M}")
    a(f"v_permlane32_swap_b32 v{M}, v{T1}")
    a(f"v_add_f32 v{M}, v{M}, v{T1}")
    a(f"v_rcp_f32 v{N[2]}, v{M}")
    a.wait_lg("fast")
    a(f"v_readfirstlane_b32 s{sFAST}, v1")
    a(f"v_mul_f32 v{N[0]}, v{N[0]}, v{N[2]}")
    a(f"v_mul_f32 v{N[1]}, v{N[1]}, v{N[2]}")
    a(f"s_cmp_lg_u32 s{sFAST}, 0")
    a("s_cselect_b64 vcc, -1, 0")
    for s in range(6):
        kt = s >> 1
        g = N[kt]
        pair, sel = (g & ~1, g & 1)
        b = S + 8 * s
        for i in range(0, 8, 2):
            a(f"v_pk_mul_f32 v[{b+i}:{b+i+1}], v[{b+i}:{b+i+1}], v[{pair}:{pair+1}] op_sel:[0,{sel}] op_sel_hi:[1,{sel}]")
        for i in range(4):
            a(f"v_cvt_pk_bf16_f32 v{P+4*s+i}, v{b+2*i}, v{b+2*i+1}")
    stamp(a, cfg, 10)
    nst = [0]
    def epi(Td):
        d = O + 16 * (Td % 3)
        r = []
        for e in range(2):
            o = OB + (2 * (Td % 2) + e) * 4
            for i in range(4): r.append(f"v_cvt_pk_bf16_f32 v{o+i}, v{d+8*e+2*i}, v{d+8*e+2*i+1}")
            r.append(("ds", f"ds_write_b128 v{vOL}, {vr(o)} offset:{L_OWN + Td*6144 + e*512}"))
            if not cfg.skip_ostore:
                nst[0] += 1
                n = nst[0]
                st = f"buffer_store_dwordx4 {vr(o)}, v{vOL}, s[{rWS}:{rWS+3}], s{sT0} offen"
                fpol = cfg.o_fast_pol if Td < cfg.plain_from else ""
                if fpol in ("sc1", "sc0 sc1"):
                    r.append(("blk", f"s_add_u32 s{sT0}, s{sOB}, {Td*6144 + e*512}\n{st} sc0 sc1"))
                else:
                    r.append(("blk", f"s_add_u32 s{sT0}, s{sOB}, {Td*6144 + e*512}\ns_cbranch_vccnz L_os{n}\n{st} sc0 sc1\ns_branch L_od{n}\nL_os{n}:\n{st} {fpol}\nL_od{n}:"))
        return r
    def emit(x):
        if isinstance(x, tuple):
            if x[0] == "ds": a.ds(x[1], "ow")
            else: a(x[1])
        else: a(x)
    fill = []
    for i in range(36):
        Td, s = divmod(i, 6)
        if cfg.fine and s == 0: a(f"s_memtime s[{28 + 2*Td}:{29 + 2*Td}]")
        if i % 2 == 0: a.wait_lg(("V", i), ("V", i + 1))
        a(mfma32(O + 16 * (Td % 3), VF + 4 * (i % 12), P + 4 * s, first=(s == 0)))
        if i + NV < 36: vread(i + NV)
        if Td >= 1 and s == 3: fill += epi(Td - 1)
        for _ in range(cfg.fill_pv):
            if fill: emit(fill.pop(0))
    if cfg.fine:
        a("s_memtime s[40:41]")
        a("s_waitcnt lgkmcnt(0)")
        for k in range(7): a(f"v_writelane_b32 v255, s{28 + 2*k}, {40 + k}")
    stamp(a, cfg, 11)
    for x in fill + epi(5): emit(x)
    stamp(a, cfg, 27)
    a.wait_lg_all()
    stamp(a, cfg, 12)
    a("s_barrier   ; O1")
    a.c("falls through into phase C")


def computeC(a, cfg):
    a.label("L_computeC")
    a.reset()
    if cfg.prio_c: a(f"s_setprio {cfg.prio_c}")
    ACC = 16
    def acc(T, t): return ACC + (T * 3 + t) * 4
    SETA = [76, 96]; SETB = [116, 128]
    vCA = [vCA0, vCA1]
    a(f"s_mul_i32 s{sT0}, s{sJQ}, 3072")
    a(f"v_add_u32 v{vCB[0]}, s{sT0}, v{vL16}")
    def reads(u):
        st = u & 1
        p = u >> 1
        hi, sl = divmod(p % 4, 2)
        so = sl * 20480 + (u & 1) * 10240
        if u < 6:
            vb, bo = vCB[0], L_OWN + u * 6144
        else:
            vb, bo = vCB[1], ((p - 3) % 3) * 12288 + (u & 1) * 6144
        R = []
        def ra(T):
            R.append((f"ds_read_b64_tr_b16 {vr(SETA[st]+4*T, 2)}, v{vCA[hi][T]} offset:{so}", ("A", u, T)))
            R.append((f"ds_read_b64_tr_b16 {vr(SETA[st]+4*T+2, 2)}, v{vCA[hi][T]} offset:{so+2560}", ("A", u, T)))
        ra(0)
        for t in range(3):
            R.append((f"ds_read_b128 {vr(SETB[st]+4*t)}, v{vb} offset:{bo + t*1024}", ("B", u, t)))
        for T in range(1, 5): ra(T)
        return R
    U = 76
    def cv(dst, d):
        return [f"v_cvt_pk_bf16_f32 v{dst}, v{d}, v{d+1}", f"v_cvt_pk_bf16_f32 v{dst+1}, v{d+2}, v{d+3}"]
    def unit(u):
        t, pi = divmod(u, 2)
        return cv(UR[u], acc(2 * pi, t)) + cv(UR[u] + 2, acc(2 * pi + 1, t))
    UR = [76, 96, 80, 100, 84, 104, 108, 112]
    tailcv = unit(0) + unit(2) + unit(4)
    stamp(a, cfg, 13)
    for ins, tag in reads(0): a.ds(ins, tag)
    a(f"v_add_u32 v{vCB[1]}, {L_OR}, v{vCB[0]}")
    for T in range(5): a(f"v_add_u32 v{vCA1[T]}, 40960, v{vCA0[T]}")
    for u in range(24):
        if u & 1 and u < 23:
            a.wait_lg_all()
            a(f"s_barrier   ; C{u >> 1}")
        R = reads(u + 1) if u < 23 else []
        st = u & 1
        m = 0
        for T in range(5):
            for t in range(3):
                if cfg.c_wait is None: a.wait_lg(("A", u, T), ("B", u, t))
                elif t == 0 and T in cfg.c_wait:
                    nxt = min([x for x in cfg.c_wait if x > T] + [5])
                    a.wait_lg(*[("A", u, x) for x in range(T, nxt)], *[("B", u, x) for x in range(3)])
                a(mfma(acc(T, t), SETA[st] + 4 * T, SETB[st] + 4 * t, first=(u == 0)))
                if m < len(R): a.ds(*R[m])
                if u == 23 and m >= 9:
                    for _ in range(2): a(tailcv.pop(0))
                m += 1
        if u == cfg.h1_flag_step:
            a.c("waves 0-2 publish their O tile once its stores have drained")
            stamp(a, cfg, 22)
            a(f"""
            s_cmp_eq_u32 s{sWAVE}, 3
            s_cbranch_scc1 L_f1done
            s_waitcnt vmcnt(0)
            s_mov_b64 exec, 15
            s_cmp_lg_u32 s{sFAST}, 0
            s_cbranch_scc1 L_f1fast
            buffer_store_dword v{vONE}, v{vF1}, s[{rWS}:{rWS+3}], 0 offen sc0 sc1
            s_branch L_f1ex
            """)
            a.label("L_f1fast")
            a(f"buffer_store_dword v{vONE}, v{vF1}, s[{rWS}:{rWS+3}], 0 offen")
            a.label("L_f1ex")
            a("s_mov_b64 exec, -1")
            a.label("L_f1done")
            stamp(a, cfg, 23)
        if u in (2, 3): stamp(a, cfg, 22 + u)
        if u in (5, 11, 17): stamp(a, cfg, 15 + (u - 5) // 6)
    stamp(a, cfg, 18)
    a.c("partials, 8 units per wave: 6 tile pairs, the odd tile of q tiles 0|1, the odd tile of q tile 2 (32 lanes)")
    a(f"s_lshr_b32 s{sT1}, s{sG}, 1")
    a(f"s_and_b32 s{sT2}, s{sG}, 1")
    for half in range(2):
        if half == 0:
            for x in unit(1) + unit(3): a(x)
        else:
            for x in unit(5) + cv(UR[6], acc(4, 0)) + cv(UR[6] + 2, acc(4, 1)) + cv(UR[7], acc(4, 2)): a(x)
            a(f"v_permlane32_swap_b32 v{UR[7]}, v{UR[7]+2}")
            a(f"v_permlane32_swap_b32 v{UR[7]+1}, v{UR[7]+3}")
        a(f"""
        s_cmp_lg_u32 s{sT1}, s{sWAVE}
        s_cbranch_scc1 L_rem{half}
        s_cmp_lg_u32 s{sT2}, {half}
        s_cbranch_scc1 L_rem{half}
        """)
        for k in range(4):
            a(f"ds_write_b128 v{vL16}, {vr(UR[4*half + k])} offset:{L_OWN + k*1024}")
        a(f"s_branch L_remdone{half}")
        a.label(f"L_rem{half}")
        for k in range(4):
            u = 4 * half + k
            if u == 7: a("s_mov_b32 exec_hi, 0")
            a(f"s_add_u32 s{sT0}, s{sPS}, {u*1024}")
            a(f"buffer_store_dwordx4 {vr(UR[u])}, v{vL16}, s[{rWS}:{rWS+3}], s{sT0} offen sc0 sc1")
            if u == 7: a("s_mov_b32 exec_hi, -1")
        a.label(f"L_remdone{half}")
    stamp(a, cfg, 19)
    a("s_waitcnt lgkmcnt(0)")
    if not cfg.pd_late: a("s_barrier   ; PD")
    if cfg.flag_line:
        for i in range(4): a(f"v_mov_b32 v{140+i}, 1")
    a("s_waitcnt vmcnt(0)")
    stamp(a, cfg, 20)
    if cfg.flag_line:
        a(f"""
        s_mov_b64 exec, 0xffff
        buffer_store_dwordx4 v[140:143], v{vF2}, s[{rWS}:{rWS+3}], 0 offen sc0 sc1
        s_mov_b64 exec, -1
        """)
    else:
        a(f"""
        s_mov_b64 exec, 3
        buffer_store_dword v{vONE}, v{vF2}, s[{rWS}:{rWS+3}], 0 offen sc0 sc1
        s_mov_b64 exec, -1
        """)
    if cfg.pd_late: a("s_barrier   ; PD")


def build(cfg, header=""):
    _lbl[0] = 0
    a = Asm()
    if header: a.raw(header.rstrip("\n"))
    a.raw(f"; @launch grid=(256,1,1) block=(512,1,1) lds={LDS_BYTES}")
    a.raw(DOC.rstrip("\n"))
    a.raw('.amdgcn_target "amdgcn-amd-amdhsa--gfx950"\n.text')
    prologue(a, cfg)
    loader(a, cfg)
    computeA(a, cfg)
    phaseB(a, cfg)
    computeC(a, cfg)
    a.label("L_fin")
    stamp(a, cfg, 21)
    if cfg.amp:
        w, ia, ib, A = cfg.amp
        a(f"""
        s_cmp_lg_u32 s{sWAVE}, {w}
        s_cbranch_scc1 L_noamp
        v_readlane_b32 s{sT0}, v255, {ia}
        v_readlane_b32 s{sT1}, v255, {ib}
        s_sub_u32 s{sT0}, s{sT1}, s{sT0}
        s_mul_i32 s{sT0}, s{sT0}, {A}
        s_memtime s[{sSTAMP}:{sSTAMP+1}]
        s_waitcnt lgkmcnt(0)
        s_add_u32 s{sT0}, s{sT0}, s{sSTAMP}
        """)
        a.label("L_amp")
        a(f"""
        s_memtime s[{sSTAMP}:{sSTAMP+1}]
        s_waitcnt lgkmcnt(0)
        s_sub_u32 s{sT1}, s{sSTAMP}, s{sT0}
        s_cmp_lt_i32 s{sT1}, 0
        s_cbranch_scc1 L_amp
        """)
        a.label("L_noamp")
    elif cfg.stamps:
        stamp_flush(a, cfg)
    a.label("L_end")
    a("s_endpgm")
    a.raw(kernel_desc(KN))
    return a.text()


def make(**kw):
    cfg = Cfg()
    for k, v in kw.items():
        assert hasattr(cfg, k), k
        setattr(cfg, k, v)
    header = open("cdna_kernels/" + NAME + ".s.ref").read().split("; Override launch")[0]
    return build(cfg, header)


if __name__ == "__main__":
    kw = {}
    for kv in sys.argv[2:]:
        k, v = kv.split("=", 1)
        kw[k] = eval(v)
    open(sys.argv[1], "w").write(make(**kw))
```

```python
import sys, math, struct
from asmgen import *

NAME = "standalone__gqa_block_cached__near_ridge"
KN = NAME + "_kernel"

X_BYTES = 768 * 640 * 2
KV_BYTES = 8 * 32 * 96 * 192 * 2
W_BYTES = 640 * 6144 * 2
OUT_BYTES = 768 * 640 * 2
WS_BYTES = 268435456
SCALE = 192 ** -0.5 * math.log2(math.e)

def f32hex(x):
    return "0x%08x" % struct.unpack("<I", struct.pack("<f", x))[0]

sX, sK, sV, sWQ, sWO, sOUT, sDBG, sWS = 4, 6, 8, 10, 12, 14, 16, 18
sWAVE, sG, sB, sJ, sH, sBH = 20, 21, 22, 23, 24, 25
sFAST, sSPIN = 26, 27
rX, rWQ, rK, rV, rWS, rWO, rOUT, rDBG = 28, 32, 36, 40, 44, 48, 52, 68
sT0, sT1, sT2, sT3 = 56, 57, 58, 59
sLW, sM0B, sKVB = 60, 61, 63
sI, sJQ, sROLE = 64, 65, 66
sOB, sPS = 62, 67
sWK, sOM0, sOK, sINB, sWE, sWM = 73, 74, 75, 76, 77, 78
sSTAMP = 80
sKW, sKX, sWC, sOC, sU, sDN, sJ4 = 92, 93, 94, 95, 96, 97, 98

L_W, L_X, L_K, L_V, L_Q = 0, 49152, 86016, 122880, 0
L_FLAG = 159744
L_OWN, L_WO, L_OR = 0, 36864, 122880
LDS_BYTES = 163840


DOC = """\
; ---------------------------------------------------------------------------------------------------------
;  C  out^T partial          160 columns x 96 rows over the 4 heads of group g (own head first, then the O tiles
; ---------------------------------------------------------------------------------------------------------
"""

class Cfg:
    stamps = False
    stamp_only = None
    amp = None
    prefetch_code = True
    pretouch = False
    pf_code_div = 1
    ws_o = 0xE000000
    ws_p = 0xF000000
    ws_in = 0xFC00000
    ws_stamp = 0x4000000
    polW = ""; polX = ""; polKV = "nt"; polWO = ""; polPF = ""; polO = "sc1"
    o_fast_pol = "sc1"
    force_slow = False
    rot = (10, 10)
    k_sched = [12] * 9
    v_sched = [16] * 9
    kv_variants = [([7] * 9, [16] * 9), ([11] * 9, [16] * 9)]
    kv_sel_shift = 3
    wo_prefetch = True
    pf_at = 'Q'
    staged = ()
    early = 1
    mid = 4
    late = 4
    wrot = False
    h1_flag_step = 0
    h2_delay = 0
    pd_late = True
    q_lag = 6
    c_loop = True
    arr_byte = False
    spoll2 = False
    flag_line = True
    arr_w3 = True
    hs_at = 14
    hs_w7 = True
    skip_arrive = False
    arr_step = 0
    prio_ld = 0
    prio_b = 0
    pf_k = 0
    pf_first = False
    pf_split = 0
    plain_from = 6
    c_wait = None
    c_rd0 = 0
    fine = False
    nv_pv = 6
    skip_out = False
    out_x4 = False
    pf_code_early = True
    q_rate = 2
    poll_sleep = None
    spin_max = 400000
    fill_s = 5
    fill_pv = 2
    fill_last = 5
    pk_tail = True
    skip_o = False; skip_wo = False; skip_ostore = False
    prio_c = 0
    polOut = ''


def stamp(a, cfg, idx):
    if not cfg.stamps: return
    if cfg.stamp_only is not None and idx not in cfg.stamp_only: return
    a(f"""
    s_memtime s[{sSTAMP}:{sSTAMP+1}]
    s_waitcnt lgkmcnt(0)
    v_writelane_b32 v255, s{sSTAMP}, {idx}
    """)
    a.lg = []

def stamp_flush(a, cfg):
    a(f"""
    s_memrealtime s[{sSTAMP}:{sSTAMP+1}]
    s_waitcnt lgkmcnt(0)
    v_writelane_b32 v255, s{sSTAMP}, 33
    s_lshl_b32 s{sT0}, s2, 3
    s_add_u32 s{sT0}, s{sT0}, s{sWAVE}
    s_lshl_b32 s{sT0}, s{sT0}, 8
    s_add_u32 s{sT0}, s{sT0}, {cfg.ws_stamp}
    v_mbcnt_lo_u32_b32 v254, -1, 0
    v_mbcnt_hi_u32_b32 v254, -1, v254
    v_lshlrev_b32 v254, 2, v254
    buffer_store_dword v255, v254, s[{rWS}:{rWS+3}], s{sT0} offen
    """)

def wait_kernarg(a, cfg):
    a("s_waitcnt lgkmcnt(0)")
    if cfg.stamps:
        a(f"v_writelane_b32 v255, s{sSTAMP}, 0")
        a(f"v_writelane_b32 v255, s{sSTAMP+2}, 32")

def mfma(d, A, B, first=False):
    c = "0" if first else vr(d)
    return f"v_mfma_f32_16x16x32_bf16 {vr(d)}, {vr(A)}, {vr(B)}, {c}"

def mfma32(d, A, B, first=False):
    c = "0" if first else vr(d, 16)
    return f"v_mfma_f32_32x32x16_bf16 {vr(d, 16)}, {vr(A)}, {vr(B)}, {c}"

_lbl = [0]
def poll(a, cfg, vaddr, rs, soff, vtmp, check):
    _lbl[0] += 1
    n = _lbl[0]
    a(f"s_mov_b32 s{sSPIN}, 0")
    a.label(f"poll{n}")
    a(f"buffer_load_dword v{vtmp}, v{vaddr}, s[{rs}:{rs+3}], {soff} offen sc1")
    a.wait_vm_all()
    check()
    a(f"""
    s_cbranch_scc1 poll{n}_ok
    s_add_u32 s{sSPIN}, s{sSPIN}, 1
    s_cmp_ge_u32 s{sSPIN}, {cfg.spin_max}
    s_cbranch_scc1 poll{n}_ok
    """)
    if cfg.poll_sleep is not None: a(f"s_sleep {cfg.poll_sleep}")
    a(f"s_branch poll{n}")
    a.label(f"poll{n}_ok")

def dma(a, vaddr, rs, soff, ldsoff, tag, base, pol=""):
    a(f"s_add_u32 m0, s{base}, {ldsoff}")
    if isinstance(soff, str):
        so = soff
        a("s_nop 0")
    else:
        a(f"s_mov_b32 s{sT0}, {soff}")
        so = f"s{sT0}"
    a.vmem(f"buffer_load_dwordx4 v{vaddr}, s[{rs}:{rs+3}], {so} offen {pol} lds", tag)


vA = [10, 11, 12]; vXe, vXo, vQW = 13, 14, 15
vK0c, vV0, vOL = 232, 233, 234
vCA0 = [235, 236, 237, 238, 239]; vL16, vF1, vF2 = 240, 241, 242
vCA1 = [140, 141, 142, 143, 144]; vCB = [145, 146]
vONE = 252
vW = [220, 221, 222]; vXL = [223, 224, 225]; vKA = [226, 227, 228]; vKB = [229, 230, 231]; vV = [232, 233, 234]
vK0 = [235, 236, 237]; vCP = [238, 239, 240]
vWO = [241, 242, 243, 244, 245]; vOR, vDL, vDO, vP1, vP2, vPF = 246, 247, 248, 249, 250, 251
vSW = [218, 219]
STG = 16


def prologue(a, cfg):
    a.raw(kernel_header(KN))
    if cfg.stamps:
        a(f"s_memtime s[{sSTAMP}:{sSTAMP+1}]")
        a(f"s_memrealtime s[{sSTAMP+2}:{sSTAMP+3}]")
    a(f"""
    s_cmp_ge_u32 s2, 256
    s_cbranch_scc1 L_end
    s_load_dwordx16 s[4:19], s[0:1], 0
    v_lshrrev_b32 v1, 6, v0
    v_lshlrev_b32 v2, 7, v0
    v_readfirstlane_b32 s{sWAVE}, v1
    """)
    if cfg.prefetch_code and cfg.pf_code_early:
        a.c("warm L2 with this kernel's own code (one dword per 128-byte line)")
        d = cfg.pf_code_div
        a(f"""
        s_cmp_ge_u32 s{sWAVE}, {4 if d == 1 else 1}
        s_cbranch_scc1 L_nopf
        s_getpc_b64 s[{sT2}:{sT2+1}]
        """)
        a.label("L_pc")
        a(f"""
        s_sub_u32 s{sT2}, s{sT2}, L_pc-{KN}
        s_subb_u32 s{sT2+1}, s{sT2+1}, 0
        """)
        if d > 1:
            n = 256 // d
            a(f"""
            s_bfe_u32 s{sT0}, s2, {hex((int(math.log2(d)) << 16) | 3)}
            s_mul_i32 s{sT0}, s{sT0}, {n*128}
            v_min_u32 v2, {(n-1)*128}, v2
            v_add_u32 v2, s{sT0}, v2
            """)
        a(f"""
        v_min_u32 v2, L_end-{KN}, v2
        global_load_dword v253, v2, s[{sT2}:{sT2+1}]
        """)
        a.label("L_nopf")
    a(f"""
    v_and_b32 v0, 63, v0
    s_and_b32 s{sG}, s2, 7
    s_lshr_b32 s{sT0}, s2, 3
    s_lshr_b32 s{sB}, s{sT0}, 2
    s_and_b32 s{sJ}, s{sT0}, 3
    s_lshl_b32 s{sH}, s{sG}, 2
    s_add_u32 s{sH}, s{sH}, s{sJ}
    s_lshl_b32 s{sBH}, s{sB}, 5
    s_add_u32 s{sBH}, s{sBH}, s{sH}
    s_lshl_b32 s{sINB}, s{sBH}, 11
    s_add_u32 s{sINB}, s{sINB}, {cfg.ws_in}
    s_cmp_lt_u32 s{sWAVE}, 4
    s_cbranch_scc1 L_computeA
    """)


def next_pair(a, cfg, p, sDst, sCnt, stride):
    if p + 1 >= 12: return
    if p + 1 < 4 or not cfg.wrot:
        a(f"""
        s_add_u32 s{sDst}, s{sDst}, {stride}
        s_cmp_eq_u32 s{sDst}, {12*stride}
        s_cselect_b32 s{sDst}, 0, s{sDst}
        """)
    else:
        a(f"""
        s_add_u32 s{sDst}, s{sJ4}, s{sCnt}
        s_cmp_ge_u32 s{sDst}, 12
        s_cselect_b32 s{sT0}, 12, 0
        s_sub_u32 s{sDst}, s{sDst}, s{sT0}
        s_mul_i32 s{sDst}, s{sDst}, {stride}
        s_add_u32 s{sCnt}, s{sCnt}, 1
        s_and_b32 s{sCnt}, s{sCnt}, 7
        """)

def ld_wo_pair(a, cfg, p):
    slot = L_WO + (p % 4) * 20480
    a(f"s_add_u32 s{sT3}, s{sWK}, s{sWE}")
    for i in range(0 if cfg.skip_wo else 5):
        if p in cfg.staged:
            d = STG + (cfg.staged.index(p) * 5 + i) * 4
            a.vmem(f"buffer_load_dwordx4 {vr(d)}, v{vWO[i]}, s[{rWO}:{rWO+3}], s{sT3} offen {cfg.polWO}", ("WO", p))
        else:
            dma(a, vWO[i], rWO, f"s{sT3}", slot + i * 1024, ("WO", p), sWM, cfg.polWO)
    next_pair(a, cfg, p, sWK, sWC, 81920)

def put_wo_pair(a, cfg, p):
    a.wait_vm(("WO", p))
    hi, sl = divmod(p % 4, 2)
    for i in range(0 if cfg.skip_wo else 5):
        d = STG + (cfg.staged.index(p) * 5 + i) * 4
        a.ds(f"ds_write_b128 v{vSW[hi]}, {vr(d)} offset:{sl*20480 + i*1024}", ("WOL", p))

def ld_o_pair(a, cfg, p):
    slot = L_OR + ((p - 3) % 3) * 12288
    a(f"s_add_u32 m0, s{sOM0}, {slot}")
    a("s_nop 0")
    for i in range(0 if cfg.skip_o else 3):
        a.vmem(f"buffer_load_dwordx4 v{vOR}, s[{rWS}:{rWS+3}], s{sOK} offen offset:{i*1024} {cfg.polO} lds", ("O", p))
    next_pair(a, cfg, p, sOK, sOC, 12288)


def clear_inbox(a, cfg):
    a(f"""
    v_lshlrev_b32 v2, 4, v0
    v_mov_b32 v4, 0
    v_mov_b32 v5, 0
    v_mov_b32 v6, 0
    v_mov_b32 v7, 0
    buffer_store_dwordx4 v[4:7], v2, s[{rWS}:{rWS+3}], s{sINB} offen sc0 sc1
    s_mov_b64 exec, 0xff
    buffer_store_dwordx4 v[4:7], v2, s[{rWS}:{rWS+3}], s{sINB} offen offset:1024 sc0 sc1
    s_mov_b64 exec, -1
    """)

def arrive_op(a, cfg):
    a(f"s_getreg_b32 s{sT1}, hwreg(HW_REG_XCC_ID, 0, 4)")
    if cfg.arr_byte:
        a(f"""
        s_or_b32 s{sT1}, s{sT1}, 0x80
        v_mov_b32 v2, s{sT1}
        v_mov_b32 v3, s{sBH}
        s_mov_b64 exec, 1
        buffer_store_byte v2, v3, s[{rDBG}:{rDBG+3}], 0 offen sc0 sc1
        s_mov_b64 exec, -1
        """)
    else:
        a(f"""
        s_lshl_b32 s{sT2}, s{sJ}, 2
        s_add_u32 s{sT2}, s{sT2}, 4
        s_lshl_b32 s{sT1}, s{sT1}, s{sT2}
        s_add_u32 s{sT1}, s{sT1}, 1
        s_lshl_b32 s{sT2}, s{sB}, 3
        s_add_u32 s{sT2}, s{sT2}, s{sG}
        s_lshl_b32 s{sT2}, s{sT2}, 2
        v_mov_b32 v2, s{sT1}
        v_mov_b32 v3, s{sT2}
        s_mov_b64 exec, 1
        buffer_atomic_add v2, v3, s[{rDBG}:{rDBG+3}], 0 offen sc1
        s_mov_b64 exec, -1
        """)


def loader(a, cfg):
    a.reset()
    if cfg.prio_ld: a(f"s_setprio {cfg.prio_ld}")
    a(f"s_mov_b32 s{sROLE}, 1")
    a(f"s_sub_u32 s{sLW}, s{sWAVE}, 4")
    a(f"s_mul_i32 s{sT0}, s{sLW}, {8*12288}")
    a(f"s_mul_i32 s{sT1}, s{sH}, 384")
    a(f"s_add_u32 s{sT0}, s{sT0}, s{sT1}")
    a(f"s_and_b32 s{sT1}, s{sLW}, 1")
    a(f"s_lshl_b32 s{sT1}, s{sT1}, 2")
    for i in range(3):
        a(f"""
        v_add_u32 v2, {64*i}, v0
        v_mul_u32_u24 v3, 2731, v2
        v_lshrrev_b32 v{vK0[i]}, 16, v3
        v_mul_u32_u24 v4, 24, v{vK0[i]}
        v_sub_u32 v{vCP[i]}, v2, v4
        v_and_b32 v5, 2, v{vK0[i]}
        v_or_b32 v5, s{sT1}, v5
        v_xor_b32 v5, v5, v{vCP[i]}
        v_mul_u32_u24 v6, 12288, v{vK0[i]}
        v_lshl_add_u32 v6, v5, 4, v6
        v_add_u32 v{vW[i]}, s{sT0}, v6
        """)
    a(f"""
    s_mul_i32 s{sT2}, s{sB}, 96
    s_mul_i32 s{sT3}, s{sLW}, 24
    s_add_u32 s{sT2}, s{sT2}, s{sT3}
    s_mul_i32 s{sT2}, s{sT2}, 1280
    v_lshrrev_b32 v2, 3, v0
    v_mul_u32_u24 v2, 1280, v2
    v_and_b32 v3, 7, v0
    v_lshrrev_b32 v4, 4, v0
    v_xor_b32 v3, v3, v4
    v_xor_b32 v3, s{sT1}, v3
    v_lshl_add_u32 v{vXL[0]}, v3, 4, v2
    v_add_u32 v{vXL[0]}, s{sT2}, v{vXL[0]}
    v_xor_b32 v3, 4, v3
    v_lshl_add_u32 v{vXL[1]}, v3, 4, v2
    s_add_u32 s{sT3}, s{sT2}, {8*1280}
    v_add_u32 v{vXL[1]}, s{sT3}, v{vXL[1]}
    v_add_u32 v{vXL[2]}, {16*1280}, v{vXL[0]}
    s_mul_i32 s{sM0B}, s{sLW}, 3072
    s_mul_i32 s{sT2}, s{sB}, {cfg.rot[0]}
    s_mul_i32 s{sT3}, s{sJ}, {cfg.rot[1]}
    s_add_u32 s{sT2}, s{sT2}, s{sT3}
    s_add_u32 s{sT2}, s{sT2}, 2
    s_lshr_b32 s{sT2}, s{sT2}, 2
    s_cmp_ge_u32 s{sT2}, 20
    s_cselect_b32 s{sT3}, 20, 0
    s_sub_u32 s{sT2}, s{sT2}, s{sT3}
    s_cmp_ge_u32 s{sT2}, 10
    s_cselect_b32 s{sT3}, 10, 0
    s_sub_u32 s{sT2}, s{sT2}, s{sT3}
    s_mul_i32 s{sKW}, s{sT2}, {64*12288}
    s_lshl_b32 s{sKX}, s{sT2}, 7
    """)
    assert (7 * cfg.rot[0] + 3 * cfg.rot[1] + 2) // 4 < 30
    if cfg.stamps and (cfg.stamp_only is None or 28 in cfg.stamp_only):
        a(f"s_memtime s[{sSTAMP+4}:{sSTAMP+5}]")
        wait_kernarg(a, cfg)
        a(f"v_writelane_b32 v255, s{sSTAMP+4}, 28")
    else:
        wait_kernarg(a, cfg)
    srd(a, rWQ, sWQ, W_BYTES)
    srd(a, rX, sX, X_BYTES)
    stamp(a, cfg, 29)

    def ldW(s):
        for i in range(3): dma(a, vW[i], rWQ, f"s{sKW}", L_W + (s % 4) * 12288 + i * 1024, ("W", s), sM0B, cfg.polW)
        a(f"""
        s_add_u32 s{sKW}, s{sKW}, {32*12288}
        s_cmp_eq_u32 s{sKW}, {640*12288}
        s_cselect_b32 s{sKW}, 0, s{sKW}
        """)
    def ldX(m):
        for i in range(3): dma(a, vXL[i], rX, f"s{sKX}", L_X + (m % 3) * 12288 + i * 1024, ("X", m), sM0B, cfg.polX)
        a(f"""
        s_add_u32 s{sKX}, s{sKX}, 128
        s_cmp_eq_u32 s{sKX}, 1280
        s_cselect_b32 s{sKX}, 0, s{sKX}
        """)
    def ldK(i):
        i1, i0 = divmod(i, 3)
        dma(a, (vKB if i1 & 1 else vKA)[i0], rK, i1 * 3072, L_K + i * 1024, "K", sKVB, cfg.polKV)
    def ldV(i):
        i1, i0 = divmod(i, 3)
        dma(a, vV[i0], rV, i1 * 3072, L_V + i * 1024, "V", sKVB, cfg.polKV)

    ldW(0); ldX(0)
    stamp(a, cfg, 24)
    srd(a, rWS, sWS, WS_BYTES)
    srd(a, rDBG, sDBG, 256)
    if not cfg.arr_w3:
        a.c("wave 7: clear this workgroup's inbox")
        a(f"s_cmp_lg_u32 s{sWAVE}, 7")
        a("s_cbranch_scc1 L_noclr")
        clear_inbox(a, cfg)
        a.label("L_noclr")
    ldW(1)
    srd(a, rK, sK, KV_BYTES)
    srd(a, rV, sV, KV_BYTES)
    srd(a, rWO, sWO, W_BYTES)
    srd(a, rOUT, sOUT, OUT_BYTES)
    a(f"""
    s_mul_i32 s{sKVB}, s{sLW}, 9216
    s_mul_i32 s{sT2}, s{sBH}, 36864
    s_add_u32 s{sT2}, s{sT2}, s{sKVB}
    """)
    for i in range(3):
        a(f"""
        v_mul_u32_u24 v6, 384, v{vK0[i]}
        v_add_u32 v6, s{sT2}, v6
        v_lshrrev_b32 v3, 1, v{vK0[i]}
        v_xor_b32 v4, v3, v{vCP[i]}
        v_xor_b32 v4, s{sT1}, v4
        v_lshl_add_u32 v{vKA[i]}, v4, 4, v6
        v_xor_b32 v4, 4, v4
        v_lshl_add_u32 v{vKB[i]}, v4, 4, v6
        v_and_b32 v3, 1, v3
        v_lshlrev_b32 v3, 2, v3
        v_xor_b32 v4, v3, v{vCP[i]}
        v_lshl_add_u32 v{vV[i]}, v4, 4, v6
        """)
    ldW(2); ldX(1); ldW(3); ldX(2)
    a.c("phase C / D loader addresses")
    a(f"""
    s_and_b32 s{sT1}, s{sLW}, 1
    s_lshr_b32 s{sT2}, s{sLW}, 1
    s_mul_i32 s{sWE}, s{sT2}, 40960
    s_mul_i32 s{sWM}, s{sLW}, 5120
    s_mul_i32 s{sT1}, s{sT1}, 320
    s_mul_i32 s{sT2}, s{sG}, {768*1280}
    s_mul_i32 s{sT3}, s{sJ}, 320
    s_add_u32 s{sT2}, s{sT2}, s{sT3}
    """)
    for i in range(5):
        a(f"""
        v_add_u32 v2, s{sT1}, v0
        v_add_u32 v2, {64*i}, v2
        v_mul_u32_u24 v3, 3277, v2
        v_lshrrev_b32 v3, 16, v3            ; row = t/20
        v_mul_u32_u24 v4, 20, v3
        v_sub_u32 v4, v2, v4                ; cp
        v_lshrrev_b32 v5, 1, v3
        v_and_b32 v5, 2, v5
        v_xor_b32 v4, v4, v5
        v_mul_u32_u24 v3, 1280, v3
        v_lshl_add_u32 v3, v4, 4, v3
        v_add_u32 v{vWO[i]}, s{sT2}, v3
        """)
    a(f"""
    s_mul_i32 s{sWK}, s{sJ}, {3*81920}
    s_mul_i32 s{sJ4}, s{sJ}, 3
    s_add_u32 s{sJ4}, s{sJ4}, 4
    s_mov_b32 s{sWC}, s{sB}
    s_mov_b32 s{sOC}, s{sB}
    v_lshlrev_b32 v7, 4, v0
    s_add_u32 s{sT1}, s{sWM}, {L_WO}
    v_add_u32 v{vSW[0]}, s{sT1}, v7
    v_add_u32 v{vSW[1]}, 40960, v{vSW[0]}
    s_add_u32 s{sT1}, s{sJ}, 1
    s_and_b32 s{sT1}, s{sT1}, 3
    s_mul_i32 s{sOK}, s{sT1}, {3*12288}
    s_mul_i32 s{sOM0}, s{sLW}, 3072
    s_lshl_b32 s{sT1}, s{sB}, 3
    s_add_u32 s{sT1}, s{sT1}, s{sG}
    s_mul_i32 s{sT1}, s{sT1}, 147456
    s_add_u32 s{sT1}, s{sT1}, s{sOM0}
    s_add_u32 s{sT1}, s{sT1}, {cfg.ws_o}
    v_add_u32 v{vOR}, s{sT1}, v7
    v_min_u32 v2, 11, v0
    v_lshlrev_b32 v2, 2, v2
    s_add_u32 s{sT1}, s{sINB}, 1024
    v_add_u32 v{vP1}, s{sT1}, v2
    v_min_u32 v2, 7, v0
    v_max_u32 v2, 1, v2
    v_add_u32 v2, s{sG}, v2
    v_and_b32 v2, 7, v2
    v_lshlrev_b32 v3, 7, v2
    v_add_u32 v{vP2}, s{sINB}, v3
    s_lshr_b32 s{sT1}, s2, 3
    s_lshl_b32 s{sT1}, s{sT1}, 2
    s_add_u32 s{sT1}, s{sT1}, s{sLW}
    s_mul_i32 s{sT1}, s{sT1}, 7680
    s_mul_i32 s{sT2}, s{sG}, 983040
    s_add_u32 s{sT1}, s{sT1}, s{sT2}
    v_min_u32 v2, 59, v0
    v_lshlrev_b32 v2, 7, v2
    v_add_u32 v{vPF}, s{sT1}, v2
    s_and_b32 s{sT0}, s{sG}, 1
    s_lshl_b32 s{sT0}, s{sT0}, 2
    s_add_u32 s{sU}, s{sT0}, s{sLW}
    s_lshl_b32 s{sT2}, s{sB}, 2
    s_add_u32 s{sT2}, s{sT2}, s{sJ}
    s_lshl_b32 s{sT2}, s{sT2}, 5
    s_lshr_b32 s{sT1}, s{sG}, 1
    s_add_u32 s{sT2}, s{sT2}, s{sT1}
    s_lshl_b32 s{sT2}, s{sT2}, 3
    s_add_u32 s{sT2}, s{sT2}, s{sU}
    s_lshl_b32 s{sT2}, s{sT2}, 10
    s_add_u32 s{sT2}, s{sT2}, {cfg.ws_p}
    v_add_u32 v{vDL}, s{sT2}, v7            ; + src*32768
    s_bfe_u32 s{sT0}, s{sG}, 0x10001        ; i
    s_lshr_b32 s{sT1}, s{sG}, 2             ; jq
    s_mul_i32 s{sT1}, s{sT1}, 48
    s_mul_i32 s{sT2}, s{sB}, 96
    s_add_u32 s{sT1}, s{sT1}, s{sT2}
    s_lshr_b32 s{sT2}, s{sU}, 1             ; t (u<6)
    s_cmp_eq_u32 s{sU}, 6
    s_cselect_b32 s{sT2}, 0, s{sT2}
    s_cmp_eq_u32 s{sU}, 7
    s_cselect_b32 s{sT2}, 2, s{sT2}
    s_lshl_b32 s{sT2}, s{sT2}, 4
    s_add_u32 s{sT1}, s{sT1}, s{sT2}
    s_mul_i32 s{sT1}, s{sT1}, 1280
    s_and_b32 s{sT2}, s{sU}, 1
    s_lshl_b32 s{sT2}, s{sT2}, 6
    s_mul_i32 s{sT3}, s{sT0}, 192           ; (80+16) columns * 2B * i
    s_add_u32 s{sT2}, s{sT2}, s{sT3}
    s_lshl_b32 s{sT3}, s{sT0}, 5
    s_add_u32 s{sT3}, s{sT3}, 128           ; (64 + 16 i) * 2B
    s_cmp_ge_u32 s{sU}, 6
    s_cselect_b32 s{sT2}, s{sT3}, s{sT2}
    s_add_u32 s{sT1}, s{sT1}, s{sT2}
    s_mul_i32 s{sT2}, s{sJ}, 320
    s_add_u32 s{sT1}, s{sT1}, s{sT2}
    v_and_b32 v2, 15, v0
    v_mul_u32_u24 v2, 1280, v2
    v_lshrrev_b32 v3, 4, v0
    v_lshl_add_u32 v2, v3, 3, v2
    v_add_u32 v{vDO}, s{sT1}, v2
    s_mov_b32 s{sDN}, 32
    s_cmp_eq_u32 s{sU}, 6
    s_cselect_b32 s{sDN}, {16*1280}, s{sDN}
    s_cmp_eq_u32 s{sU}, 7
    s_cselect_b32 s{sDN}, 16, s{sDN}
    """)
    stamp(a, cfg, 1)
    a.wait_vm(("W", 0), ("X", 0))
    a("s_barrier   ; P")
    stamp(a, cfg, 2)
    def arrive(n):
        if cfg.skip_arrive or cfg.arr_w3: return
        a.c("wave 7: inbox cleared (its stores are older than W1) -> arrive in d_debug")
        a(f"s_cmp_lg_u32 s{sWAVE}, 7")
        a(f"s_cbranch_scc1 L_noarr{n}")
        arrive_op(a, cfg)
        a.label(f"L_noarr{n}")
    def hs_read():
        a.c("have the 32 workgroups of this batch cleared their inboxes?  (read now, looked at before the V barrier)")
        a(f"""
        v_and_b32 v8, 7, v0
        v_lshlrev_b32 v8, 2, v8
        s_lshl_b32 s{sSPIN}, s{sB}, 5
        v_add_u32 v8, s{sSPIN}, v8
        """)
        if cfg.hs_w7:
            _lbl[0] += 1
            a(f"s_cmp_lg_u32 s{sWAVE}, 7")
            a(f"s_cbranch_scc1 L_nohsrd{_lbl[0]}")
            a(f"buffer_load_dword v9, v8, s[{rDBG}:{rDBG+3}], 0 offen sc1")
            a.label(f"L_nohsrd{_lbl[0]}")
            a.hs_pos = len(a.vm)
        else:
            a.vmem(f"buffer_load_dword v9, v8, s[{rDBG}:{rDBG+3}], 0 offen sc1", "hs")
    variants = cfg.kv_variants or [(cfg.k_sched, cfg.v_sched)]
    nv = len(variants)
    if nv > 1:
        a(f"s_lshr_b32 s{sT1}, s2, {cfg.kv_sel_shift}")
        a(f"s_and_b32 s{sT1}, s{sT1}, {nv-1}")
        for v in range(1, nv):
            a(f"s_cmp_eq_u32 s{sT1}, {v}")
            a(f"s_cbranch_scc1 L_kvvar{v}")
    vm0 = list(a.vm)
    for v, var in enumerate(variants):
        ksch, vsch = var[0], var[1]
        pfs = var[2] if len(var) > 2 else cfg.pf_at
        if v: a.label(f"L_kvvar{v}")
        a.vm = list(vm0)
        for s in range(19):
            a.wait_vm(("W", s + 1), ("X", (s + 1) >> 1))
            if s == cfg.arr_step: arrive(v)
            a(f"s_barrier   ; B{s}")
            if s + 4 < 20: ldW(s + 4)
            if s & 1 and (s >> 1) + 3 < 10: ldX((s >> 1) + 3)
            if cfg.wo_prefetch and pfs == s:
                a.vmem(f"buffer_load_dword v253, v{vPF}, s[{rWO}:{rWO+3}], 0 offen {cfg.polPF}", "pf")
            def pfk():
                if cfg.pf_k and ksch[-1] == s:
                    m = (1 << cfg.pf_k) - 1
                    a(f"s_mov_b32 exec_lo, {m & 0xffffffff:#x}")
                    a(f"s_mov_b32 exec_hi, {m >> 32:#x}")
                    a.vmem(f"buffer_load_dword v253, v{vPF}, s[{rWO}:{rWO+3}], 0 offen {cfg.polPF}", "pf")
                    a("s_mov_b64 exec, -1")
            if cfg.pf_first: pfk()
            for i, ss in enumerate(ksch):
                if ss == s: ldK(i)
            if not cfg.pf_first: pfk()
            if (cfg.hs_at == 'K' and ksch[-1] == s) or cfg.hs_at == s: hs_read()
            for i, ss in enumerate(vsch):
                if ss == s: ldV(i)
            if s in (4, 9, 14): stamp(a, cfg, 3 + (s - 4) // 5)
        a.wait_vm("K")
        if v < nv - 1: a("s_branch L_kvjoin")
    if nv > 1: a.label("L_kvjoin")
    stamp(a, cfg, 6)
    a("s_barrier   ; Q")
    a.vm = ["V"]
    def pf():
        if cfg.wo_prefetch:
            a.vmem(f"buffer_load_dword v253, v{vPF}, s[{rWO}:{rWO+3}], 0 offen {cfg.polPF}", "pf")
    if cfg.hs_at == 'Q': hs_read()
    def pf_part(lo, hi):
        m = ((1 << hi) - 1) ^ ((1 << lo) - 1)
        a(f"s_mov_b32 exec_lo, {m & 0xffffffff:#x}")
        a(f"s_mov_b32 exec_hi, {m >> 32:#x}")
        pf()
        a("s_mov_b64 exec, -1")
    if cfg.pf_at == "Q":
        if cfg.pf_split: pf_part(0, cfg.pf_split)
        elif cfg.pf_k:
            if cfg.pf_k < 60: pf_part(cfg.pf_k, 60)
        else: pf()
    nxt = 0
    def issue_upto(n):
        nonlocal nxt
        while nxt < n:
            ld_wo_pair(a, cfg, nxt); nxt += 1
    for p in range(2, cfg.early): assert p in cfg.staged
    issue_upto(cfg.early)
    if cfg.hs_w7:
        a(f"s_cmp_lg_u32 s{sWAVE}, 7")
        a("s_cbranch_scc1 L_nohs")
    save = list(a.vm)
    if cfg.hs_at == 'Q':
        if cfg.hs_w7:
            n = len(a.vm) - a.hs_pos
            a(f"s_waitcnt vmcnt({n})")
        else:
            a.wait_vm("hs")
            save = list(a.vm)
    def chk():
        if cfg.arr_byte:
            a(f"""
            v_and_b32 v4, 0x80808080, v9
            v_cmp_eq_u32 vcc, 0x80808080, v4
            s_cmp_eq_u64 vcc, -1
            """)
        else:
            a(f"""
            v_and_b32 v4, 7, v9
            v_cmp_eq_u32 vcc, 4, v4
            s_cmp_eq_u64 vcc, -1
            """)
    chk()
    if cfg.skip_arrive: a("s_cmp_eq_u32 0, 0")
    a("s_cbranch_scc1 L_hsok")
    poll(a, cfg, 8, rDBG, "0", 9, chk)
    a.label("L_hsok")
    a.vm = save
    a(f"""
    s_cmp_lg_u32 s{sWAVE}, 7
    s_cbranch_scc1 L_nohs
    v_readlane_b32 s{sT1}, v9, s{sG}
    """)
    if cfg.arr_byte:
        a(f"""
        s_and_b32 s{sT2}, s{sT1}, 0xff
        s_mul_i32 s{sT2}, s{sT2}, 0x01010101
        """)
    else:
        a(f"""
        s_bfe_u32 s{sT1}, s{sT1}, 0x100004
        s_and_b32 s{sT2}, s{sT1}, 15
        s_mul_i32 s{sT2}, s{sT2}, 0x1111
        """)
    a(f"""
    s_cmp_eq_u32 s{sT1}, s{sT2}
    s_cselect_b32 s{sT1}, {0 if cfg.force_slow else 1}, 0
    v_mov_b32 v2, {L_FLAG}
    v_mov_b32 v3, s{sT1}
    ds_write_b32 v2, v3
    buffer_load_dword v253, v{vP1}, s[{rWS}:{rWS+3}], 0 offen sc1
    s_waitcnt lgkmcnt(0)
    """)
    a.label("L_nohs")
    a.wait_vm("V")
    stamp(a, cfg, 8)
    a("s_barrier   ; V")
    if cfg.pf_at == "V": pf()
    if cfg.pf_at == "Q" and cfg.pf_split: pf_part(cfg.pf_split, 60)
    for p in (2, 3):
        if p in cfg.staged and p < nxt: put_wo_pair(a, cfg, p)
    issue_upto(cfg.mid)
    for p in (2, 3):
        if p in cfg.staged and not any(t == ("WOL", p) for t in a.lg) and p >= cfg.early: put_wo_pair(a, cfg, p)
    if cfg.pf_at == "V2": pf()
    stamp(a, cfg, 10)
    a.wait_vm(("WO", 0))
    stamp(a, cfg, 12)
    a("s_barrier   ; O1")
    stamp(a, cfg, 13)
    for p in range(max(nxt, 4), cfg.late): assert p in cfg.staged
    issue_upto(max(4, cfg.late))
    def chk1():
        a(f"v_cmp_eq_u32 vcc, 1, v3")
        a("s_cmp_eq_u64 vcc, -1")
    for p in range(11):
        if p in (1, 2): stamp(a, cfg, 21 + p)
        if p == 2:
            a.c("wait for the siblings' O tiles")
            poll(a, cfg, vP1, rWS, "0", 3, chk1)
            if cfg.stamps: a(f"v_writelane_b32 v255, s{sSPIN}, 30")
            stamp(a, cfg, 14)
            for pp in (3, 4, 5): ld_o_pair(a, cfg, pp)
        a.wait_vm(("WO", p + 1), ("O", p + 1))
        a.wait_lg(("WOL", p + 1))
        a(f"s_barrier   ; C{p}")
        if p + 4 < 12:
            issue_upto(p + 5)
            if p + 4 in cfg.staged: put_wo_pair(a, cfg, p + 4)
        if p >= 3 and p + 3 < 12: ld_o_pair(a, cfg, p + 3)
        if p in (2, 5, 8): stamp(a, cfg, 15 + (p - 2) // 3)
    stamp(a, cfg, 18)
    a.c("phase D")
    A = 48
    a("s_barrier   ; PD")
    stamp(a, cfg, 26)
    a(f"s_lshl_b32 s{sT0}, s{sLW}, 10")
    a(f"v_lshlrev_b32 v2, 4, v0")
    a(f"v_add_u32 v2, s{sT0}, v2")
    a.ds(f"ds_read_b128 v[16:19], v2 offset:{L_OWN}", "own")
    a(f"s_cmp_lg_u32 s{sWAVE}, 4")
    a("s_cbranch_scc1 L_nopoll2")
    if cfg.h2_delay: a(f"s_sleep {cfg.h2_delay}")
    def chk2():
        a(f"v_cmp_eq_u32 vcc, 1, v3")
        a("s_cmp_eq_u64 vcc, -1")
    if cfg.spoll2:
        a(f"""
        s_add_u32 s28, s{sWS}, s{sINB}
        s_addc_u32 s29, s{sWS+1}, 0
        s_mov_b32 s{sSPIN}, 0
        """)
        a.label("L_sp2")
        for k in range(8): a(f"s_load_dword s{32+k}, s[28:29], {k*128} glc")
        a("s_waitcnt lgkmcnt(0)")
        a(f"s_and_b32 s32, s32, s33")
        for k in range(2, 8): a(f"s_and_b32 s32, s32, s{32+k}")
        a(f"""
        s_cmp_eq_u32 s32, 1
        s_cbranch_scc1 L_nopoll2
        s_add_u32 s{sSPIN}, s{sSPIN}, 1
        s_cmp_lt_u32 s{sSPIN}, {cfg.spin_max}
        s_cbranch_scc1 L_sp2
        """)
        a.lg = []
    else:
        poll(a, cfg, vP2, rWS, "0", 3, chk2)
    a.label("L_nopoll2")
    a("s_barrier   ; PE")
    if cfg.stamps: a(f"v_writelane_b32 v255, s{sSPIN}, 31")
    stamp(a, cfg, 19)
    a(f"""
    s_cmp_eq_u32 s{sU}, 7
    s_cselect_b32 exec_hi, 0, -1
    """)
    a.vm = []
    for k in range(1, 8):
        a(f"""
        s_add_u32 s{sT0}, s{sG}, {k}
        s_and_b32 s{sT0}, s{sT0}, 7
        s_lshl_b32 s{sT0}, s{sT0}, 15
        """)
        a.vmem(f"buffer_load_dwordx4 {vr(16+4*k)}, v{vDL}, s[{rWS}:{rWS+3}], s{sT0} offen sc1", ("p", k))
    a(f"s_mov_b32 s{sT1}, 0xffff0000")
    for k in range(8):
        if k == 0: a.wait_lg_all()
        a.wait_vm(("p", k))
        for i in range(4):
            s = 16 + 4 * k + i
            if k == 0:
                a(f"v_lshlrev_b32 v{A+2*i}, 16, v{s}")
                a(f"v_and_b32 v{A+2*i+1}, s{sT1}, v{s}")
            else:
                a(f"v_lshlrev_b32 v{60+2*i}, 16, v{s}")
                a(f"v_and_b32 v{61+2*i}, s{sT1}, v{s}")
                a(f"v_add_f32 v{A+2*i}, v{A+2*i}, v{60+2*i}")
                a(f"v_add_f32 v{A+2*i+1}, v{A+2*i+1}, v{61+2*i}")
    stamp(a, cfg, 20)
    for i in range(4):
        a(f"v_cvt_pk_bf16_f32 v{16+i}, v{A+2*i}, v{A+2*i+1}")
    if cfg.out_x4:
        a.c("tile pairs: lanes kq 0|1 and 2|3 trade halves so that every lane holds 8 consecutive columns")
        a(f"""
        s_cmp_ge_u32 s{sU}, 6
        s_cbranch_scc1 L_outx2
        v_permlane16_swap_b32 v16, v18
        v_permlane16_swap_b32 v17, v19
        v_bfe_u32 v2, v0, 4, 1
        v_mul_u32_u24 v2, 24, v2
        v_add_u32 v2, v2, v{vDO}
        """)
        a(f"buffer_store_dwordx4 v[16:19], v2, s[{rOUT}:{rOUT+3}], 0 offen {cfg.polOut}")
        a("s_branch L_outdone")
        a.label("L_outx2")
    if not cfg.skip_out:
        a(f"buffer_store_dwordx2 v[16:17], v{vDO}, s[{rOUT}:{rOUT+3}], 0 offen {cfg.polOut}")
        a(f"buffer_store_dwordx2 v[18:19], v{vDO}, s[{rOUT}:{rOUT+3}], s{sDN} offen {cfg.polOut}")
    if cfg.out_x4: a.label("L_outdone")
    a("s_mov_b64 exec, -1")
    a("s_branch L_fin")


def computeA(a, cfg):
    a.label("L_computeA")
    a.reset()
    a(f"s_mov_b32 s{sROLE}, 0")
    if cfg.prefetch_code and not cfg.pf_code_early:
        a.c("wave w warms L2 with 8 KB of this kernel's code (one dword per 128-byte line)")
        a(f"s_getpc_b64 s[{sT2}:{sT2+1}]")
        a.label("L_pc")
        a(f"""
        s_sub_u32 s{sT2}, s{sT2}, L_pc-{KN}
        s_subb_u32 s{sT2+1}, s{sT2+1}, 0
        s_lshl_b32 s{sT0}, s{sWAVE}, 13
        v_lshlrev_b32 v2, 7, v0
        v_add_u32 v2, s{sT0}, v2
        v_min_u32 v2, L_end-{KN}, v2
        global_load_dword v253, v2, s[{sT2}:{sT2+1}]
        """)
    ACC = 16
    def acc(T, t): return ACC + (T * 6 + t) * 4
    SETA = [88, 124]; SETB = [100, 136]
    a.c("phase A addresses: v2=kq v3=r v4=c v5=n")
    a(f"""
    v_lshrrev_b32 v2, 4, v0
    v_bfe_u32 v3, v0, 2, 2
    v_and_b32 v4, 3, v0
    v_and_b32 v5, 15, v0
    v_lshlrev_b32 v6, 3, v2
    v_add_u32 v6, v6, v3                     ; k = 8kq + r
    v_mul_u32_u24 v6, 384, v6
    v_lshl_add_u32 v6, v4, 3, v6             ; k*384 + 8c
    v_lshrrev_b32 v7, 1, v3
    v_and_b32 v8, 1, v2
    v_lshl_or_b32 v7, v8, 1, v7              ; h(k)
    s_mul_i32 s{sT0}, s{sWAVE}, 3
    """)
    for T in range(3):
        a(f"""
        s_add_u32 s{sT1}, s{sT0}, {T}
        v_xor_b32 v8, s{sT1}, v7
        v_lshl_add_u32 v{vA[T]}, v8, 5, v6
        """)
    a(f"""
    v_lshrrev_b32 v6, 1, v5                  ; (n>>1)&7
    v_xor_b32 v6, v6, v2
    v_lshlrev_b32 v6, 4, v6
    v_lshl_add_u32 v6, v5, 7, v6
    v_add_u32 v{vXe}, {L_X}, v6
    v_xor_b32 v{vXo}, 64, v{vXe}
    v_lshrrev_b32 v6, 1, v2
    v_lshlrev_b32 v6, 9, v6
    v_lshl_add_u32 v6, v5, 4, v6
    v_and_b32 v7, 1, v2
    v_lshl_add_u32 v6, v7, 3, v6
    s_mul_i32 s{sT0}, s{sWAVE}, 3072
    v_add_u32 v{vQW}, s{sT0}, v6
    v_lshlrev_b32 v{vL16}, 4, v0
    v_mov_b32 v{vONE}, 1
    v_and_b32 v6, 31, v0
    v_lshrrev_b32 v7, 5, v0
    v_bfe_u32 v8, v0, 1, 3                   ; (m>>1)&7
    v_xor_b32 v8, v8, v7
    v_mul_u32_u24 v9, 384, v6
    v_lshl_add_u32 v9, v8, 4, v9
    v_add_u32 v{vK0c}, {L_K}, v9
    v_lshl_add_u32 v8, v7, 2, v3
    v_mul_u32_u24 v8, 384, v8
    v_lshl_add_u32 v8, v4, 3, v8             ; + 8c
    v_and_b32 v9, 2, v3                      ; hh
    v_and_b32 v6, 1, v2                      ; dh
    v_or_b32 v9, v9, v6
    v_lshl_add_u32 v8, v9, 5, v8
    v_add_u32 v{vV0}, {L_V}, v8
    v_lshlrev_b32 v8, 10, v6                 ; (n>>4)*1024
    v_lshl_add_u32 v8, v7, 8, v8             ; + hi*256
    v_lshl_add_u32 v8, v5, 4, v8             ; + (n&15)*16
    s_lshl_b32 s{sT0}, s{sWAVE}, 11
    v_add_u32 v{vOL}, s{sT0}, v8
    s_lshl_b32 s{sT2}, s{sB}, 3
    s_add_u32 s{sT2}, s{sT2}, s{sG}
    s_lshl_b32 s{sT2}, s{sT2}, 2
    s_add_u32 s{sT2}, s{sT2}, s{sJ}
    s_mul_i32 s{sOB}, s{sT2}, 36864
    s_add_u32 s{sOB}, s{sOB}, {cfg.ws_o}
    s_lshl_b32 s{sT2}, s{sJ}, 11
    s_sub_u32 s{sT2}, s{sINB}, s{sT2}
    s_add_u32 s{sT2}, s{sT2}, 1024
    s_mul_i32 s{sT3}, s{sJ}, 12
    s_add_u32 s{sT2}, s{sT2}, s{sT3}
    s_lshl_b32 s{sT3}, s{sWAVE}, 2
    s_add_u32 s{sT2}, s{sT2}, s{sT3}
    v_lshlrev_b32 v8, 11, v4
    v_add_u32 v{vF1}, s{sT2}, v8
    s_and_b32 s{sI}, s{sWAVE}, 1
    s_lshr_b32 s{sJQ}, s{sWAVE}, 1
    v_lshrrev_b32 v6, 1, v2
    v_lshlrev_b32 v6, 4, v6
    v_and_b32 v7, 1, v2
    v_lshl_add_u32 v6, v7, 2, v6
    v_add_u32 v6, v6, v3
    v_mul_u32_u24 v6, 320, v6
    v_lshl_add_u32 v6, v4, 3, v6
    v_add_u32 v6, {L_WO}, v6
    s_mul_i32 s{sT0}, s{sI}, 5
    """)
    a.c("local tile T is column tile 5i + (T+i) mod 5: tiles (0,1) and (2,3) pair up, tile 4 is the odd one")
    for T in range(5):
        a(f"s_add_u32 s{sT1}, s{sI}, {T}")
        if T == 4:
            a(f"s_cmp_eq_u32 s{sT1}, 5")
            a(f"s_cselect_b32 s{sT1}, 0, s{sT1}")
        a(f"""
        s_add_u32 s{sT1}, s{sT1}, s{sT0}
        v_xor_b32 v8, s{sT1}, v7
        v_lshl_add_u32 v{vCA0[T]}, v8, 5, v6
        """)
    a(f"""
    s_lshl_b32 s{sT0}, s{sB}, 2
    s_add_u32 s{sT0}, s{sT0}, s{sJ}
    s_lshl_b32 s{sT0}, s{sT0}, 3
    s_add_u32 s{sT0}, s{sT0}, s{sG}
    s_lshl_b32 s{sT0}, s{sT0}, 2
    s_add_u32 s{sT0}, s{sT0}, s{sWAVE}
    s_lshl_b32 s{sT0}, s{sT0}, 13
    s_add_u32 s{sPS}, s{sT0}, {cfg.ws_p}
    s_lshl_b32 s{sT0}, s{sB}, 5
    s_lshl_b32 s{sT1}, s{sWAVE}, 3
    s_add_u32 s{sT0}, s{sT0}, s{sT1}
    s_add_u32 s{sT0}, s{sT0}, s{sJ}
    s_lshl_b32 s{sT0}, s{sT0}, 11
    s_lshl_b32 s{sT1}, s{sG}, 7
    s_add_u32 s{sT0}, s{sT0}, s{sT1}
    s_add_u32 s{sT0}, s{sT0}, {cfg.ws_in}
    """)
    if cfg.flag_line:
        a(f"""
        v_bfe_u32 v3, v0, 3, 1
        v_lshlrev_b32 v3, 13, v3
        v_and_b32 v6, 7, v0
        v_lshl_add_u32 v3, v6, 4, v3
        v_add_u32 v{vF2}, s{sT0}, v3
        """)
    else:
        a(f"""
        v_and_b32 v3, 1, v0
        v_lshlrev_b32 v3, 13, v3
        v_add_u32 v{vF2}, s{sT0}, v3
        """)
    wait_kernarg(a, cfg)
    srd(a, rWS, sWS, WS_BYTES)
    if cfg.arr_w3:
        a.c("wave 3: clear this workgroup's inbox, then arrive in d_debug")
        a(f"s_cmp_lg_u32 s{sWAVE}, 3")
        a("s_cbranch_scc1 L_noclr")
        srd(a, rDBG, sDBG, 256)
        clear_inbox(a, cfg)
        a("s_waitcnt vmcnt(0)")
        if not cfg.skip_arrive: arrive_op(a, cfg)
        a.label("L_noclr")
    if cfg.pretouch:
        a.c("wave 1 touches the pages used later so that their translations are resident")
        a(f"""
        s_cmp_lg_u32 s{sWAVE}, 1
        s_cbranch_scc1 L_notouch
        """)
        srd(a, rK, sK, KV_BYTES); srd(a, rV, sV, KV_BYTES); srd(a, rWO, sWO, W_BYTES); srd(a, rOUT, sOUT, OUT_BYTES)
        a(f"""
        s_mov_b64 exec, 3
        v_mul_u32_u24 v2, 36860, v0
        s_mul_i32 s{sT0}, s{sBH}, 36864
        buffer_load_dword v253, v2, s[{rK}:{rK+3}], s{sT0} offen nt
        buffer_load_dword v253, v2, s[{rV}:{rV+3}], s{sT0} offen nt
        v_mul_u32_u24 v2, 983036, v0
        s_mul_i32 s{sT0}, s{sG}, 983040
        buffer_load_dword v253, v2, s[{rWO}:{rWO+3}], s{sT0} offen
        buffer_load_dword v253, v2, s[{rOUT}:{rOUT+3}], 0 offen nt
        buffer_load_dword v253, v{vL16}, s[{rWS}:{rWS+3}], s{sOB} offen nt
        buffer_load_dword v253, v{vL16}, s[{rWS}:{rWS+3}], s{sPS} offen nt
        s_mov_b64 exec, -1
        """)
        a.label("L_notouch")
    stamp(a, cfg, 1)

    def reads(s):
        st = s & 1
        wo = L_W + (s % 4) * 12288
        xo = ((s >> 1) % 3) * 12288
        vx = vXo if s & 1 else vXe
        R = []
        def ra(T):
            R.append((f"ds_read_b64_tr_b16 {vr(SETA[st]+4*T, 2)}, v{vA[T]} offset:{wo}", ("A", s, T)))
            R.append((f"ds_read_b64_tr_b16 {vr(SETA[st]+4*T+2, 2)}, v{vA[T]} offset:{wo+1536}", ("A", s, T)))
        ra(0)
        for t in range(6):
            R.append((f"ds_read_b128 {vr(SETB[st]+4*t)}, v{vx} offset:{xo + t*2048}", ("B", s, t)))
        ra(1); ra(2)
        return R

    a("s_barrier   ; P")
    stamp(a, cfg, 2)
    for ins, tag in reads(0): a.ds(ins, tag)
    def qwrite(T, t):
        d = acc(T, t)
        tmp = 88 + ((T * 6 + t) % 8) * 2
        return [f"v_cvt_pk_bf16_f32 v{tmp}, v{d}, v{d+1}", f"v_cvt_pk_bf16_f32 v{tmp+1}, v{d+2}, v{d+3}",
                ("ds", f"ds_write_b64 v{vQW}, {vr(tmp, 2)} offset:{L_Q + 1024*T + 12288*(t >> 1) + 256*(t & 1)}")]
    for s in range(20):
        a.wait_lg_all()
        if s < 19:
            a(f"s_barrier   ; B{s}")
        R = reads(s + 1) if s < 19 else []
        st = s & 1
        m = 0
        qq = []
        for T in range(3):
            for t in range(6):
                a(mfma(acc(T, t), SETA[st] + 4 * T, SETB[st] + 4 * t, first=(s == 0)))
                if m < len(R): a.ds(*R[m])
                if s == 19:
                    if m >= cfg.q_lag:
                        T2, t2 = divmod(m - cfg.q_lag, 6)
                        qq += qwrite(T2, t2)
                    for _ in range(cfg.q_rate):
                        if qq:
                            x = qq.pop(0)
                            a.ds(x[1], "qw") if isinstance(x, tuple) else a(x)
                m += 1
        if s in (4, 9, 14): stamp(a, cfg, 3 + (s - 4) // 5)
    stamp(a, cfg, 6)
    a.c("Q -> bf16 -> LDS (fragment-major)")
    for m in range(18 - cfg.q_lag, 18): qq += qwrite(*divmod(m, 6))
    for x in qq:
        a.ds(x[1], "qw") if isinstance(x, tuple) else a(x)
    a.wait_lg_all()
    a("s_barrier   ; Q")
    a(f"""
    s_cmp_lt_u32 s{sWAVE}, 3
    s_cbranch_scc1 L_phaseB
    s_barrier   ; V
    s_barrier   ; O1
    s_branch L_computeC
    """)


def phaseB(a, cfg):
    a.label("L_phaseB")
    a.reset()
    if cfg.prio_b: a(f"s_setprio {cfg.prio_b}")
    S = 16; QF = 72; KF = 120; P = 64; VF = 88; O = 136; OB = 184
    vQR = 10; vKa = [vK0c, 11, 12, 13]; vVa = [vV0, 14]
    M, T1 = 2, 3
    N = [4, 5, 6]; LA = [7, 9, 10]; LB = [8, 15, 11]
    sC2 = sSTAMP + 8
    stamp(a, cfg, 7)
    a(f"s_mul_i32 s{sT0}, s{sWAVE}, 12288")
    a(f"v_add_u32 v{vQR}, s{sT0}, v{vL16}")
    def qread(ks): a.ds(f"ds_read_b128 {vr(QF+4*ks)}, v{vQR} offset:{L_Q + ks*1024}", ("Q", ks))
    def kread(i):
        kt, ks = divmod(i, 12)
        a.ds(f"ds_read_b128 {vr(KF + 4*(i % 4))}, v{vKa[ks & 3]} offset:{kt*12288 + (ks >> 2)*128}", ("K", i))
    qread(0); kread(0)
    for x in range(1, 4): a(f"v_xor_b32 v{vKa[x]}, {32*x}, v{vK0c}")
    qread(1); kread(1); qread(2); kread(2); kread(3)
    a(f"v_xor_b32 v{vVa[1]}, 64, v{vV0}")
    a(f"s_mov_b32 s{sC2}, {f32hex(SCALE)}")
    a(f"s_mov_b32 s{sC2+1}, {f32hex(SCALE)}")
    def maxops(kt):
        b = S + 16 * kt
        r = []
        if kt == 0:
            r.append(f"v_max3_f32 v{M}, v{b}, v{b+1}, v{b+2}"); r.append(f"v_max3_f32 v{T1}, v{b+3}, v{b+4}, v{b+5}")
            rest = list(range(6, 16))
        else:
            r.append(f"v_max3_f32 v{T1}, v{b}, v{b+1}, v{b+2}")
            rest = list(range(3, 16))
        tog = 0
        while len(rest) >= 2:
            d = (M, T1)[tog]; tog ^= 1
            r.append(f"v_max3_f32 v{d}, v{d}, v{b+rest[0]}, v{b+rest[1]}"); rest = rest[2:]
        if rest: r.append(f"v_max3_f32 v{M}, v{M}, v{T1}, v{b+rest[0]}")
        else: r.append(f"v_max_f32 v{M}, v{M}, v{T1}")
        r += [f"v_mov_b32 v{T1}, v{M}", "s_nop 1", f"v_permlane32_swap_b32 v{M}, v{T1}", f"v_max_f32 v{M}, v{M}, v{T1}",
              f"v_mul_f32 v{N[kt]}, {f32hex(-SCALE)}, v{M}"]
        return r
    def expops(kt):
        b = S + 16 * kt
        r = []
        for i in range(16 + 3):
            if i < 16: r.append(f"v_fmamk_f32 v{b+i}, v{b+i}, {f32hex(SCALE)}, v{N[kt]}")
            if 1 <= i <= 16: r.append(f"v_exp_f32 v{b+i-1}, v{b+i-1}")
            j = i - 3
            if j == 1: r.append(f"v_add_f32 v{LA[kt]}, v{b}, v{b+1}")
            elif j == 3: r.append(f"v_add_f32 v{LB[kt]}, v{b+2}, v{b+3}")
            elif j >= 4: r.append(f"v_add_f32 v{(LA if j % 2 == 0 else LB)[kt]}, v{(LA if j % 2 == 0 else LB)[kt]}, v{b+j}")
        return r
    fill = []
    for i in range(36):
        kt, ks = divmod(i, 12)
        if i % 2 == 0: a.wait_lg(("Q", ks), ("K", i), ("Q", ks + 1), ("K", i + 1))
        a(mfma32(S + 16 * kt, KF + 4 * (i % 4), QF + 4 * ks, first=(ks == 0)))
        if i + 4 < 36: kread(i + 4)
        if i + 3 < 12: qread(i + 3)
        if i == 14: fill += maxops(0) + expops(0)
        if i == 26: fill += maxops(1) + expops(1)
        for _ in range(cfg.fill_s):
            if fill: a(fill.pop(0))
    stamp(a, cfg, 8)
    a("s_barrier   ; V")
    stamp(a, cfg, 9)
    def vread(i):
        Td, s = divmod(i, 6)
        for e in range(2):
            a.ds(f"ds_read_b64_tr_b16 {vr(VF + 4*(i % 12) + 2*e, 2)}, v{vVa[Td & 1]} offset:{(Td >> 1)*128 + s*6144 + e*3072}", ("V", i))
    NV = cfg.nv_pv
    for i in range(NV): vread(i)
    a(f"v_mov_b32 v1, {L_FLAG}")
    a.ds("ds_read_b32 v1, v1", "fast")
    for x in fill + maxops(2): a(x)
    b = S + 32
    a(f"v_sub_f32 v{N[0]}, v{N[2]}, v{N[0]}")
    a(f"v_sub_f32 v{N[1]}, v{N[2]}, v{N[1]}")
    for i in range(0, 16, 2):
        a(f"v_pk_fma_f32 v[{b+i}:{b+i+1}], v[{b+i}:{b+i+1}], s[{sC2}:{sC2+1}], v[{N[2]}:{N[2]+1}] op_sel_hi:[1,1,0]")
    a(f"v_exp_f32 v{N[0]}, v{N[0]}")
    a(f"v_exp_f32 v{N[1]}, v{N[1]}")
    a(f"v_add_f32 v{LA[0]}, v{LA[0]}, v{LB[0]}")
    a(f"v_add_f32 v{LA[1]}, v{LA[1]}, v{LB[1]}")
    for i in range(16):
        a(f"v_exp_f32 v{b+i}, v{b+i}")
    a(f"v_mul_f32 v{LA[0]}, v{LA[0]}, v{N[0]}")
    a(f"v_fmac_f32 v{LA[0]}, v{LA[1]}, v{N[1]}")
    a(f"v_pk_add_f32 v[{LA[2]}:{LA[2]+1}], v[{b}:{b+1}], v[{b+2}:{b+3}]")
    a(f"v_pk_add_f32 v[{M}:{M+1}], v[{b+4}:{b+5}], v[{b+6}:{b+7}]")
    for i in range(8, 16, 4):
        a(f"v_pk_add_f32 v[{LA[2]}:{LA[2]+1}], v[{LA[2]}:{LA[2]+1}], v[{b+i}:{b+i+1}]")
        a(f"v_pk_add_f32 v[{M}:{M+1}], v[{M}:{M+1}], v[{b+i+2}:{b+i+3}]")
    a(f"v_pk_add_f32 v[{M}:{M+1}], v[{M}:{M+1}], v[{LA[2]}:{LA[2]+1}]")
    a(f"v_add_f32 v{M}, v{M}, v{T1}")
    a(f"v_add_f32 v{M}, v{M}, v{LA[0]}")
    a(f"v_mov_b32 v{T1}, v{M}")
    a(f"v_permlane32_swap_b32 v{M}, v{T1}")
    a(f"v_add_f32 v{M}, v{M}, v{T1}")
    a(f"v_rcp_f32 v{N[2]}, v{M}")
    a.wait_lg("fast")
    a(f"v_readfirstlane_b32 s{sFAST}, v1")
    a(f"v_mul_f32 v{N[0]}, v{N[0]}, v{N[2]}")
    a(f"v_mul_f32 v{N[1]}, v{N[1]}, v{N[2]}")
    a(f"s_cmp_lg_u32 s{sFAST}, 0")
    a("s_cselect_b64 vcc, -1, 0")
    for s in range(6):
        kt = s >> 1
        g = N[kt]
        pair, sel = (g & ~1, g & 1)
        b = S + 8 * s
        for i in range(0, 8, 2):
            a(f"v_pk_mul_f32 v[{b+i}:{b+i+1}], v[{b+i}:{b+i+1}], v[{pair}:{pair+1}] op_sel:[0,{sel}] op_sel_hi:[1,{sel}]")
        for i in range(4):
            a(f"v_cvt_pk_bf16_f32 v{P+4*s+i}, v{b+2*i}, v{b+2*i+1}")
    stamp(a, cfg, 10)
    nst = [0]
    def epi(Td):
        d = O + 16 * (Td % 3)
        r = []
        for e in range(2):
            o = OB + (2 * (Td % 2) + e) * 4
            for i in range(4): r.append(f"v_cvt_pk_bf16_f32 v{o+i}, v{d+8*e+2*i}, v{d+8*e+2*i+1}")
            r.append(("ds", f"ds_write_b128 v{vOL}, {vr(o)} offset:{L_OWN + Td*6144 + e*512}"))
            if not cfg.skip_ostore:
                nst[0] += 1
                n = nst[0]
                st = f"buffer_store_dwordx4 {vr(o)}, v{vOL}, s[{rWS}:{rWS+3}], s{sT0} offen"
                fpol = cfg.o_fast_pol if Td < cfg.plain_from else ""
                if fpol in ("sc1", "sc0 sc1"):
                    r.append(("blk", f"s_add_u32 s{sT0}, s{sOB}, {Td*6144 + e*512}\n{st} sc0 sc1"))
                else:
                    r.append(("blk", f"s_add_u32 s{sT0}, s{sOB}, {Td*6144 + e*512}\ns_cbranch_vccnz L_os{n}\n{st} sc0 sc1\ns_branch L_od{n}\nL_os{n}:\n{st} {fpol}\nL_od{n}:"))
        return r
    def emit(x):
        if isinstance(x, tuple):
            if x[0] == "ds": a.ds(x[1], "ow")
            else: a(x[1])
        else: a(x)
    fill = []
    for i in range(36):
        Td, s = divmod(i, 6)
        if cfg.fine and s == 0: a(f"s_memtime s[{28 + 2*Td}:{29 + 2*Td}]")
        if i % 2 == 0: a.wait_lg(("V", i), ("V", i + 1))
        a(mfma32(O + 16 * (Td % 3), VF + 4 * (i % 12), P + 4 * s, first=(s == 0)))
        if i + NV < 36: vread(i + NV)
        if Td >= 1 and s == 3: fill += epi(Td - 1)
        for _ in range(cfg.fill_pv):
            if fill: emit(fill.pop(0))
    if cfg.fine:
        a("s_memtime s[40:41]")
        a("s_waitcnt lgkmcnt(0)")
        for k in range(7): a(f"v_writelane_b32 v255, s{28 + 2*k}, {40 + k}")
    stamp(a, cfg, 11)
    for x in fill + epi(5): emit(x)
    stamp(a, cfg, 27)
    a.wait_lg_all()
    stamp(a, cfg, 12)
    a("s_barrier   ; O1")
    a.c("falls through into phase C")


def computeC(a, cfg):
    a.label("L_computeC")
    a.reset()
    if cfg.prio_c: a(f"s_setprio {cfg.prio_c}")
    ACC = 16
    def acc(T, t): return ACC + (T * 3 + t) * 4
    SETA = [76, 96]; SETB = [116, 128]
    vCA = [vCA0, vCA1]
    a(f"s_mul_i32 s{sT0}, s{sJQ}, 3072")
    a(f"v_add_u32 v{vCB[0]}, s{sT0}, v{vL16}")
    def reads(u):
        st = u & 1
        p = u >> 1
        hi, sl = divmod(p % 4, 2)
        so = sl * 20480 + (u & 1) * 10240
        if u < 6:
            vb, bo = vCB[0], L_OWN + u * 6144
        else:
            vb, bo = vCB[1], ((p - 3) % 3) * 12288 + (u & 1) * 6144
        R = []
        def ra(T):
            R.append((f"ds_read_b64_tr_b16 {vr(SETA[st]+4*T, 2)}, v{vCA[hi][T]} offset:{so}", ("A", u, T)))
            R.append((f"ds_read_b64_tr_b16 {vr(SETA[st]+4*T+2, 2)}, v{vCA[hi][T]} offset:{so+2560}", ("A", u, T)))
        ra(0)
        for t in range(3):
            R.append((f"ds_read_b128 {vr(SETB[st]+4*t)}, v{vb} offset:{bo + t*1024}", ("B", u, t)))
        for T in range(1, 5): ra(T)
        return R
    U = 76
    def cv(dst, d):
        return [f"v_cvt_pk_bf16_f32 v{dst}, v{d}, v{d+1}", f"v_cvt_pk_bf16_f32 v{dst+1}, v{d+2}, v{d+3}"]
    def unit(u):
        t, pi = divmod(u, 2)
        return cv(UR[u], acc(2 * pi, t)) + cv(UR[u] + 2, acc(2 * pi + 1, t))
    UR = [76, 96, 80, 100, 84, 104, 108, 112]
    tailcv = unit(0) + unit(2) + unit(4)
    def h1_flag():
        a.c("waves 0-2 publish their O tile once its stores have drained")
        stamp(a, cfg, 22)
        a(f"""
        s_cmp_eq_u32 s{sWAVE}, 3
        s_cbranch_scc1 L_f1done
        s_waitcnt vmcnt(0)
        s_mov_b64 exec, 15
        s_cmp_lg_u32 s{sFAST}, 0
        s_cbranch_scc1 L_f1fast
        buffer_store_dword v{vONE}, v{vF1}, s[{rWS}:{rWS+3}], 0 offen sc0 sc1
        s_branch L_f1ex
        """)
        a.label("L_f1fast")
        a(f"buffer_store_dword v{vONE}, v{vF1}, s[{rWS}:{rWS+3}], 0 offen")
        a.label("L_f1ex")
        a("s_mov_b64 exec, -1")
        a.label("L_f1done")
        stamp(a, cfg, 23)
    if cfg.c_loop:
        vAc = vCA1; vBc = vCB[1]
        sSL, sBO, sCNT = 28, 29, 30
        def rd(u, par, va, vb):
            st = u & 1
            R = []
            def ra(T):
                R.append((f"ds_read_b64_tr_b16 {vr(SETA[st]+4*T, 2)}, v{va[T]} offset:{par*10240}", ("A", u, T)))
                R.append((f"ds_read_b64_tr_b16 {vr(SETA[st]+4*T+2, 2)}, v{va[T]} offset:{par*10240+2560}", ("A", u, T)))
            ra(0)
            for t in range(3): R.append((f"ds_read_b128 {vr(SETB[st]+4*t)}, v{vb} offset:{par*6144 + t*1024}", ("B", u, t)))
            for T in range(1, 5): ra(T)
            return R
        def step(u, R, first=False, tail=False):
            st = u & 1
            m = 0
            for T in range(5):
                for t in range(3):
                    a.wait_lg(("A", u, T), ("B", u, t))
                    a(mfma(acc(T, t), SETA[st] + 4 * T, SETB[st] + 4 * t, first=first))
                    if m < len(R): a.ds(*R[m])
                    if tail and m >= 9:
                        for _ in range(2): a(tailcv.pop(0))
                    m += 1
        def advance():
            a(f"""
            s_add_u32 s{sSL}, s{sSL}, 20480
            s_cmp_eq_u32 s{sSL}, 81920
            s_cselect_b32 s{sSL}, 0, s{sSL}
            s_add_u32 s{sBO}, s{sBO}, 12288
            s_cmp_eq_u32 s{sBO}, {L_OWN + 36864}
            s_cselect_b32 s{sBO}, {L_OR}, s{sBO}
            s_cmp_eq_u32 s{sBO}, {L_OR + 36864}
            s_cselect_b32 s{sBO}, {L_OR}, s{sBO}
            v_add_u32 v{vAc[0]}, s{sSL}, v{vCA0[0]}
            v_add_u32 v{vBc}, s{sBO}, v{vCB[0]}
            """)
            for T in range(1, 5): a(f"v_add_u32 v{vAc[T]}, s{sSL}, v{vCA0[T]}")
        stamp(a, cfg, 13)
        for ins, tag in rd(0, 0, vCA0, vCB[0]): a.ds(ins, tag)
        a(f"s_mov_b32 s{sSL}, 0")
        a(f"s_mov_b32 s{sBO}, {L_OWN}")
        a(f"s_mov_b32 s{sCNT}, 0")
        step(0, rd(1, 1, vCA0, vCB[0]), first=True)
        advance()
        h1_flag()
        a.label("L_cloop")
        a.wait_lg_all()
        a("s_barrier   ; C0..C9")
        step(1, rd(2, 0, vAc, vBc))
        step(2, rd(3, 1, vAc, vBc))
        advance()
        a(f"""
        s_add_u32 s{sCNT}, s{sCNT}, 1
        s_cmp_lt_u32 s{sCNT}, 10
        s_cbranch_scc1 L_cloop
        """)
        a.wait_lg_all()
        a("s_barrier   ; C10")
        step(21, rd(22, 0, vAc, vBc))
        step(22, rd(23, 1, vAc, vBc))
        step(23, [], tail=True)
    else:
        stamp(a, cfg, 13)
        for ins, tag in reads(0): a.ds(ins, tag)
        a(f"v_add_u32 v{vCB[1]}, {L_OR}, v{vCB[0]}")
        for T in range(5): a(f"v_add_u32 v{vCA1[T]}, 40960, v{vCA0[T]}")
        for u in range(24):
            if u & 1 and u < 23:
                a.wait_lg_all()
                a(f"s_barrier   ; C{u >> 1}")
            R = reads(u + 1) if u < 23 else []
            st = u & 1
            m = 0
            for T in range(5):
                for t in range(3):
                    if cfg.c_wait is None: a.wait_lg(("A", u, T), ("B", u, t))
                    elif t == 0 and T in cfg.c_wait:
                        nxt = min([x for x in cfg.c_wait if x > T] + [5])
                        a.wait_lg(*[("A", u, x) for x in range(T, nxt)], *[("B", u, x) for x in range(3)])
                    a(mfma(acc(T, t), SETA[st] + 4 * T, SETB[st] + 4 * t, first=(u == 0)))
                    if m < len(R): a.ds(*R[m])
                    if u == 23 and m >= 9:
                        for _ in range(2): a(tailcv.pop(0))
                    m += 1
            if u == cfg.h1_flag_step: h1_flag()
            if u in (2, 3): stamp(a, cfg, 22 + u)
            if u in (5, 11, 17): stamp(a, cfg, 15 + (u - 5) // 6)
    stamp(a, cfg, 18)
    a.c("partials, 8 units per wave: 6 tile pairs, the odd tile of q tiles 0|1, the odd tile of q tile 2 (32 lanes)")
    a(f"s_lshr_b32 s{sT1}, s{sG}, 1")
    a(f"s_and_b32 s{sT2}, s{sG}, 1")
    for half in range(2):
        if half == 0:
            for x in unit(1) + unit(3): a(x)
        else:
            for x in unit(5) + cv(UR[6], acc(4, 0)) + cv(UR[6] + 2, acc(4, 1)) + cv(UR[7], acc(4, 2)): a(x)
            a(f"v_permlane32_swap_b32 v{UR[7]}, v{UR[7]+2}")
            a(f"v_permlane32_swap_b32 v{UR[7]+1}, v{UR[7]+3}")
        a(f"""
        s_cmp_lg_u32 s{sT1}, s{sWAVE}
        s_cbranch_scc1 L_rem{half}
        s_cmp_lg_u32 s{sT2}, {half}
        s_cbranch_scc1 L_rem{half}
        """)
        for k in range(4):
            a(f"ds_write_b128 v{vL16}, {vr(UR[4*half + k])} offset:{L_OWN + k*1024}")
        a(f"s_branch L_remdone{half}")
        a.label(f"L_rem{half}")
        for k in range(4):
            u = 4 * half + k
            if u == 7: a("s_mov_b32 exec_hi, 0")
            a(f"s_add_u32 s{sT0}, s{sPS}, {u*1024}")
            a(f"buffer_store_dwordx4 {vr(UR[u])}, v{vL16}, s[{rWS}:{rWS+3}], s{sT0} offen sc0 sc1")
            if u == 7: a("s_mov_b32 exec_hi, -1")
        a.label(f"L_remdone{half}")
    stamp(a, cfg, 19)
    a("s_waitcnt lgkmcnt(0)")
    if not cfg.pd_late: a("s_barrier   ; PD")
    if cfg.flag_line:
        for i in range(4): a(f"v_mov_b32 v{140+i}, 1")
    a("s_waitcnt vmcnt(0)")
    stamp(a, cfg, 20)
    if cfg.flag_line:
        a(f"""
        s_mov_b64 exec, 0xffff
        buffer_store_dwordx4 v[140:143], v{vF2}, s[{rWS}:{rWS+3}], 0 offen sc0 sc1
        s_mov_b64 exec, -1
        """)
    else:
        a(f"""
        s_mov_b64 exec, 3
        buffer_store_dword v{vONE}, v{vF2}, s[{rWS}:{rWS+3}], 0 offen sc0 sc1
        s_mov_b64 exec, -1
        """)
    if cfg.pd_late: a("s_barrier   ; PD")


def build(cfg, header=""):
    _lbl[0] = 0
    a = Asm()
    if header: a.raw(header.rstrip("\n"))
    a.raw(f"; @launch grid=(256,1,1) block=(512,1,1) lds={LDS_BYTES}")
    a.raw(DOC.rstrip("\n"))
    a.raw('.amdgcn_target "amdgcn-amd-amdhsa--gfx950"\n.text')
    prologue(a, cfg)
    loader(a, cfg)
    computeA(a, cfg)
    phaseB(a, cfg)
    computeC(a, cfg)
    a.label("L_fin")
    stamp(a, cfg, 21)
    if cfg.amp:
        w, ia, ib, A = cfg.amp
        a(f"""
        s_cmp_lg_u32 s{sWAVE}, {w}
        s_cbranch_scc1 L_noamp
        v_readlane_b32 s{sT0}, v255, {ia}
        v_readlane_b32 s{sT1}, v255, {ib}
        s_sub_u32 s{sT0}, s{sT1}, s{sT0}
        s_mul_i32 s{sT0}, s{sT0}, {A}
        s_memtime s[{sSTAMP}:{sSTAMP+1}]
        s_waitcnt lgkmcnt(0)
        s_add_u32 s{sT0}, s{sT0}, s{sSTAMP}
        """)
        a.label("L_amp")
        a(f"""
        s_memtime s[{sSTAMP}:{sSTAMP+1}]
        s_waitcnt lgkmcnt(0)
        s_sub_u32 s{sT1}, s{sSTAMP}, s{sT0}
        s_cmp_lt_i32 s{sT1}, 0
        s_cbranch_scc1 L_amp
        """)
        a.label("L_noamp")
    elif cfg.stamps:
        stamp_flush(a, cfg)
    a.label("L_end")
    a("s_endpgm")
    a.raw(kernel_desc(KN))
    return a.text()


def make(**kw):
    cfg = Cfg()
    for k, v in kw.items():
        assert hasattr(cfg, k), k
        setattr(cfg, k, v)
    header = open("cdna_kernels/" + NAME + ".s.ref").read().split("; Override launch")[0]
    return build(cfg, header)


if __name__ == "__main__":
    kw = {}
    for kv in sys.argv[2:]:
        k, v = kv.split("=", 1)
        kw[k] = eval(v)
    open(sys.argv[1], "w").write(make(**kw))
```

```python
import sys, math, struct
from asmgen import *

NAME = "standalone__gqa_block_cached__near_ridge"
KN = NAME + "_kernel"

X_BYTES = 768 * 640 * 2
KV_BYTES = 8 * 32 * 96 * 192 * 2
W_BYTES = 640 * 6144 * 2
OUT_BYTES = 768 * 640 * 2
WS_BYTES = 268435456
SCALE = 192 ** -0.5 * math.log2(math.e)

def f32hex(x):
    return "0x%08x" % struct.unpack("<I", struct.pack("<f", x))[0]

sX, sK, sV, sWQ, sWO, sOUT, sDBG, sWS = 4, 6, 8, 10, 12, 14, 16, 18
sWAVE, sG, sB, sJ, sH, sBH = 20, 21, 22, 23, 24, 25
sFAST, sSPIN = 26, 27
rX, rWQ, rK, rV, rWS, rWO, rOUT, rDBG = 28, 32, 36, 40, 44, 48, 52, 68
sT0, sT1, sT2, sT3 = 56, 57, 58, 59
sLW, sM0B, sKVB = 60, 61, 63
sI, sJQ, sROLE = 64, 65, 66
sOB, sPS = 62, 67
sWK, sOM0, sOK, sINB, sWE, sWM = 73, 74, 75, 76, 77, 78
sSTAMP = 80
sKW, sKX, sWC, sOC, sU, sDN, sJ4 = 92, 93, 94, 95, 96, 97, 98

L_W, L_X, L_K, L_V, L_Q = 0, 49152, 86016, 122880, 0
L_FLAG = 159744
L_OWN, L_WO, L_OR = 0, 36864, 122880
LDS_BYTES = 163840


DOC = """\
; ---------------------------------------------------------------------------------------------------------
;  C  out^T partial          160 columns x 96 rows over the 4 heads of group g (own head first, then the O tiles
; ---------------------------------------------------------------------------------------------------------
"""

class Cfg:
    stamps = False
    stamp_only = None
    amp = None
    prefetch_code = True
    pretouch = False
    pf_code_div = 1
    ws_o = 0xE000000
    ws_p = 0xF000000
    ws_in = 0xFC00000
    ws_stamp = 0x4000000
    polW = ""; polX = ""; polKV = "nt"; polWO = ""; polPF = ""; polO = "sc1"
    o_fast_pol = "sc1"
    force_slow = False
    rot = (10, 10)
    k_sched = [12] * 9
    v_sched = [16] * 9
    kv_variants = [([7] * 9, [16] * 9), ([11] * 9, [16] * 9)]
    kv_sel_shift = 3
    wo_prefetch = True
    pf_at = 'Q'
    staged = ()
    early = 1
    mid = 4
    late = 4
    wrot = False
    h1_flag_step = 0
    h2_delay = 0
    pd_late = True
    q_lag = 6
    flag_pre = 'V'
    arr_byte = False
    spoll2 = False
    flag_line = True
    arr_w3 = True
    hs_at = 14
    hs_w7 = True
    skip_arrive = False
    arr_step = 0
    prio_ld = 0
    prio_b = 0
    pf_k = 0
    pf_first = False
    pf_split = 0
    plain_from = 6
    c_wait = None
    c_rd0 = 0
    fine = False
    nv_pv = 6
    skip_out = False
    out_x4 = False
    pf_code_early = True
    q_rate = 2
    poll_sleep = None
    spin_max = 400000
    fill_s = 5
    fill_pv = 2
    fill_last = 5
    pk_tail = True
    skip_o = False; skip_wo = False; skip_ostore = False
    prio_c = 0
    polOut = ''


def stamp(a, cfg, idx):
    if not cfg.stamps: return
    if cfg.stamp_only is not None and idx not in cfg.stamp_only: return
    a(f"""
    s_memtime s[{sSTAMP}:{sSTAMP+1}]
    s_waitcnt lgkmcnt(0)
    v_writelane_b32 v255, s{sSTAMP}, {idx}
    """)
    a.lg = []

def stamp_flush(a, cfg):
    a(f"""
    s_memrealtime s[{sSTAMP}:{sSTAMP+1}]
    s_waitcnt lgkmcnt(0)
    v_writelane_b32 v255, s{sSTAMP}, 33
    s_lshl_b32 s{sT0}, s2, 3
    s_add_u32 s{sT0}, s{sT0}, s{sWAVE}
    s_lshl_b32 s{sT0}, s{sT0}, 8
    s_add_u32 s{sT0}, s{sT0}, {cfg.ws_stamp}
    v_mbcnt_lo_u32_b32 v254, -1, 0
    v_mbcnt_hi_u32_b32 v254, -1, v254
    v_lshlrev_b32 v254, 2, v254
    buffer_store_dword v255, v254, s[{rWS}:{rWS+3}], s{sT0} offen
    """)

def wait_kernarg(a, cfg):
    a("s_waitcnt lgkmcnt(0)")
    if cfg.stamps:
        a(f"v_writelane_b32 v255, s{sSTAMP}, 0")
        a(f"v_writelane_b32 v255, s{sSTAMP+2}, 32")

def mfma(d, A, B, first=False):
    c = "0" if first else vr(d)
    return f"v_mfma_f32_16x16x32_bf16 {vr(d)}, {vr(A)}, {vr(B)}, {c}"

def mfma32(d, A, B, first=False):
    c = "0" if first else vr(d, 16)
    return f"v_mfma_f32_32x32x16_bf16 {vr(d, 16)}, {vr(A)}, {vr(B)}, {c}"

_lbl = [0]
def poll(a, cfg, vaddr, rs, soff, vtmp, check):
    _lbl[0] += 1
    n = _lbl[0]
    a(f"s_mov_b32 s{sSPIN}, 0")
    a.label(f"poll{n}")
    a(f"buffer_load_dword v{vtmp}, v{vaddr}, s[{rs}:{rs+3}], {soff} offen sc1")
    a.wait_vm_all()
    check()
    a(f"""
    s_cbranch_scc1 poll{n}_ok
    s_add_u32 s{sSPIN}, s{sSPIN}, 1
    s_cmp_ge_u32 s{sSPIN}, {cfg.spin_max}
    s_cbranch_scc1 poll{n}_ok
    """)
    if cfg.poll_sleep is not None: a(f"s_sleep {cfg.poll_sleep}")
    a(f"s_branch poll{n}")
    a.label(f"poll{n}_ok")

def dma(a, vaddr, rs, soff, ldsoff, tag, base, pol=""):
    a(f"s_add_u32 m0, s{base}, {ldsoff}")
    if isinstance(soff, str):
        so = soff
        a("s_nop 0")
    else:
        a(f"s_mov_b32 s{sT0}, {soff}")
        so = f"s{sT0}"
    a.vmem(f"buffer_load_dwordx4 v{vaddr}, s[{rs}:{rs+3}], {so} offen {pol} lds", tag)


vA = [10, 11, 12]; vXe, vXo, vQW = 13, 14, 15
vK0c, vV0, vOL = 232, 233, 234
vCA0 = [235, 236, 237, 238, 239]; vL16, vF1, vF2 = 240, 241, 242
vCA1 = [140, 141, 142, 143, 144]; vCB = [145, 146]
vONE = 252
vW = [220, 221, 222]; vXL = [223, 224, 225]; vKA = [226, 227, 228]; vKB = [229, 230, 231]; vV = [232, 233, 234]
vK0 = [235, 236, 237]; vCP = [238, 239, 240]
vWO = [241, 242, 243, 244, 245]; vOR, vDL, vDO, vP1, vP2, vPF = 246, 247, 248, 249, 250, 251
vSW = [218, 219]
STG = 16


def prologue(a, cfg):
    a.raw(kernel_header(KN))
    if cfg.stamps:
        a(f"s_memtime s[{sSTAMP}:{sSTAMP+1}]")
        a(f"s_memrealtime s[{sSTAMP+2}:{sSTAMP+3}]")
    a(f"""
    s_cmp_ge_u32 s2, 256
    s_cbranch_scc1 L_end
    s_load_dwordx16 s[4:19], s[0:1], 0
    v_lshrrev_b32 v1, 6, v0
    v_lshlrev_b32 v2, 7, v0
    v_readfirstlane_b32 s{sWAVE}, v1
    """)
    if cfg.prefetch_code and cfg.pf_code_early:
        a.c("warm L2 with this kernel's own code (one dword per 128-byte line)")
        d = cfg.pf_code_div
        a(f"""
        s_cmp_ge_u32 s{sWAVE}, {4 if d == 1 else 1}
        s_cbranch_scc1 L_nopf
        s_getpc_b64 s[{sT2}:{sT2+1}]
        """)
        a.label("L_pc")
        a(f"""
        s_sub_u32 s{sT2}, s{sT2}, L_pc-{KN}
        s_subb_u32 s{sT2+1}, s{sT2+1}, 0
        """)
        if d > 1:
            n = 256 // d
            a(f"""
            s_bfe_u32 s{sT0}, s2, {hex((int(math.log2(d)) << 16) | 3)}
            s_mul_i32 s{sT0}, s{sT0}, {n*128}
            v_min_u32 v2, {(n-1)*128}, v2
            v_add_u32 v2, s{sT0}, v2
            """)
        a(f"""
        v_min_u32 v2, L_end-{KN}, v2
        global_load_dword v253, v2, s[{sT2}:{sT2+1}]
        """)
        a.label("L_nopf")
    a(f"""
    v_and_b32 v0, 63, v0
    s_and_b32 s{sG}, s2, 7
    s_lshr_b32 s{sT0}, s2, 3
    s_lshr_b32 s{sB}, s{sT0}, 2
    s_and_b32 s{sJ}, s{sT0}, 3
    s_lshl_b32 s{sH}, s{sG}, 2
    s_add_u32 s{sH}, s{sH}, s{sJ}
    s_lshl_b32 s{sBH}, s{sB}, 5
    s_add_u32 s{sBH}, s{sBH}, s{sH}
    s_lshl_b32 s{sINB}, s{sBH}, 11
    s_add_u32 s{sINB}, s{sINB}, {cfg.ws_in}
    s_cmp_lt_u32 s{sWAVE}, 4
    s_cbranch_scc1 L_computeA
    """)


def next_pair(a, cfg, p, sDst, sCnt, stride):
    if p + 1 >= 12: return
    if p + 1 < 4 or not cfg.wrot:
        a(f"""
        s_add_u32 s{sDst}, s{sDst}, {stride}
        s_cmp_eq_u32 s{sDst}, {12*stride}
        s_cselect_b32 s{sDst}, 0, s{sDst}
        """)
    else:
        a(f"""
        s_add_u32 s{sDst}, s{sJ4}, s{sCnt}
        s_cmp_ge_u32 s{sDst}, 12
        s_cselect_b32 s{sT0}, 12, 0
        s_sub_u32 s{sDst}, s{sDst}, s{sT0}
        s_mul_i32 s{sDst}, s{sDst}, {stride}
        s_add_u32 s{sCnt}, s{sCnt}, 1
        s_and_b32 s{sCnt}, s{sCnt}, 7
        """)

def ld_wo_pair(a, cfg, p):
    slot = L_WO + (p % 4) * 20480
    a(f"s_add_u32 s{sT3}, s{sWK}, s{sWE}")
    for i in range(0 if cfg.skip_wo else 5):
        if p in cfg.staged:
            d = STG + (cfg.staged.index(p) * 5 + i) * 4
            a.vmem(f"buffer_load_dwordx4 {vr(d)}, v{vWO[i]}, s[{rWO}:{rWO+3}], s{sT3} offen {cfg.polWO}", ("WO", p))
        else:
            dma(a, vWO[i], rWO, f"s{sT3}", slot + i * 1024, ("WO", p), sWM, cfg.polWO)
    next_pair(a, cfg, p, sWK, sWC, 81920)

def put_wo_pair(a, cfg, p):
    a.wait_vm(("WO", p))
    hi, sl = divmod(p % 4, 2)
    for i in range(0 if cfg.skip_wo else 5):
        d = STG + (cfg.staged.index(p) * 5 + i) * 4
        a.ds(f"ds_write_b128 v{vSW[hi]}, {vr(d)} offset:{sl*20480 + i*1024}", ("WOL", p))

def ld_o_pair(a, cfg, p):
    slot = L_OR + ((p - 3) % 3) * 12288
    a(f"s_add_u32 m0, s{sOM0}, {slot}")
    a("s_nop 0")
    for i in range(0 if cfg.skip_o else 3):
        a.vmem(f"buffer_load_dwordx4 v{vOR}, s[{rWS}:{rWS+3}], s{sOK} offen offset:{i*1024} {cfg.polO} lds", ("O", p))
    next_pair(a, cfg, p, sOK, sOC, 12288)


def clear_inbox(a, cfg):
    a(f"""
    v_lshlrev_b32 v2, 4, v0
    v_mov_b32 v4, 0
    v_mov_b32 v5, 0
    v_mov_b32 v6, 0
    v_mov_b32 v7, 0
    buffer_store_dwordx4 v[4:7], v2, s[{rWS}:{rWS+3}], s{sINB} offen sc0 sc1
    s_mov_b64 exec, 0xff
    buffer_store_dwordx4 v[4:7], v2, s[{rWS}:{rWS+3}], s{sINB} offen offset:1024 sc0 sc1
    s_mov_b64 exec, -1
    """)

def arrive_op(a, cfg):
    a(f"s_getreg_b32 s{sT1}, hwreg(HW_REG_XCC_ID, 0, 4)")
    if cfg.arr_byte:
        a(f"""
        s_or_b32 s{sT1}, s{sT1}, 0x80
        v_mov_b32 v2, s{sT1}
        v_mov_b32 v3, s{sBH}
        s_mov_b64 exec, 1
        buffer_store_byte v2, v3, s[{rDBG}:{rDBG+3}], 0 offen sc0 sc1
        s_mov_b64 exec, -1
        """)
    else:
        a(f"""
        s_lshl_b32 s{sT2}, s{sJ}, 2
        s_add_u32 s{sT2}, s{sT2}, 4
        s_lshl_b32 s{sT1}, s{sT1}, s{sT2}
        s_add_u32 s{sT1}, s{sT1}, 1
        s_lshl_b32 s{sT2}, s{sB}, 3
        s_add_u32 s{sT2}, s{sT2}, s{sG}
        s_lshl_b32 s{sT2}, s{sT2}, 2
        v_mov_b32 v2, s{sT1}
        v_mov_b32 v3, s{sT2}
        s_mov_b64 exec, 1
        buffer_atomic_add v2, v3, s[{rDBG}:{rDBG+3}], 0 offen sc1
        s_mov_b64 exec, -1
        """)


def loader(a, cfg):
    a.reset()
    if cfg.prio_ld: a(f"s_setprio {cfg.prio_ld}")
    a(f"s_mov_b32 s{sROLE}, 1")
    a(f"s_sub_u32 s{sLW}, s{sWAVE}, 4")
    a(f"s_mul_i32 s{sT0}, s{sLW}, {8*12288}")
    a(f"s_mul_i32 s{sT1}, s{sH}, 384")
    a(f"s_add_u32 s{sT0}, s{sT0}, s{sT1}")
    a(f"s_and_b32 s{sT1}, s{sLW}, 1")
    a(f"s_lshl_b32 s{sT1}, s{sT1}, 2")
    for i in range(3):
        a(f"""
        v_add_u32 v2, {64*i}, v0
        v_mul_u32_u24 v3, 2731, v2
        v_lshrrev_b32 v{vK0[i]}, 16, v3
        v_mul_u32_u24 v4, 24, v{vK0[i]}
        v_sub_u32 v{vCP[i]}, v2, v4
        v_and_b32 v5, 2, v{vK0[i]}
        v_or_b32 v5, s{sT1}, v5
        v_xor_b32 v5, v5, v{vCP[i]}
        v_mul_u32_u24 v6, 12288, v{vK0[i]}
        v_lshl_add_u32 v6, v5, 4, v6
        v_add_u32 v{vW[i]}, s{sT0}, v6
        """)
    a(f"""
    s_mul_i32 s{sT2}, s{sB}, 96
    s_mul_i32 s{sT3}, s{sLW}, 24
    s_add_u32 s{sT2}, s{sT2}, s{sT3}
    s_mul_i32 s{sT2}, s{sT2}, 1280
    v_lshrrev_b32 v2, 3, v0
    v_mul_u32_u24 v2, 1280, v2
    v_and_b32 v3, 7, v0
    v_lshrrev_b32 v4, 4, v0
    v_xor_b32 v3, v3, v4
    v_xor_b32 v3, s{sT1}, v3
    v_lshl_add_u32 v{vXL[0]}, v3, 4, v2
    v_add_u32 v{vXL[0]}, s{sT2}, v{vXL[0]}
    v_xor_b32 v3, 4, v3
    v_lshl_add_u32 v{vXL[1]}, v3, 4, v2
    s_add_u32 s{sT3}, s{sT2}, {8*1280}
    v_add_u32 v{vXL[1]}, s{sT3}, v{vXL[1]}
    v_add_u32 v{vXL[2]}, {16*1280}, v{vXL[0]}
    s_mul_i32 s{sM0B}, s{sLW}, 3072
    s_mul_i32 s{sT2}, s{sB}, {cfg.rot[0]}
    s_mul_i32 s{sT3}, s{sJ}, {cfg.rot[1]}
    s_add_u32 s{sT2}, s{sT2}, s{sT3}
    s_add_u32 s{sT2}, s{sT2}, 2
    s_lshr_b32 s{sT2}, s{sT2}, 2
    s_cmp_ge_u32 s{sT2}, 20
    s_cselect_b32 s{sT3}, 20, 0
    s_sub_u32 s{sT2}, s{sT2}, s{sT3}
    s_cmp_ge_u32 s{sT2}, 10
    s_cselect_b32 s{sT3}, 10, 0
    s_sub_u32 s{sT2}, s{sT2}, s{sT3}
    s_mul_i32 s{sKW}, s{sT2}, {64*12288}
    s_lshl_b32 s{sKX}, s{sT2}, 7
    """)
    assert (7 * cfg.rot[0] + 3 * cfg.rot[1] + 2) // 4 < 30
    if cfg.stamps and (cfg.stamp_only is None or 28 in cfg.stamp_only):
        a(f"s_memtime s[{sSTAMP+4}:{sSTAMP+5}]")
        wait_kernarg(a, cfg)
        a(f"v_writelane_b32 v255, s{sSTAMP+4}, 28")
    else:
        wait_kernarg(a, cfg)
    srd(a, rWQ, sWQ, W_BYTES)
    srd(a, rX, sX, X_BYTES)
    stamp(a, cfg, 29)

    def ldW(s):
        for i in range(3): dma(a, vW[i], rWQ, f"s{sKW}", L_W + (s % 4) * 12288 + i * 1024, ("W", s), sM0B, cfg.polW)
        a(f"""
        s_add_u32 s{sKW}, s{sKW}, {32*12288}
        s_cmp_eq_u32 s{sKW}, {640*12288}
        s_cselect_b32 s{sKW}, 0, s{sKW}
        """)
    def ldX(m):
        for i in range(3): dma(a, vXL[i], rX, f"s{sKX}", L_X + (m % 3) * 12288 + i * 1024, ("X", m), sM0B, cfg.polX)
        a(f"""
        s_add_u32 s{sKX}, s{sKX}, 128
        s_cmp_eq_u32 s{sKX}, 1280
        s_cselect_b32 s{sKX}, 0, s{sKX}
        """)
    def ldK(i):
        i1, i0 = divmod(i, 3)
        dma(a, (vKB if i1 & 1 else vKA)[i0], rK, i1 * 3072, L_K + i * 1024, "K", sKVB, cfg.polKV)
    def ldV(i):
        i1, i0 = divmod(i, 3)
        dma(a, vV[i0], rV, i1 * 3072, L_V + i * 1024, "V", sKVB, cfg.polKV)

    ldW(0); ldX(0)
    stamp(a, cfg, 24)
    srd(a, rWS, sWS, WS_BYTES)
    srd(a, rDBG, sDBG, 256)
    if not cfg.arr_w3:
        a.c("wave 7: clear this workgroup's inbox")
        a(f"s_cmp_lg_u32 s{sWAVE}, 7")
        a("s_cbranch_scc1 L_noclr")
        clear_inbox(a, cfg)
        a.label("L_noclr")
    ldW(1)
    srd(a, rK, sK, KV_BYTES)
    srd(a, rV, sV, KV_BYTES)
    srd(a, rWO, sWO, W_BYTES)
    srd(a, rOUT, sOUT, OUT_BYTES)
    a(f"""
    s_mul_i32 s{sKVB}, s{sLW}, 9216
    s_mul_i32 s{sT2}, s{sBH}, 36864
    s_add_u32 s{sT2}, s{sT2}, s{sKVB}
    """)
    for i in range(3):
        a(f"""
        v_mul_u32_u24 v6, 384, v{vK0[i]}
        v_add_u32 v6, s{sT2}, v6
        v_lshrrev_b32 v3, 1, v{vK0[i]}
        v_xor_b32 v4, v3, v{vCP[i]}
        v_xor_b32 v4, s{sT1}, v4
        v_lshl_add_u32 v{vKA[i]}, v4, 4, v6
        v_xor_b32 v4, 4, v4
        v_lshl_add_u32 v{vKB[i]}, v4, 4, v6
        v_and_b32 v3, 1, v3
        v_lshlrev_b32 v3, 2, v3
        v_xor_b32 v4, v3, v{vCP[i]}
        v_lshl_add_u32 v{vV[i]}, v4, 4, v6
        """)
    ldW(2); ldX(1); ldW(3); ldX(2)
    a.c("phase C / D loader addresses")
    a(f"""
    s_and_b32 s{sT1}, s{sLW}, 1
    s_lshr_b32 s{sT2}, s{sLW}, 1
    s_mul_i32 s{sWE}, s{sT2}, 40960
    s_mul_i32 s{sWM}, s{sLW}, 5120
    s_mul_i32 s{sT1}, s{sT1}, 320
    s_mul_i32 s{sT2}, s{sG}, {768*1280}
    s_mul_i32 s{sT3}, s{sJ}, 320
    s_add_u32 s{sT2}, s{sT2}, s{sT3}
    """)
    for i in range(5):
        a(f"""
        v_add_u32 v2, s{sT1}, v0
        v_add_u32 v2, {64*i}, v2
        v_mul_u32_u24 v3, 3277, v2
        v_lshrrev_b32 v3, 16, v3            ; row = t/20
        v_mul_u32_u24 v4, 20, v3
        v_sub_u32 v4, v2, v4                ; cp
        v_lshrrev_b32 v5, 1, v3
        v_and_b32 v5, 2, v5
        v_xor_b32 v4, v4, v5
        v_mul_u32_u24 v3, 1280, v3
        v_lshl_add_u32 v3, v4, 4, v3
        v_add_u32 v{vWO[i]}, s{sT2}, v3
        """)
    a(f"""
    s_mul_i32 s{sWK}, s{sJ}, {3*81920}
    s_mul_i32 s{sJ4}, s{sJ}, 3
    s_add_u32 s{sJ4}, s{sJ4}, 4
    s_mov_b32 s{sWC}, s{sB}
    s_mov_b32 s{sOC}, s{sB}
    v_lshlrev_b32 v7, 4, v0
    s_add_u32 s{sT1}, s{sWM}, {L_WO}
    v_add_u32 v{vSW[0]}, s{sT1}, v7
    v_add_u32 v{vSW[1]}, 40960, v{vSW[0]}
    s_add_u32 s{sT1}, s{sJ}, 1
    s_and_b32 s{sT1}, s{sT1}, 3
    s_mul_i32 s{sOK}, s{sT1}, {3*12288}
    s_mul_i32 s{sOM0}, s{sLW}, 3072
    s_lshl_b32 s{sT1}, s{sB}, 3
    s_add_u32 s{sT1}, s{sT1}, s{sG}
    s_mul_i32 s{sT1}, s{sT1}, 147456
    s_add_u32 s{sT1}, s{sT1}, s{sOM0}
    s_add_u32 s{sT1}, s{sT1}, {cfg.ws_o}
    v_add_u32 v{vOR}, s{sT1}, v7
    v_min_u32 v2, 11, v0
    v_lshlrev_b32 v2, 2, v2
    s_add_u32 s{sT1}, s{sINB}, 1024
    v_add_u32 v{vP1}, s{sT1}, v2
    v_min_u32 v2, 7, v0
    v_max_u32 v2, 1, v2
    v_add_u32 v2, s{sG}, v2
    v_and_b32 v2, 7, v2
    v_lshlrev_b32 v3, 7, v2
    v_add_u32 v{vP2}, s{sINB}, v3
    s_lshr_b32 s{sT1}, s2, 3
    s_lshl_b32 s{sT1}, s{sT1}, 2
    s_add_u32 s{sT1}, s{sT1}, s{sLW}
    s_mul_i32 s{sT1}, s{sT1}, 7680
    s_mul_i32 s{sT2}, s{sG}, 983040
    s_add_u32 s{sT1}, s{sT1}, s{sT2}
    v_min_u32 v2, 59, v0
    v_lshlrev_b32 v2, 7, v2
    v_add_u32 v{vPF}, s{sT1}, v2
    s_and_b32 s{sT0}, s{sG}, 1
    s_lshl_b32 s{sT0}, s{sT0}, 2
    s_add_u32 s{sU}, s{sT0}, s{sLW}
    s_lshl_b32 s{sT2}, s{sB}, 2
    s_add_u32 s{sT2}, s{sT2}, s{sJ}
    s_lshl_b32 s{sT2}, s{sT2}, 5
    s_lshr_b32 s{sT1}, s{sG}, 1
    s_add_u32 s{sT2}, s{sT2}, s{sT1}
    s_lshl_b32 s{sT2}, s{sT2}, 3
    s_add_u32 s{sT2}, s{sT2}, s{sU}
    s_lshl_b32 s{sT2}, s{sT2}, 10
    s_add_u32 s{sT2}, s{sT2}, {cfg.ws_p}
    v_add_u32 v{vDL}, s{sT2}, v7            ; + src*32768
    s_bfe_u32 s{sT0}, s{sG}, 0x10001        ; i
    s_lshr_b32 s{sT1}, s{sG}, 2             ; jq
    s_mul_i32 s{sT1}, s{sT1}, 48
    s_mul_i32 s{sT2}, s{sB}, 96
    s_add_u32 s{sT1}, s{sT1}, s{sT2}
    s_lshr_b32 s{sT2}, s{sU}, 1             ; t (u<6)
    s_cmp_eq_u32 s{sU}, 6
    s_cselect_b32 s{sT2}, 0, s{sT2}
    s_cmp_eq_u32 s{sU}, 7
    s_cselect_b32 s{sT2}, 2, s{sT2}
    s_lshl_b32 s{sT2}, s{sT2}, 4
    s_add_u32 s{sT1}, s{sT1}, s{sT2}
    s_mul_i32 s{sT1}, s{sT1}, 1280
    s_and_b32 s{sT2}, s{sU}, 1
    s_lshl_b32 s{sT2}, s{sT2}, 6
    s_mul_i32 s{sT3}, s{sT0}, 192           ; (80+16) columns * 2B * i
    s_add_u32 s{sT2}, s{sT2}, s{sT3}
    s_lshl_b32 s{sT3}, s{sT0}, 5
    s_add_u32 s{sT3}, s{sT3}, 128           ; (64 + 16 i) * 2B
    s_cmp_ge_u32 s{sU}, 6
    s_cselect_b32 s{sT2}, s{sT3}, s{sT2}
    s_add_u32 s{sT1}, s{sT1}, s{sT2}
    s_mul_i32 s{sT2}, s{sJ}, 320
    s_add_u32 s{sT1}, s{sT1}, s{sT2}
    v_and_b32 v2, 15, v0
    v_mul_u32_u24 v2, 1280, v2
    v_lshrrev_b32 v3, 4, v0
    v_lshl_add_u32 v2, v3, 3, v2
    v_add_u32 v{vDO}, s{sT1}, v2
    s_mov_b32 s{sDN}, 32
    s_cmp_eq_u32 s{sU}, 6
    s_cselect_b32 s{sDN}, {16*1280}, s{sDN}
    s_cmp_eq_u32 s{sU}, 7
    s_cselect_b32 s{sDN}, 16, s{sDN}
    """)
    stamp(a, cfg, 1)
    a.wait_vm(("W", 0), ("X", 0))
    a("s_barrier   ; P")
    stamp(a, cfg, 2)
    def arrive(n):
        if cfg.skip_arrive or cfg.arr_w3: return
        a.c("wave 7: inbox cleared (its stores are older than W1) -> arrive in d_debug")
        a(f"s_cmp_lg_u32 s{sWAVE}, 7")
        a(f"s_cbranch_scc1 L_noarr{n}")
        arrive_op(a, cfg)
        a.label(f"L_noarr{n}")
    def hs_read():
        a.c("have the 32 workgroups of this batch cleared their inboxes?  (read now, looked at before the V barrier)")
        a(f"""
        v_and_b32 v8, 7, v0
        v_lshlrev_b32 v8, 2, v8
        s_lshl_b32 s{sSPIN}, s{sB}, 5
        v_add_u32 v8, s{sSPIN}, v8
        """)
        if cfg.hs_w7:
            _lbl[0] += 1
            a(f"s_cmp_lg_u32 s{sWAVE}, 7")
            a(f"s_cbranch_scc1 L_nohsrd{_lbl[0]}")
            a(f"buffer_load_dword v9, v8, s[{rDBG}:{rDBG+3}], 0 offen sc1")
            if cfg.flag_pre == 'hs': a(f"buffer_load_dword v253, v{vP1}, s[{rWS}:{rWS+3}], 0 offen sc1")
            a.label(f"L_nohsrd{_lbl[0]}")
            a.hs_pos = len(a.vm)
        else:
            a.vmem(f"buffer_load_dword v9, v8, s[{rDBG}:{rDBG+3}], 0 offen sc1", "hs")
    variants = cfg.kv_variants or [(cfg.k_sched, cfg.v_sched)]
    nv = len(variants)
    if nv > 1:
        a(f"s_lshr_b32 s{sT1}, s2, {cfg.kv_sel_shift}")
        a(f"s_and_b32 s{sT1}, s{sT1}, {nv-1}")
        for v in range(1, nv):
            a(f"s_cmp_eq_u32 s{sT1}, {v}")
            a(f"s_cbranch_scc1 L_kvvar{v}")
    vm0 = list(a.vm)
    for v, var in enumerate(variants):
        ksch, vsch = var[0], var[1]
        pfs = var[2] if len(var) > 2 else cfg.pf_at
        if v: a.label(f"L_kvvar{v}")
        a.vm = list(vm0)
        for s in range(19):
            a.wait_vm(("W", s + 1), ("X", (s + 1) >> 1))
            if s == cfg.arr_step: arrive(v)
            a(f"s_barrier   ; B{s}")
            if s + 4 < 20: ldW(s + 4)
            if s & 1 and (s >> 1) + 3 < 10: ldX((s >> 1) + 3)
            if cfg.wo_prefetch and pfs == s:
                a.vmem(f"buffer_load_dword v253, v{vPF}, s[{rWO}:{rWO+3}], 0 offen {cfg.polPF}", "pf")
            def pfk():
                if cfg.pf_k and ksch[-1] == s:
                    m = (1 << cfg.pf_k) - 1
                    a(f"s_mov_b32 exec_lo, {m & 0xffffffff:#x}")
                    a(f"s_mov_b32 exec_hi, {m >> 32:#x}")
                    a.vmem(f"buffer_load_dword v253, v{vPF}, s[{rWO}:{rWO+3}], 0 offen {cfg.polPF}", "pf")
                    a("s_mov_b64 exec, -1")
            if cfg.pf_first: pfk()
            for i, ss in enumerate(ksch):
                if ss == s: ldK(i)
            if not cfg.pf_first: pfk()
            if (cfg.hs_at == 'K' and ksch[-1] == s) or cfg.hs_at == s: hs_read()
            for i, ss in enumerate(vsch):
                if ss == s: ldV(i)
            if s in (4, 9, 14): stamp(a, cfg, 3 + (s - 4) // 5)
        a.wait_vm("K")
        if v < nv - 1: a("s_branch L_kvjoin")
    if nv > 1: a.label("L_kvjoin")
    stamp(a, cfg, 6)
    a("s_barrier   ; Q")
    a.vm = ["V"]
    def pf():
        if cfg.wo_prefetch:
            a.vmem(f"buffer_load_dword v253, v{vPF}, s[{rWO}:{rWO+3}], 0 offen {cfg.polPF}", "pf")
    if cfg.hs_at == 'Q': hs_read()
    def pf_part(lo, hi):
        m = ((1 << hi) - 1) ^ ((1 << lo) - 1)
        a(f"s_mov_b32 exec_lo, {m & 0xffffffff:#x}")
        a(f"s_mov_b32 exec_hi, {m >> 32:#x}")
        pf()
        a("s_mov_b64 exec, -1")
    if cfg.pf_at == "Q":
        if cfg.pf_split: pf_part(0, cfg.pf_split)
        elif cfg.pf_k:
            if cfg.pf_k < 60: pf_part(cfg.pf_k, 60)
        else: pf()
    nxt = 0
    def issue_upto(n):
        nonlocal nxt
        while nxt < n:
            ld_wo_pair(a, cfg, nxt); nxt += 1
    for p in range(2, cfg.early): assert p in cfg.staged
    issue_upto(cfg.early)
    if cfg.hs_w7:
        a(f"s_cmp_lg_u32 s{sWAVE}, 7")
        a("s_cbranch_scc1 L_nohs")
    save = list(a.vm)
    if cfg.hs_at == 'Q':
        if cfg.hs_w7:
            n = len(a.vm) - a.hs_pos
            a(f"s_waitcnt vmcnt({n})")
        else:
            a.wait_vm("hs")
            save = list(a.vm)
    def chk():
        if cfg.arr_byte:
            a(f"""
            v_and_b32 v4, 0x80808080, v9
            v_cmp_eq_u32 vcc, 0x80808080, v4
            s_cmp_eq_u64 vcc, -1
            """)
        else:
            a(f"""
            v_and_b32 v4, 7, v9
            v_cmp_eq_u32 vcc, 4, v4
            s_cmp_eq_u64 vcc, -1
            """)
    chk()
    if cfg.skip_arrive: a("s_cmp_eq_u32 0, 0")
    a("s_cbranch_scc1 L_hsok")
    poll(a, cfg, 8, rDBG, "0", 9, chk)
    a.label("L_hsok")
    a.vm = save
    a(f"""
    s_cmp_lg_u32 s{sWAVE}, 7
    s_cbranch_scc1 L_nohs
    v_readlane_b32 s{sT1}, v9, s{sG}
    """)
    if cfg.arr_byte:
        a(f"""
        s_and_b32 s{sT2}, s{sT1}, 0xff
        s_mul_i32 s{sT2}, s{sT2}, 0x01010101
        """)
    else:
        a(f"""
        s_bfe_u32 s{sT1}, s{sT1}, 0x100004
        s_and_b32 s{sT2}, s{sT1}, 15
        s_mul_i32 s{sT2}, s{sT2}, 0x1111
        """)
    a(f"""
    s_cmp_eq_u32 s{sT1}, s{sT2}
    s_cselect_b32 s{sT1}, {0 if cfg.force_slow else 1}, 0
    v_mov_b32 v2, {L_FLAG}
    v_mov_b32 v3, s{sT1}
    ds_write_b32 v2, v3
    """)
    if cfg.flag_pre == 'V': a(f"buffer_load_dword v253, v{vP1}, s[{rWS}:{rWS+3}], 0 offen sc1")
    a("s_waitcnt lgkmcnt(0)")
    a.label("L_nohs")
    a.wait_vm("V")
    stamp(a, cfg, 8)
    a("s_barrier   ; V")
    if cfg.pf_at == "V": pf()
    if cfg.pf_at == "Q" and cfg.pf_split: pf_part(cfg.pf_split, 60)
    for p in (2, 3):
        if p in cfg.staged and p < nxt: put_wo_pair(a, cfg, p)
    issue_upto(cfg.mid)
    for p in (2, 3):
        if p in cfg.staged and not any(t == ("WOL", p) for t in a.lg) and p >= cfg.early: put_wo_pair(a, cfg, p)
    if cfg.pf_at == "V2": pf()
    stamp(a, cfg, 10)
    a.wait_vm(("WO", 0))
    stamp(a, cfg, 12)
    a("s_barrier   ; O1")
    stamp(a, cfg, 13)
    for p in range(max(nxt, 4), cfg.late): assert p in cfg.staged
    issue_upto(max(4, cfg.late))
    def chk1():
        a(f"v_cmp_eq_u32 vcc, 1, v3")
        a("s_cmp_eq_u64 vcc, -1")
    for p in range(11):
        if p in (1, 2): stamp(a, cfg, 21 + p)
        if p == 2:
            a.c("wait for the siblings' O tiles")
            poll(a, cfg, vP1, rWS, "0", 3, chk1)
            if cfg.stamps: a(f"v_writelane_b32 v255, s{sSPIN}, 30")
            stamp(a, cfg, 14)
            for pp in (3, 4, 5): ld_o_pair(a, cfg, pp)
        a.wait_vm(("WO", p + 1), ("O", p + 1))
        a.wait_lg(("WOL", p + 1))
        a(f"s_barrier   ; C{p}")
        if p + 4 < 12:
            issue_upto(p + 5)
            if p + 4 in cfg.staged: put_wo_pair(a, cfg, p + 4)
        if p >= 3 and p + 3 < 12: ld_o_pair(a, cfg, p + 3)
        if p in (2, 5, 8): stamp(a, cfg, 15 + (p - 2) // 3)
    stamp(a, cfg, 18)
    a.c("phase D")
    A = 48
    a("s_barrier   ; PD")
    stamp(a, cfg, 26)
    a(f"s_lshl_b32 s{sT0}, s{sLW}, 10")
    a(f"v_lshlrev_b32 v2, 4, v0")
    a(f"v_add_u32 v2, s{sT0}, v2")
    a.ds(f"ds_read_b128 v[16:19], v2 offset:{L_OWN}", "own")
    a(f"s_cmp_lg_u32 s{sWAVE}, 4")
    a("s_cbranch_scc1 L_nopoll2")
    if cfg.h2_delay: a(f"s_sleep {cfg.h2_delay}")
    def chk2():
        a(f"v_cmp_eq_u32 vcc, 1, v3")
        a("s_cmp_eq_u64 vcc, -1")
    if cfg.spoll2:
        a(f"""
        s_add_u32 s28, s{sWS}, s{sINB}
        s_addc_u32 s29, s{sWS+1}, 0
        s_mov_b32 s{sSPIN}, 0
        """)
        a.label("L_sp2")
        for k in range(8): a(f"s_load_dword s{32+k}, s[28:29], {k*128} glc")
        a("s_waitcnt lgkmcnt(0)")
        a(f"s_and_b32 s32, s32, s33")
        for k in range(2, 8): a(f"s_and_b32 s32, s32, s{32+k}")
        a(f"""
        s_cmp_eq_u32 s32, 1
        s_cbranch_scc1 L_nopoll2
        s_add_u32 s{sSPIN}, s{sSPIN}, 1
        s_cmp_lt_u32 s{sSPIN}, {cfg.spin_max}
        s_cbranch_scc1 L_sp2
        """)
        a.lg = []
    else:
        poll(a, cfg, vP2, rWS, "0", 3, chk2)
    a.label("L_nopoll2")
    a("s_barrier   ; PE")
    if cfg.stamps: a(f"v_writelane_b32 v255, s{sSPIN}, 31")
    stamp(a, cfg, 19)
    a(f"""
    s_cmp_eq_u32 s{sU}, 7
    s_cselect_b32 exec_hi, 0, -1
    """)
    a.vm = []
    for k in range(1, 8):
        a(f"""
        s_add_u32 s{sT0}, s{sG}, {k}
        s_and_b32 s{sT0}, s{sT0}, 7
        s_lshl_b32 s{sT0}, s{sT0}, 15
        """)
        a.vmem(f"buffer_load_dwordx4 {vr(16+4*k)}, v{vDL}, s[{rWS}:{rWS+3}], s{sT0} offen sc1", ("p", k))
    a(f"s_mov_b32 s{sT1}, 0xffff0000")
    for k in range(8):
        if k == 0: a.wait_lg_all()
        a.wait_vm(("p", k))
        for i in range(4):
            s = 16 + 4 * k + i
            if k == 0:
                a(f"v_lshlrev_b32 v{A+2*i}, 16, v{s}")
                a(f"v_and_b32 v{A+2*i+1}, s{sT1}, v{s}")
            else:
                a(f"v_lshlrev_b32 v{60+2*i}, 16, v{s}")
                a(f"v_and_b32 v{61+2*i}, s{sT1}, v{s}")
                a(f"v_add_f32 v{A+2*i}, v{A+2*i}, v{60+2*i}")
                a(f"v_add_f32 v{A+2*i+1}, v{A+2*i+1}, v{61+2*i}")
    stamp(a, cfg, 20)
    for i in range(4):
        a(f"v_cvt_pk_bf16_f32 v{16+i}, v{A+2*i}, v{A+2*i+1}")
    if cfg.out_x4:
        a.c("tile pairs: lanes kq 0|1 and 2|3 trade halves so that every lane holds 8 consecutive columns")
        a(f"""
        s_cmp_ge_u32 s{sU}, 6
        s_cbranch_scc1 L_outx2
        v_permlane16_swap_b32 v16, v18
        v_permlane16_swap_b32 v17, v19
        v_bfe_u32 v2, v0, 4, 1
        v_mul_u32_u24 v2, 24, v2
        v_add_u32 v2, v2, v{vDO}
        """)
        a(f"buffer_store_dwordx4 v[16:19], v2, s[{rOUT}:{rOUT+3}], 0 offen {cfg.polOut}")
        a("s_branch L_outdone")
        a.label("L_outx2")
    if not cfg.skip_out:
        a(f"buffer_store_dwordx2 v[16:17], v{vDO}, s[{rOUT}:{rOUT+3}], 0 offen {cfg.polOut}")
        a(f"buffer_store_dwordx2 v[18:19], v{vDO}, s[{rOUT}:{rOUT+3}], s{sDN} offen {cfg.polOut}")
    if cfg.out_x4: a.label("L_outdone")
    a("s_mov_b64 exec, -1")
    a("s_branch L_fin")


def computeA(a, cfg):
    a.label("L_computeA")
    a.reset()
    a(f"s_mov_b32 s{sROLE}, 0")
    if cfg.prefetch_code and not cfg.pf_code_early:
        a.c("wave w warms L2 with 8 KB of this kernel's code (one dword per 128-byte line)")
        a(f"s_getpc_b64 s[{sT2}:{sT2+1}]")
        a.label("L_pc")
        a(f"""
        s_sub_u32 s{sT2}, s{sT2}, L_pc-{KN}
        s_subb_u32 s{sT2+1}, s{sT2+1}, 0
        s_lshl_b32 s{sT0}, s{sWAVE}, 13
        v_lshlrev_b32 v2, 7, v0
        v_add_u32 v2, s{sT0}, v2
        v_min_u32 v2, L_end-{KN}, v2
        global_load_dword v253, v2, s[{sT2}:{sT2+1}]
        """)
    ACC = 16
    def acc(T, t): return ACC + (T * 6 + t) * 4
    SETA = [88, 124]; SETB = [100, 136]
    a.c("phase A addresses: v2=kq v3=r v4=c v5=n")
    a(f"""
    v_lshrrev_b32 v2, 4, v0
    v_bfe_u32 v3, v0, 2, 2
    v_and_b32 v4, 3, v0
    v_and_b32 v5, 15, v0
    v_lshlrev_b32 v6, 3, v2
    v_add_u32 v6, v6, v3                     ; k = 8kq + r
    v_mul_u32_u24 v6, 384, v6
    v_lshl_add_u32 v6, v4, 3, v6             ; k*384 + 8c
    v_lshrrev_b32 v7, 1, v3
    v_and_b32 v8, 1, v2
    v_lshl_or_b32 v7, v8, 1, v7              ; h(k)
    s_mul_i32 s{sT0}, s{sWAVE}, 3
    """)
    for T in range(3):
        a(f"""
        s_add_u32 s{sT1}, s{sT0}, {T}
        v_xor_b32 v8, s{sT1}, v7
        v_lshl_add_u32 v{vA[T]}, v8, 5, v6
        """)
    a(f"""
    v_lshrrev_b32 v6, 1, v5                  ; (n>>1)&7
    v_xor_b32 v6, v6, v2
    v_lshlrev_b32 v6, 4, v6
    v_lshl_add_u32 v6, v5, 7, v6
    v_add_u32 v{vXe}, {L_X}, v6
    v_xor_b32 v{vXo}, 64, v{vXe}
    v_lshrrev_b32 v6, 1, v2
    v_lshlrev_b32 v6, 9, v6
    v_lshl_add_u32 v6, v5, 4, v6
    v_and_b32 v7, 1, v2
    v_lshl_add_u32 v6, v7, 3, v6
    s_mul_i32 s{sT0}, s{sWAVE}, 3072
    v_add_u32 v{vQW}, s{sT0}, v6
    v_lshlrev_b32 v{vL16}, 4, v0
    v_mov_b32 v{vONE}, 1
    v_and_b32 v6, 31, v0
    v_lshrrev_b32 v7, 5, v0
    v_bfe_u32 v8, v0, 1, 3                   ; (m>>1)&7
    v_xor_b32 v8, v8, v7
    v_mul_u32_u24 v9, 384, v6
    v_lshl_add_u32 v9, v8, 4, v9
    v_add_u32 v{vK0c}, {L_K}, v9
    v_lshl_add_u32 v8, v7, 2, v3
    v_mul_u32_u24 v8, 384, v8
    v_lshl_add_u32 v8, v4, 3, v8             ; + 8c
    v_and_b32 v9, 2, v3                      ; hh
    v_and_b32 v6, 1, v2                      ; dh
    v_or_b32 v9, v9, v6
    v_lshl_add_u32 v8, v9, 5, v8
    v_add_u32 v{vV0}, {L_V}, v8
    v_lshlrev_b32 v8, 10, v6                 ; (n>>4)*1024
    v_lshl_add_u32 v8, v7, 8, v8             ; + hi*256
    v_lshl_add_u32 v8, v5, 4, v8             ; + (n&15)*16
    s_lshl_b32 s{sT0}, s{sWAVE}, 11
    v_add_u32 v{vOL}, s{sT0}, v8
    s_lshl_b32 s{sT2}, s{sB}, 3
    s_add_u32 s{sT2}, s{sT2}, s{sG}
    s_lshl_b32 s{sT2}, s{sT2}, 2
    s_add_u32 s{sT2}, s{sT2}, s{sJ}
    s_mul_i32 s{sOB}, s{sT2}, 36864
    s_add_u32 s{sOB}, s{sOB}, {cfg.ws_o}
    s_lshl_b32 s{sT2}, s{sJ}, 11
    s_sub_u32 s{sT2}, s{sINB}, s{sT2}
    s_add_u32 s{sT2}, s{sT2}, 1024
    s_mul_i32 s{sT3}, s{sJ}, 12
    s_add_u32 s{sT2}, s{sT2}, s{sT3}
    s_lshl_b32 s{sT3}, s{sWAVE}, 2
    s_add_u32 s{sT2}, s{sT2}, s{sT3}
    v_lshlrev_b32 v8, 11, v4
    v_add_u32 v{vF1}, s{sT2}, v8
    s_and_b32 s{sI}, s{sWAVE}, 1
    s_lshr_b32 s{sJQ}, s{sWAVE}, 1
    v_lshrrev_b32 v6, 1, v2
    v_lshlrev_b32 v6, 4, v6
    v_and_b32 v7, 1, v2
    v_lshl_add_u32 v6, v7, 2, v6
    v_add_u32 v6, v6, v3
    v_mul_u32_u24 v6, 320, v6
    v_lshl_add_u32 v6, v4, 3, v6
    v_add_u32 v6, {L_WO}, v6
    s_mul_i32 s{sT0}, s{sI}, 5
    """)
    a.c("local tile T is column tile 5i + (T+i) mod 5: tiles (0,1) and (2,3) pair up, tile 4 is the odd one")
    for T in range(5):
        a(f"s_add_u32 s{sT1}, s{sI}, {T}")
        if T == 4:
            a(f"s_cmp_eq_u32 s{sT1}, 5")
            a(f"s_cselect_b32 s{sT1}, 0, s{sT1}")
        a(f"""
        s_add_u32 s{sT1}, s{sT1}, s{sT0}
        v_xor_b32 v8, s{sT1}, v7
        v_lshl_add_u32 v{vCA0[T]}, v8, 5, v6
        """)
    a(f"""
    s_lshl_b32 s{sT0}, s{sB}, 2
    s_add_u32 s{sT0}, s{sT0}, s{sJ}
    s_lshl_b32 s{sT0}, s{sT0}, 3
    s_add_u32 s{sT0}, s{sT0}, s{sG}
    s_lshl_b32 s{sT0}, s{sT0}, 2
    s_add_u32 s{sT0}, s{sT0}, s{sWAVE}
    s_lshl_b32 s{sT0}, s{sT0}, 13
    s_add_u32 s{sPS}, s{sT0}, {cfg.ws_p}
    s_lshl_b32 s{sT0}, s{sB}, 5
    s_lshl_b32 s{sT1}, s{sWAVE}, 3
    s_add_u32 s{sT0}, s{sT0}, s{sT1}
    s_add_u32 s{sT0}, s{sT0}, s{sJ}
    s_lshl_b32 s{sT0}, s{sT0}, 11
    s_lshl_b32 s{sT1}, s{sG}, 7
    s_add_u32 s{sT0}, s{sT0}, s{sT1}
    s_add_u32 s{sT0}, s{sT0}, {cfg.ws_in}
    """)
    if cfg.flag_line:
        a(f"""
        v_bfe_u32 v3, v0, 3, 1
        v_lshlrev_b32 v3, 13, v3
        v_and_b32 v6, 7, v0
        v_lshl_add_u32 v3, v6, 4, v3
        v_add_u32 v{vF2}, s{sT0}, v3
        """)
    else:
        a(f"""
        v_and_b32 v3, 1, v0
        v_lshlrev_b32 v3, 13, v3
        v_add_u32 v{vF2}, s{sT0}, v3
        """)
    wait_kernarg(a, cfg)
    srd(a, rWS, sWS, WS_BYTES)
    if cfg.arr_w3:
        a.c("wave 3: clear this workgroup's inbox, then arrive in d_debug")
        a(f"s_cmp_lg_u32 s{sWAVE}, 3")
        a("s_cbranch_scc1 L_noclr")
        srd(a, rDBG, sDBG, 256)
        clear_inbox(a, cfg)
        a("s_waitcnt vmcnt(0)")
        if not cfg.skip_arrive: arrive_op(a, cfg)
        a.label("L_noclr")
    if cfg.pretouch:
        a.c("wave 1 touches the pages used later so that their translations are resident")
        a(f"""
        s_cmp_lg_u32 s{sWAVE}, 1
        s_cbranch_scc1 L_notouch
        """)
        srd(a, rK, sK, KV_BYTES); srd(a, rV, sV, KV_BYTES); srd(a, rWO, sWO, W_BYTES); srd(a, rOUT, sOUT, OUT_BYTES)
        a(f"""
        s_mov_b64 exec, 3
        v_mul_u32_u24 v2, 36860, v0
        s_mul_i32 s{sT0}, s{sBH}, 36864
        buffer_load_dword v253, v2, s[{rK}:{rK+3}], s{sT0} offen nt
        buffer_load_dword v253, v2, s[{rV}:{rV+3}], s{sT0} offen nt
        v_mul_u32_u24 v2, 983036, v0
        s_mul_i32 s{sT0}, s{sG}, 983040
        buffer_load_dword v253, v2, s[{rWO}:{rWO+3}], s{sT0} offen
        buffer_load_dword v253, v2, s[{rOUT}:{rOUT+3}], 0 offen nt
        buffer_load_dword v253, v{vL16}, s[{rWS}:{rWS+3}], s{sOB} offen nt
        buffer_load_dword v253, v{vL16}, s[{rWS}:{rWS+3}], s{sPS} offen nt
        s_mov_b64 exec, -1
        """)
        a.label("L_notouch")
    stamp(a, cfg, 1)

    def reads(s):
        st = s & 1
        wo = L_W + (s % 4) * 12288
        xo = ((s >> 1) % 3) * 12288
        vx = vXo if s & 1 else vXe
        R = []
        def ra(T):
            R.append((f"ds_read_b64_tr_b16 {vr(SETA[st]+4*T, 2)}, v{vA[T]} offset:{wo}", ("A", s, T)))
            R.append((f"ds_read_b64_tr_b16 {vr(SETA[st]+4*T+2, 2)}, v{vA[T]} offset:{wo+1536}", ("A", s, T)))
        ra(0)
        for t in range(6):
            R.append((f"ds_read_b128 {vr(SETB[st]+4*t)}, v{vx} offset:{xo + t*2048}", ("B", s, t)))
        ra(1); ra(2)
        return R

    a("s_barrier   ; P")
    stamp(a, cfg, 2)
    for ins, tag in reads(0): a.ds(ins, tag)
    def qwrite(T, t):
        d = acc(T, t)
        tmp = 88 + ((T * 6 + t) % 8) * 2
        return [f"v_cvt_pk_bf16_f32 v{tmp}, v{d}, v{d+1}", f"v_cvt_pk_bf16_f32 v{tmp+1}, v{d+2}, v{d+3}",
                ("ds", f"ds_write_b64 v{vQW}, {vr(tmp, 2)} offset:{L_Q + 1024*T + 12288*(t >> 1) + 256*(t & 1)}")]
    for s in range(20):
        a.wait_lg_all()
        if s < 19:
            a(f"s_barrier   ; B{s}")
        R = reads(s + 1) if s < 19 else []
        st = s & 1
        m = 0
        qq = []
        for T in range(3):
            for t in range(6):
                a(mfma(acc(T, t), SETA[st] + 4 * T, SETB[st] + 4 * t, first=(s == 0)))
                if m < len(R): a.ds(*R[m])
                if s == 19:
                    if m >= cfg.q_lag:
                        T2, t2 = divmod(m - cfg.q_lag, 6)
                        qq += qwrite(T2, t2)
                    for _ in range(cfg.q_rate):
                        if qq:
                            x = qq.pop(0)
                            a.ds(x[1], "qw") if isinstance(x, tuple) else a(x)
                m += 1
        if s in (4, 9, 14): stamp(a, cfg, 3 + (s - 4) // 5)
    stamp(a, cfg, 6)
    a.c("Q -> bf16 -> LDS (fragment-major)")
    for m in range(18 - cfg.q_lag, 18): qq += qwrite(*divmod(m, 6))
    for x in qq:
        a.ds(x[1], "qw") if isinstance(x, tuple) else a(x)
    a.wait_lg_all()
    a("s_barrier   ; Q")
    a(f"""
    s_cmp_lt_u32 s{sWAVE}, 3
    s_cbranch_scc1 L_phaseB
    s_barrier   ; V
    s_barrier   ; O1
    s_branch L_computeC
    """)


def phaseB(a, cfg):
    a.label("L_phaseB")
    a.reset()
    if cfg.prio_b: a(f"s_setprio {cfg.prio_b}")
    S = 16; QF = 72; KF = 120; P = 64; VF = 88; O = 136; OB = 184
    vQR = 10; vKa = [vK0c, 11, 12, 13]; vVa = [vV0, 14]
    M, T1 = 2, 3
    N = [4, 5, 6]; LA = [7, 9, 10]; LB = [8, 15, 11]
    sC2 = sSTAMP + 8
    stamp(a, cfg, 7)
    a(f"s_mul_i32 s{sT0}, s{sWAVE}, 12288")
    a(f"v_add_u32 v{vQR}, s{sT0}, v{vL16}")
    def qread(ks): a.ds(f"ds_read_b128 {vr(QF+4*ks)}, v{vQR} offset:{L_Q + ks*1024}", ("Q", ks))
    def kread(i):
        kt, ks = divmod(i, 12)
        a.ds(f"ds_read_b128 {vr(KF + 4*(i % 4))}, v{vKa[ks & 3]} offset:{kt*12288 + (ks >> 2)*128}", ("K", i))
    qread(0); kread(0)
    for x in range(1, 4): a(f"v_xor_b32 v{vKa[x]}, {32*x}, v{vK0c}")
    qread(1); kread(1); qread(2); kread(2); kread(3)
    a(f"v_xor_b32 v{vVa[1]}, 64, v{vV0}")
    a(f"s_mov_b32 s{sC2}, {f32hex(SCALE)}")
    a(f"s_mov_b32 s{sC2+1}, {f32hex(SCALE)}")
    def maxops(kt):
        b = S + 16 * kt
        r = []
        if kt == 0:
            r.append(f"v_max3_f32 v{M}, v{b}, v{b+1}, v{b+2}"); r.append(f"v_max3_f32 v{T1}, v{b+3}, v{b+4}, v{b+5}")
            rest = list(range(6, 16))
        else:
            r.append(f"v_max3_f32 v{T1}, v{b}, v{b+1}, v{b+2}")
            rest = list(range(3, 16))
        tog = 0
        while len(rest) >= 2:
            d = (M, T1)[tog]; tog ^= 1
            r.append(f"v_max3_f32 v{d}, v{d}, v{b+rest[0]}, v{b+rest[1]}"); rest = rest[2:]
        if rest: r.append(f"v_max3_f32 v{M}, v{M}, v{T1}, v{b+rest[0]}")
        else: r.append(f"v_max_f32 v{M}, v{M}, v{T1}")
        r += [f"v_mov_b32 v{T1}, v{M}", "s_nop 1", f"v_permlane32_swap_b32 v{M}, v{T1}", f"v_max_f32 v{M}, v{M}, v{T1}",
              f"v_mul_f32 v{N[kt]}, {f32hex(-SCALE)}, v{M}"]
        return r
    def expops(kt):
        b = S + 16 * kt
        r = []
        for i in range(16 + 3):
            if i < 16: r.append(f"v_fmamk_f32 v{b+i}, v{b+i}, {f32hex(SCALE)}, v{N[kt]}")
            if 1 <= i <= 16: r.append(f"v_exp_f32 v{b+i-1}, v{b+i-1}")
            j = i - 3
            if j == 1: r.append(f"v_add_f32 v{LA[kt]}, v{b}, v{b+1}")
            elif j == 3: r.append(f"v_add_f32 v{LB[kt]}, v{b+2}, v{b+3}")
            elif j >= 4: r.append(f"v_add_f32 v{(LA if j % 2 == 0 else LB)[kt]}, v{(LA if j % 2 == 0 else LB)[kt]}, v{b+j}")
        return r
    fill = []
    for i in range(36):
        kt, ks = divmod(i, 12)
        if i % 2 == 0: a.wait_lg(("Q", ks), ("K", i), ("Q", ks + 1), ("K", i + 1))
        a(mfma32(S + 16 * kt, KF + 4 * (i % 4), QF + 4 * ks, first=(ks == 0)))
        if i + 4 < 36: kread(i + 4)
        if i + 3 < 12: qread(i + 3)
        if i == 14: fill += maxops(0) + expops(0)
        if i == 26: fill += maxops(1) + expops(1)
        for _ in range(cfg.fill_s):
            if fill: a(fill.pop(0))
    stamp(a, cfg, 8)
    a("s_barrier   ; V")
    stamp(a, cfg, 9)
    def vread(i):
        Td, s = divmod(i, 6)
        for e in range(2):
            a.ds(f"ds_read_b64_tr_b16 {vr(VF + 4*(i % 12) + 2*e, 2)}, v{vVa[Td & 1]} offset:{(Td >> 1)*128 + s*6144 + e*3072}", ("V", i))
    NV = cfg.nv_pv
    for i in range(NV): vread(i)
    a(f"v_mov_b32 v1, {L_FLAG}")
    a.ds("ds_read_b32 v1, v1", "fast")
    for x in fill + maxops(2): a(x)
    b = S + 32
    a(f"v_sub_f32 v{N[0]}, v{N[2]}, v{N[0]}")
    a(f"v_sub_f32 v{N[1]}, v{N[2]}, v{N[1]}")
    for i in range(0, 16, 2):
        a(f"v_pk_fma_f32 v[{b+i}:{b+i+1}], v[{b+i}:{b+i+1}], s[{sC2}:{sC2+1}], v[{N[2]}:{N[2]+1}] op_sel_hi:[1,1,0]")
    a(f"v_exp_f32 v{N[0]}, v{N[0]}")
    a(f"v_exp_f32 v{N[1]}, v{N[1]}")
    a(f"v_add_f32 v{LA[0]}, v{LA[0]}, v{LB[0]}")
    a(f"v_add_f32 v{LA[1]}, v{LA[1]}, v{LB[1]}")
    for i in range(16):
        a(f"v_exp_f32 v{b+i}, v{b+i}")
    a(f"v_mul_f32 v{LA[0]}, v{LA[0]}, v{N[0]}")
    a(f"v_fmac_f32 v{LA[0]}, v{LA[1]}, v{N[1]}")
    a(f"v_pk_add_f32 v[{LA[2]}:{LA[2]+1}], v[{b}:{b+1}], v[{b+2}:{b+3}]")
    a(f"v_pk_add_f32 v[{M}:{M+1}], v[{b+4}:{b+5}], v[{b+6}:{b+7}]")
    for i in range(8, 16, 4):
        a(f"v_pk_add_f32 v[{LA[2]}:{LA[2]+1}], v[{LA[2]}:{LA[2]+1}], v[{b+i}:{b+i+1}]")
        a(f"v_pk_add_f32 v[{M}:{M+1}], v[{M}:{M+1}], v[{b+i+2}:{b+i+3}]")
    a(f"v_pk_add_f32 v[{M}:{M+1}], v[{M}:{M+1}], v[{LA[2]}:{LA[2]+1}]")
    a(f"v_add_f32 v{M}, v{M}, v{T1}")
    a(f"v_add_f32 v{M}, v{M}, v{LA[0]}")
    a(f"v_mov_b32 v{T1}, v{M}")
    a(f"v_permlane32_swap_b32 v{M}, v{T1}")
    a(f"v_add_f32 v{M}, v{M}, v{T1}")
    a(f"v_rcp_f32 v{N[2]}, v{M}")
    a.wait_lg("fast")
    a(f"v_readfirstlane_b32 s{sFAST}, v1")
    a(f"v_mul_f32 v{N[0]}, v{N[0]}, v{N[2]}")
    a(f"v_mul_f32 v{N[1]}, v{N[1]}, v{N[2]}")
    a(f"s_cmp_lg_u32 s{sFAST}, 0")
    a("s_cselect_b64 vcc, -1, 0")
    for s in range(6):
        kt = s >> 1
        g = N[kt]
        pair, sel = (g & ~1, g & 1)
        b = S + 8 * s
        for i in range(0, 8, 2):
            a(f"v_pk_mul_f32 v[{b+i}:{b+i+1}], v[{b+i}:{b+i+1}], v[{pair}:{pair+1}] op_sel:[0,{sel}] op_sel_hi:[1,{sel}]")
        for i in range(4):
            a(f"v_cvt_pk_bf16_f32 v{P+4*s+i}, v{b+2*i}, v{b+2*i+1}")
    stamp(a, cfg, 10)
    nst = [0]
    def epi(Td):
        d = O + 16 * (Td % 3)
        r = []
        for e in range(2):
            o = OB + (2 * (Td % 2) + e) * 4
            for i in range(4): r.append(f"v_cvt_pk_bf16_f32 v{o+i}, v{d+8*e+2*i}, v{d+8*e+2*i+1}")
            r.append(("ds", f"ds_write_b128 v{vOL}, {vr(o)} offset:{L_OWN + Td*6144 + e*512}"))
            if not cfg.skip_ostore:
                nst[0] += 1
                n = nst[0]
                st = f"buffer_store_dwordx4 {vr(o)}, v{vOL}, s[{rWS}:{rWS+3}], s{sT0} offen"
                fpol = cfg.o_fast_pol if Td < cfg.plain_from else ""
                if fpol in ("sc1", "sc0 sc1"):
                    r.append(("blk", f"s_add_u32 s{sT0}, s{sOB}, {Td*6144 + e*512}\n{st} sc0 sc1"))
                else:
                    r.append(("blk", f"s_add_u32 s{sT0}, s{sOB}, {Td*6144 + e*512}\ns_cbranch_vccnz L_os{n}\n{st} sc0 sc1\ns_branch L_od{n}\nL_os{n}:\n{st} {fpol}\nL_od{n}:"))
        return r
    def emit(x):
        if isinstance(x, tuple):
            if x[0] == "ds": a.ds(x[1], "ow")
            else: a(x[1])
        else: a(x)
    fill = []
    for i in range(36):
        Td, s = divmod(i, 6)
        if cfg.fine and s == 0: a(f"s_memtime s[{28 + 2*Td}:{29 + 2*Td}]")
        if i % 2 == 0: a.wait_lg(("V", i), ("V", i + 1))
        a(mfma32(O + 16 * (Td % 3), VF + 4 * (i % 12), P + 4 * s, first=(s == 0)))
        if i + NV < 36: vread(i + NV)
        if Td >= 1 and s == 3: fill += epi(Td - 1)
        for _ in range(cfg.fill_pv):
            if fill: emit(fill.pop(0))
    if cfg.fine:
        a("s_memtime s[40:41]")
        a("s_waitcnt lgkmcnt(0)")
        for k in range(7): a(f"v_writelane_b32 v255, s{28 + 2*k}, {40 + k}")
    stamp(a, cfg, 11)
    for x in fill + epi(5): emit(x)
    stamp(a, cfg, 27)
    a.wait_lg_all()
    stamp(a, cfg, 12)
    a("s_barrier   ; O1")
    a.c("falls through into phase C")


def computeC(a, cfg):
    a.label("L_computeC")
    a.reset()
    if cfg.prio_c: a(f"s_setprio {cfg.prio_c}")
    ACC = 16
    def acc(T, t): return ACC + (T * 3 + t) * 4
    SETA = [76, 96]; SETB = [116, 128]
    vCA = [vCA0, vCA1]
    a(f"s_mul_i32 s{sT0}, s{sJQ}, 3072")
    a(f"v_add_u32 v{vCB[0]}, s{sT0}, v{vL16}")
    def reads(u):
        st = u & 1
        p = u >> 1
        hi, sl = divmod(p % 4, 2)
        so = sl * 20480 + (u & 1) * 10240
        if u < 6:
            vb, bo = vCB[0], L_OWN + u * 6144
        else:
            vb, bo = vCB[1], ((p - 3) % 3) * 12288 + (u & 1) * 6144
        R = []
        def ra(T):
            R.append((f"ds_read_b64_tr_b16 {vr(SETA[st]+4*T, 2)}, v{vCA[hi][T]} offset:{so}", ("A", u, T)))
            R.append((f"ds_read_b64_tr_b16 {vr(SETA[st]+4*T+2, 2)}, v{vCA[hi][T]} offset:{so+2560}", ("A", u, T)))
        ra(0)
        for t in range(3):
            R.append((f"ds_read_b128 {vr(SETB[st]+4*t)}, v{vb} offset:{bo + t*1024}", ("B", u, t)))
        for T in range(1, 5): ra(T)
        return R
    U = 76
    def cv(dst, d):
        return [f"v_cvt_pk_bf16_f32 v{dst}, v{d}, v{d+1}", f"v_cvt_pk_bf16_f32 v{dst+1}, v{d+2}, v{d+3}"]
    def unit(u):
        t, pi = divmod(u, 2)
        return cv(UR[u], acc(2 * pi, t)) + cv(UR[u] + 2, acc(2 * pi + 1, t))
    UR = [76, 96, 80, 100, 84, 104, 108, 112]
    tailcv = unit(0) + unit(2) + unit(4)
    stamp(a, cfg, 13)
    for ins, tag in reads(0): a.ds(ins, tag)
    a(f"v_add_u32 v{vCB[1]}, {L_OR}, v{vCB[0]}")
    for T in range(5): a(f"v_add_u32 v{vCA1[T]}, 40960, v{vCA0[T]}")
    for u in range(24):
        if u & 1 and u < 23:
            a.wait_lg_all()
            a(f"s_barrier   ; C{u >> 1}")
        R = reads(u + 1) if u < 23 else []
        st = u & 1
        m = 0
        for T in range(5):
            for t in range(3):
                if cfg.c_wait is None: a.wait_lg(("A", u, T), ("B", u, t))
                elif t == 0 and T in cfg.c_wait:
                    nxt = min([x for x in cfg.c_wait if x > T] + [5])
                    a.wait_lg(*[("A", u, x) for x in range(T, nxt)], *[("B", u, x) for x in range(3)])
                a(mfma(acc(T, t), SETA[st] + 4 * T, SETB[st] + 4 * t, first=(u == 0)))
                if m < len(R): a.ds(*R[m])
                if u == 23 and m >= 9:
                    for _ in range(2): a(tailcv.pop(0))
                m += 1
        if u == cfg.h1_flag_step:
            a.c("waves 0-2 publish their O tile once its stores have drained")
            stamp(a, cfg, 22)
            a(f"""
            s_cmp_eq_u32 s{sWAVE}, 3
            s_cbranch_scc1 L_f1done
            s_waitcnt vmcnt(0)
            s_mov_b64 exec, 15
            s_cmp_lg_u32 s{sFAST}, 0
            s_cbranch_scc1 L_f1fast
            buffer_store_dword v{vONE}, v{vF1}, s[{rWS}:{rWS+3}], 0 offen sc0 sc1
            s_branch L_f1ex
            """)
            a.label("L_f1fast")
            a(f"buffer_store_dword v{vONE}, v{vF1}, s[{rWS}:{rWS+3}], 0 offen")
            a.label("L_f1ex")
            a("s_mov_b64 exec, -1")
            a.label("L_f1done")
            stamp(a, cfg, 23)
        if u in (2, 3): stamp(a, cfg, 22 + u)
        if u in (5, 11, 17): stamp(a, cfg, 15 + (u - 5) // 6)
    stamp(a, cfg, 18)
    a.c("partials, 8 units per wave: 6 tile pairs, the odd tile of q tiles 0|1, the odd tile of q tile 2 (32 lanes)")
    a(f"s_lshr_b32 s{sT1}, s{sG}, 1")
    a(f"s_and_b32 s{sT2}, s{sG}, 1")
    for half in range(2):
        if half == 0:
            for x in unit(1) + unit(3): a(x)
        else:
            for x in unit(5) + cv(UR[6], acc(4, 0)) + cv(UR[6] + 2, acc(4, 1)) + cv(UR[7], acc(4, 2)): a(x)
            a(f"v_permlane32_swap_b32 v{UR[7]}, v{UR[7]+2}")
            a(f"v_permlane32_swap_b32 v{UR[7]+1}, v{UR[7]+3}")
        a(f"""
        s_cmp_lg_u32 s{sT1}, s{sWAVE}
        s_cbranch_scc1 L_rem{half}
        s_cmp_lg_u32 s{sT2}, {half}
        s_cbranch_scc1 L_rem{half}
        """)
        for k in range(4):
            a(f"ds_write_b128 v{vL16}, {vr(UR[4*half + k])} offset:{L_OWN + k*1024}")
        a(f"s_branch L_remdone{half}")
        a.label(f"L_rem{half}")
        for k in range(4):
            u = 4 * half + k
            if u == 7: a("s_mov_b32 exec_hi, 0")
            a(f"s_add_u32 s{sT0}, s{sPS}, {u*1024}")
            a(f"buffer_store_dwordx4 {vr(UR[u])}, v{vL16}, s[{rWS}:{rWS+3}], s{sT0} offen sc0 sc1")
            if u == 7: a("s_mov_b32 exec_hi, -1")
        a.label(f"L_remdone{half}")
    stamp(a, cfg, 19)
    a("s_waitcnt lgkmcnt(0)")
    if not cfg.pd_late: a("s_barrier   ; PD")
    if cfg.flag_line:
        for i in range(4): a(f"v_mov_b32 v{140+i}, 1")
    a("s_waitcnt vmcnt(0)")
    stamp(a, cfg, 20)
    if cfg.flag_line:
        a(f"""
        s_mov_b64 exec, 0xffff
        buffer_store_dwordx4 v[140:143], v{vF2}, s[{rWS}:{rWS+3}], 0 offen sc0 sc1
        s_mov_b64 exec, -1
        """)
    else:
        a(f"""
        s_mov_b64 exec, 3
        buffer_store_dword v{vONE}, v{vF2}, s[{rWS}:{rWS+3}], 0 offen sc0 sc1
        s_mov_b64 exec, -1
        """)
    if cfg.pd_late: a("s_barrier   ; PD")


def build(cfg, header=""):
    _lbl[0] = 0
    a = Asm()
    if header: a.raw(header.rstrip("\n"))
    a.raw(f"; @launch grid=(256,1,1) block=(512,1,1) lds={LDS_BYTES}")
    a.raw(DOC.rstrip("\n"))
    a.raw('.amdgcn_target "amdgcn-amd-amdhsa--gfx950"\n.text')
    prologue(a, cfg)
    loader(a, cfg)
    computeA(a, cfg)
    phaseB(a, cfg)
    computeC(a, cfg)
    a.label("L_fin")
    stamp(a, cfg, 21)
    if cfg.amp:
        w, ia, ib, A = cfg.amp
        a(f"""
        s_cmp_lg_u32 s{sWAVE}, {w}
        s_cbranch_scc1 L_noamp
        v_readlane_b32 s{sT0}, v255, {ia}
        v_readlane_b32 s{sT1}, v255, {ib}
        s_sub_u32 s{sT0}, s{sT1}, s{sT0}
        s_mul_i32 s{sT0}, s{sT0}, {A}
        s_memtime s[{sSTAMP}:{sSTAMP+1}]
        s_waitcnt lgkmcnt(0)
        s_add_u32 s{sT0}, s{sT0}, s{sSTAMP}
        """)
        a.label("L_amp")
        a(f"""
        s_memtime s[{sSTAMP}:{sSTAMP+1}]
        s_waitcnt lgkmcnt(0)
        s_sub_u32 s{sT1}, s{sSTAMP}, s{sT0}
        s_cmp_lt_i32 s{sT1}, 0
        s_cbranch_scc1 L_amp
        """)
        a.label("L_noamp")
    elif cfg.stamps:
        stamp_flush(a, cfg)
    a.label("L_end")
    a("s_endpgm")
    a.raw(kernel_desc(KN))
    return a.text()


def make(**kw):
    cfg = Cfg()
    for k, v in kw.items():
        assert hasattr(cfg, k), k
        setattr(cfg, k, v)
    header = open("cdna_kernels/" + NAME + ".s.ref").read().split("; Override launch")[0]
    return build(cfg, header)


if __name__ == "__main__":
    kw = {}
    for kv in sys.argv[2:]:
        k, v = kv.split("=", 1)
        kw[k] = eval(v)
    open(sys.argv[1], "w").write(make(**kw))
```

```python
import sys, math, struct
from asmgen import *

NAME = "standalone__gqa_block_cached__near_ridge"
KN = NAME + "_kernel"

X_BYTES = 768 * 640 * 2
KV_BYTES = 8 * 32 * 96 * 192 * 2
W_BYTES = 640 * 6144 * 2
OUT_BYTES = 768 * 640 * 2
WS_BYTES = 268435456
SCALE = 192 ** -0.5 * math.log2(math.e)

def f32hex(x):
    return "0x%08x" % struct.unpack("<I", struct.pack("<f", x))[0]

sX, sK, sV, sWQ, sWO, sOUT, sDBG, sWS = 4, 6, 8, 10, 12, 14, 16, 18
sWAVE, sG, sB, sJ, sH, sBH = 20, 21, 22, 23, 24, 25
sFAST, sSPIN = 26, 27
rX, rWQ, rK, rV, rWS, rWO, rOUT, rDBG = 28, 32, 36, 40, 44, 48, 52, 68
sT0, sT1, sT2, sT3 = 56, 57, 58, 59
sLW, sM0B, sKVB = 60, 61, 63
sI, sJQ, sROLE = 64, 65, 66
sOB, sPS = 62, 67
sWK, sOM0, sOK, sINB, sWE, sWM = 73, 74, 75, 76, 77, 78
sSTAMP = 80
sKW, sKX, sWC, sOC, sU, sDN, sJ4 = 92, 93, 94, 95, 96, 97, 98

L_W, L_X, L_K, L_V, L_Q = 0, 49152, 86016, 122880, 0
L_FLAG = 159744
L_OWN, L_WO, L_OR = 0, 36864, 122880
LDS_BYTES = 163840


DOC = """\
; ---------------------------------------------------------------------------------------------------------
;  C  out^T partial          160 columns x 96 rows over the 4 heads of group g (own head first, then the O tiles
; ---------------------------------------------------------------------------------------------------------
"""

class Cfg:
    stamps = False
    stamp_only = None
    amp = None
    prefetch_code = True
    pretouch = False
    pf_code_div = 1
    ws_o = 0xE000000
    ws_p = 0xF000000
    ws_in = 0xFC00000
    ws_stamp = 0x4000000
    polW = ""; polX = ""; polKV = "nt"; polWO = ""; polPF = ""; polO = "sc1"
    o_fast_pol = "sc1"
    force_slow = False
    rot = (10, 10)
    k_sched = [12] * 9
    v_sched = [16] * 9
    kv_variants = [([7] * 9, [16] * 9), ([11] * 9, [16] * 9)]
    kv_sel_shift = 3
    wo_prefetch = True
    pf_at = 'Q'
    staged = ()
    early = 1
    mid = 4
    late = 4
    wrot = False
    h1_flag_step = 0
    h2_delay = 0
    pd_late = True
    q_lag = 6
    touch_k = None
    flag_pre = 'V'
    arr_byte = False
    spoll2 = False
    flag_line = True
    arr_w3 = True
    hs_at = 14
    hs_w7 = True
    skip_arrive = False
    arr_step = 0
    prio_ld = 0
    prio_b = 0
    pf_k = 0
    pf_first = False
    pf_split = 0
    plain_from = 6
    c_wait = None
    c_rd0 = 0
    fine = False
    nv_pv = 6
    skip_out = False
    out_x4 = False
    pf_code_early = True
    q_rate = 2
    poll_sleep = None
    spin_max = 400000
    fill_s = 5
    fill_pv = 2
    fill_last = 5
    pk_tail = True
    skip_o = False; skip_wo = False; skip_ostore = False
    prio_c = 0
    polOut = ''


def stamp(a, cfg, idx):
    if not cfg.stamps: return
    if cfg.stamp_only is not None and idx not in cfg.stamp_only: return
    a(f"""
    s_memtime s[{sSTAMP}:{sSTAMP+1}]
    s_waitcnt lgkmcnt(0)
    v_writelane_b32 v255, s{sSTAMP}, {idx}
    """)
    a.lg = []

def stamp_flush(a, cfg):
    a(f"""
    s_memrealtime s[{sSTAMP}:{sSTAMP+1}]
    s_waitcnt lgkmcnt(0)
    v_writelane_b32 v255, s{sSTAMP}, 33
    s_lshl_b32 s{sT0}, s2, 3
    s_add_u32 s{sT0}, s{sT0}, s{sWAVE}
    s_lshl_b32 s{sT0}, s{sT0}, 8
    s_add_u32 s{sT0}, s{sT0}, {cfg.ws_stamp}
    v_mbcnt_lo_u32_b32 v254, -1, 0
    v_mbcnt_hi_u32_b32 v254, -1, v254
    v_lshlrev_b32 v254, 2, v254
    buffer_store_dword v255, v254, s[{rWS}:{rWS+3}], s{sT0} offen
    """)

def wait_kernarg(a, cfg):
    a("s_waitcnt lgkmcnt(0)")
    if cfg.stamps:
        a(f"v_writelane_b32 v255, s{sSTAMP}, 0")
        a(f"v_writelane_b32 v255, s{sSTAMP+2}, 32")

def mfma(d, A, B, first=False):
    c = "0" if first else vr(d)
    return f"v_mfma_f32_16x16x32_bf16 {vr(d)}, {vr(A)}, {vr(B)}, {c}"

def mfma32(d, A, B, first=False):
    c = "0" if first else vr(d, 16)
    return f"v_mfma_f32_32x32x16_bf16 {vr(d, 16)}, {vr(A)}, {vr(B)}, {c}"

_lbl = [0]
def poll(a, cfg, vaddr, rs, soff, vtmp, check):
    _lbl[0] += 1
    n = _lbl[0]
    a(f"s_mov_b32 s{sSPIN}, 0")
    a.label(f"poll{n}")
    a(f"buffer_load_dword v{vtmp}, v{vaddr}, s[{rs}:{rs+3}], {soff} offen sc1")
    a.wait_vm_all()
    check()
    a(f"""
    s_cbranch_scc1 poll{n}_ok
    s_add_u32 s{sSPIN}, s{sSPIN}, 1
    s_cmp_ge_u32 s{sSPIN}, {cfg.spin_max}
    s_cbranch_scc1 poll{n}_ok
    """)
    if cfg.poll_sleep is not None: a(f"s_sleep {cfg.poll_sleep}")
    a(f"s_branch poll{n}")
    a.label(f"poll{n}_ok")

def dma(a, vaddr, rs, soff, ldsoff, tag, base, pol=""):
    a(f"s_add_u32 m0, s{base}, {ldsoff}")
    if isinstance(soff, str):
        so = soff
        a("s_nop 0")
    else:
        a(f"s_mov_b32 s{sT0}, {soff}")
        so = f"s{sT0}"
    a.vmem(f"buffer_load_dwordx4 v{vaddr}, s[{rs}:{rs+3}], {so} offen {pol} lds", tag)


vA = [10, 11, 12]; vXe, vXo, vQW = 13, 14, 15
vK0c, vV0, vOL = 232, 233, 234
vCA0 = [235, 236, 237, 238, 239]; vL16, vF1, vF2 = 240, 241, 242
vCA1 = [140, 141, 142, 143, 144]; vCB = [145, 146]
vONE = 252
vW = [220, 221, 222]; vXL = [223, 224, 225]; vKA = [226, 227, 228]; vKB = [229, 230, 231]; vV = [232, 233, 234]
vK0 = [235, 236, 237]; vCP = [238, 239, 240]
vWO = [241, 242, 243, 244, 245]; vOR, vDL, vDO, vP1, vP2, vPF = 246, 247, 248, 249, 250, 251
vSW = [218, 219]
STG = 16


def prologue(a, cfg):
    a.raw(kernel_header(KN))
    if cfg.stamps:
        a(f"s_memtime s[{sSTAMP}:{sSTAMP+1}]")
        a(f"s_memrealtime s[{sSTAMP+2}:{sSTAMP+3}]")
    a(f"""
    s_cmp_ge_u32 s2, 256
    s_cbranch_scc1 L_end
    s_load_dwordx16 s[4:19], s[0:1], 0
    v_lshrrev_b32 v1, 6, v0
    v_lshlrev_b32 v2, 7, v0
    v_readfirstlane_b32 s{sWAVE}, v1
    """)
    if cfg.prefetch_code and cfg.pf_code_early:
        a.c("warm L2 with this kernel's own code (one dword per 128-byte line)")
        d = cfg.pf_code_div
        a(f"""
        s_cmp_ge_u32 s{sWAVE}, {4 if d == 1 else 1}
        s_cbranch_scc1 L_nopf
        s_getpc_b64 s[{sT2}:{sT2+1}]
        """)
        a.label("L_pc")
        a(f"""
        s_sub_u32 s{sT2}, s{sT2}, L_pc-{KN}
        s_subb_u32 s{sT2+1}, s{sT2+1}, 0
        """)
        if d > 1:
            n = 256 // d
            a(f"""
            s_bfe_u32 s{sT0}, s2, {hex((int(math.log2(d)) << 16) | 3)}
            s_mul_i32 s{sT0}, s{sT0}, {n*128}
            v_min_u32 v2, {(n-1)*128}, v2
            v_add_u32 v2, s{sT0}, v2
            """)
        a(f"""
        v_min_u32 v2, L_end-{KN}, v2
        global_load_dword v253, v2, s[{sT2}:{sT2+1}]
        """)
        a.label("L_nopf")
    a(f"""
    v_and_b32 v0, 63, v0
    s_and_b32 s{sG}, s2, 7
    s_lshr_b32 s{sT0}, s2, 3
    s_lshr_b32 s{sB}, s{sT0}, 2
    s_and_b32 s{sJ}, s{sT0}, 3
    s_lshl_b32 s{sH}, s{sG}, 2
    s_add_u32 s{sH}, s{sH}, s{sJ}
    s_lshl_b32 s{sBH}, s{sB}, 5
    s_add_u32 s{sBH}, s{sBH}, s{sH}
    s_lshl_b32 s{sINB}, s{sBH}, 11
    s_add_u32 s{sINB}, s{sINB}, {cfg.ws_in}
    s_cmp_lt_u32 s{sWAVE}, 4
    s_cbranch_scc1 L_computeA
    """)


def next_pair(a, cfg, p, sDst, sCnt, stride):
    if p + 1 >= 12: return
    if p + 1 < 4 or not cfg.wrot:
        a(f"""
        s_add_u32 s{sDst}, s{sDst}, {stride}
        s_cmp_eq_u32 s{sDst}, {12*stride}
        s_cselect_b32 s{sDst}, 0, s{sDst}
        """)
    else:
        a(f"""
        s_add_u32 s{sDst}, s{sJ4}, s{sCnt}
        s_cmp_ge_u32 s{sDst}, 12
        s_cselect_b32 s{sT0}, 12, 0
        s_sub_u32 s{sDst}, s{sDst}, s{sT0}
        s_mul_i32 s{sDst}, s{sDst}, {stride}
        s_add_u32 s{sCnt}, s{sCnt}, 1
        s_and_b32 s{sCnt}, s{sCnt}, 7
        """)

def ld_wo_pair(a, cfg, p):
    slot = L_WO + (p % 4) * 20480
    a(f"s_add_u32 s{sT3}, s{sWK}, s{sWE}")
    for i in range(0 if cfg.skip_wo else 5):
        if p in cfg.staged:
            d = STG + (cfg.staged.index(p) * 5 + i) * 4
            a.vmem(f"buffer_load_dwordx4 {vr(d)}, v{vWO[i]}, s[{rWO}:{rWO+3}], s{sT3} offen {cfg.polWO}", ("WO", p))
        else:
            dma(a, vWO[i], rWO, f"s{sT3}", slot + i * 1024, ("WO", p), sWM, cfg.polWO)
    next_pair(a, cfg, p, sWK, sWC, 81920)

def put_wo_pair(a, cfg, p):
    a.wait_vm(("WO", p))
    hi, sl = divmod(p % 4, 2)
    for i in range(0 if cfg.skip_wo else 5):
        d = STG + (cfg.staged.index(p) * 5 + i) * 4
        a.ds(f"ds_write_b128 v{vSW[hi]}, {vr(d)} offset:{sl*20480 + i*1024}", ("WOL", p))

def ld_o_pair(a, cfg, p):
    slot = L_OR + ((p - 3) % 3) * 12288
    a(f"s_add_u32 m0, s{sOM0}, {slot}")
    a("s_nop 0")
    for i in range(0 if cfg.skip_o else 3):
        a.vmem(f"buffer_load_dwordx4 v{vOR}, s[{rWS}:{rWS+3}], s{sOK} offen offset:{i*1024} {cfg.polO} lds", ("O", p))
    next_pair(a, cfg, p, sOK, sOC, 12288)


def clear_inbox(a, cfg):
    a(f"""
    v_lshlrev_b32 v2, 4, v0
    v_mov_b32 v4, 0
    v_mov_b32 v5, 0
    v_mov_b32 v6, 0
    v_mov_b32 v7, 0
    buffer_store_dwordx4 v[4:7], v2, s[{rWS}:{rWS+3}], s{sINB} offen sc0 sc1
    s_mov_b64 exec, 0xff
    buffer_store_dwordx4 v[4:7], v2, s[{rWS}:{rWS+3}], s{sINB} offen offset:1024 sc0 sc1
    s_mov_b64 exec, -1
    """)

def arrive_op(a, cfg):
    a(f"s_getreg_b32 s{sT1}, hwreg(HW_REG_XCC_ID, 0, 4)")
    if cfg.arr_byte:
        a(f"""
        s_or_b32 s{sT1}, s{sT1}, 0x80
        v_mov_b32 v2, s{sT1}
        v_mov_b32 v3, s{sBH}
        s_mov_b64 exec, 1
        buffer_store_byte v2, v3, s[{rDBG}:{rDBG+3}], 0 offen sc0 sc1
        s_mov_b64 exec, -1
        """)
    else:
        a(f"""
        s_lshl_b32 s{sT2}, s{sJ}, 2
        s_add_u32 s{sT2}, s{sT2}, 4
        s_lshl_b32 s{sT1}, s{sT1}, s{sT2}
        s_add_u32 s{sT1}, s{sT1}, 1
        s_lshl_b32 s{sT2}, s{sB}, 3
        s_add_u32 s{sT2}, s{sT2}, s{sG}
        s_lshl_b32 s{sT2}, s{sT2}, 2
        v_mov_b32 v2, s{sT1}
        v_mov_b32 v3, s{sT2}
        s_mov_b64 exec, 1
        buffer_atomic_add v2, v3, s[{rDBG}:{rDBG+3}], 0 offen sc1
        s_mov_b64 exec, -1
        """)


def loader(a, cfg):
    a.reset()
    if cfg.prio_ld: a(f"s_setprio {cfg.prio_ld}")
    a(f"s_mov_b32 s{sROLE}, 1")
    a(f"s_sub_u32 s{sLW}, s{sWAVE}, 4")
    a(f"s_mul_i32 s{sT0}, s{sLW}, {8*12288}")
    a(f"s_mul_i32 s{sT1}, s{sH}, 384")
    a(f"s_add_u32 s{sT0}, s{sT0}, s{sT1}")
    a(f"s_and_b32 s{sT1}, s{sLW}, 1")
    a(f"s_lshl_b32 s{sT1}, s{sT1}, 2")
    for i in range(3):
        a(f"""
        v_add_u32 v2, {64*i}, v0
        v_mul_u32_u24 v3, 2731, v2
        v_lshrrev_b32 v{vK0[i]}, 16, v3
        v_mul_u32_u24 v4, 24, v{vK0[i]}
        v_sub_u32 v{vCP[i]}, v2, v4
        v_and_b32 v5, 2, v{vK0[i]}
        v_or_b32 v5, s{sT1}, v5
        v_xor_b32 v5, v5, v{vCP[i]}
        v_mul_u32_u24 v6, 12288, v{vK0[i]}
        v_lshl_add_u32 v6, v5, 4, v6
        v_add_u32 v{vW[i]}, s{sT0}, v6
        """)
    a(f"""
    s_mul_i32 s{sT2}, s{sB}, 96
    s_mul_i32 s{sT3}, s{sLW}, 24
    s_add_u32 s{sT2}, s{sT2}, s{sT3}
    s_mul_i32 s{sT2}, s{sT2}, 1280
    v_lshrrev_b32 v2, 3, v0
    v_mul_u32_u24 v2, 1280, v2
    v_and_b32 v3, 7, v0
    v_lshrrev_b32 v4, 4, v0
    v_xor_b32 v3, v3, v4
    v_xor_b32 v3, s{sT1}, v3
    v_lshl_add_u32 v{vXL[0]}, v3, 4, v2
    v_add_u32 v{vXL[0]}, s{sT2}, v{vXL[0]}
    v_xor_b32 v3, 4, v3
    v_lshl_add_u32 v{vXL[1]}, v3, 4, v2
    s_add_u32 s{sT3}, s{sT2}, {8*1280}
    v_add_u32 v{vXL[1]}, s{sT3}, v{vXL[1]}
    v_add_u32 v{vXL[2]}, {16*1280}, v{vXL[0]}
    s_mul_i32 s{sM0B}, s{sLW}, 3072
    s_mul_i32 s{sT2}, s{sB}, {cfg.rot[0]}
    s_mul_i32 s{sT3}, s{sJ}, {cfg.rot[1]}
    s_add_u32 s{sT2}, s{sT2}, s{sT3}
    s_add_u32 s{sT2}, s{sT2}, 2
    s_lshr_b32 s{sT2}, s{sT2}, 2
    s_cmp_ge_u32 s{sT2}, 20
    s_cselect_b32 s{sT3}, 20, 0
    s_sub_u32 s{sT2}, s{sT2}, s{sT3}
    s_cmp_ge_u32 s{sT2}, 10
    s_cselect_b32 s{sT3}, 10, 0
    s_sub_u32 s{sT2}, s{sT2}, s{sT3}
    s_mul_i32 s{sKW}, s{sT2}, {64*12288}
    s_lshl_b32 s{sKX}, s{sT2}, 7
    """)
    assert (7 * cfg.rot[0] + 3 * cfg.rot[1] + 2) // 4 < 30
    if cfg.stamps and (cfg.stamp_only is None or 28 in cfg.stamp_only):
        a(f"s_memtime s[{sSTAMP+4}:{sSTAMP+5}]")
        wait_kernarg(a, cfg)
        a(f"v_writelane_b32 v255, s{sSTAMP+4}, 28")
    else:
        wait_kernarg(a, cfg)
    srd(a, rWQ, sWQ, W_BYTES)
    srd(a, rX, sX, X_BYTES)
    stamp(a, cfg, 29)

    def ldW(s):
        for i in range(3): dma(a, vW[i], rWQ, f"s{sKW}", L_W + (s % 4) * 12288 + i * 1024, ("W", s), sM0B, cfg.polW)
        a(f"""
        s_add_u32 s{sKW}, s{sKW}, {32*12288}
        s_cmp_eq_u32 s{sKW}, {640*12288}
        s_cselect_b32 s{sKW}, 0, s{sKW}
        """)
    def ldX(m):
        for i in range(3): dma(a, vXL[i], rX, f"s{sKX}", L_X + (m % 3) * 12288 + i * 1024, ("X", m), sM0B, cfg.polX)
        a(f"""
        s_add_u32 s{sKX}, s{sKX}, 128
        s_cmp_eq_u32 s{sKX}, 1280
        s_cselect_b32 s{sKX}, 0, s{sKX}
        """)
    def ldK(i):
        i1, i0 = divmod(i, 3)
        dma(a, (vKB if i1 & 1 else vKA)[i0], rK, i1 * 3072, L_K + i * 1024, "K", sKVB, cfg.polKV)
    def ldV(i):
        i1, i0 = divmod(i, 3)
        dma(a, vV[i0], rV, i1 * 3072, L_V + i * 1024, "V", sKVB, cfg.polKV)

    ldW(0); ldX(0)
    stamp(a, cfg, 24)
    srd(a, rWS, sWS, WS_BYTES)
    srd(a, rDBG, sDBG, 256)
    if not cfg.arr_w3:
        a.c("wave 7: clear this workgroup's inbox")
        a(f"s_cmp_lg_u32 s{sWAVE}, 7")
        a("s_cbranch_scc1 L_noclr")
        clear_inbox(a, cfg)
        a.label("L_noclr")
    ldW(1)
    srd(a, rK, sK, KV_BYTES)
    srd(a, rV, sV, KV_BYTES)
    srd(a, rWO, sWO, W_BYTES)
    srd(a, rOUT, sOUT, OUT_BYTES)
    a(f"""
    s_mul_i32 s{sKVB}, s{sLW}, 9216
    s_mul_i32 s{sT2}, s{sBH}, 36864
    s_add_u32 s{sT2}, s{sT2}, s{sKVB}
    """)
    for i in range(3):
        a(f"""
        v_mul_u32_u24 v6, 384, v{vK0[i]}
        v_add_u32 v6, s{sT2}, v6
        v_lshrrev_b32 v3, 1, v{vK0[i]}
        v_xor_b32 v4, v3, v{vCP[i]}
        v_xor_b32 v4, s{sT1}, v4
        v_lshl_add_u32 v{vKA[i]}, v4, 4, v6
        v_xor_b32 v4, 4, v4
        v_lshl_add_u32 v{vKB[i]}, v4, 4, v6
        v_and_b32 v3, 1, v3
        v_lshlrev_b32 v3, 2, v3
        v_xor_b32 v4, v3, v{vCP[i]}
        v_lshl_add_u32 v{vV[i]}, v4, 4, v6
        """)
    ldW(2); ldX(1); ldW(3); ldX(2)
    a.c("phase C / D loader addresses")
    a(f"""
    s_and_b32 s{sT1}, s{sLW}, 1
    s_lshr_b32 s{sT2}, s{sLW}, 1
    s_mul_i32 s{sWE}, s{sT2}, 40960
    s_mul_i32 s{sWM}, s{sLW}, 5120
    s_mul_i32 s{sT1}, s{sT1}, 320
    s_mul_i32 s{sT2}, s{sG}, {768*1280}
    s_mul_i32 s{sT3}, s{sJ}, 320
    s_add_u32 s{sT2}, s{sT2}, s{sT3}
    """)
    for i in range(5):
        a(f"""
        v_add_u32 v2, s{sT1}, v0
        v_add_u32 v2, {64*i}, v2
        v_mul_u32_u24 v3, 3277, v2
        v_lshrrev_b32 v3, 16, v3            ; row = t/20
        v_mul_u32_u24 v4, 20, v3
        v_sub_u32 v4, v2, v4                ; cp
        v_lshrrev_b32 v5, 1, v3
        v_and_b32 v5, 2, v5
        v_xor_b32 v4, v4, v5
        v_mul_u32_u24 v3, 1280, v3
        v_lshl_add_u32 v3, v4, 4, v3
        v_add_u32 v{vWO[i]}, s{sT2}, v3
        """)
    a(f"""
    s_mul_i32 s{sWK}, s{sJ}, {3*81920}
    s_mul_i32 s{sJ4}, s{sJ}, 3
    s_add_u32 s{sJ4}, s{sJ4}, 4
    s_mov_b32 s{sWC}, s{sB}
    s_mov_b32 s{sOC}, s{sB}
    v_lshlrev_b32 v7, 4, v0
    s_add_u32 s{sT1}, s{sWM}, {L_WO}
    v_add_u32 v{vSW[0]}, s{sT1}, v7
    v_add_u32 v{vSW[1]}, 40960, v{vSW[0]}
    s_add_u32 s{sT1}, s{sJ}, 1
    s_and_b32 s{sT1}, s{sT1}, 3
    s_mul_i32 s{sOK}, s{sT1}, {3*12288}
    s_mul_i32 s{sOM0}, s{sLW}, 3072
    s_lshl_b32 s{sT1}, s{sB}, 3
    s_add_u32 s{sT1}, s{sT1}, s{sG}
    s_mul_i32 s{sT1}, s{sT1}, 147456
    s_add_u32 s{sT1}, s{sT1}, s{sOM0}
    s_add_u32 s{sT1}, s{sT1}, {cfg.ws_o}
    v_add_u32 v{vOR}, s{sT1}, v7
    v_min_u32 v2, 11, v0
    v_lshlrev_b32 v2, 2, v2
    s_add_u32 s{sT1}, s{sINB}, 1024
    v_add_u32 v{vP1}, s{sT1}, v2
    v_min_u32 v2, 7, v0
    v_max_u32 v2, 1, v2
    v_add_u32 v2, s{sG}, v2
    v_and_b32 v2, 7, v2
    v_lshlrev_b32 v3, 7, v2
    v_add_u32 v{vP2}, s{sINB}, v3
    s_lshr_b32 s{sT1}, s2, 3
    s_lshl_b32 s{sT1}, s{sT1}, 2
    s_add_u32 s{sT1}, s{sT1}, s{sLW}
    s_mul_i32 s{sT1}, s{sT1}, 7680
    s_mul_i32 s{sT2}, s{sG}, 983040
    s_add_u32 s{sT1}, s{sT1}, s{sT2}
    v_min_u32 v2, 59, v0
    v_lshlrev_b32 v2, 7, v2
    v_add_u32 v{vPF}, s{sT1}, v2
    s_and_b32 s{sT0}, s{sG}, 1
    s_lshl_b32 s{sT0}, s{sT0}, 2
    s_add_u32 s{sU}, s{sT0}, s{sLW}
    s_lshl_b32 s{sT2}, s{sB}, 2
    s_add_u32 s{sT2}, s{sT2}, s{sJ}
    s_lshl_b32 s{sT2}, s{sT2}, 5
    s_lshr_b32 s{sT1}, s{sG}, 1
    s_add_u32 s{sT2}, s{sT2}, s{sT1}
    s_lshl_b32 s{sT2}, s{sT2}, 3
    s_add_u32 s{sT2}, s{sT2}, s{sU}
    s_lshl_b32 s{sT2}, s{sT2}, 10
    s_add_u32 s{sT2}, s{sT2}, {cfg.ws_p}
    v_add_u32 v{vDL}, s{sT2}, v7            ; + src*32768
    s_bfe_u32 s{sT0}, s{sG}, 0x10001        ; i
    s_lshr_b32 s{sT1}, s{sG}, 2             ; jq
    s_mul_i32 s{sT1}, s{sT1}, 48
    s_mul_i32 s{sT2}, s{sB}, 96
    s_add_u32 s{sT1}, s{sT1}, s{sT2}
    s_lshr_b32 s{sT2}, s{sU}, 1             ; t (u<6)
    s_cmp_eq_u32 s{sU}, 6
    s_cselect_b32 s{sT2}, 0, s{sT2}
    s_cmp_eq_u32 s{sU}, 7
    s_cselect_b32 s{sT2}, 2, s{sT2}
    s_lshl_b32 s{sT2}, s{sT2}, 4
    s_add_u32 s{sT1}, s{sT1}, s{sT2}
    s_mul_i32 s{sT1}, s{sT1}, 1280
    s_and_b32 s{sT2}, s{sU}, 1
    s_lshl_b32 s{sT2}, s{sT2}, 6
    s_mul_i32 s{sT3}, s{sT0}, 192           ; (80+16) columns * 2B * i
    s_add_u32 s{sT2}, s{sT2}, s{sT3}
    s_lshl_b32 s{sT3}, s{sT0}, 5
    s_add_u32 s{sT3}, s{sT3}, 128           ; (64 + 16 i) * 2B
    s_cmp_ge_u32 s{sU}, 6
    s_cselect_b32 s{sT2}, s{sT3}, s{sT2}
    s_add_u32 s{sT1}, s{sT1}, s{sT2}
    s_mul_i32 s{sT2}, s{sJ}, 320
    s_add_u32 s{sT1}, s{sT1}, s{sT2}
    v_and_b32 v2, 15, v0
    v_mul_u32_u24 v2, 1280, v2
    v_lshrrev_b32 v3, 4, v0
    v_lshl_add_u32 v2, v3, 3, v2
    v_add_u32 v{vDO}, s{sT1}, v2
    s_mov_b32 s{sDN}, 32
    s_cmp_eq_u32 s{sU}, 6
    s_cselect_b32 s{sDN}, {16*1280}, s{sDN}
    s_cmp_eq_u32 s{sU}, 7
    s_cselect_b32 s{sDN}, 16, s{sDN}
    """)
    stamp(a, cfg, 1)
    a.wait_vm(("W", 0), ("X", 0))
    a("s_barrier   ; P")
    stamp(a, cfg, 2)
    def arrive(n):
        if cfg.skip_arrive or cfg.arr_w3: return
        a.c("wave 7: inbox cleared (its stores are older than W1) -> arrive in d_debug")
        a(f"s_cmp_lg_u32 s{sWAVE}, 7")
        a(f"s_cbranch_scc1 L_noarr{n}")
        arrive_op(a, cfg)
        a.label(f"L_noarr{n}")
    def hs_read():
        a.c("have the 32 workgroups of this batch cleared their inboxes?  (read now, looked at before the V barrier)")
        a(f"""
        v_and_b32 v8, 7, v0
        v_lshlrev_b32 v8, 2, v8
        s_lshl_b32 s{sSPIN}, s{sB}, 5
        v_add_u32 v8, s{sSPIN}, v8
        """)
        if cfg.hs_w7:
            _lbl[0] += 1
            a(f"s_cmp_lg_u32 s{sWAVE}, 7")
            a(f"s_cbranch_scc1 L_nohsrd{_lbl[0]}")
            a(f"buffer_load_dword v9, v8, s[{rDBG}:{rDBG+3}], 0 offen sc1")
            if cfg.flag_pre == 'hs': a(f"buffer_load_dword v253, v{vP1}, s[{rWS}:{rWS+3}], 0 offen sc1")
            a.label(f"L_nohsrd{_lbl[0]}")
            a.hs_pos = len(a.vm)
        else:
            a.vmem(f"buffer_load_dword v9, v8, s[{rDBG}:{rDBG+3}], 0 offen sc1", "hs")
    variants = cfg.kv_variants or [(cfg.k_sched, cfg.v_sched)]
    nv = len(variants)
    if nv > 1:
        a(f"s_lshr_b32 s{sT1}, s2, {cfg.kv_sel_shift}")
        a(f"s_and_b32 s{sT1}, s{sT1}, {nv-1}")
        for v in range(1, nv):
            a(f"s_cmp_eq_u32 s{sT1}, {v}")
            a(f"s_cbranch_scc1 L_kvvar{v}")
    vm0 = list(a.vm)
    for v, var in enumerate(variants):
        ksch, vsch = var[0], var[1]
        pfs = var[2] if len(var) > 2 else cfg.pf_at
        if v: a.label(f"L_kvvar{v}")
        a.vm = list(vm0)
        for s in range(19):
            a.wait_vm(("W", s + 1), ("X", (s + 1) >> 1))
            if s == cfg.arr_step: arrive(v)
            a(f"s_barrier   ; B{s}")
            if s + 4 < 20: ldW(s + 4)
            if s & 1 and (s >> 1) + 3 < 10: ldX((s >> 1) + 3)
            if cfg.wo_prefetch and pfs == s:
                a.vmem(f"buffer_load_dword v253, v{vPF}, s[{rWO}:{rWO+3}], 0 offen {cfg.polPF}", "pf")
            def pfk():
                if cfg.pf_k and ksch[-1] == s:
                    m = (1 << cfg.pf_k) - 1
                    a(f"s_mov_b32 exec_lo, {m & 0xffffffff:#x}")
                    a(f"s_mov_b32 exec_hi, {m >> 32:#x}")
                    a.vmem(f"buffer_load_dword v253, v{vPF}, s[{rWO}:{rWO+3}], 0 offen {cfg.polPF}", "pf")
                    a("s_mov_b64 exec, -1")
            if cfg.pf_first: pfk()
            for i, ss in enumerate(ksch):
                if ss == s: ldK(i)
            if not cfg.pf_first: pfk()
            if cfg.touch_k and ksch[-1] == s:
                _lbl[0] += 1
                a(f"s_cmp_lg_u32 s{sWAVE}, 4")
                a(f"s_cbranch_scc1 L_notch{_lbl[0]}")
                a("s_mov_b64 exec, 1")
                if 'v' in cfg.touch_k: a(f"buffer_load_dword v253, v{vV[0]}, s[{rV}:{rV+3}], 0 offen nt")
                if 'w' in cfg.touch_k: a(f"buffer_load_dword v253, v{vWO[0]}, s[{rWO}:{rWO+3}], s{sWK} offen")
                if 'o' in cfg.touch_k: a(f"buffer_load_dword v253, v{vOR}, s[{rWS}:{rWS+3}], 0 offen nt")
                if 'p' in cfg.touch_k: a(f"buffer_load_dword v253, v{vDL}, s[{rWS}:{rWS+3}], 0 offen nt")
                if 'u' in cfg.touch_k: a(f"buffer_load_dword v253, v{vDO}, s[{rOUT}:{rOUT+3}], 0 offen nt")
                a("s_mov_b64 exec, -1")
                a.label(f"L_notch{_lbl[0]}")
            if (cfg.hs_at == 'K' and ksch[-1] == s) or cfg.hs_at == s: hs_read()
            for i, ss in enumerate(vsch):
                if ss == s: ldV(i)
            if s in (4, 9, 14): stamp(a, cfg, 3 + (s - 4) // 5)
        a.wait_vm("K")
        if v < nv - 1: a("s_branch L_kvjoin")
    if nv > 1: a.label("L_kvjoin")
    stamp(a, cfg, 6)
    a("s_barrier   ; Q")
    a.vm = ["V"]
    def pf():
        if cfg.wo_prefetch:
            a.vmem(f"buffer_load_dword v253, v{vPF}, s[{rWO}:{rWO+3}], 0 offen {cfg.polPF}", "pf")
    if cfg.hs_at == 'Q': hs_read()
    def pf_part(lo, hi):
        m = ((1 << hi) - 1) ^ ((1 << lo) - 1)
        a(f"s_mov_b32 exec_lo, {m & 0xffffffff:#x}")
        a(f"s_mov_b32 exec_hi, {m >> 32:#x}")
        pf()
        a("s_mov_b64 exec, -1")
    if cfg.pf_at == "Q":
        if cfg.pf_split: pf_part(0, cfg.pf_split)
        elif cfg.pf_k:
            if cfg.pf_k < 60: pf_part(cfg.pf_k, 60)
        else: pf()
    nxt = 0
    def issue_upto(n):
        nonlocal nxt
        while nxt < n:
            ld_wo_pair(a, cfg, nxt); nxt += 1
    for p in range(2, cfg.early): assert p in cfg.staged
    issue_upto(cfg.early)
    if cfg.hs_w7:
        a(f"s_cmp_lg_u32 s{sWAVE}, 7")
        a("s_cbranch_scc1 L_nohs")
    save = list(a.vm)
    if cfg.hs_at == 'Q':
        if cfg.hs_w7:
            n = len(a.vm) - a.hs_pos
            a(f"s_waitcnt vmcnt({n})")
        else:
            a.wait_vm("hs")
            save = list(a.vm)
    def chk():
        if cfg.arr_byte:
            a(f"""
            v_and_b32 v4, 0x80808080, v9
            v_cmp_eq_u32 vcc, 0x80808080, v4
            s_cmp_eq_u64 vcc, -1
            """)
        else:
            a(f"""
            v_and_b32 v4, 7, v9
            v_cmp_eq_u32 vcc, 4, v4
            s_cmp_eq_u64 vcc, -1
            """)
    chk()
    if cfg.skip_arrive: a("s_cmp_eq_u32 0, 0")
    a("s_cbranch_scc1 L_hsok")
    poll(a, cfg, 8, rDBG, "0", 9, chk)
    a.label("L_hsok")
    a.vm = save
    a(f"""
    s_cmp_lg_u32 s{sWAVE}, 7
    s_cbranch_scc1 L_nohs
    v_readlane_b32 s{sT1}, v9, s{sG}
    """)
    if cfg.arr_byte:
        a(f"""
        s_and_b32 s{sT2}, s{sT1}, 0xff
        s_mul_i32 s{sT2}, s{sT2}, 0x01010101
        """)
    else:
        a(f"""
        s_bfe_u32 s{sT1}, s{sT1}, 0x100004
        s_and_b32 s{sT2}, s{sT1}, 15
        s_mul_i32 s{sT2}, s{sT2}, 0x1111
        """)
    a(f"""
    s_cmp_eq_u32 s{sT1}, s{sT2}
    s_cselect_b32 s{sT1}, {0 if cfg.force_slow else 1}, 0
    v_mov_b32 v2, {L_FLAG}
    v_mov_b32 v3, s{sT1}
    ds_write_b32 v2, v3
    """)
    if cfg.flag_pre == 'V': a(f"buffer_load_dword v253, v{vP1}, s[{rWS}:{rWS+3}], 0 offen sc1")
    a("s_waitcnt lgkmcnt(0)")
    a.label("L_nohs")
    a.wait_vm("V")
    stamp(a, cfg, 8)
    a("s_barrier   ; V")
    if cfg.pf_at == "V": pf()
    if cfg.pf_at == "Q" and cfg.pf_split: pf_part(cfg.pf_split, 60)
    for p in (2, 3):
        if p in cfg.staged and p < nxt: put_wo_pair(a, cfg, p)
    issue_upto(cfg.mid)
    for p in (2, 3):
        if p in cfg.staged and not any(t == ("WOL", p) for t in a.lg) and p >= cfg.early: put_wo_pair(a, cfg, p)
    if cfg.pf_at == "V2": pf()
    stamp(a, cfg, 10)
    a.wait_vm(("WO", 0))
    stamp(a, cfg, 12)
    a("s_barrier   ; O1")
    stamp(a, cfg, 13)
    for p in range(max(nxt, 4), cfg.late): assert p in cfg.staged
    issue_upto(max(4, cfg.late))
    def chk1():
        a(f"v_cmp_eq_u32 vcc, 1, v3")
        a("s_cmp_eq_u64 vcc, -1")
    for p in range(11):
        if p in (1, 2): stamp(a, cfg, 21 + p)
        if p == 2:
            a.c("wait for the siblings' O tiles")
            poll(a, cfg, vP1, rWS, "0", 3, chk1)
            if cfg.stamps: a(f"v_writelane_b32 v255, s{sSPIN}, 30")
            stamp(a, cfg, 14)
            for pp in (3, 4, 5): ld_o_pair(a, cfg, pp)
        a.wait_vm(("WO", p + 1), ("O", p + 1))
        a.wait_lg(("WOL", p + 1))
        a(f"s_barrier   ; C{p}")
        if p + 4 < 12:
            issue_upto(p + 5)
            if p + 4 in cfg.staged: put_wo_pair(a, cfg, p + 4)
        if p >= 3 and p + 3 < 12: ld_o_pair(a, cfg, p + 3)
        if p in (2, 5, 8): stamp(a, cfg, 15 + (p - 2) // 3)
    stamp(a, cfg, 18)
    a.c("phase D")
    A = 48
    a("s_barrier   ; PD")
    stamp(a, cfg, 26)
    a(f"s_lshl_b32 s{sT0}, s{sLW}, 10")
    a(f"v_lshlrev_b32 v2, 4, v0")
    a(f"v_add_u32 v2, s{sT0}, v2")
    a.ds(f"ds_read_b128 v[16:19], v2 offset:{L_OWN}", "own")
    a(f"s_cmp_lg_u32 s{sWAVE}, 4")
    a("s_cbranch_scc1 L_nopoll2")
    if cfg.h2_delay: a(f"s_sleep {cfg.h2_delay}")
    def chk2():
        a(f"v_cmp_eq_u32 vcc, 1, v3")
        a("s_cmp_eq_u64 vcc, -1")
    if cfg.spoll2:
        a(f"""
        s_add_u32 s28, s{sWS}, s{sINB}
        s_addc_u32 s29, s{sWS+1}, 0
        s_mov_b32 s{sSPIN}, 0
        """)
        a.label("L_sp2")
        for k in range(8): a(f"s_load_dword s{32+k}, s[28:29], {k*128} glc")
        a("s_waitcnt lgkmcnt(0)")
        a(f"s_and_b32 s32, s32, s33")
        for k in range(2, 8): a(f"s_and_b32 s32, s32, s{32+k}")
        a(f"""
        s_cmp_eq_u32 s32, 1
        s_cbranch_scc1 L_nopoll2
        s_add_u32 s{sSPIN}, s{sSPIN}, 1
        s_cmp_lt_u32 s{sSPIN}, {cfg.spin_max}
        s_cbranch_scc1 L_sp2
        """)
        a.lg = []
    else:
        poll(a, cfg, vP2, rWS, "0", 3, chk2)
    a.label("L_nopoll2")
    a("s_barrier   ; PE")
    if cfg.stamps: a(f"v_writelane_b32 v255, s{sSPIN}, 31")
    stamp(a, cfg, 19)
    a(f"""
    s_cmp_eq_u32 s{sU}, 7
    s_cselect_b32 exec_hi, 0, -1
    """)
    a.vm = []
    for k in range(1, 8):
        a(f"""
        s_add_u32 s{sT0}, s{sG}, {k}
        s_and_b32 s{sT0}, s{sT0}, 7
        s_lshl_b32 s{sT0}, s{sT0}, 15
        """)
        a.vmem(f"buffer_load_dwordx4 {vr(16+4*k)}, v{vDL}, s[{rWS}:{rWS+3}], s{sT0} offen sc1", ("p", k))
    a(f"s_mov_b32 s{sT1}, 0xffff0000")
    for k in range(8):
        if k == 0: a.wait_lg_all()
        a.wait_vm(("p", k))
        for i in range(4):
            s = 16 + 4 * k + i
            if k == 0:
                a(f"v_lshlrev_b32 v{A+2*i}, 16, v{s}")
                a(f"v_and_b32 v{A+2*i+1}, s{sT1}, v{s}")
            else:
                a(f"v_lshlrev_b32 v{60+2*i}, 16, v{s}")
                a(f"v_and_b32 v{61+2*i}, s{sT1}, v{s}")
                a(f"v_add_f32 v{A+2*i}, v{A+2*i}, v{60+2*i}")
                a(f"v_add_f32 v{A+2*i+1}, v{A+2*i+1}, v{61+2*i}")
    stamp(a, cfg, 20)
    for i in range(4):
        a(f"v_cvt_pk_bf16_f32 v{16+i}, v{A+2*i}, v{A+2*i+1}")
    if cfg.out_x4:
        a.c("tile pairs: lanes kq 0|1 and 2|3 trade halves so that every lane holds 8 consecutive columns")
        a(f"""
        s_cmp_ge_u32 s{sU}, 6
        s_cbranch_scc1 L_outx2
        v_permlane16_swap_b32 v16, v18
        v_permlane16_swap_b32 v17, v19
        v_bfe_u32 v2, v0, 4, 1
        v_mul_u32_u24 v2, 24, v2
        v_add_u32 v2, v2, v{vDO}
        """)
        a(f"buffer_store_dwordx4 v[16:19], v2, s[{rOUT}:{rOUT+3}], 0 offen {cfg.polOut}")
        a("s_branch L_outdone")
        a.label("L_outx2")
    if not cfg.skip_out:
        a(f"buffer_store_dwordx2 v[16:17], v{vDO}, s[{rOUT}:{rOUT+3}], 0 offen {cfg.polOut}")
        a(f"buffer_store_dwordx2 v[18:19], v{vDO}, s[{rOUT}:{rOUT+3}], s{sDN} offen {cfg.polOut}")
    if cfg.out_x4: a.label("L_outdone")
    a("s_mov_b64 exec, -1")
    a("s_branch L_fin")


def computeA(a, cfg):
    a.label("L_computeA")
    a.reset()
    a(f"s_mov_b32 s{sROLE}, 0")
    if cfg.prefetch_code and not cfg.pf_code_early:
        a.c("wave w warms L2 with 8 KB of this kernel's code (one dword per 128-byte line)")
        a(f"s_getpc_b64 s[{sT2}:{sT2+1}]")
        a.label("L_pc")
        a(f"""
        s_sub_u32 s{sT2}, s{sT2}, L_pc-{KN}
        s_subb_u32 s{sT2+1}, s{sT2+1}, 0
        s_lshl_b32 s{sT0}, s{sWAVE}, 13
        v_lshlrev_b32 v2, 7, v0
        v_add_u32 v2, s{sT0}, v2
        v_min_u32 v2, L_end-{KN}, v2
        global_load_dword v253, v2, s[{sT2}:{sT2+1}]
        """)
    ACC = 16
    def acc(T, t): return ACC + (T * 6 + t) * 4
    SETA = [88, 124]; SETB = [100, 136]
    a.c("phase A addresses: v2=kq v3=r v4=c v5=n")
    a(f"""
    v_lshrrev_b32 v2, 4, v0
    v_bfe_u32 v3, v0, 2, 2
    v_and_b32 v4, 3, v0
    v_and_b32 v5, 15, v0
    v_lshlrev_b32 v6, 3, v2
    v_add_u32 v6, v6, v3                     ; k = 8kq + r
    v_mul_u32_u24 v6, 384, v6
    v_lshl_add_u32 v6, v4, 3, v6             ; k*384 + 8c
    v_lshrrev_b32 v7, 1, v3
    v_and_b32 v8, 1, v2
    v_lshl_or_b32 v7, v8, 1, v7              ; h(k)
    s_mul_i32 s{sT0}, s{sWAVE}, 3
    """)
    for T in range(3):
        a(f"""
        s_add_u32 s{sT1}, s{sT0}, {T}
        v_xor_b32 v8, s{sT1}, v7
        v_lshl_add_u32 v{vA[T]}, v8, 5, v6
        """)
    a(f"""
    v_lshrrev_b32 v6, 1, v5                  ; (n>>1)&7
    v_xor_b32 v6, v6, v2
    v_lshlrev_b32 v6, 4, v6
    v_lshl_add_u32 v6, v5, 7, v6
    v_add_u32 v{vXe}, {L_X}, v6
    v_xor_b32 v{vXo}, 64, v{vXe}
    v_lshrrev_b32 v6, 1, v2
    v_lshlrev_b32 v6, 9, v6
    v_lshl_add_u32 v6, v5, 4, v6
    v_and_b32 v7, 1, v2
    v_lshl_add_u32 v6, v7, 3, v6
    s_mul_i32 s{sT0}, s{sWAVE}, 3072
    v_add_u32 v{vQW}, s{sT0}, v6
    v_lshlrev_b32 v{vL16}, 4, v0
    v_mov_b32 v{vONE}, 1
    v_and_b32 v6, 31, v0
    v_lshrrev_b32 v7, 5, v0
    v_bfe_u32 v8, v0, 1, 3                   ; (m>>1)&7
    v_xor_b32 v8, v8, v7
    v_mul_u32_u24 v9, 384, v6
    v_lshl_add_u32 v9, v8, 4, v9
    v_add_u32 v{vK0c}, {L_K}, v9
    v_lshl_add_u32 v8, v7, 2, v3
    v_mul_u32_u24 v8, 384, v8
    v_lshl_add_u32 v8, v4, 3, v8             ; + 8c
    v_and_b32 v9, 2, v3                      ; hh
    v_and_b32 v6, 1, v2                      ; dh
    v_or_b32 v9, v9, v6
    v_lshl_add_u32 v8, v9, 5, v8
    v_add_u32 v{vV0}, {L_V}, v8
    v_lshlrev_b32 v8, 10, v6                 ; (n>>4)*1024
    v_lshl_add_u32 v8, v7, 8, v8             ; + hi*256
    v_lshl_add_u32 v8, v5, 4, v8             ; + (n&15)*16
    s_lshl_b32 s{sT0}, s{sWAVE}, 11
    v_add_u32 v{vOL}, s{sT0}, v8
    s_lshl_b32 s{sT2}, s{sB}, 3
    s_add_u32 s{sT2}, s{sT2}, s{sG}
    s_lshl_b32 s{sT2}, s{sT2}, 2
    s_add_u32 s{sT2}, s{sT2}, s{sJ}
    s_mul_i32 s{sOB}, s{sT2}, 36864
    s_add_u32 s{sOB}, s{sOB}, {cfg.ws_o}
    s_lshl_b32 s{sT2}, s{sJ}, 11
    s_sub_u32 s{sT2}, s{sINB}, s{sT2}
    s_add_u32 s{sT2}, s{sT2}, 1024
    s_mul_i32 s{sT3}, s{sJ}, 12
    s_add_u32 s{sT2}, s{sT2}, s{sT3}
    s_lshl_b32 s{sT3}, s{sWAVE}, 2
    s_add_u32 s{sT2}, s{sT2}, s{sT3}
    v_lshlrev_b32 v8, 11, v4
    v_add_u32 v{vF1}, s{sT2}, v8
    s_and_b32 s{sI}, s{sWAVE}, 1
    s_lshr_b32 s{sJQ}, s{sWAVE}, 1
    v_lshrrev_b32 v6, 1, v2
    v_lshlrev_b32 v6, 4, v6
    v_and_b32 v7, 1, v2
    v_lshl_add_u32 v6, v7, 2, v6
    v_add_u32 v6, v6, v3
    v_mul_u32_u24 v6, 320, v6
    v_lshl_add_u32 v6, v4, 3, v6
    v_add_u32 v6, {L_WO}, v6
    s_mul_i32 s{sT0}, s{sI}, 5
    """)
    a.c("local tile T is column tile 5i + (T+i) mod 5: tiles (0,1) and (2,3) pair up, tile 4 is the odd one")
    for T in range(5):
        a(f"s_add_u32 s{sT1}, s{sI}, {T}")
        if T == 4:
            a(f"s_cmp_eq_u32 s{sT1}, 5")
            a(f"s_cselect_b32 s{sT1}, 0, s{sT1}")
        a(f"""
        s_add_u32 s{sT1}, s{sT1}, s{sT0}
        v_xor_b32 v8, s{sT1}, v7
        v_lshl_add_u32 v{vCA0[T]}, v8, 5, v6
        """)
    a(f"""
    s_lshl_b32 s{sT0}, s{sB}, 2
    s_add_u32 s{sT0}, s{sT0}, s{sJ}
    s_lshl_b32 s{sT0}, s{sT0}, 3
    s_add_u32 s{sT0}, s{sT0}, s{sG}
    s_lshl_b32 s{sT0}, s{sT0}, 2
    s_add_u32 s{sT0}, s{sT0}, s{sWAVE}
    s_lshl_b32 s{sT0}, s{sT0}, 13
    s_add_u32 s{sPS}, s{sT0}, {cfg.ws_p}
    s_lshl_b32 s{sT0}, s{sB}, 5
    s_lshl_b32 s{sT1}, s{sWAVE}, 3
    s_add_u32 s{sT0}, s{sT0}, s{sT1}
    s_add_u32 s{sT0}, s{sT0}, s{sJ}
    s_lshl_b32 s{sT0}, s{sT0}, 11
    s_lshl_b32 s{sT1}, s{sG}, 7
    s_add_u32 s{sT0}, s{sT0}, s{sT1}
    s_add_u32 s{sT0}, s{sT0}, {cfg.ws_in}
    """)
    if cfg.flag_line:
        a(f"""
        v_bfe_u32 v3, v0, 3, 1
        v_lshlrev_b32 v3, 13, v3
        v_and_b32 v6, 7, v0
        v_lshl_add_u32 v3, v6, 4, v3
        v_add_u32 v{vF2}, s{sT0}, v3
        """)
    else:
        a(f"""
        v_and_b32 v3, 1, v0
        v_lshlrev_b32 v3, 13, v3
        v_add_u32 v{vF2}, s{sT0}, v3
        """)
    wait_kernarg(a, cfg)
    srd(a, rWS, sWS, WS_BYTES)
    if cfg.arr_w3:
        a.c("wave 3: clear this workgroup's inbox, then arrive in d_debug")
        a(f"s_cmp_lg_u32 s{sWAVE}, 3")
        a("s_cbranch_scc1 L_noclr")
        srd(a, rDBG, sDBG, 256)
        clear_inbox(a, cfg)
        a("s_waitcnt vmcnt(0)")
        if not cfg.skip_arrive: arrive_op(a, cfg)
        a.label("L_noclr")
    if cfg.pretouch:
        a.c("wave 1 touches the pages used later so that their translations are resident")
        a(f"""
        s_cmp_lg_u32 s{sWAVE}, 1
        s_cbranch_scc1 L_notouch
        """)
        srd(a, rK, sK, KV_BYTES); srd(a, rV, sV, KV_BYTES); srd(a, rWO, sWO, W_BYTES); srd(a, rOUT, sOUT, OUT_BYTES)
        a(f"""
        s_mov_b64 exec, 3
        v_mul_u32_u24 v2, 36860, v0
        s_mul_i32 s{sT0}, s{sBH}, 36864
        buffer_load_dword v253, v2, s[{rK}:{rK+3}], s{sT0} offen nt
        buffer_load_dword v253, v2, s[{rV}:{rV+3}], s{sT0} offen nt
        v_mul_u32_u24 v2, 983036, v0
        s_mul_i32 s{sT0}, s{sG}, 983040
        buffer_load_dword v253, v2, s[{rWO}:{rWO+3}], s{sT0} offen
        buffer_load_dword v253, v2, s[{rOUT}:{rOUT+3}], 0 offen nt
        buffer_load_dword v253, v{vL16}, s[{rWS}:{rWS+3}], s{sOB} offen nt
        buffer_load_dword v253, v{vL16}, s[{rWS}:{rWS+3}], s{sPS} offen nt
        s_mov_b64 exec, -1
        """)
        a.label("L_notouch")
    stamp(a, cfg, 1)

    def reads(s):
        st = s & 1
        wo = L_W + (s % 4) * 12288
        xo = ((s >> 1) % 3) * 12288
        vx = vXo if s & 1 else vXe
        R = []
        def ra(T):
            R.append((f"ds_read_b64_tr_b16 {vr(SETA[st]+4*T, 2)}, v{vA[T]} offset:{wo}", ("A", s, T)))
            R.append((f"ds_read_b64_tr_b16 {vr(SETA[st]+4*T+2, 2)}, v{vA[T]} offset:{wo+1536}", ("A", s, T)))
        ra(0)
        for t in range(6):
            R.append((f"ds_read_b128 {vr(SETB[st]+4*t)}, v{vx} offset:{xo + t*2048}", ("B", s, t)))
        ra(1); ra(2)
        return R

    a("s_barrier   ; P")
    stamp(a, cfg, 2)
    for ins, tag in reads(0): a.ds(ins, tag)
    def qwrite(T, t):
        d = acc(T, t)
        tmp = 88 + ((T * 6 + t) % 8) * 2
        return [f"v_cvt_pk_bf16_f32 v{tmp}, v{d}, v{d+1}", f"v_cvt_pk_bf16_f32 v{tmp+1}, v{d+2}, v{d+3}",
                ("ds", f"ds_write_b64 v{vQW}, {vr(tmp, 2)} offset:{L_Q + 1024*T + 12288*(t >> 1) + 256*(t & 1)}")]
    for s in range(20):
        a.wait_lg_all()
        if s < 19:
            a(f"s_barrier   ; B{s}")
        R = reads(s + 1) if s < 19 else []
        st = s & 1
        m = 0
        qq = []
        for T in range(3):
            for t in range(6):
                a(mfma(acc(T, t), SETA[st] + 4 * T, SETB[st] + 4 * t, first=(s == 0)))
                if m < len(R): a.ds(*R[m])
                if s == 19:
                    if m >= cfg.q_lag:
                        T2, t2 = divmod(m - cfg.q_lag, 6)
                        qq += qwrite(T2, t2)
                    for _ in range(cfg.q_rate):
                        if qq:
                            x = qq.pop(0)
                            a.ds(x[1], "qw") if isinstance(x, tuple) else a(x)
                m += 1
        if s in (4, 9, 14): stamp(a, cfg, 3 + (s - 4) // 5)
    stamp(a, cfg, 6)
    a.c("Q -> bf16 -> LDS (fragment-major)")
    for m in range(18 - cfg.q_lag, 18): qq += qwrite(*divmod(m, 6))
    for x in qq:
        a.ds(x[1], "qw") if isinstance(x, tuple) else a(x)
    a.wait_lg_all()
    a("s_barrier   ; Q")
    a(f"""
    s_cmp_lt_u32 s{sWAVE}, 3
    s_cbranch_scc1 L_phaseB
    s_barrier   ; V
    s_barrier   ; O1
    s_branch L_computeC
    """)


def phaseB(a, cfg):
    a.label("L_phaseB")
    a.reset()
    if cfg.prio_b: a(f"s_setprio {cfg.prio_b}")
    S = 16; QF = 72; KF = 120; P = 64; VF = 88; O = 136; OB = 184
    vQR = 10; vKa = [vK0c, 11, 12, 13]; vVa = [vV0, 14]
    M, T1 = 2, 3
    N = [4, 5, 6]; LA = [7, 9, 10]; LB = [8, 15, 11]
    sC2 = sSTAMP + 8
    stamp(a, cfg, 7)
    a(f"s_mul_i32 s{sT0}, s{sWAVE}, 12288")
    a(f"v_add_u32 v{vQR}, s{sT0}, v{vL16}")
    def qread(ks): a.ds(f"ds_read_b128 {vr(QF+4*ks)}, v{vQR} offset:{L_Q + ks*1024}", ("Q", ks))
    def kread(i):
        kt, ks = divmod(i, 12)
        a.ds(f"ds_read_b128 {vr(KF + 4*(i % 4))}, v{vKa[ks & 3]} offset:{kt*12288 + (ks >> 2)*128}", ("K", i))
    qread(0); kread(0)
    for x in range(1, 4): a(f"v_xor_b32 v{vKa[x]}, {32*x}, v{vK0c}")
    qread(1); kread(1); qread(2); kread(2); kread(3)
    a(f"v_xor_b32 v{vVa[1]}, 64, v{vV0}")
    a(f"s_mov_b32 s{sC2}, {f32hex(SCALE)}")
    a(f"s_mov_b32 s{sC2+1}, {f32hex(SCALE)}")
    def maxops(kt):
        b = S + 16 * kt
        r = []
        if kt == 0:
            r.append(f"v_max3_f32 v{M}, v{b}, v{b+1}, v{b+2}"); r.append(f"v_max3_f32 v{T1}, v{b+3}, v{b+4}, v{b+5}")
            rest = list(range(6, 16))
        else:
            r.append(f"v_max3_f32 v{T1}, v{b}, v{b+1}, v{b+2}")
            rest = list(range(3, 16))
        tog = 0
        while len(rest) >= 2:
            d = (M, T1)[tog]; tog ^= 1
            r.append(f"v_max3_f32 v{d}, v{d}, v{b+rest[0]}, v{b+rest[1]}"); rest = rest[2:]
        if rest: r.append(f"v_max3_f32 v{M}, v{M}, v{T1}, v{b+rest[0]}")
        else: r.append(f"v_max_f32 v{M}, v{M}, v{T1}")
        r += [f"v_mov_b32 v{T1}, v{M}", "s_nop 1", f"v_permlane32_swap_b32 v{M}, v{T1}", f"v_max_f32 v{M}, v{M}, v{T1}",
              f"v_mul_f32 v{N[kt]}, {f32hex(-SCALE)}, v{M}"]
        return r
    def expops(kt):
        b = S + 16 * kt
        r = []
        for i in range(16 + 3):
            if i < 16: r.append(f"v_fmamk_f32 v{b+i}, v{b+i}, {f32hex(SCALE)}, v{N[kt]}")
            if 1 <= i <= 16: r.append(f"v_exp_f32 v{b+i-1}, v{b+i-1}")
            j = i - 3
            if j == 1: r.append(f"v_add_f32 v{LA[kt]}, v{b}, v{b+1}")
            elif j == 3: r.append(f"v_add_f32 v{LB[kt]}, v{b+2}, v{b+3}")
            elif j >= 4: r.append(f"v_add_f32 v{(LA if j % 2 == 0 else LB)[kt]}, v{(LA if j % 2 == 0 else LB)[kt]}, v{b+j}")
        return r
    fill = []
    for i in range(36):
        kt, ks = divmod(i, 12)
        if i % 2 == 0: a.wait_lg(("Q", ks), ("K", i), ("Q", ks + 1), ("K", i + 1))
        a(mfma32(S + 16 * kt, KF + 4 * (i % 4), QF + 4 * ks, first=(ks == 0)))
        if i + 4 < 36: kread(i + 4)
        if i + 3 < 12: qread(i + 3)
        if i == 14: fill += maxops(0) + expops(0)
        if i == 26: fill += maxops(1) + expops(1)
        for _ in range(cfg.fill_s):
            if fill: a(fill.pop(0))
    stamp(a, cfg, 8)
    a("s_barrier   ; V")
    stamp(a, cfg, 9)
    def vread(i):
        Td, s = divmod(i, 6)
        for e in range(2):
            a.ds(f"ds_read_b64_tr_b16 {vr(VF + 4*(i % 12) + 2*e, 2)}, v{vVa[Td & 1]} offset:{(Td >> 1)*128 + s*6144 + e*3072}", ("V", i))
    NV = cfg.nv_pv
    for i in range(NV): vread(i)
    a(f"v_mov_b32 v1, {L_FLAG}")
    a.ds("ds_read_b32 v1, v1", "fast")
    for x in fill + maxops(2): a(x)
    b = S + 32
    a(f"v_sub_f32 v{N[0]}, v{N[2]}, v{N[0]}")
    a(f"v_sub_f32 v{N[1]}, v{N[2]}, v{N[1]}")
    for i in range(0, 16, 2):
        a(f"v_pk_fma_f32 v[{b+i}:{b+i+1}], v[{b+i}:{b+i+1}], s[{sC2}:{sC2+1}], v[{N[2]}:{N[2]+1}] op_sel_hi:[1,1,0]")
    a(f"v_exp_f32 v{N[0]}, v{N[0]}")
    a(f"v_exp_f32 v{N[1]}, v{N[1]}")
    a(f"v_add_f32 v{LA[0]}, v{LA[0]}, v{LB[0]}")
    a(f"v_add_f32 v{LA[1]}, v{LA[1]}, v{LB[1]}")
    for i in range(16):
        a(f"v_exp_f32 v{b+i}, v{b+i}")
    a(f"v_mul_f32 v{LA[0]}, v{LA[0]}, v{N[0]}")
    a(f"v_fmac_f32 v{LA[0]}, v{LA[1]}, v{N[1]}")
    a(f"v_pk_add_f32 v[{LA[2]}:{LA[2]+1}], v[{b}:{b+1}], v[{b+2}:{b+3}]")
    a(f"v_pk_add_f32 v[{M}:{M+1}], v[{b+4}:{b+5}], v[{b+6}:{b+7}]")
    for i in range(8, 16, 4):
        a(f"v_pk_add_f32 v[{LA[2]}:{LA[2]+1}], v[{LA[2]}:{LA[2]+1}], v[{b+i}:{b+i+1}]")
        a(f"v_pk_add_f32 v[{M}:{M+1}], v[{M}:{M+1}], v[{b+i+2}:{b+i+3}]")
    a(f"v_pk_add_f32 v[{M}:{M+1}], v[{M}:{M+1}], v[{LA[2]}:{LA[2]+1}]")
    a(f"v_add_f32 v{M}, v{M}, v{T1}")
    a(f"v_add_f32 v{M}, v{M}, v{LA[0]}")
    a(f"v_mov_b32 v{T1}, v{M}")
    a(f"v_permlane32_swap_b32 v{M}, v{T1}")
    a(f"v_add_f32 v{M}, v{M}, v{T1}")
    a(f"v_rcp_f32 v{N[2]}, v{M}")
    a.wait_lg("fast")
    a(f"v_readfirstlane_b32 s{sFAST}, v1")
    a(f"v_mul_f32 v{N[0]}, v{N[0]}, v{N[2]}")
    a(f"v_mul_f32 v{N[1]}, v{N[1]}, v{N[2]}")
    a(f"s_cmp_lg_u32 s{sFAST}, 0")
    a("s_cselect_b64 vcc, -1, 0")
    for s in range(6):
        kt = s >> 1
        g = N[kt]
        pair, sel = (g & ~1, g & 1)
        b = S + 8 * s
        for i in range(0, 8, 2):
            a(f"v_pk_mul_f32 v[{b+i}:{b+i+1}], v[{b+i}:{b+i+1}], v[{pair}:{pair+1}] op_sel:[0,{sel}] op_sel_hi:[1,{sel}]")
        for i in range(4):
            a(f"v_cvt_pk_bf16_f32 v{P+4*s+i}, v{b+2*i}, v{b+2*i+1}")
    stamp(a, cfg, 10)
    nst = [0]
    def epi(Td):
        d = O + 16 * (Td % 3)
        r = []
        for e in range(2):
            o = OB + (2 * (Td % 2) + e) * 4
            for i in range(4): r.append(f"v_cvt_pk_bf16_f32 v{o+i}, v{d+8*e+2*i}, v{d+8*e+2*i+1}")
            r.append(("ds", f"ds_write_b128 v{vOL}, {vr(o)} offset:{L_OWN + Td*6144 + e*512}"))
            if not cfg.skip_ostore:
                nst[0] += 1
                n = nst[0]
                st = f"buffer_store_dwordx4 {vr(o)}, v{vOL}, s[{rWS}:{rWS+3}], s{sT0} offen"
                fpol = cfg.o_fast_pol if Td < cfg.plain_from else ""
                if fpol in ("sc1", "sc0 sc1"):
                    r.append(("blk", f"s_add_u32 s{sT0}, s{sOB}, {Td*6144 + e*512}\n{st} sc0 sc1"))
                else:
                    r.append(("blk", f"s_add_u32 s{sT0}, s{sOB}, {Td*6144 + e*512}\ns_cbranch_vccnz L_os{n}\n{st} sc0 sc1\ns_branch L_od{n}\nL_os{n}:\n{st} {fpol}\nL_od{n}:"))
        return r
    def emit(x):
        if isinstance(x, tuple):
            if x[0] == "ds": a.ds(x[1], "ow")
            else: a(x[1])
        else: a(x)
    fill = []
    for i in range(36):
        Td, s = divmod(i, 6)
        if cfg.fine and s == 0: a(f"s_memtime s[{28 + 2*Td}:{29 + 2*Td}]")
        if i % 2 == 0: a.wait_lg(("V", i), ("V", i + 1))
        a(mfma32(O + 16 * (Td % 3), VF + 4 * (i % 12), P + 4 * s, first=(s == 0)))
        if i + NV < 36: vread(i + NV)
        if Td >= 1 and s == 3: fill += epi(Td - 1)
        for _ in range(cfg.fill_pv):
            if fill: emit(fill.pop(0))
    if cfg.fine:
        a("s_memtime s[40:41]")
        a("s_waitcnt lgkmcnt(0)")
        for k in range(7): a(f"v_writelane_b32 v255, s{28 + 2*k}, {40 + k}")
    stamp(a, cfg, 11)
    for x in fill + epi(5): emit(x)
    stamp(a, cfg, 27)
    a.wait_lg_all()
    stamp(a, cfg, 12)
    a("s_barrier   ; O1")
    a.c("falls through into phase C")


def computeC(a, cfg):
    a.label("L_computeC")
    a.reset()
    if cfg.prio_c: a(f"s_setprio {cfg.prio_c}")
    ACC = 16
    def acc(T, t): return ACC + (T * 3 + t) * 4
    SETA = [76, 96]; SETB = [116, 128]
    vCA = [vCA0, vCA1]
    a(f"s_mul_i32 s{sT0}, s{sJQ}, 3072")
    a(f"v_add_u32 v{vCB[0]}, s{sT0}, v{vL16}")
    def reads(u):
        st = u & 1
        p = u >> 1
        hi, sl = divmod(p % 4, 2)
        so = sl * 20480 + (u & 1) * 10240
        if u < 6:
            vb, bo = vCB[0], L_OWN + u * 6144
        else:
            vb, bo = vCB[1], ((p - 3) % 3) * 12288 + (u & 1) * 6144
        R = []
        def ra(T):
            R.append((f"ds_read_b64_tr_b16 {vr(SETA[st]+4*T, 2)}, v{vCA[hi][T]} offset:{so}", ("A", u, T)))
            R.append((f"ds_read_b64_tr_b16 {vr(SETA[st]+4*T+2, 2)}, v{vCA[hi][T]} offset:{so+2560}", ("A", u, T)))
        ra(0)
        for t in range(3):
            R.append((f"ds_read_b128 {vr(SETB[st]+4*t)}, v{vb} offset:{bo + t*1024}", ("B", u, t)))
        for T in range(1, 5): ra(T)
        return R
    U = 76
    def cv(dst, d):
        return [f"v_cvt_pk_bf16_f32 v{dst}, v{d}, v{d+1}", f"v_cvt_pk_bf16_f32 v{dst+1}, v{d+2}, v{d+3}"]
    def unit(u):
        t, pi = divmod(u, 2)
        return cv(UR[u], acc(2 * pi, t)) + cv(UR[u] + 2, acc(2 * pi + 1, t))
    UR = [76, 96, 80, 100, 84, 104, 108, 112]
    tailcv = unit(0) + unit(2) + unit(4)
    stamp(a, cfg, 13)
    for ins, tag in reads(0): a.ds(ins, tag)
    a(f"v_add_u32 v{vCB[1]}, {L_OR}, v{vCB[0]}")
    for T in range(5): a(f"v_add_u32 v{vCA1[T]}, 40960, v{vCA0[T]}")
    for u in range(24):
        if u & 1 and u < 23:
            a.wait_lg_all()
            a(f"s_barrier   ; C{u >> 1}")
        R = reads(u + 1) if u < 23 else []
        st = u & 1
        m = 0
        for T in range(5):
            for t in range(3):
                if cfg.c_wait is None: a.wait_lg(("A", u, T), ("B", u, t))
                elif t == 0 and T in cfg.c_wait:
                    nxt = min([x for x in cfg.c_wait if x > T] + [5])
                    a.wait_lg(*[("A", u, x) for x in range(T, nxt)], *[("B", u, x) for x in range(3)])
                a(mfma(acc(T, t), SETA[st] + 4 * T, SETB[st] + 4 * t, first=(u == 0)))
                if m < len(R): a.ds(*R[m])
                if u == 23 and m >= 9:
                    for _ in range(2): a(tailcv.pop(0))
                m += 1
        if u == cfg.h1_flag_step:
            a.c("waves 0-2 publish their O tile once its stores have drained")
            stamp(a, cfg, 22)
            a(f"""
            s_cmp_eq_u32 s{sWAVE}, 3
            s_cbranch_scc1 L_f1done
            s_waitcnt vmcnt(0)
            s_mov_b64 exec, 15
            s_cmp_lg_u32 s{sFAST}, 0
            s_cbranch_scc1 L_f1fast
            buffer_store_dword v{vONE}, v{vF1}, s[{rWS}:{rWS+3}], 0 offen sc0 sc1
            s_branch L_f1ex
            """)
            a.label("L_f1fast")
            a(f"buffer_store_dword v{vONE}, v{vF1}, s[{rWS}:{rWS+3}], 0 offen")
            a.label("L_f1ex")
            a("s_mov_b64 exec, -1")
            a.label("L_f1done")
            stamp(a, cfg, 23)
        if u in (2, 3): stamp(a, cfg, 22 + u)
        if u in (5, 11, 17): stamp(a, cfg, 15 + (u - 5) // 6)
    stamp(a, cfg, 18)
    a.c("partials, 8 units per wave: 6 tile pairs, the odd tile of q tiles 0|1, the odd tile of q tile 2 (32 lanes)")
    a(f"s_lshr_b32 s{sT1}, s{sG}, 1")
    a(f"s_and_b32 s{sT2}, s{sG}, 1")
    for half in range(2):
        if half == 0:
            for x in unit(1) + unit(3): a(x)
        else:
            for x in unit(5) + cv(UR[6], acc(4, 0)) + cv(UR[6] + 2, acc(4, 1)) + cv(UR[7], acc(4, 2)): a(x)
            a(f"v_permlane32_swap_b32 v{UR[7]}, v{UR[7]+2}")
            a(f"v_permlane32_swap_b32 v{UR[7]+1}, v{UR[7]+3}")
        a(f"""
        s_cmp_lg_u32 s{sT1}, s{sWAVE}
        s_cbranch_scc1 L_rem{half}
        s_cmp_lg_u32 s{sT2}, {half}
        s_cbranch_scc1 L_rem{half}
        """)
        for k in range(4):
            a(f"ds_write_b128 v{vL16}, {vr(UR[4*half + k])} offset:{L_OWN + k*1024}")
        a(f"s_branch L_remdone{half}")
        a.label(f"L_rem{half}")
        for k in range(4):
            u = 4 * half + k
            if u == 7: a("s_mov_b32 exec_hi, 0")
            a(f"s_add_u32 s{sT0}, s{sPS}, {u*1024}")
            a(f"buffer_store_dwordx4 {vr(UR[u])}, v{vL16}, s[{rWS}:{rWS+3}], s{sT0} offen sc0 sc1")
            if u == 7: a("s_mov_b32 exec_hi, -1")
        a.label(f"L_remdone{half}")
    stamp(a, cfg, 19)
    a("s_waitcnt lgkmcnt(0)")
    if not cfg.pd_late: a("s_barrier   ; PD")
    if cfg.flag_line:
        for i in range(4): a(f"v_mov_b32 v{140+i}, 1")
    a("s_waitcnt vmcnt(0)")
    stamp(a, cfg, 20)
    if cfg.flag_line:
        a(f"""
        s_mov_b64 exec, 0xffff
        buffer_store_dwordx4 v[140:143], v{vF2}, s[{rWS}:{rWS+3}], 0 offen sc0 sc1
        s_mov_b64 exec, -1
        """)
    else:
        a(f"""
        s_mov_b64 exec, 3
        buffer_store_dword v{vONE}, v{vF2}, s[{rWS}:{rWS+3}], 0 offen sc0 sc1
        s_mov_b64 exec, -1
        """)
    if cfg.pd_late: a("s_barrier   ; PD")


def build(cfg, header=""):
    _lbl[0] = 0
    a = Asm()
    if header: a.raw(header.rstrip("\n"))
    a.raw(f"; @launch grid=(256,1,1) block=(512,1,1) lds={LDS_BYTES}")
    a.raw(DOC.rstrip("\n"))
    a.raw('.amdgcn_target "amdgcn-amd-amdhsa--gfx950"\n.text')
    prologue(a, cfg)
    loader(a, cfg)
    computeA(a, cfg)
    phaseB(a, cfg)
    computeC(a, cfg)
    a.label("L_fin")
    stamp(a, cfg, 21)
    if cfg.amp:
        w, ia, ib, A = cfg.amp
        a(f"""
        s_cmp_lg_u32 s{sWAVE}, {w}
        s_cbranch_scc1 L_noamp
        v_readlane_b32 s{sT0}, v255, {ia}
        v_readlane_b32 s{sT1}, v255, {ib}
        s_sub_u32 s{sT0}, s{sT1}, s{sT0}
        s_mul_i32 s{sT0}, s{sT0}, {A}
        s_memtime s[{sSTAMP}:{sSTAMP+1}]
        s_waitcnt lgkmcnt(0)
        s_add_u32 s{sT0}, s{sT0}, s{sSTAMP}
        """)
        a.label("L_amp")
        a(f"""
        s_memtime s[{sSTAMP}:{sSTAMP+1}]
        s_waitcnt lgkmcnt(0)
        s_sub_u32 s{sT1}, s{sSTAMP}, s{sT0}
        s_cmp_lt_i32 s{sT1}, 0
        s_cbranch_scc1 L_amp
        """)
        a.label("L_noamp")
    elif cfg.stamps:
        stamp_flush(a, cfg)
    a.label("L_end")
    a("s_endpgm")
    a.raw(kernel_desc(KN))
    return a.text()


def make(**kw):
    cfg = Cfg()
    for k, v in kw.items():
        assert hasattr(cfg, k), k
        setattr(cfg, k, v)
    header = open("cdna_kernels/" + NAME + ".s.ref").read().split("; Override launch")[0]
    return build(cfg, header)


if __name__ == "__main__":
    kw = {}
    for kv in sys.argv[2:]:
        k, v = kv.split("=", 1)
        kw[k] = eval(v)
    open(sys.argv[1], "w").write(make(**kw))
```
